```python
import torch

def _softmax(x, axis=-1):
    return torch.softmax(x, dim=axis)
def _gelu(x):
    return torch.nn.functional.gelu(x, approximate="tanh")
def _silu(x):
    return torch.nn.functional.silu(x)
def _sigmoid(x):
    return torch.sigmoid(x)
def _layernorm(x, axis=-1, eps=1e-5):
    m = x.mean(dim=axis, keepdim=True)
    v = x.var(dim=axis, keepdim=True, unbiased=False)
    return (x - m) / torch.sqrt(v + eps)
def _scatter_add(tgt, idx, src, axis=0):
    return tgt.clone().index_add_(axis, idx, src)
def _segment_sum(src, seg, n):
    out = torch.zeros((n,) + src.shape[1:], dtype=src.dtype)
    return out.index_add_(0, seg, src)
def _pad(x, pw):
    flat = tuple(v for pair in reversed(pw) for v in pair)
    return torch.nn.functional.pad(x, flat)

kernel_name = 'parallel_sum__compressed_kv_cla__swiglu_ffn__prompt'

def setup_inputs():

    _w = (lambda a: (lambda t: t.to(torch.bfloat16) if t.is_floating_point() else t)(torch.as_tensor(a)))
    def _A_setup():
        B, H, Sq, Sk, D, M = 1, 32, 2048, 2048, 128, 512
        Dc = 4 * D
        return {
            "x": _w((lambda *s: torch.randn(*s, dtype=torch.bfloat16) * 0.05)(B, Sq, M)),
            "c_kv": _w((lambda *s: torch.randn(*s, dtype=torch.bfloat16) * 1.6)(B, Sk, Dc)),
            "w_q": _w((lambda *s: torch.randn(*s, dtype=torch.bfloat16) * 0.8)(M, H, D) * (M ** -0.5)),
            "w_uk": _w((lambda *s: torch.randn(*s, dtype=torch.bfloat16) * 0.8)(Dc, H, D) * (Dc ** -0.5)),
            "w_uv": _w((lambda *s: torch.randn(*s, dtype=torch.bfloat16) * 1.6)(Dc, H, D) * (Dc ** -0.5)),
            "w_o": _w((lambda *s: torch.randn(*s, dtype=torch.bfloat16) * 1.6)(H, D, M) * ((H * D) ** -0.5)),
        }
    _A_in = _A_setup()

    def _B_setup():
        B, S, D, F = 1, 2048, 512, 1792
        return {
            "x": _w((lambda *s: torch.randn(*s, dtype=torch.bfloat16) * 0.05)(B, S, D)),
            "w_gate": _w((lambda *s: torch.randn(*s, dtype=torch.bfloat16) * 0.05)(D, F)),
            "w_up": _w((lambda *s: torch.randn(*s, dtype=torch.bfloat16) * 0.05)(D, F)),
            "w_down": _w((lambda *s: torch.randn(*s, dtype=torch.bfloat16) * 0.05)(F, D)),
        }
    _B_in = _B_setup()

    return {
        "A_x": _A_in["x"],
        "A_c_kv": _A_in["c_kv"],
        "A_w_q": _A_in["w_q"],
        "A_w_uk": _A_in["w_uk"],
        "A_w_uv": _A_in["w_uv"],
        "A_w_o": _A_in["w_o"],
        "B_x": _B_in["x"],
        "B_w_gate": _B_in["w_gate"],
        "B_w_up": _B_in["w_up"],
        "B_w_down": _B_in["w_down"],
    }

def reference(A_x, A_c_kv, A_w_q, A_w_uk, A_w_uv, A_w_o, B_x, B_w_gate, B_w_up, B_w_down):
    def _A_ref(x, c_kv, w_q, w_uk, w_uv, w_o):
        B, Sq, M = x.shape[0], x.shape[1], x.shape[2]
        Sk = c_kv.shape[1]
        H, D = w_q.shape[1], w_q.shape[2]
        q = torch.einsum("bqm,mhd->bhqd", x, w_q)
        k = torch.einsum("bkc,chd->bhkd", c_kv, w_uk)
        v = torch.einsum("bkc,chd->bhkd", c_kv, w_uv)
        scores = torch.einsum("bhqd,bhkd->bhqk", q, k) * (D ** -0.5)
        off = Sk - Sq
        qi = torch.arange(Sq)[:, None]
        kj = torch.arange(Sk)[None, :]
        cmask = kj <= (qi + off)
        scores = torch.where(cmask[None, None], scores, -1e9)
        p = _softmax(scores, axis=-1)
        ctx = torch.einsum("bhqk,bhkd->bhqd", p, v)
        return torch.einsum("bhqd,hdm->bqm", ctx, w_o)

    def _B_ref(x, w_gate, w_up, w_down):
        g = _silu(x @ w_gate)
        u = x @ w_up
        return (g * u) @ w_down

    x = A_x
    xn = _layernorm(x, axis=-1)
    return x + _A_ref(xn, A_c_kv, A_w_q, A_w_uk, A_w_uv, A_w_o) + _B_ref(xn, B_w_gate, B_w_up, B_w_down)
```

```python
import re

_RE_RANGE = re.compile(r"^([vas])\[(\d+):(\d+)\]$")
_RE_ONE = re.compile(r"^([vas])(\d+)$")

def regs_of(tok):
    t = tok.strip()
    if t.startswith("-"): t = t[1:]
    if t.startswith("abs(") and t.endswith(")"): t = t[4:-1]
    if t.startswith("|") and t.endswith("|"): t = t[1:-1]
    m = _RE_RANGE.match(t)
    if m: return [(m.group(1), i) for i in range(int(m.group(2)), int(m.group(3)) + 1)]
    m = _RE_ONE.match(t)
    if m: return [(m.group(1), int(m.group(2)))]
    if t == "vcc": return [("s", 106), ("s", 107)]
    if t == "vcc_lo": return [("s", 106)]
    if t == "vcc_hi": return [("s", 107)]
    if t == "exec": return [("s", 126), ("s", 127)]
    if t == "m0": return [("s", 124)]
    return []

def split_ops(s):
    ops, depth, cur = [], 0, ""
    for ch in s:
        if ch in "[(": depth += 1
        if ch in "])": depth -= 1
        if ch == "," and depth == 0:
            ops.append(cur.strip()); cur = ""
        else:
            cur += ch
    if cur.strip(): ops.append(cur.strip())
    mods = []
    if ops:
        parts = ops[-1].split()
        ops[-1] = parts[0]; mods = parts[1:]
    return ops, mods

TRANS = ("v_exp_f32", "v_log_f32", "v_rcp_f32", "v_rsq_f32", "v_sqrt_f32", "v_sin_f32", "v_cos_f32")
NODST_S = ("s_cmp", "s_cbranch", "s_branch", "s_waitcnt", "s_barrier", "s_nop", "s_endpgm", "s_setprio", "s_sleep", "s_bitcmp", "s_setreg")

class Inst:
    __slots__ = ("text", "mn", "ops", "mods", "defs", "uses", "kind", "note", "label", "passes", "idx")
    def __init__(self, text, note=None):
        self.text = text; self.note = note; self.label = None; self.passes = 0
        body = text.split(";")[0].strip()
        sp = body.split(None, 1)
        self.mn = mn = sp[0]
        ops, mods = split_ops(sp[1]) if len(sp) > 1 else ([], [])
        self.ops, self.mods = ops, mods
        d, u = [], []
        R = [regs_of(o) for o in ops]
        if mn.startswith("v_mfma"):
            self.kind = "mfma"; d = R[0]; u = R[1] + R[2] + R[3]
            self.passes = 8 if "32x32" in mn else 4
        elif mn.startswith("v_cmp"):
            self.kind = "valu"; d = R[0]; u = sum(R[1:], [])
            if mn.startswith("v_cmpx"): d = d + regs_of("exec")
        elif mn.startswith("v_permlane") and "swap" in mn:
            self.kind = "valu"; d = R[0] + R[1]; u = R[0] + R[1]
        elif mn.startswith("v_"):
            self.kind = "valu"; d = R[0]; u = sum(R[1:], [])
            if mn.startswith(("v_fmac", "v_dot2c", "v_pk_fmac", "v_writelane")): u = u + R[0]
            if mn.startswith(("v_add_co", "v_sub_co", "v_addc_co", "v_subb_co")):
                d = R[0] + R[1]; u = sum(R[2:], [])
            if "dpp" in mn or any(m.startswith(("row_", "quad_perm", "wave_")) for m in mods): u = u + R[0]
        elif mn.startswith("ds_read") or mn.startswith(("ds_bpermute", "ds_permute", "ds_swizzle")):
            self.kind = "ds"; d = R[0]; u = sum(R[1:], [])
        elif mn.startswith("ds_"):
            self.kind = "ds"; u = sum(R, [])
        elif mn.startswith("buffer_load") or mn.startswith("global_load"):
            self.kind = "vmem"
            if "lds" in mods or "_lds_" in mn:
                u = sum(R, []) + regs_of("m0")
            else:
                d = R[0]; u = sum(R[1:], [])
        elif mn.startswith(("buffer_store", "global_store")):
            self.kind = "vmem"; u = sum(R, [])
        elif mn.startswith(("buffer_atomic", "global_atomic")):
            self.kind = "vmem"; u = sum(R, [])
            if "sc0" in mods: d = R[0]
        elif mn.startswith(("buffer_inv", "buffer_wbl2")):
            self.kind = "vmem"
        elif mn.startswith(("s_load", "s_memtime", "s_memrealtime", "s_buffer_load")):
            self.kind = "smem"; d = R[0]; u = sum(R[1:], [])
        elif mn.startswith("s_"):
            self.kind = "salu"
            if mn.startswith(NODST_S):
                u = sum(R, [])
            else:
                d = R[0]; u = sum(R[1:], [])
                if "saveexec" in mn: d = d + regs_of("exec"); u = u + regs_of("exec")
            if mn in ("s_cbranch_vccz", "s_cbranch_vccnz"): u = regs_of("vcc")
        else:
            raise ValueError("unknown instruction: " + text)
        self.defs, self.uses = d, u

class Prog:
    def __init__(self):
        self.items = []
        self.lq = []
        self.vq = []
        self.nlab = 0
        self.auto = True
        self.nvm = 0
    def raw(self, s): self.items.append(("raw", s))
    def label(self, name): self.items.append(("label", name))
    def newlabel(self, p="L"):
        self.nlab += 1; return "%s_%d" % (p, self.nlab)
    def _emit(self, ins): self.items.append(ins)
    def __call__(self, text, note=None, tag=None):
        out = None
        for l in text.strip("\n").split("\n"):
            l = l.strip()
            if not l or l.startswith(";"): continue
            out = self.one(l, note, tag)
        return out
    def one(self, text, note=None, tag=None):
        ins = Inst(text, note)
        if ins.mn == "s_waitcnt":
            self._apply_wait(text); self._emit(ins); return None
        touched = set(ins.defs) | set(ins.uses)
        if self.auto:
            nl = self._need(self.lq, touched); nv = self._need(self.vq, touched)
            if nl is not None and any(e["smem"] for e in self.lq): nl = 0
            self.wait(vm=nv, lgkm=nl)
        self._emit(ins)
        tok = None
        if ins.kind == "ds" or ins.kind == "smem":
            tok = dict(regs=set(ins.defs), tag=tag, smem=(ins.kind == "smem"), text=text); self.lq.append(tok)
        elif ins.kind == "vmem":
            tok = dict(regs=set(ins.defs), tag=tag, smem=False, text=text); self.vq.append(tok); self.nvm += 1
        return tok
    def _need(self, q, touched):
        last = -1
        for i, e in enumerate(q):
            if e["regs"] & touched: last = i
        return None if last < 0 else len(q) - 1 - last
    def _apply_wait(self, text):
        m = re.search(r"vmcnt\((\d+)\)", text)
        if m:
            n = int(m.group(1)); self.vq = self.vq[len(self.vq) - n:] if n < len(self.vq) else self.vq
            if n == 0: self.vq = []
        m = re.search(r"lgkmcnt\((\d+)\)", text)
        if m:
            n = int(m.group(1)); self.lq = self.lq[len(self.lq) - n:] if n < len(self.lq) else self.lq
            if n == 0: self.lq = []
    def wait(self, vm=None, lgkm=None):
        parts = []
        if vm is not None and vm < len(self.vq): parts.append("vmcnt(%d)" % min(vm, 63))
        if lgkm is not None and lgkm < len(self.lq): parts.append("lgkmcnt(%d)" % min(lgkm, 15))
        if parts:
            t = "s_waitcnt " + " ".join(parts)
            self._apply_wait(t); self._emit(Inst(t))
    def wait_tok(self, toks):
        if not isinstance(toks, (list, tuple)): toks = [toks]
        nv = nl = None
        for t in toks:
            for i, e in enumerate(self.vq):
                if e is t: n = len(self.vq) - 1 - i; nv = n if nv is None else min(nv, n)
            for i, e in enumerate(self.lq):
                if e is t: n = len(self.lq) - 1 - i; nl = n if nl is None else min(nl, n)
        self.wait(vm=nv, lgkm=nl)
    def sig(self):
        return ([e["text"] for e in self.lq], [e["text"] for e in self.vq])
    def nop(self, n):
        while n > 0:
            k = min(n, 16); self("s_nop %d" % (k - 1)); n -= k
    def text(self):
        out = []
        for it in self.items:
            if isinstance(it, Inst): out.append("    " + it.text + (("   ; " + it.note) if it.note else ""))
            elif it[0] == "label": out.append(it[1] + ":")
            else: out.append(it[1])
        return "\n".join(out) + "\n"

M32 = 0xFFFFFFFF
def _val(tok, S):
    r = regs_of(tok)
    if r:
        if r[0][0] != "s": return None
        return S.get(r[0][1])
    try:
        return int(tok, 0) & M32
    except ValueError:
        try:
            import struct
            return struct.unpack("<I", struct.pack("<f", float(tok)))[0]
        except ValueError:
            return None

def trace(prog, entry, wg, wave, vcc_taken=lambda ins, n: False, maxn=2000000):
    items = prog.items
    labels = {it[1]: i for i, it in enumerate(items) if not isinstance(it, Inst) and it[0] == "label"}
    pc = labels[entry]; S = {2: wg}; scc = None; out = []; nv = 0
    while True:
        it = items[pc]; pc += 1
        if not isinstance(it, Inst): continue
        out.append(it)
        if len(out) > maxn: raise RuntimeError("trace too long")
        mn, ops = it.mn, it.ops
        if mn == "s_endpgm": return out
        if it.kind == "salu":
            if mn == "s_branch": pc = labels[ops[0]]; continue
            if mn in ("s_cbranch_scc0", "s_cbranch_scc1"):
                assert scc is not None, "unknown scc at " + it.text
                if scc == (1 if mn.endswith("1") else 0): pc = labels[ops[0]]
                continue
            if mn in ("s_cbranch_vccnz", "s_cbranch_vccz", "s_cbranch_execz", "s_cbranch_execnz"):
                nv += 1
                if it.note == "go" or vcc_taken(it, nv): pc = labels[ops[0]]
                continue
            if mn.startswith("s_cmp"):
                if mn.endswith("u64"): scc = int(vcc_taken(it, -1)) if mn == "s_cmp_lg_u64" else None; continue
                a, b = _val(ops[0], S), _val(ops[1], S)
                if a is None or b is None: scc = None; continue
                if mn.endswith("i32"):
                    a = a - (1 << 32) if a >> 31 else a; b = b - (1 << 32) if b >> 31 else b
                c = mn.split("_")[2]
                scc = int({"eq": a == b, "lg": a != b, "lt": a < b, "le": a <= b, "gt": a > b, "ge": a >= b}[c]); continue
            if mn == "s_bitcmp1_b32":
                a, b = _val(ops[0], S), _val(ops[1], S); scc = None if a is None else (a >> b) & 1; continue
            if mn.startswith(NODST_S): continue
            dst = regs_of(ops[0])
            if "b64" in mn or len(dst) != 1:
                for r in it.defs: S.pop(r[1], None)
                if mn == "s_mov_b64":
                    src = regs_of(ops[1])
                    if len(src) == 2:
                        for dd, ss in zip(dst, src):
                            if ss[1] in S: S[dd[1]] = S[ss[1]]
                scc = None if mn not in ("s_mov_b64", "s_getpc_b64") else scc
                continue
            a = _val(ops[1], S) if len(ops) > 1 else None
            b = _val(ops[2], S) if len(ops) > 2 else None
            res = None
            if mn in ("s_mov_b32", "s_movk_i32"): res = a
            elif mn == "s_cselect_b32":
                res = None if scc is None else (a if scc else b)
            elif a is not None and b is not None:
                if mn in ("s_add_u32", "s_add_i32"): res = (a + b) & M32; scc = int(a + b > M32)
                elif mn in ("s_sub_u32", "s_sub_i32"): res = (a - b) & M32; scc = int(b > a)
                elif mn == "s_mul_i32": res = (a * b) & M32
                elif mn == "s_lshl_b32": res = (a << (b & 31)) & M32; scc = int(res != 0)
                elif mn == "s_lshr_b32": res = a >> (b & 31); scc = int(res != 0)
                elif mn == "s_and_b32": res = a & b; scc = int(res != 0)
                elif mn == "s_or_b32": res = a | b; scc = int(res != 0)
                elif mn == "s_xor_b32": res = a ^ b; scc = int(res != 0)
                elif mn == "s_min_u32": res = min(a, b); scc = int(a < b)
                elif mn == "s_max_u32": res = max(a, b); scc = int(a > b)
                else: scc = None
            else:
                if mn != "s_mul_i32": scc = None
            if res is None: S.pop(dst[0][1], None)
            else: S[dst[0][1]] = res
        else:
            for r in it.defs:
                if r[0] == "s": S.pop(r[1], None)
            if mn == "v_readfirstlane_b32" and it.note and it.note.startswith("=wave"):
                S[regs_of(ops[0])[0][1]] = wave
            if mn == "v_readfirstlane_b32" and it.note and it.note.startswith("=val"):
                S[regs_of(ops[0])[0][1]] = int(it.note.split()[1])
            if mn == "v_readfirstlane_b32" and it.note and it.note.startswith("=one"):
                S[regs_of(ops[0])[0][1]] = 1

def check_trace(tr, name=""):
    probs = []
    lq, vq = [], []
    pos = 0
    lastw = {}
    mfw = {}
    mfc = {}
    stw = {}
    salu_m0 = -100
    for it in tr:
        mn = it.mn
        dist = lambda p: pos - p - 1
        touched = set(it.defs) | set(it.uses)
        if mn == "s_waitcnt":
            m = re.search(r"vmcnt\((\d+)\)", it.text)
            if m:
                n = int(m.group(1)); vq = vq[len(vq) - n:] if 0 < n < len(vq) else ([] if n == 0 else vq)
            m = re.search(r"lgkmcnt\((\d+)\)", it.text)
            if m:
                n = int(m.group(1))
                if n == 0: lq = []
                elif not any(e[1] for e in lq): lq = lq[len(lq) - n:] if n < len(lq) else lq
        else:
            for q, nm in ((lq, "lgkm"), (vq, "vm")):
                for e in q:
                    if (e[0] & touched) and it.note != "diag" and it.text != e[2] and not (it.kind == "vmem" and it.defs == [("v", 124)] and e[0] == {("v", 124)}):
                        probs.append("%s: %s-wait missing: [%s] touches dest of [%s]" % (name, nm, it.text, e[2]))
        def need(n, p, why):
            if dist(p[0]) < n:
                probs.append("%s: hazard %s need %d got %d: [%s] -> [%s]" % (name, why, n, dist(p[0]), p[1].text, it.text))
        if it.kind == "mfma":
            R = [regs_of(o) for o in it.ops]
            for r in it.uses:
                if r in lastw: need(2, lastw[r], "VALU->MFMA")
            for r in R[1] + R[2]:
                if r in mfw: need(12 if mfw[r][1].passes == 8 else 8, mfw[r], "MFMA D->A/B")
            for r in R[3]:
                if r in mfw:
                    p = mfw[r]
                    same = regs_of(p[1].ops[0]) == R[3] and p[1].passes == it.passes
                    if not same: need(10 if p[1].passes == 8 else 6, p, "MFMA D->C overlap")
            for r in R[0]:
                if r in mfw and regs_of(mfw[r][1].ops[0]) != R[3]:
                    need(10 if mfw[r][1].passes == 8 else 6, mfw[r], "MFMA D->D WAW")
            ex = ("s", 126)
            if ex in lastw: need(4, lastw[ex], "EXEC->MFMA")
        elif it.kind in ("valu", "vmem", "ds"):
            for r in touched:
                if r in mfw: need(12 if mfw[r][1].passes == 8 else 8, mfw[r], "MFMA D->VALU/mem")
            if it.kind == "valu":
                for r in it.defs:
                    if r in mfc: need(7 if mfc[r][1].passes == 8 else 3, mfc[r], "MFMA C WAR")
                    if r in stw: need(2, stw[r], "store data WAR")
                for r in it.uses:
                    if r in lastw:
                        p = lastw[r]
                        if r[0] == "s": need(2, p, "VALU sgpr->VALU")
                        if p[1].mn.startswith(TRANS) and not mn.startswith(TRANS) and r[0] != "s": need(1, p, "trans")
                        if mn.startswith("v_permlane"): need(2, p, "VALU->permlane")
                        if mn.startswith(("v_readlane", "v_readfirstlane")): need(1, p, "VALU->readlane")
                        if "dpp" in mn or any(m.startswith(("row_", "quad_perm", "wave_")) for m in it.mods): need(2, p, "VALU->DPP")
            else:
                for r in it.uses:
                    if r[0] == "s" and r in lastw: need(5, lastw[r], "VALU sgpr->VMEM")
                    if r[0] != "s" and r in lastw and lastw[r][1].mn.startswith(TRANS): need(1, lastw[r], "trans->mem")
                if ("s", 124) in it.uses and pos - salu_m0 - 1 < 1:
                    probs.append("%s: hazard m0->lds dma [%s]" % (name, it.text))
                for r in it.defs:
                    if r in stw: need(1, stw[r], "store data WAR(load)")
        elif it.kind == "salu":
            for r in it.uses:
                if r in lastw and r[0] == "s" and not mn.startswith("s_cbranch"): need(1, lastw[r], "VALU sgpr->SALU(soft)")
        if it.kind == "valu":
            for r in it.defs: lastw[r] = (pos, it); mfw.pop(r, None)
        elif it.kind == "mfma":
            for r in it.defs: mfw[r] = (pos, it); lastw.pop(r, None)
            for r in regs_of(it.ops[3]): mfc[r] = (pos, it)
        elif it.kind in ("salu", "smem"):
            for r in it.defs:
                lastw.pop(r, None)
                if r == ("s", 124): salu_m0 = pos
        else:
            for r in it.defs: lastw.pop(r, None); mfw.pop(r, None)
            if "store" in mn and ("x4" in mn or "x3" in mn):
                data = regs_of(it.ops[0]) if mn.startswith("buffer") else regs_of(it.ops[1])
                for r in data: stw[r] = (pos, it)
        if it.kind in ("ds", "smem"): lq.append((set(it.defs), it.kind == "smem", it.text))
        if it.kind == "vmem":
            vq.append((set(it.defs), False, it.text))
            if len(vq) > 63: probs.append("%s: more than 63 vm outstanding at [%s]" % (name, it.text))
        if mn == "s_nop": pos += int(it.ops[0], 0) + 1
        else: pos += 1
    return probs

def kernel_begin(a, name):
    a.raw(".globl %s" % name); a.raw(".p2align 8"); a.raw(".type %s,@function" % name); a.label(name)
    a.lq = []; a.vq = []

def kernel_desc(name, nfv, accum, sgpr=102):
    return "\n".join([".p2align 6", ".amdhsa_kernel %s" % name,
        "  .amdhsa_next_free_vgpr %d" % nfv, "  .amdhsa_next_free_sgpr %d" % sgpr,
        "  .amdhsa_accum_offset %d" % accum, "  .amdhsa_group_segment_fixed_size 0",
        "  .amdhsa_kernarg_size 104", "  .amdhsa_user_sgpr_count 2",
        "  .amdhsa_user_sgpr_kernarg_segment_ptr 1", "  .amdhsa_system_sgpr_workgroup_id_x 1",
        ".end_amdhsa_kernel"])

def srd(a, d, base, nbytes):
    a("s_mov_b32 s%d, s%d" % (d, base))
    a("s_and_b32 s%d, s%d, 0xffff" % (d + 1, base + 1))
    a("s_mov_b32 s%d, 0x%x" % (d + 2, nbytes))
    a("s_mov_b32 s%d, 0x00020000" % (d + 3))

def vr(base, n=4, f="v"): return "%s[%d:%d]" % (f, base, base + n - 1)
```

```python
import sys
from fw import *

NAME = "parallel_sum__compressed_kv_cla__swiglu_ffn__prompt"
WS_XN = 0x0000000
WS_K = 0x0200000
WS_V = 0x1200000
WS_CH = 0x2200000
WS_PART = 0x4000000
WS_FLAG = 0x5000000
WS_BYTES = 0x10000000
MF = "v_mfma_f32_32x32x16_bf16"

def emit_tagged(p, toks, text, tag):
    if tag is not None and tag.startswith("m0:"):
        p.m0own = tag[3:]; p(text); return
    if text.endswith(" lds"):
        assert getattr(p, "m0own", None) == tag, ("m0 owner mismatch", text, tag, p.m0own)
    t = p(text)
    if tag is not None: toks.setdefault(tag, []).append(t)

class Slots:
    def __init__(self): self.s = []
    def add(self, mfma): self.s.append(dict(m=mfma, pre=[], f=[])); return len(self.s) - 1
    def put(self, slot, text, tag=None):
        slot = max(0, min(slot, len(self.s) - 1)); self.s[slot]["f"].append((text, tag))
    def spread(self, start, items, per=2, end=None):
        k = 0
        for it in items:
            sl = start + k // per
            if end is not None: sl = min(sl, end)
            if isinstance(it, tuple): self.put(sl, it[0], it[1])
            else: self.put(sl, it)
            k += 1
        return start + (k + per - 1) // per
    def emit(self, p, toks):
        for sl in self.s:
            for it in sl["pre"]: it(p)
            p(sl["m"])
            for text, tag in sl["f"]:
                if callable(text): text(p)
                else: emit_tagged(p, toks, text, tag)

STAMP = False
OPT = {}
def stamp(p, i):
    if not STAMP: return
    p("s_memtime s[100:101]"); p("s_waitcnt lgkmcnt(0)"); p("s_mov_b32 s%d, s100" % (64 + i))
def stamp_flush(p, n, srdws, swave, vtmp):
    if not STAMP: return
    p("s_lshl_b32 s100, s2, 3"); p("s_add_u32 s100, s100, s%d" % swave); p("s_lshl_b32 s100, s100, 8"); p("s_add_u32 s100, s100, 0x6000000")
    p("v_mov_b32 v%d, 0" % (vtmp + 1))
    for i in range(n):
        p("v_mov_b32 v%d, s%d" % (vtmp, 64 + i))
        p("buffer_store_dword v%d, v%d, s[%d:%d], s100 offen offset:%d" % (vtmp, vtmp + 1, srdws, srdws + 3, 4 * i))
        p("s_waitcnt vmcnt(0)")

def lane_setup(p, vlane, vwave_s):
    p("v_lshrrev_b32 v1, 6, v0")
    p("v_and_b32 v%d, 63, v0" % vlane)
    p("v_readfirstlane_b32 s%d, v1" % vwave_s, note="=wave")

def wave_sum(p, v):
    for sh in (1, 2, 4, 8):
        p("s_nop 1")
        p("v_add_f32_dpp v%d, v%d, v%d row_shr:%d row_mask:0xf bank_mask:0xf bound_ctrl:0" % (v, v, v, sh))
    p("s_nop 1"); p("v_add_f32_dpp v%d, v%d, v%d row_bcast:15 row_mask:0xa bank_mask:0xf" % (v, v, v))
    p("s_nop 1"); p("v_add_f32_dpp v%d, v%d, v%d row_bcast:31 row_mask:0xc bank_mask:0xf" % (v, v, v))

def slab_engine(p, toks, items, nslab, mfma_fn, wread_fn, wdma_fn, prev, minbar=None, LA=5, FR=8, FRB=64, hooks=None, pre_issued=4, bstep=16):
    S = Slots()
    seq = []
    for (sl, blocks) in items:
        for a in range(4):
            for b in blocks:
                seq.append((sl, a, b))
    n = len(seq)
    minbar = minbar or {}
    for i, (sl, a, b) in enumerate(seq):
        S.add(mfma_fn(sl, a, b, FRB + 4 * (i % FR)))
    first_read = {}; last_use = {}
    prolog_reads = []
    for i, (sl, a, b) in enumerate(seq):
        rs = i - LA
        for t in wread_fn(sl, a, b, FRB + 4 * (i % FR)):
            if rs < 0: prolog_reads.append(t)
            else: S.put(rs, t)
        first_read.setdefault(sl, rs)
        last_use[sl] = i
    bpos = list(range(8, n, bstep))
    waited = set(s for s in first_read if first_read[s] < bpos[0])
    init_need = sorted(waited)
    issued = set(range(pre_issued))
    for bi, bp in enumerate(bpos):
        nxt = bpos[bi + 1] if bi + 1 < len(bpos) else n + 100
        need = [s for s in first_read if s not in waited and first_read[s] < nxt]
        for s in need: assert s in issued, ("slab %d needed at barrier %d but not issued" % (s, bp))
        waited |= set(need)
        new = [s for s in range(nslab) if s not in issued and (prev[s] is None or last_use[prev[s]] < bp) and minbar.get(s, 0) <= bp]
        new = new[:2]
        def mk(need=need):
            def f(p):
                p.wait_tok(sum([toks["W%d" % s] for s in need], []))
                p("s_barrier")
                if hooks: hooks(p)
            return f
        if need or new:
            S.s[bp]["pre"].append(mk())
        k = 0
        for s in new:
            issued.add(s)
            for it in wdma_fn(s):
                S.put(bp + k // 2, it[0], it[1]); k += 1
        S.s[bp]["dma_end"] = bp + (k + 1) // 2
    assert len(issued) == nslab
    return S, seq, prolog_reads, init_need

def gen_kv(p):
    name = "kv_kernel"
    kernel_begin(p, name)
    p("s_cmp_ge_u32 s2, 256"); p("s_cbranch_scc1 KV_END")
    p("s_load_dwordx4 s[4:7], s[0:1], 0")
    p("s_load_dwordx4 s[8:11], s[0:1], 24")
    p("s_load_dwordx2 s[12:13], s[0:1], 96")
    VL = 112
    stamp(p, 0)
    lane_setup(p, VL, 32)
    p("s_and_b32 s33, s2, 1"); p("s_lshl_b32 s33, s33, 2"); p("s_lshr_b32 s34, s2, 3"); p("s_and_b32 s35, s34, 3")
    p("s_add_u32 s33, s33, s35")
    p("s_lshr_b32 s35, s2, 1"); p("s_and_b32 s35, s35, 3"); p("s_lshl_b32 s35, s35, 3"); p("s_lshr_b32 s34, s34, 2")
    p("s_add_u32 s34, s34, s35")
    p("s_lshl_b32 s35, s33, 3"); p("s_add_u32 s35, s35, s32")
    VWA, VTA, VDW, VDT, VL16 = 113, 117, 121, 123, 127
    T0, T1, T2 = 96, 97, 98
    p("v_lshlrev_b32 v%d, 4, v%d" % (VL16, VL))
    p("v_bfe_u32 v%d, v%d, 2, 2" % (T0, VL))
    p("v_lshrrev_b32 v%d, 5, v%d" % (T1, VL))
    p("v_lshl_add_u32 v%d, v%d, 3, v%d" % (T1, T1, T0))
    p("v_lshlrev_b32 v%d, 8, v%d" % (T1, T1))
    p("v_bfe_u32 v%d, v%d, 4, 1" % (T2, VL)); p("v_lshl_add_u32 v%d, v%d, 5, v%d" % (T1, T2, T1))
    p("v_and_b32 v%d, 3, v%d" % (T2, VL)); p("v_lshl_add_u32 v%d, v%d, 3, v%d" % (T1, T2, T1))
    for b in range(4):
        p("v_xor_b32 v%d, %d, v%d" % (T2, b, T0)); p("v_lshl_add_u32 v%d, v%d, 6, v%d" % (VWA + b, T2, T1))
    p("v_lshrrev_b32 v%d, 4, v%d" % (T0, VL)); p("v_lshlrev_b32 v%d, 2, v%d" % (T1, T0))
    p("v_and_b32 v%d, 15, v%d" % (T2, VL)); p("v_xor_b32 v%d, v%d, v%d" % (T1, T1, T2)); p("v_lshlrev_b32 v%d, 4, v%d" % (T1, T1))
    p("v_lshl_add_u32 v%d, v%d, 13, v%d" % (VDW, T0, T1))
    p("s_lshl_b32 s36, s32, 16"); p("v_add_u32 v%d, s36, v%d" % (VDW, VDW))
    p("v_add_u32 v%d, %d, v%d" % (VDW + 1, 4 * 8192 - 1024, VDW))
    p("v_lshrrev_b32 v%d, 3, v%d" % (T0, VL)); p("v_lshlrev_b32 v%d, 10, v%d" % (T0, T0))
    p("s_lshl_b32 s36, s35, 15"); p("v_add_u32 v%d, s36, v%d" % (T0, T0))
    p("v_lshrrev_b32 v%d, 4, v%d" % (T1, VL)); p("v_and_b32 v%d, 7, v%d" % (T2, VL)); p("v_xor_b32 v%d, v%d, v%d" % (T1, T1, T2))
    for q in range(4):
        p("v_xor_b32 v%d, %d, v%d" % (T2, 4 * (q & 1), T1)); p("v_lshl_add_u32 v%d, v%d, 4, v%d" % (VDT + q, T2, T0))
        if q: p("v_add_u32 v%d, %d, v%d" % (VDT + q, q * 8192 - q * 1024, VDT + q))
    p("v_and_b32 v%d, 31, v%d" % (T0, VL)); p("v_bfe_u32 v%d, v%d, 1, 3" % (T1, VL)); p("v_lshrrev_b32 v%d, 5, v%d" % (T2, VL))
    p("v_xor_b32 v%d, v%d, v%d" % (T1, T1, T2)); p("v_lshlrev_b32 v%d, 4, v%d" % (T1, T1)); p("v_lshl_add_u32 v%d, v%d, 7, v%d" % (T0, T0, T1))
    p("s_lshl_b32 s37, s32, 12"); p("s_add_u32 s37, s37, 65536")
    for a in range(4):
        p("v_xor_b32 v%d, %d, v%d" % (T1, 32 * a, T0)); p("v_add_u32 v%d, s37, v%d" % (VTA + a, T1))
    p("s_lshl_b32 s38, s32, 11")
    p("s_waitcnt lgkmcnt(0)")
    srd(p, 16, 6, 2097152); srd(p, 24, 12, WS_BYTES); srd(p, 28, 4, 2097152)
    p("s_cmp_ge_u32 s34, 16")
    p("s_cselect_b32 s20, s10, s8"); p("s_cselect_b32 s21, s11, s9"); p("s_and_b32 s21, s21, 0xffff")
    p("s_mov_b32 s22, 4194304"); p("s_mov_b32 s23, 0x00020000")
    p("s_cmp_ge_u32 s34, 16")
    p("s_mov_b32 s40, 0x%x" % WS_K); p("s_cselect_b32 s40, 0x%x, s40" % WS_V)
    p("s_and_b32 s39, s34, 15")
    p("s_lshl_b32 s41, s39, 20"); p("s_add_u32 s40, s40, s41")
    p("s_lshl_b32 s41, s35, 13"); p("s_add_u32 s40, s40, s41")
    p("s_lshl_b32 s39, s39, 9")
    toks = {}
    stamp(p, 20)
    XR = 100
    p("s_lshl_b32 s41, s2, 3"); p("s_add_u32 s41, s41, s32")
    SLOT = [0, 1, 2, 3, 0, 1, 2, 3, 0, 8, 9, 1, 4, 5, 2, 6]
    PREV = [None] * 4 + [0, 1, 2, 3, 4, None, None, 5, None, None, 6, None]
    MINB = {9: 88, 10: 88, 12: 104, 13: 104, 15: 120}
    def wdma(s):
        ps, c = divmod(s, 8)
        return [("s_add_u32 m0, s38, %d" % (SLOT[s] * 16384), "m0:W%d" % s),
                ("s_add_u32 s43, s39, %d" % (c * 64 * 8192 + ps * 256), None),
                ("buffer_load_dwordx4 v%d, s[20:23], s43 offen lds" % VDW, "W%d" % s),
                ("buffer_load_dwordx4 v%d, s[20:23], s43 offen offset:1024 lds" % (VDW + 1), "W%d" % s)]
    def tdma(c):
        r = [("s_add_u32 m0, s37, %d" % ((c % 3) * 32768), "m0:T%d" % c), ("s_movk_i32 s44, %d" % (c * 128), None)]
        for q in range(4):
            r.append(("buffer_load_dwordx4 v%d, s[16:19], s44 offen offset:%d lds" % (VDT + q, q * 1024), "T%d" % c))
        return r
    def run(lst):
        for text, tag in lst: emit_tagged(p, toks, text, tag)
    def PF():
        p("s_lshr_b32 s46, s2, 3"); p("s_lshl_b32 s47, s32, 6"); p("s_add_u32 s47, s47, s46"); p("s_lshl_b32 s47, s47, 13")
        p("s_lshr_b32 s48, s2, 1"); p("s_and_b32 s48, s48, 1"); p("s_lshl_b32 s48, s48, 12"); p("s_add_u32 s47, s47, s48")
        p("v_lshrrev_b32 v64, 5, v%d" % VL); p("v_lshlrev_b32 v65, 18, v64"); p("v_and_b32 v66, 31, v%d" % VL)
        p("v_lshl_add_u32 v65, v66, 7, v65")
        p("buffer_load_dword v68, v65, s[20:23], s47 offen")
        if OPT.get("pf64", 0): p("buffer_load_dword v69, v65, s[20:23], s47 offen offset:64")
        p("s_and_b32 s47, s2, 1"); p("s_lshl_b32 s47, s47, 5"); p("s_add_u32 s47, s47, s46"); p("s_lshl_b32 s47, s47, 15")
        p("s_and_b32 s48, s32, 3"); p("s_lshl_b32 s48, s48, 8"); p("s_add_u32 s47, s47, s48")
        p("s_lshr_b32 s48, s32, 2"); p("s_lshl_b32 s48, s48, 6"); p("s_add_u32 s47, s47, s48")
        p("v_lshlrev_b32 v65, 7, v64"); p("v_lshl_add_u32 v65, v66, 10, v65")
        p("buffer_load_dword v70, v65, s[16:19], s47 offen")
    run(wdma(0)); run(tdma(0))
    p("s_barrier")
    if OPT.get("pf", 1) == 2: PF()
    run(wdma(1)); run(tdma(1))
    if OPT.get("pf", 1) == 1: PF()
    stamp(p, 21)
    class Rec:
        def __init__(self): self.l = []
        def __call__(self, t, note=None): self.l.append(t)
    q = Rec()
    F = 104
    for j in range(4):
        q("v_lshlrev_b32 v%d, 16, v%d" % (F + 2 * j, XR + j))
        q("v_and_b32 v%d, 0xffff0000, v%d" % (F + 2 * j + 1, XR + j))
    q("v_add_f32 v%d, v%d, v%d" % (T0, F, F + 1))
    for j in range(2, 8): q("v_add_f32 v%d, v%d, v%d" % (T0, T0, F + j))
    wave_sum(q, T0)
    q("s_nop 0"); q("v_readlane_b32 s45, v%d, 63" % T0)
    q("v_mov_b32 v%d, 0x3b000000" % T1); q("s_nop 0"); q("v_mul_f32 v%d, s45, v%d" % (T1, T1))
    q("v_sub_f32 v%d, v%d, v%d" % (T2, F, T1)); q("v_mul_f32 v%d, v%d, v%d" % (T0, T2, T2))
    for j in range(1, 8):
        q("v_sub_f32 v%d, v%d, v%d" % (T2, F + j, T1)); q("v_fmac_f32 v%d, v%d, v%d" % (T0, T2, T2))
    wave_sum(q, T0)
    q("s_nop 0"); q("v_readlane_b32 s45, v%d, 63" % T0)
    q("v_mov_b32 v%d, 0x3b000000" % T2); q("s_nop 0"); q("v_mul_f32 v%d, s45, v%d" % (T2, T2))
    q("v_cvt_pk_bf16_f32 v%d, v%d, v%d" % (T0, T1, T2))
    q("v_lshlrev_b32 v%d, 16, v%d" % (T1, T0)); q("v_and_b32 v%d, 0xffff0000, v%d" % (T2, T0))
    q("v_add_f32 v%d, 0x3727c5ac, v%d" % (T2, T2))
    q("v_cvt_pk_bf16_f32 v%d, v%d, v%d" % (T2, T2, T2)); q("v_lshlrev_b32 v%d, 16, v%d" % (T2, T2))
    q("v_sqrt_f32 v%d, v%d" % (T2, T2)); q("s_nop 0")
    q("v_cvt_pk_bf16_f32 v%d, v%d, v%d" % (T2, T2, T2)); q("v_lshlrev_b32 v%d, 16, v%d" % (T2, T2))
    q("v_rcp_f32 v%d, v%d" % (T0, T2))
    for j in range(8): q("v_sub_f32 v%d, v%d, v%d" % (F + j, F + j, T1))
    for j in range(4): q("v_cvt_pk_bf16_f32 v%d, v%d, v%d" % (XR + j, F + 2 * j, F + 2 * j + 1))
    for j in range(4):
        q("v_lshlrev_b32 v%d, 16, v%d" % (F + 2 * j, XR + j))
        q("v_and_b32 v%d, 0xffff0000, v%d" % (F + 2 * j + 1, XR + j))
    for j in range(8):
        q("v_mul_f32 v%d, v%d, v%d" % (T1, F + j, T0))
        q("v_fma_f32 v%d, -v%d, v%d, v%d" % (F + j, T1, T2, F + j))
        q("v_fma_f32 v%d, v%d, v%d, v%d" % (F + j, F + j, T0, T1))
    for j in range(4): q("v_cvt_pk_bf16_f32 v%d, v%d, v%d" % (XR + j, F + 2 * j, F + 2 * j + 1))
    q("v_lshlrev_b32 v%d, 9, v%d" % (T0, VL))
    q("s_lshr_b32 s42, s41, 5"); q("s_lshl_b32 s42, s42, 15"); q("s_and_b32 s45, s41, 31"); q("s_lshl_b32 s45, s45, 4")
    q("s_add_u32 s42, s42, s45"); q("s_add_u32 s42, s42, 0x%x" % WS_XN)
    q("buffer_store_dwordx4 %s, v%d, s[24:27], s42 offen" % (vr(XR), T0))
    q("v_add_u32 v%d, 4096, v%d" % (VL, VL16))
    LN = q.l
    p("s_cmp_ge_u32 s34, 16"); p("s_cbranch_scc1 KV_VARV")
    st = (list(p.lq), list(p.vq))
    for var in ("K", "V"):
        if var == "V":
            p.label("KV_VARV"); p.lq, p.vq = list(st[0]), list(st[1])
        tk = {k: list(v) for k, v in toks.items()}
        items = [(s, (2 * h, 2 * h + 1)) for s in range(8) for h in range(2)] + [(s, (0, 1)) for s in range(8, 16)] + [(s, (2,)) for s in range(8, 16)] + [(s, (3,)) for s in range(8, 16)]
        def mf(sl, a, b, fr):
            ps, c = divmod(sl, 8); t = "a[%d:%d]" % (16 * c + 4 * a, 16 * c + 4 * a + 3)
            acc = vr(16 * b, 16); cc = "0" if (c == 0 and a == 0) else acc
            return "%s %s, %s, %s, %s" % (MF, acc, vr(fr), t, cc) if var == "K" else "%s %s, %s, %s, %s" % (MF, acc, t, vr(fr), cc)
        def wr(sl, a, b, fr):
            o = (SLOT[sl] % 4) * 16384 + a * 4096
            ad = (VWA, VTA, VDT)[SLOT[sl] // 4] + b
            return ["ds_read_b64_tr_b16 %s, v%d offset:%d" % (vr(fr, 2), ad, o),
                    "ds_read_b64_tr_b16 %s, v%d offset:%d" % (vr(fr + 2, 2), ad, o + 1024)]
        cnt = [3]
        def hk(p):
            stamp(p, cnt[0]); cnt[0] += 1
        S, seq, pro, init = slab_engine(p, tk, items, 16, mf, wr, wdma, PREV, MINB, hooks=hk)
        def tread(c):
            def f(p):
                p.wait_tok(tk["T%d" % c])
                for a in range(4):
                    if c % 3 == 2:
                        p("v_add_u32 v%d, 0x10000, v%d" % (96 + a, VTA + a))
                        p("ds_read_b128 a[%d:%d], v%d" % (16 * c + 4 * a, 16 * c + 4 * a + 3, 96 + a))
                    else:
                        p("ds_read_b128 a[%d:%d], v%d offset:%d" % (16 * c + 4 * a, 16 * c + 4 * a + 3, VTA + a, (c % 3) * 32768))
            return f
        for c in range(1, 8): S.put(16 * (c - 1) + 10, tread(c))
        for c in range(3, 8): S.spread(16 * (c - 3) + 12, tdma(c), per=2)
        S.spread(92, ["v_add_u32 v%d, 0x20000, v%d" % (VDT + b, VWA + b) for b in range(4)], per=1)
        S.spread(108, ["v_add_u32 v%d, 0x10000, v%d" % (VTA + b, VWA + b) for b in range(4)], per=1)
        def cvt(hf, q):
            b = 2 * hf + q // 2; s_ = q % 2
            return ["v_cvt_pk_bf16_f32 v%d, v%d, v%d" % (96 + 4 * q + j, 16 * b + 8 * s_ + 2 * j, 16 * b + 8 * s_ + 2 * j + 1) for j in range(4)]
        def sto(hf, q, sreg):
            o = (4 * hf + q) * 1024
            return "buffer_store_dwordx4 %s, v%d, s[24:27], s%d offen offset:%d %s" % (vr(96 + 4 * q), VL if o >= 4096 else VL16, sreg, o % 4096, OPT.get("st", "sc1"))
        S.spread(0, wdma(2) + tdma(2) + wdma(3), per=2)
        S.spread(8, ["s_lshl_b32 s42, s41, 10", "buffer_load_dwordx4 %s, v%d, s[28:31], s42 offen" % (vr(XR), VL16)], per=2)
        assert S.spread(28, LN, per=3) <= 73
        S.spread(123, sum([cvt(0, q) for q in range(4)], []), per=4)
        for q in range(4): S.put(128 + 14 * q, sto(0, q, 40))
        for q in range(4): S.spread(174 + 4 * q, cvt(1, q), per=1)
        for q in range(4): S.put(192 + 6 * q, sto(1, q, 40))
        S.put(211, "s_add_u32 s40, s40, 0x80000")
        for q in range(4):
            S.spread(212 + 6 * q, cvt(0, q), per=2); S.put(215 + 6 * q, sto(0, q, 40))
        for q in range(2):
            S.spread(238 + 6 * q, cvt(1, q), per=2); S.put(241 + 6 * q, sto(1, q, 40))
        def epi(ps, hf):
            return sum([cvt(hf, q) + [sto(hf, q, 40)] for q in range(2, 4)], [])
        stamp(p, 1)
        p.wait_tok(sum([tk["W%d" % s] for s in init], [])); p("s_barrier")
        stamp(p, 2)
        tread(0)(p)
        for t in pro: p(t)
        S.emit(p, tk)
        p.nop(12)
        for t in epi(1, 1): p(t)
        stamp(p, 18)
        if STAMP: p("s_waitcnt vmcnt(0)")
        stamp(p, 19)
        p("s_branch KV_TAIL")
    p.label("KV_TAIL")
    stamp_flush(p, 23, 24, 32, 64)
    p("s_cmp_ge_u32 s41, 64"); p("s_cbranch_scc1 KV_END")
    p("s_and_b32 s42, s41, 7"); p("s_cmp_lg_u32 s42, 0"); p("s_cbranch_scc1 KV_END")
    for i in range(4): p("v_mov_b32 v%d, 0" % (64 + i))
    p("s_lshl_b32 s42, s2, 10"); p("s_add_u32 s42, s42, 0x%x" % WS_FLAG)
    p("buffer_store_dwordx4 v[64:67], v%d, s[24:27], s42 offen" % VL16)
    p.label("KV_END")
    p("s_endpgm")
    return kernel_desc(name, 256, 128, 102)


import struct
def f32hex(x): return "0x%08x" % struct.unpack("<I", struct.pack("<f", x))[0]
QSCALE = 1.4426950408889634 / (128 ** 0.5)
THR = float(2 ** 20)

def gen_at(p):
    name = "at_kernel"
    kernel_begin(p, name)
    p("s_cmp_ge_u32 s2, 256"); p("s_cbranch_scc1 AT_END")
    p("s_load_dwordx2 s[4:5], s[0:1], 16")
    p("s_load_dwordx4 s[8:11], s[0:1], 56")
    p("s_load_dwordx2 s[12:13], s[0:1], 96")
    VL = 112
    stamp(p, 0)
    lane_setup(p, VL, 32)
    p("s_and_b32 s33, s2, 7"); p("s_lshl_b32 s33, s33, 2"); p("s_lshr_b32 s34, s2, 3"); p("s_and_b32 s35, s34, 3")
    p("s_add_u32 s33, s33, s35")
    p("s_lshr_b32 s34, s34, 2")
    p("s_and_b32 s36, s32, 3")
    p("s_lshl_b32 s37, s34, 2"); p("s_add_u32 s35, s37, 3"); p("s_sub_u32 s35, s35, s36")
    p("s_sub_u32 s37, 60, s37"); p("s_add_u32 s38, s37, s36")
    p("s_cmp_ge_u32 s32, 4"); p("s_cselect_b32 s35, s38, s35")
    p("s_add_u32 s37, s37, 3")
    VWA, VGA, VDW, VDG, VL16 = 113, 117, 121, 123, 127
    T0, T1, T2, T3 = 96, 97, 98, 99
    WB = 98304
    p("v_lshlrev_b32 v%d, 4, v%d" % (VL16, VL))
    p("v_bfe_u32 v%d, v%d, 2, 2" % (T0, VL))
    p("v_lshrrev_b32 v%d, 5, v%d" % (T1, VL))
    p("v_lshl_add_u32 v%d, v%d, 3, v%d" % (T3, T1, T0))
    p("v_lshlrev_b32 v%d, 8, v%d" % (T1, T3))
    p("v_bfe_u32 v%d, v%d, 4, 1" % (T2, VL)); p("v_lshl_add_u32 v%d, v%d, 5, v%d" % (T1, T2, T1))
    p("v_and_b32 v%d, 3, v%d" % (100, VL)); p("v_lshl_add_u32 v%d, v%d, 3, v%d" % (T1, 100, T1)); p("v_add_u32 v%d, %d, v%d" % (T1, WB, T1))
    for b in range(4):
        p("v_xor_b32 v%d, %d, v%d" % (101, b, T0)); p("v_lshl_add_u32 v%d, v%d, 6, v%d" % (VWA + b, 101, T1))
    p("v_lshlrev_b32 v%d, 7, v%d" % (T1, T3)); p("v_lshl_add_u32 v%d, v%d, 13, v%d" % (T1, T2, T1))
    p("v_lshl_add_u32 v%d, v%d, 3, v%d" % (T1, 100, T1)); p("v_add_u32 v%d, %d, v%d" % (T1, WB, T1))
    p("v_lshrrev_b32 v%d, 1, v%d" % (T0, T0)); p("v_lshl_or_b32 v%d, v%d, 1, v%d" % (T0, T2, T0))
    for b in range(4):
        p("v_xor_b32 v%d, %d, v%d" % (101, b, T0)); p("v_lshl_add_u32 v%d, v%d, 5, v%d" % (VGA + b, 101, T1))
    p("v_lshrrev_b32 v%d, 4, v%d" % (T0, VL)); p("v_lshlrev_b32 v%d, 2, v%d" % (T1, T0))
    p("v_and_b32 v%d, 15, v%d" % (T2, VL)); p("v_xor_b32 v%d, v%d, v%d" % (T1, T1, T2)); p("v_lshlrev_b32 v%d, 4, v%d" % (T1, T1))
    p("v_lshl_add_u32 v%d, v%d, 13, v%d" % (VDW, T0, T1))
    p("s_lshl_b32 s38, s32, 16"); p("v_add_u32 v%d, s38, v%d" % (VDW, VDW))
    p("v_add_u32 v%d, %d, v%d" % (VDW + 1, 4 * 8192 - 1024, VDW))
    p("v_lshrrev_b32 v%d, 3, v%d" % (T0, VL)); p("s_lshl_b32 s38, s32, 3"); p("v_add_u32 v%d, s38, v%d" % (T0, T0))
    p("v_mul_u32_u24 v%d, 3584, v%d" % (T0, T0))
    p("v_and_b32 v%d, 1, v%d" % (T1, VL)); p("v_lshl_add_u32 v%d, v%d, 4, v%d" % (T0, T1, T0))
    p("v_bfe_u32 v%d, v%d, 1, 2" % (T1, VL)); p("v_bfe_u32 v%d, v%d, 4, 1" % (T2, VL)); p("v_xor_b32 v%d, v%d, v%d" % (T1, T1, T2))
    p("v_lshl_add_u32 v%d, v%d, 5, v%d" % (VDG, T1, T0))
    p("v_xor_b32 v%d, 2, v%d" % (T1, T1)); p("v_lshl_add_u32 v%d, v%d, 5, v%d" % (VDG + 1, T1, T0))
    p("v_add_u32 v%d, 4096, v%d" % (VDG + 2, VL16))
    VL16B = VDG + 2
    p("s_lshl_b32 s39, s33, 7"); p("s_mul_i32 s38, s33, 96"); p("s_add_u32 s38, s38, 512")
    p("s_cmp_ge_u32 s33, 16"); p("s_cselect_b32 s39, s38, s39")
    p("s_lshl_b32 s40, s33, 8")
    p("s_lshl_b32 s41, s32, 11"); p("s_add_u32 s41, s41, %d" % WB)
    p("s_lshl_b32 s42, s32, 10"); p("s_add_u32 s42, s42, %d" % WB)
    p("s_lshl_b32 s43, s35, 15"); p("s_add_u32 s43, s43, 0x%x" % WS_XN)
    p("s_mul_i32 s44, s35, %d" % (368 * 1024)); p("s_add_u32 s44, s44, 0x%x" % WS_CH)
    p("s_lshl_b32 s45, s39, 5"); p("s_add_u32 s45, s45, s44"); p("s_add_u32 s45, s45, %d" % (256 * 1024))
    p("s_add_u32 s46, s45, 3072"); p("s_cmp_ge_u32 s33, 16"); p("s_cselect_b32 s46, 0x20000000, s46")
    p("s_lshl_b32 s38, s33, 13"); p("s_add_u32 s44, s44, s38")
    p("s_waitcnt lgkmcnt(0)")
    srd(p, 16, 4, 4194304); srd(p, 20, 8, 512 * 3584); srd(p, 28, 10, 512 * 3584); srd(p, 24, 12, WS_BYTES)
    toks = {}
    def run(lst):
        for text, tag in lst: emit_tagged(p, toks, text, tag)
    def wdma(s):
        ps, c = divmod(s, 8)
        if ps == 0:
            return [("s_add_u32 m0, s42, %d" % ((s % 4) * 16384), "m0:W%d" % s),
                    ("s_add_u32 s47, s39, %d" % (c * 64 * 3584), None),
                    ("buffer_load_dwordx4 v%d, s[20:23], s47 offen lds" % VDG, "W%d" % s),
                    ("s_add_u32 m0, s42, %d" % ((s % 4) * 16384 + 8192), "m0:W%d" % s),
                    ("s_nop 0", None),
                    ("buffer_load_dwordx4 v%d, s[28:31], s47 offen lds" % (VDG + 1), "W%d" % s)]
        return [("s_add_u32 m0, s41, %d" % ((s % 4) * 16384), "m0:W%d" % s),
                ("s_add_u32 s47, s40, %d" % (c * 64 * 8192), None),
                ("buffer_load_dwordx4 v%d, s[16:19], s47 offen lds" % VDW, "W%d" % s),
                ("buffer_load_dwordx4 v%d, s[16:19], s47 offen offset:1024 lds" % (VDW + 1), "W%d" % s)]
    def tld(c):
        r = [("s_add_u32 s48, s43, %d" % (c * 4096), None)]
        for a in range(4):
            r.append(("buffer_load_dwordx4 a[%d:%d], v%d, s[24:27], s48 offen offset:%d" % (16 * c + 4 * a, 16 * c + 4 * a + 3, VL16, a * 1024), None))
        return r
    stamp(p, 20)
    run(wdma(0)); run(tld(0)); p("s_barrier"); run(wdma(1)); run(tld(1))
    X, Y = (0, 1), (2, 3)
    items = [(s, h) for s in range(6) for h in (X, Y)] + [(6, X), (7, X), (6, Y), (7, Y), (8, X), (9, X), (8, Y), (9, Y)] + [(s, h) for s in range(10, 16) for h in (X, Y)]
    def mf(sl, a, b, fr):
        ps, c = divmod(sl, 8); t = "a[%d:%d]" % (16 * c + 4 * a, 16 * c + 4 * a + 3)
        acc = vr(16 * b, 16); cc = "0" if (c == 0 and a == 0) else acc
        return "%s %s, %s, %s, %s" % (MF, acc, vr(fr), t, cc)
    def wr(sl, a, b, fr):
        if sl < 8:
            o = (sl % 4) * 16384 + a * 2048
            return ["ds_read_b64_tr_b16 %s, v%d offset:%d" % (vr(fr, 2), VGA + b, o), "ds_read_b64_tr_b16 %s, v%d offset:%d" % (vr(fr + 2, 2), VGA + b, o + 512)]
        o = (sl % 4) * 16384 + a * 4096
        return ["ds_read_b64_tr_b16 %s, v%d offset:%d" % (vr(fr, 2), VWA + b, o), "ds_read_b64_tr_b16 %s, v%d offset:%d" % (vr(fr + 2, 2), VWA + b, o + 1024)]
    cnt = [3]
    def hk(p):
        if cnt[0] in (4, 10, 11, 12, 17): stamp(p, {4: 3, 10: 4, 11: 5, 12: 6, 17: 7}[cnt[0]])
        cnt[0] += 1
    PREV = [None] * 4 + list(range(12))
    S, seq, pro, init = slab_engine(p, toks, items, 16, mf, wr, wdma, PREV, hooks=hk)
    S.spread(0, wdma(2) + tld(2) + wdma(3), per=2)
    for c in range(3, 8): S.spread(16 * (c - 3) + 12, tld(c), per=2)
    def swiglu(b):
        r = []; st = 96 + 4 * (b % 2); E = 104
        g = 16 * b; u = g + 8
        for j in range(8): r.append("v_mul_f32 v%d, 0xbfb8aa3b, v%d" % (E + j, g + j))
        for j in range(8): r.append("v_exp_f32 v%d, v%d" % (E + j, E + j))
        for j in range(8): r.append("v_mul_f32 v%d, v%d, v%d" % (g + j, g + j, u + j))
        for j in range(8): r.append("v_add_f32 v%d, 1.0, v%d" % (E + j, E + j))
        for j in range(8): r.append("v_rcp_f32 v%d, v%d" % (E + j, E + j))
        r.append("s_nop 0")
        for j in range(8): r.append("v_mul_f32 v%d, v%d, v%d" % (g + j, g + j, E + j))
        for j in range(4): r.append("v_cvt_pk_bf16_f32 v%d, v%d, v%d" % (st + j, g + 2 * j, g + 2 * j + 1))
        if b < 3: r.append("buffer_store_dwordx4 %s, v%d, s[24:27], s45 offen offset:%d sc1" % (vr(st), VL16, b * 1024))
        else: r.append("buffer_store_dwordx4 %s, v%d, s[24:27], s46 offen sc1" % (vr(st), VL16))
        return r
    e = S.spread(112 + 3, swiglu(0) + swiglu(1), per=9); assert e <= 128, e
    e = S.spread(128 + 3, swiglu(2) + swiglu(3), per=9); assert e <= 144, e
    def qepi(hf):
        r = []
        for j in range(32): r.append("v_mul_f32 v%d, %s, v%d" % (32 * hf + j, f32hex(QSCALE), 32 * hf + j))
        for j in range(16): r.append("v_cvt_pk_bf16_f32 v%d, v%d, v%d" % (16 * hf + j, 32 * hf + 2 * j, 32 * hf + 2 * j + 1))
        return r
    S.spread(248 + 3, qepi(0), per=10)
    p("s_lshl_b32 s49, s33, 19")
    kvinit = [("s_lshl_b32 s50, s32, 13", None), ("s_add_u32 s51, s49, s50", None), ("s_add_u32 s51, s51, 0x%x" % WS_K, None),
              ("s_add_u32 s52, s51, 0x%x" % (WS_V - WS_K - 6 * 8192), None), ("s_add_u32 s53, s50, %d" % (65536 - 6 * 8192), None),
              ("s_cmp_ge_u32 s32, 6", None), ("s_cselect_b32 s51, s52, s51", None), ("s_cselect_b32 s50, s53, s50", None)]
    for hf in range(2):
        kvinit += [("s_add_u32 m0, s50, %d" % (hf * 4096), "m0:KV"), ("s_add_u32 s52, s51, %d" % (hf * 4096), None)]
        kvinit += [("buffer_load_dwordx4 v%d, s[24:27], s52 offen offset:%d lds" % (VL16, j * 1024), "KV") for j in range(4)]
    for it in kvinit[:8]: S.put(206, it[0], it[1])
    S.spread(207, kvinit[8:], per=1)
    stamp(p, 1)
    p.wait_tok(sum([toks["W%d" % s] for s in init], [])); p("s_barrier")
    stamp(p, 2)
    for t in pro: p(t)
    S.emit(p, toks)
    p("s_cmp_ge_u32 s36, 2")
    p("s_mov_b32 s54, 0x%x" % (WS_K + 6 * 8192)); p("s_cselect_b32 s54, 0x%x, s54" % (WS_V + 0 * 8192))
    p("s_mov_b32 s56, 0x%x" % WS_K); p("s_cselect_b32 s56, 0x%x, s56" % WS_V)
    p("s_mov_b32 s57, 0"); p("s_cselect_b32 s57, 0x10000, s57")
    p("s_mov_b32 s55, %d" % (6 * 8192)); p("s_cselect_b32 s55, 0, s55")
    p("s_lshl_b32 s50, s36, 13"); p("s_add_u32 s54, s54, s50"); p("s_add_u32 s54, s54, s49"); p("s_add_u32 s55, s55, s50")
    p("s_lshl_b32 s50, s37, 13"); p("s_add_u32 s56, s56, s50"); p("s_add_u32 s56, s56, s49")
    p.nop(4)
    for t in qepi(1): p(t)
    p.wait_tok(toks["KV"]); p("s_barrier")
    stamp(p, 8)
    attention(p, VL, VL16, VL16B)
    p.label("AT_END")
    p("s_endpgm")
    return kernel_desc(name, 256, 128, 102)

def attention(p, VL, VL16, VL16B):
    SB = (32, 48); CI = 64; PB = (80, 88); E = 96; LR = (100, 101); VKA, VKB, VV, VQM = 102, 103, 104, 105
    TM = 106
    FRB = 64; FR = 8; LA = OPT.get("la", 5)
    fr = lambda j: "a[%d:%d]" % (FRB + 4 * (j % FR), FRB + 4 * (j % FR) + 3)
    O = lambda db: "a[%d:%d]" % (16 * db, 16 * db + 15)
    def dma_block():
        p("s_min_u32 s50, s54, s56"); p("s_and_b32 s51, s55, 0xffff"); p("s_add_u32 m0, s51, s57")
        p("s_add_u32 s52, s50, 4096")
        for j in range(4): p("buffer_load_dwordx4 v%d, s[24:27], s50 offen offset:%d lds" % (VL16, j * 1024))
        p("s_add_u32 m0, m0, 4096"); p("s_add_u32 s54, s54, 16384")
        for j in range(4): p("buffer_load_dwordx4 v%d, s[24:27], s52 offen offset:%d lds" % (VL16, j * 1024))
        p("s_add_u32 s55, s55, 16384")
    def kread(j, ad, off): return "ds_read_b128 %s, v%d offset:%d" % (fr(j), ad, off + j * 1024)
    def vread(j, off): return "ds_read_b128 %s, v%d offset:%d" % (fr(j), VV, off + (2 * (j & 3) + ((j - 8) >> 2)) * 1024)
    def maskprep():
        for half in range(2):
            for r in range(8 * half, 8 * half + 8):
                p("v_cmp_gt_i32 s[%d:%d], %d, v%d" % (82 + 2 * (r % 8), 83 + 2 * (r % 8), (r & 3) + 8 * (r >> 2), VQM))
            for r in range(8 * half, 8 * half + 8):
                p("v_cndmask_b32 v%d, v%d, v%d, s[%d:%d]" % (CI + r, CI + r, TM, 82 + 2 * (r % 8), 83 + 2 * (r % 8)))
        p("s_nop 1")
    def period(par, pv=True):
        cur, nxt = SB[par], SB[1 - par]
        koff = 0 if par else 8192
        S = Slots()
        for j in range(8):
            S.add("%s %s, %s, %s, %s" % (MF, vr(nxt, 16), fr(j), vr(4 * j), vr(CI, 16) if j == 0 else vr(nxt, 16)))
        if pv:
            for j in range(8, 16):
                s_, db = (j - 8) >> 2, j & 3
                S.add("%s %s, %s, %s, %s" % (MF, O(db), fr(j), vr(PB[1 - par] + 4 * s_), O(db)))
        n = len(S.s)
        k = 16 // n
        for j in range(LA, n): S.put(j - LA, kread(j, VKA, koff) if j < 8 else vread(j, koff))
        for j in range(LA): S.put(n - LA + j, kread(j, VKA, 8192) if par else kread(j, VKB, 0))
        for r in range(16):
            sl = r // k
            S.put(sl, "v_add_f32 v%d, v%d, v%d" % (LR[par], LR[1 - par] if r == 0 else LR[par], E + r % 4))
            if r & 1: S.put(sl, "v_cvt_pk_bf16_f32 v%d, v%d, v%d" % (PB[par] + r // 2, E + (r - 1) % 4, E + r % 4))
            if r < 15: S.put(sl, "v_exp_f32 v%d, v%d" % (E + (r + 1) % 4, cur + r + 1))
            if k > 1 and r < 15: S.put(sl, "s_nop 0")
        S.put(n - 1, "v_cmp_lt_f32 vcc, s59, v%d" % LR[par])
        if not pv: S.put(n - 1, "s_nop 7"); S.put(n - 1, "s_nop 1")
        S.put(n - 1, "v_exp_f32 v%d, v%d" % (E, nxt))
        S.emit(p, {})
    def fixup(par, back):
        cur, nxt = SB[par], SB[1 - par]
        p.nop(12)
        p("v_max3_f32 v%d, v%d, v%d, v%d" % (TM, cur, cur + 1, cur + 2))
        for r in range(3, 15, 2): p("v_max3_f32 v%d, v%d, v%d, v%d" % (TM, TM, cur + r, cur + r + 1))
        p("v_max_f32 v%d, v%d, v%d" % (TM, TM, cur + 15))
        p("v_mov_b32 v%d, v%d" % (TM + 1, TM)); p("s_nop 1"); p("v_permlane32_swap_b32 v%d, v%d" % (TM + 1, TM)); p("s_nop 1")
        p("v_max_f32 v%d, v%d, v%d" % (TM, TM, TM + 1)); p("v_ceil_f32 v%d, v%d" % (TM, TM)); p("v_max_f32 v%d, 0, v%d" % (TM, TM))
        p("v_exp_f32 v%d, -v%d" % (TM + 1, TM))
        for r in range(16):
            p("v_sub_f32 v%d, v%d, v%d" % (cur + r, cur + r, TM)); p("v_sub_f32 v%d, v%d, v%d" % (nxt + r, nxt + r, TM))
            p("v_sub_f32 v%d, v%d, v%d" % (CI + r, CI + r, TM))
        for r in range(64):
            p("v_accvgpr_read_b32 v%d, a%d" % (TM + 2 + r % 2, r)); p("v_mul_f32 v%d, v%d, v%d" % (TM + 2 + r % 2, TM + 2 + r % 2, TM + 1))
            p("v_accvgpr_write_b32 a%d, v%d" % (r, TM + 2 + r % 2))
        p("v_mul_f32 v%d, v%d, v%d" % (LR[par], LR[1 - par], TM + 1))
        for r in range(0, 16, 2):
            p("v_exp_f32 v%d, v%d" % (E, cur + r)); p("v_exp_f32 v%d, v%d" % (E + 1, cur + r + 1)); p("s_nop 0")
            p("v_add_f32 v%d, v%d, v%d" % (LR[par], LR[par], E)); p("v_add_f32 v%d, v%d, v%d" % (LR[par], LR[par], E + 1))
            p("v_cvt_pk_bf16_f32 v%d, v%d, v%d" % (PB[par] + r // 2, E, E + 1))
        p("v_exp_f32 v%d, v%d" % (E, nxt))
        p("v_mov_b32 v%d, 0xff800000" % TM)
        p("s_branch %s" % back)
    p("v_mov_b32 v%d, v%d" % (VKA, VL16)); p("v_add_u32 v%d, 16384, v%d" % (VKB, VL16)); p("v_add_u32 v%d, 0x1c000, v%d" % (VV, VL16))
    for j in range(LA): p(kread(j, VKA, 0))
    p("v_and_b32 v%d, 31, v%d" % (VQM, VL)); p("v_lshrrev_b32 v%d, 5, v%d" % (TM, VL)); p("v_lshlrev_b32 v%d, 2, v%d" % (TM, TM))
    p("v_sub_u32 v%d, v%d, v%d" % (VQM, VQM, TM))
    p("v_mov_b32 v%d, 0xff800000" % TM)
    for r in range(16): p("v_mov_b32 v%d, 0" % (CI + r))
    for r in range(64): p("v_accvgpr_write_b32 a%d, 0" % r)
    p("v_mov_b32 v%d, 0" % LR[1])
    p("s_mov_b32 s59, %s" % f32hex(THR))
    p("s_mov_b32 s58, 32768")
    p("s_mov_b32 s60, 1")
    if STAMP:
        for i in range(8): p("s_mov_b32 s%d, 0" % (74 + i))
        p("s_mov_b32 s98, s72")
    p("s_cmp_lt_u32 s32, 4"); p("s_cbranch_scc1 AT_ISA")
    if OPT.get("prio", 0): p("s_setprio 1")
    p("s_branch AT_NOA0")
    p.label("AT_ISA")
    vq0 = list(p.vq); dma_block(); p.vq = vq0
    p.label("AT_NOA0")
    p("s_cmp_lg_u32 s35, 0"); p("s_cbranch_scc1 AT_NM0")
    maskprep()
    p.label("AT_NM0")
    S = Slots()
    for j in range(8): S.add("%s %s, %s, %s, %s" % (MF, vr(SB[0], 16), fr(j), vr(4 * j), vr(CI, 16) if j == 0 else vr(SB[0], 16)))
    for j in range(LA, 8): S.put(j - LA, kread(j, VKA, 0))
    for j in range(LA): S.put(8 - LA + j, kread(j, VKA, 8192))
    S.emit(p, {})
    p.nop(11)
    c = SB[0]
    p("v_max3_f32 v%d, v%d, v%d, v%d" % (E, c, c + 1, c + 2))
    for r in range(3, 15, 2): p("v_max3_f32 v%d, v%d, v%d, v%d" % (E, E, c + r, c + r + 1))
    p("v_max_f32 v%d, v%d, v%d" % (E, E, c + 15))
    p("v_mov_b32 v%d, v%d" % (E + 1, E)); p("s_nop 1"); p("v_permlane32_swap_b32 v%d, v%d" % (E + 1, E)); p("s_nop 1")
    p("v_max_f32 v%d, v%d, v%d" % (E + 1, E, E + 1))
    for r in range(16): p("v_sub_f32 v%d, 0, v%d" % (CI + r, E + 1))
    for r in range(16): p("v_sub_f32 v%d, v%d, v%d" % (c + r, c + r, E + 1))
    p("v_exp_f32 v%d, v%d" % (E, c))
    p("s_cmp_lg_u32 s35, 1"); p("s_cbranch_scc1 AT_NM1")
    maskprep()
    p.label("AT_NM1")
    period(0, pv=False)
    sig0 = [sorted(e["regs"]) for e in p.lq]
    p.label("AT_STEPEND")
    p("v_add_u32 v%d, 0x10000, v%d" % (VV, VKA)); p("v_mov_b32 v%d, v%d" % (VKA, VKB)); p("v_add_u32 v%d, s58, v%d" % (VKB, VL16))
    p("s_add_u32 s58, s58, 16384"); p("s_and_b32 s58, s58, 0xffff")
    def acc_stamp(i):
        if not STAMP: return
        lq = list(p.lq)
        p("s_memtime s[100:101]"); p("s_waitcnt lgkmcnt(0)"); p("s_sub_u32 s99, s100, s98"); p("s_add_u32 s%d, s%d, s99" % (74 + i, 74 + i)); p("s_mov_b32 s98, s100")
        p.lq = lq
    acc_stamp(0)
    p("s_waitcnt vmcnt(8)")
    acc_stamp(1)
    p("s_barrier")
    acc_stamp(2)
    p("s_cmp_ge_u32 s32, 4"); p("s_cbranch_scc1 AT_NOA1")
    dma_block(); p.vq = []
    p.label("AT_NOA1")
    acc_stamp(3)
    lqs = {}
    for par in (1, 0):
        p("s_add_u32 s60, s60, 1"); p("s_cmp_ge_u32 s60, s35"); p("s_cbranch_scc1 AT_H%d" % par)
        p.label("AT_P%d" % par)
        lqs[par] = list(p.lq)
        period(par)
        p("s_cbranch_vccnz AT_FIX%d" % par)
        p.label("AT_B%d" % par)
        assert [sorted(e["regs"]) for e in p.lq] == sig0
    p("s_branch AT_STEPEND")
    for par in (1, 0):
        p.lq = list(lqs[par])
        p.label("AT_FIX%d" % par); fixup(par, "AT_B%d" % par)
        p.label("AT_H%d" % par)
        p("s_sub_u32 s50, s60, s35"); p("s_cmp_eq_u32 s50, 1"); p("s_cbranch_scc1 AT_P%d" % par)
        p("s_cmp_eq_u32 s50, 2"); p("s_cbranch_scc1 AT_T%d" % par)
        maskprep(); p("s_branch AT_P%d" % par)
        p.label("AT_T%d" % par)
        p("s_waitcnt lgkmcnt(0)")
        off = 0 if par else 8192
        for j in range(8, 16): p(vread(j, off))
        p("v_mov_b32 v%d, v%d" % (TM + 1, LR[1 - par])); p("v_mov_b32 v%d, v%d" % (TM + 2, LR[1 - par]))
        for j in range(8, 16):
            s_, db = (j - 8) >> 2, j & 3
            p("%s %s, %s, %s, %s" % (MF, O(db), fr(j), vr(PB[1 - par] + 4 * s_), O(db)))
        p("s_branch AT_EPI")
    p.label("AT_EPI")
    p("s_sub_u32 s50, s32, 4"); p("s_cmp_gt_u32 s50, 1"); p("s_cbranch_scc1 AT_EPI2")
    p("s_barrier")
    p.label("AT_EPI2")
    p("v_permlane32_swap_b32 v%d, v%d" % (TM + 1, TM + 2)); p("s_nop 1")
    p("v_add_f32 v%d, v%d, v%d" % (TM + 1, TM + 1, TM + 2)); p("v_rcp_f32 v%d, v%d" % (TM + 1, TM + 1))
    p.nop(8)
    for q in range(8):
        st = 32 + 8 * (q % 4)
        for j in range(8): p("v_accvgpr_read_b32 v%d, a%d" % (st + j, 8 * q + j))
        for j in range(8): p("v_mul_f32 v%d, v%d, v%d" % (st + j, st + j, TM + 1))
        for j in range(4): p("v_cvt_pk_bf16_f32 v%d, v%d, v%d" % (st + j, st + 2 * j, st + 2 * j + 1))
        p("buffer_store_dwordx4 %s, v%d, s[24:27], s44 offen offset:%d sc1" % (vr(st), VL16B if q >= 4 else VL16, (q % 4) * 1024))
    stamp(p, 9)
    p("s_cmp_ge_u32 s32, 4"); p("s_cbranch_scc1 AT_FIN")
    p("s_lshr_b32 s60, s60, 1")
    p("s_lshr_b32 s61, s37, 1")
    p("s_waitcnt vmcnt(16)")
    p.label("AT_LD")
    p("s_cmp_gt_u32 s60, s61"); p("s_cbranch_scc1 AT_FIN")
    acc_stamp(4)
    p("s_barrier")
    acc_stamp(5)
    dma_block(); p.vq = []
    acc_stamp(6)
    p("s_add_u32 s60, s60, 1")
    p("s_waitcnt vmcnt(8)")
    p("s_branch AT_LD")
    p.label("AT_FIN")
    stamp_flush(p, 21, 24, 32, 64)


def gen_out(p):
    name = "out_kernel"
    kernel_begin(p, name)
    p("s_cmp_ge_u32 s2, 256"); p("s_cbranch_scc1 OUT_END")
    p("s_load_dwordx2 s[4:5], s[0:1], 0")
    p("s_load_dwordx2 s[6:7], s[0:1], 40")
    p("s_load_dwordx4 s[12:15], s[0:1], 72")
    p("s_load_dwordx2 s[48:49], s[0:1], 96")
    VL = 112
    stamp(p, 0)
    lane_setup(p, VL, 32)
    p("s_and_b32 s33, s2, 3")
    p("s_lshr_b32 s34, s2, 3")
    p("s_and_b32 s35, s34, 3")
    p("s_lshr_b32 s34, s34, 2"); p("s_lshr_b32 s36, s2, 2"); p("s_and_b32 s36, s36, 1"); p("s_lshl_b32 s36, s36, 3")
    p("s_add_u32 s34, s34, s36")
    p("s_lshr_b32 s36, s32, 2")
    p("s_and_b32 s37, s32, 3")
    p("s_lshl_b32 s38, s34, 2"); p("s_add_u32 s38, s38, s37")
    VWA, VDW, VL16, VXO = 113, 125, 127, 124
    VW = [113, 100, 104]
    T0, T1, T2 = 96, 97, 98
    p("v_lshlrev_b32 v%d, 4, v%d" % (VL16, VL))
    p("v_bfe_u32 v%d, v%d, 2, 2" % (T0, VL)); p("v_lshrrev_b32 v%d, 5, v%d" % (T1, VL))
    p("v_lshl_add_u32 v%d, v%d, 2, v%d" % (T1, T1, T0)); p("v_lshlrev_b32 v%d, 8, v%d" % (T1, T1))
    p("v_bfe_u32 v%d, v%d, 4, 1" % (T2, VL)); p("v_lshl_add_u32 v%d, v%d, 5, v%d" % (T1, T2, T1))
    p("v_and_b32 v%d, 3, v%d" % (T2, VL)); p("v_lshl_add_u32 v%d, v%d, 3, v%d" % (T1, T2, T1))
    p("s_lshl_b32 s39, s36, 14"); p("v_add_u32 v%d, s39, v%d" % (T1, T1))
    for b in range(4):
        p("v_xor_b32 v%d, %d, v%d" % (T2, b, T0)); p("v_lshl_add_u32 v%d, v%d, 6, v%d" % (VW[0] + b, T2, T1))
        p("v_add_u32 v%d, 0x10000, v%d" % (VW[1] + b, VW[0] + b)); p("v_add_u32 v%d, 0x20000, v%d" % (VW[2] + b, VW[0] + b))
    p("v_lshrrev_b32 v%d, 4, v%d" % (T0, VL)); p("v_lshlrev_b32 v%d, 2, v%d" % (T1, T0))
    p("v_and_b32 v%d, 15, v%d" % (T2, VL)); p("v_xor_b32 v%d, v%d, v%d" % (T1, T1, T2)); p("v_lshlrev_b32 v%d, 4, v%d" % (T1, T1))
    p("v_lshl_add_u32 v%d, v%d, 10, v%d" % (VDW, T0, T1))
    p("s_lshl_b32 s39, s32, 13"); p("v_add_u32 v%d, s39, v%d" % (VDW, VDW))
    p("v_add_u32 v%d, %d, v%d" % (VDW + 1, 4 * 1024 - 1024, VDW))
    p("v_and_b32 v%d, 31, v%d" % (T0, VL)); p("v_lshrrev_b32 v%d, 5, v%d" % (T1, VL)); p("v_lshlrev_b32 v%d, 3, v%d" % (T1, T1))
    p("v_lshl_add_u32 v%d, v%d, 10, v%d" % (VXO, T0, T1))
    p("s_lshl_b32 s39, s38, 15"); p("s_lshl_b32 s40, s35, 8"); p("s_add_u32 s39, s39, s40"); p("s_lshl_b32 s40, s33, 6"); p("s_add_u32 s39, s39, s40")
    p("s_lshl_b32 s40, s32, 11")
    p("s_mul_i32 s41, s33, %d" % (448 * 1024)); p("s_lshl_b32 s42, s35, 8"); p("s_add_u32 s41, s41, s42")
    p("s_lshl_b32 s43, s33, 20"); p("s_add_u32 s42, s42, s43")
    p("s_mul_i32 s43, s38, %d" % (368 * 1024)); p("s_add_u32 s43, s43, 0x%x" % WS_CH); p("s_lshl_b32 s44, s36, 12"); p("s_add_u32 s43, s43, s44")
    p("s_mul_i32 s44, s33, %d" % (28 * 1024)); p("s_add_u32 s44, s44, s43"); p("s_add_u32 s44, s44, %d" % (256 * 1024))
    p("s_lshl_b32 s45, s33, 16"); p("s_add_u32 s45, s45, s43"); p("s_sub_u32 s45, s45, %d" % (28 * 1024))
    p("s_cmp_eq_u32 s36, 0"); p("s_cselect_b32 s46, s44, s45")
    p("s_waitcnt lgkmcnt(0)")
    srd(p, 16, 6, 4194304); srd(p, 20, 12, 1792 * 1024); srd(p, 24, 48, WS_BYTES); srd(p, 28, 4, 2097152); srd(p, 8, 14, 2097152)
    toks = {}
    def run(lst):
        for text, tag in lst: emit_tagged(p, toks, text, tag)
    NR = 12; RING = 5; TR = 8
    def wdma(r):
        out = []
        for g in range(2):
            sg = 2 * r + g
            if sg > 22: continue
            out += [("s_add_u32 m0, s40, %d" % (((r % RING) * 2 + g) * 16384), "m0:W%d" % r)]
            if sg < 7: out += [("s_add_u32 s47, s41, %d" % (sg * 65536), None)]; sr = "s[20:23]"
            else: out += [("s_add_u32 s47, s42, %d" % ((sg - 7) * 65536), None)]; sr = "s[16:19]"
            out += [("buffer_load_dwordx4 v%d, %s, s47 offen lds" % (VDW, sr), "W%d" % r),
                    ("buffer_load_dwordx4 v%d, %s, s47 offen offset:1024 lds" % (VDW + 1, sr), "W%d" % r)]
        return out
    def tld(r):
        base = 44 if r < 3 else (46 if r == 3 else 45)
        out = [("s_add_u32 s50, s%d, %d" % (base, r * 8192), None)]
        for a in range(4):
            t = 16 * (r % TR) + 4 * a
            out.append(("buffer_load_dwordx4 a[%d:%d], v%d, s[24:27], s50 offen offset:%d" % (t, t + 3, VL16, a * 1024), None))
        return out
    stamp(p, 20)
    run(wdma(0)); run(tld(0)); p("s_barrier"); run(wdma(1)); run(tld(1))
    X, Y = (0, 1), (2, 3)
    items = [(r, h) for r in range(NR) for h in (X, Y)]
    def mf(r, a, b, fr):
        t = 16 * (r % TR) + 4 * a
        acc = vr(16 * b, 16); cc = "0" if (r == 0 and a == 0) else acc
        return "%s %s, %s, a[%d:%d], %s" % (MF, acc, vr(fr), t, t + 3, cc)
    def wr(r, a, b, fr):
        sl = (r % RING) * 2
        o = (sl % 4) * 16384 + a * 4096; ad = VW[sl // 4] + b
        return ["ds_read_b64_tr_b16 %s, v%d offset:%d" % (vr(fr, 2), ad, o), "ds_read_b64_tr_b16 %s, v%d offset:%d" % (vr(fr + 2, 2), ad, o + 2048)]
    cnt = [3]
    def hk(p):
        stamp(p, cnt[0]); cnt[0] += 1
    PREV = [None] * RING + list(range(NR - RING))
    S, seq, pro, init = slab_engine(p, toks, items, NR, mf, wr, wdma, PREV, hooks=hk, pre_issued=RING)
    e = S.spread(0, wdma(2) + tld(2) + wdma(3) + tld(3), per=3)
    S.spread(12, wdma(4) + tld(4), per=3)
    for r in range(5, NR): S.spread(16 * (r - 5) + 28, tld(r), per=2)
    S.spread(150, ["buffer_load_dwordx2 v[%d:%d], v%d, s[28:31], s39 offen offset:%d" % (116 + 2 * q + (0 if q < 0 else 1), 117 + 2 * q + 1, VXO, q * 16) for q in range(0)], per=1)
    stamp(p, 1)
    p.wait_tok(sum([toks["W%d" % s] for s in init], [])); p("s_barrier")
    stamp(p, 2)
    for t in pro: p(t)
    def leave(p):
        p("s_cmp_eq_u32 s36, 1"); p("s_cbranch_scc1 OUT_RED")
    S.s[16 * (NR - 1)]["pre"].append(leave)
    S.emit(p, toks)
    p.label("OUT_RED")
    p("s_waitcnt lgkmcnt(0)")
    stamp(p, 16)
    for q in range(4): p("buffer_load_dwordx2 v[%d:%d], v%d, s[28:31], s39 offen offset:%d" % (88 + 2 * q, 89 + 2 * q, VXO, q * 16))
    p("s_barrier")
    p.nop(8)
    p("s_lshl_b32 s47, s32, 13"); p("v_add_u32 v96, s47, v%d" % VL16)
    p("s_xor_b32 s47, s47, 0x8000"); p("v_add_u32 v97, s47, v%d" % VL16)
    p("s_cmp_eq_u32 s36, 1"); p("s_cbranch_scc1 OUT_G1")
    st = (list(p.lq), list(p.vq))
    for g in range(2):
        if g == 1:
            p.label("OUT_G1"); p.lq, p.vq = list(st[0]), list(st[1])
        give = 32 * (1 - g); keep = 32 * g
        for q in range(8): p("ds_write_b128 v96, %s offset:%d" % (vr(give + 4 * q), q * 1024))
        p("s_waitcnt lgkmcnt(0)"); p("s_barrier")
        for q in range(8): p("ds_read_b128 %s, v97 offset:%d" % (vr(give + 4 * q), q * 1024))
        for r in range(32): p("v_add_f32 v%d, v%d, v%d" % (r, keep + r, give + r))
        if g == 0: p("s_branch OUT_X")
    p.label("OUT_X")
    p("s_lshl_b32 s47, s34, 2"); p("s_add_u32 s47, s47, s35")
    p("s_lshl_b32 s51, s47, 18"); p("s_add_u32 s51, s51, 0x%x" % WS_PART); p("s_lshl_b32 s50, s37, 12"); p("s_add_u32 s51, s51, s50")
    p("s_lshl_b32 s52, s47, 7"); p("s_add_u32 s52, s52, 0x%x" % WS_FLAG)
    p("s_lshl_b32 s50, s33, 14"); p("s_add_u32 s50, s50, s51"); p("s_lshl_b32 s53, s36, 17"); p("s_add_u32 s50, s50, s53")
    p("s_lshl_b32 s53, s36, 1")
    for bb in range(2):
        p("s_add_u32 s54, s50, %d" % (bb * 65536)); p("s_add_u32 s55, s53, %d" % bb); p("s_cmp_eq_u32 s55, s33"); p("s_cselect_b32 s54, 0x20000000, s54")
        for q in range(4): p("buffer_store_dwordx4 %s, v%d, s[24:27], s54 offen offset:%d sc1" % (vr(16 * bb + 4 * q), VL16, q * 1024))
    p("s_waitcnt vmcnt(0)"); p("s_barrier")
    stamp(p, 17)
    p("s_lshr_b32 s54, s33, 1"); p("s_cmp_lg_u32 s54, s36"); p("s_cbranch_scc1 OUT_FIN")
    p("s_cmp_lg_u32 s37, 0"); p("s_cbranch_scc1 OUT_NOFLAG")
    p("v_mov_b32 v96, 1"); p("v_mov_b32 v97, 0"); p("s_lshl_b32 s54, s33, 2"); p("s_add_u32 s54, s54, s52")
    p("s_mov_b64 exec, 1")
    p("buffer_store_dword v96, v97, s[24:27], s54 offen sc1")
    p("s_mov_b64 exec, -1")
    p.label("OUT_NOFLAG")
    p("s_and_b32 s54, s33, 1"); p("s_cmp_eq_u32 s54, 0"); p("s_cbranch_scc1 OUT_OWN")
    for r in range(16): p("v_mov_b32 v%d, v%d" % (r, 16 + r))
    p.label("OUT_OWN")
    p("v_mov_b32 v97, 0"); p("s_mov_b32 s55, 0")
    p.label("OUT_POLL")
    p("buffer_load_dwordx4 v[100:103], v97, s[24:27], s52 offen sc1")
    p("s_add_u32 s55, s55, 1")
    p("v_and_b32 v100, v100, v101"); p("v_and_b32 v102, v102, v103"); p("v_and_b32 v100, v100, v102"); p("s_nop 0")
    p("v_readfirstlane_b32 s54, v100", note="=one"); p("s_nop 1")
    p("s_cmp_eq_u32 s54, 1"); p("s_cbranch_scc1 OUT_GO")
    p("s_sleep 1")
    p("s_cmp_lt_u32 s55, 0x40000"); p("s_cbranch_scc1 OUT_POLL")
    p.label("OUT_GO")
    stamp(p, 18)
    p("s_lshl_b32 s50, s33, 16"); p("s_add_u32 s50, s50, s51")
    for k in range(1, 4):
        p("s_add_u32 s54, s33, %d" % k); p("s_and_b32 s54, s54, 3"); p("s_lshl_b32 s54, s54, 14"); p("s_add_u32 s54, s54, s50")
        for q in range(4): p("buffer_load_dwordx4 %s, v%d, s[24:27], s54 offen offset:%d sc1" % (vr(16 * k + 4 * q), VL16, q * 1024))
    for q in range(4):
        for e in range(2):
            p("v_lshlrev_b32 v%d, 16, v%d" % (64 + 4 * q + 2 * e, 88 + 2 * q + e)); p("v_and_b32 v%d, 0xffff0000, v%d" % (65 + 4 * q + 2 * e, 88 + 2 * q + e))
    for r in range(16): p("v_add_f32 v%d, v%d, v%d" % (r, r, 64 + r))
    for k in range(1, 4):
        for r in range(16): p("v_add_f32 v%d, v%d, v%d" % (r, r, 16 * k + r))
    for q in range(4):
        p("v_cvt_pk_bf16_f32 v%d, v%d, v%d" % (64 + 2 * q, 4 * q, 4 * q + 1)); p("v_cvt_pk_bf16_f32 v%d, v%d, v%d" % (65 + 2 * q, 4 * q + 2, 4 * q + 3))
        p("buffer_store_dwordx2 v[%d:%d], v%d, s[8:11], s39 offen offset:%d" % (64 + 2 * q, 65 + 2 * q, VXO, q * 16))
    p.label("OUT_FIN")
    stamp(p, 19)
    stamp_flush(p, 21, 24, 32, 96)
    p.label("OUT_END")
    p("s_endpgm")
    return kernel_desc(name, 256, 128, 102)

def build(which=("kv",)):
    p = Prog()
    hdr = open("cdna_kernels/%s.s.ref" % NAME).read().split("; Override launch")[0]
    p.raw(hdr.rstrip())
    L = {"kv": "; @launch kernel=kv_kernel grid=(256,1,1) block=(512,1,1) lds=163840",
         "at": "; @launch kernel=at_kernel grid=(256,1,1) block=(512,1,1) lds=163840",
         "out": "; @launch kernel=out_kernel grid=(256,1,1) block=(512,1,1) lds=163840"}
    for k in which: p.raw(L[k])
    p.raw('.amdgcn_target "amdgcn-amd-amdhsa--gfx950"'); p.raw(".text")
    descs = []
    G = globals()
    for k in which: descs.append(G["gen_" + k](p))
    p.raw('.section .rodata,"a"')
    for d in descs: p.raw(d)
    return p

def selfcheck(p, which):
    bad = []
    cases = {"kv": [(0, 0), (1, 3), (6, 7), (255, 5)], "at": [(0, 0), (0, 3), (0, 4), (0, 7), (100, 1), (100, 6), (255, 2), (255, 5)],
             "out": [(0, 0), (0, 4), (1, 1), (2, 6), (3, 3), (3, 7), (255, 4)]}
    for k in which:
        for wg in sorted(set(c[0] for c in cases[k])):
            pass
        for wg, wave in cases[k]:
            tr = trace(p, k + "_kernel", wg, wave)
            pr = check_trace(tr, "%s wg%d w%d" % (k, wg, wave))
            nb = sum(1 for i in tr if i.mn == "s_barrier"); nm = sum(1 for i in tr if i.kind == "mfma")
            print("%s wg%d w%d: %d instrs, %d mfma, %d barriers, %d problems" % (k, wg, wave, len(tr), nm, nb, len(pr)))
            bad += pr
    for b in bad[:40]: print(b)
    return not bad

if __name__ == "__main__":
    which = sys.argv[2].split(",") if len(sys.argv) > 2 else ["kv"]
    for o in sys.argv[3:]:
        if o == "stamp": STAMP = True
        else:
            k, v = o.split("="); OPT[k] = int(v) if v.isdigit() else v.replace("_", " ").strip()
    p = build(which)
    ok = selfcheck(p, which)
    open(sys.argv[1], "w").write(p.text())
    import subprocess
    r = subprocess.run(["clang", "-x", "assembler", "-target", "amdgcn-amd-amdhsa", "-mcpu=gfx950", "-c", sys.argv[1], "-o", "chk.o"], capture_output=True, text=True)
    print("written", sys.argv[1], "OK" if ok else "PROBLEMS", "ASM-OK" if r.returncode == 0 else "ASM-FAIL\n" + r.stderr[:2000])
```

```python
import sys, struct
from fw import *

NAME = "parallel_sum__compressed_kv_cla__swiglu_ffn__prompt"
KN = NAME + "_kernel"
WS_XN = 0x0000000
WS_K = 0x0200000
WS_V = 0x1200000
WS_CH = 0x2200000
WS_PART = 0x4000000
WS_FLAG = 0x5000000
WS_BYTES = 0x10000000
OOB = 0x20000000
MF = "v_mfma_f32_16x16x32_bf16"
STAMP = False
OPT = {}
def f32hex(x): return "0x%08x" % struct.unpack("<I", struct.pack("<f", x))[0]
QSCALE = 1.4426950408889634 / (128 ** 0.5)
THR = float(2 ** 20)

R_WS, R_W1, R_CKV, R_X, R_WQ, R_WG, R_WU, R_WO, R_WD, R_OUT, R_DBG = 8, 12, 16, 20, 24, 28, 32, 36, 40, 44, 48
def sr(r): return "s[%d:%d]" % (r, r + 3)
sWAVE, sIDX, sX8, sT0, sT1, sT2, sT3 = 3, 4, 5, 6, 7, 52, 53
sU1, sO1, sO1B, sLW, sLT, sLNROW = 54, 55, 56, 57, 58, 59
sHEAD, sTB, sLAST, sS4, sF0, sQC, sXN, sHO, sHO2, sCTX, sHB = 60, 61, 62, 63, 64, 65, 66, 67, 68, 69, 70
sSRC, sDST, sMAX, sRB, sRING, sTHR, sUU, sTE, sPF = 71, 72, 73, 74, 75, 76, 77, 78, 79
sTAB = 80
sRO2, sROH = 96, 97
VL16, VWR, VD8, VDG, VDT, VTA, VONE, VDUM, VPOLL, VL128, VSP = 112, 113, 117, 118, 119, 121, 123, 124, 125, 126, 127
FRB, FR = 64, 8
EG = [(0, 0), (0, 1), (1, 0), (1, 1)]
FG = [(0, 2), (0, 3), (1, 2), (1, 3)]

def emit_tagged(p, toks, text, tag):
    if tag is not None and tag.startswith("m0:"):
        p.m0own = tag[3:]; p(text); return
    if text.endswith(" lds"):
        assert getattr(p, "m0own", None) == tag, ("m0 owner mismatch", text, tag, p.m0own)
    t = p(text)
    if tag is not None: toks.setdefault(tag, []).append(t)

class Slots:
    def __init__(self): self.s = []
    def add(self, mfma): self.s.append(dict(m=mfma, pre=[], f=[])); return len(self.s) - 1
    def put(self, slot, text, tag=None):
        assert 0 <= slot < len(self.s), slot
        self.s[slot]["f"].append((text, tag))
    def spread(self, start, items, per=1, step=1):
        k = 0
        for it in items:
            sl = start + (k // per) * step
            if isinstance(it, tuple): self.put(sl, it[0], it[1])
            else: self.put(sl, it)
            k += 1
        return start + ((k + per - 1) // per) * step
    def emit(self, p, toks, lo=0, hi=None):
        for sl in self.s[lo:hi]:
            for it in sl["pre"]: it(p)
            p(sl["m"])
            for text, tag in sl["f"]:
                if callable(text): text(p)
                else: emit_tagged(p, toks, text, tag)

def stamp(p, i):
    if not STAMP: return
    lq, vq = list(p.lq), list(p.vq)
    p.auto = False
    p("s_memtime s[100:101]"); p("s_waitcnt lgkmcnt(0)")
    p("v_mov_b32 v%d, s100" % VDUM, note="diag")
    p("buffer_store_dword v%d, v%d, %s, s99 offen offset:%d" % (VDUM, VONE, sr(R_WS), 4 * i), note="diag")
    p.auto = True
    p.lq, p.vq = [], vq

def acc_stamp(p, i):
    if not (STAMP and OPT.get("acc", 0)): return
    lq = list(p.lq); p.auto = False
    p("s_memtime s[100:101]"); p("s_waitcnt lgkmcnt(0)"); p("s_sub_u32 s101, s100, s98"); p("s_mov_b32 s98, s100")
    p("v_accvgpr_read_b32 v%d, a%d" % (VPOLL, 120 + i)); p("s_nop 0"); p("v_add_u32 v%d, s101, v%d" % (VPOLL, VPOLL)); p("s_nop 0"); p("v_accvgpr_write_b32 a%d, v%d" % (120 + i, VPOLL))
    p.auto = True; p.lq = lq
def acc_flush(p):
    if not (STAMP and OPT.get("acc", 0)): return
    vq = list(p.vq)
    for i in range(8):
        p("v_accvgpr_read_b32 v%d, a%d" % (96 + i, 120 + i))
        p("s_nop 0")
        p("buffer_store_dword v%d, v%d, %s, s99 offen offset:%d" % (96 + i, VONE, sr(R_WS), 4 * (32 + i)))
    p.vq = vq

def cond(p, text):
    p(text); p.vq.pop()

def wave_sum(q, v):
    for sh in (1, 2, 4, 8):
        q("s_nop 1"); q("v_add_f32_dpp v%d, v%d, v%d row_shr:%d row_mask:0xf bank_mask:0xf bound_ctrl:0" % (v, v, v, sh))
    q("s_nop 1"); q("v_add_f32_dpp v%d, v%d, v%d row_bcast:15 row_mask:0xa bank_mask:0xf" % (v, v, v))
    q("s_nop 1"); q("v_add_f32_dpp v%d, v%d, v%d row_bcast:31 row_mask:0xc bank_mask:0xf" % (v, v, v))

class Rec:
    def __init__(self): self.l = []
    def __call__(self, t, note=None): self.l.append(t)

def poll_issue(srd, soff):
    if soff.isdigit(): soff = "0 offset:" + soff
    return "buffer_load_dword v%d, off, %s, %s sc1" % (VPOLL, sr(srd), soff)
def poll_check(srd, soff, expect, w0=False):
    def f(p):
        ok, lp = p.newlabel("PK"), p.newlabel("PL")
        if w0: p("v_mov_b32 v%d, v%d" % (VPOLL, VPOLL)); p("s_cmp_lg_u32 s%d, 0" % sWAVE); p("s_cbranch_scc1 %s" % ok)
        p("v_readfirstlane_b32 s%d, v%d" % (sT0, VPOLL), note="=val %d" % expect); p("s_mov_b32 s%d, 0" % sT1)
        p("s_cmp_ge_u32 s%d, %d" % (sT0, expect)); p("s_cbranch_scc1 %s" % ok)
        lq, vq = list(p.lq), list(p.vq)
        p.label(lp)
        p("s_sleep 4"); p(poll_issue(srd, soff)); p("s_add_u32 s%d, s%d, 1" % (sT1, sT1)); p("s_waitcnt vmcnt(0)")
        p("v_readfirstlane_b32 s%d, v%d" % (sT0, VPOLL), note="=val %d" % expect)
        p("s_cmp_ge_u32 s%d, 0x40000" % sT1); p("s_cbranch_scc1 %s" % ok)
        p("s_cmp_lt_u32 s%d, %d" % (sT0, expect)); p("s_cbranch_scc1 %s" % lp)
        p.lq, p.vq = lq, vq
        p.label(ok)
    return f
def signal(off):
    def f(p):
        sk = p.newlabel("SG")
        p("s_cmp_lg_u32 s%d, 0" % sWAVE); p("s_cbranch_scc1 %s" % sk)
        p("v_mov_b32 v%d, 1" % VSP)
        cond(p, "buffer_atomic_add v%d, v%d, %s, 0 offen offset:%d sc1" % (VSP, VONE, sr(R_DBG), off))
        p.label(sk)
    return f

def engine(toks, items, slot_of, mfma_fn, wdma_fn, prev, minbar, issued, rd2, cur_base, LA=6, extra_wait=None, after_bar=None, before_bar=None, maxnew=2):
    S = Slots(); frags = []
    for (sl, grp) in items:
        for kk in range(2):
            for (sub, cbp) in grp: frags.append((sl, kk, sub, cbp))
    for n, (sl, kk, sub, cbp) in enumerate(frags):
        for th in range(2): S.add(mfma_fn(sl, kk, 4 * sub + cbp, th, FRB + 4 * (n % FR)))
    n2 = len(S.s)
    first_read, last_use, pro = {}, {}, []
    for n, (sl, kk, sub, cbp) in enumerate(frags):
        fr = FRB + 4 * (n % FR); rs = 2 * (n - LA); base = slot_of[sl] * 16384
        L = []
        if cur_base[cbp] != base:
            L.append(("v_add_u32 v%d, 0x%x, v%d" % (VWR + cbp, (base - cur_base[cbp]) & 0xffffffff, VWR + cbp), None)); cur_base[cbp] = base
        o = sub * 8192 + kk * 4096
        L.append(("ds_read_b64_tr_b16 %s, v%d offset:%d" % (vr(fr, 2), VWR + cbp, o), "F%d" % n))
        L2 = ("ds_read_b64_tr_b16 %s, v%d offset:%d" % (vr(fr + 2, 2), VWR + cbp, o + rd2), "F%d" % n)
        if rs < 0: pro += L + [L2]
        else:
            for it in L: S.put(rs, it[0], it[1])
            S.put(rs + 1, L2[0], L2[1])
        first_read.setdefault(sl, rs); last_use[sl] = 2 * n + 1
        if n % 2 == 0 and n + 1 < len(frags):
            S.s[2 * n]["pre"].append(lambda p, n=n: p.wait_tok(toks["F%d" % (n + 1)]))
    bpos = list(range(16, n2, 32))
    waited = set(s for s in first_read if first_read[s] < bpos[0]); init_need = sorted(waited)
    issued = set(issued); extra_wait = extra_wait or {}; after_bar = after_bar or {}
    order = sorted(first_read, key=lambda s: first_read[s])
    for bi, bp in enumerate(bpos):
        nxt = bpos[bi + 1] if bi + 1 < len(bpos) else n2 + 100
        need = [s for s in order if s not in waited and first_read[s] < nxt]
        for s in need: assert s in issued, ("slab %d needed at barrier %d but not issued" % (s, bp))
        waited |= set(need)
        new = [s for s in order if s not in issued and (prev.get(s) is None or last_use[prev[s]] < bp) and minbar.get(s, 0) <= bp][:maxnew]
        tags = ["W%d" % s for s in need] + extra_wait.get(bp, [])
        def f(p, tags=tags, bp=bp):
            fine = OPT.get("fine", 0) and n2 > 512
            if fine: stamp(p, 64 + 3 * (bp // 32))
            for g in (before_bar or {}).get(bp, []): g(p)
            p.wait_tok(sum([toks.get(t, []) for t in tags], []))
            if fine: stamp(p, 65 + 3 * (bp // 32))
            p("s_barrier")
            if fine: stamp(p, 66 + 3 * (bp // 32))
            for g in after_bar.get(bp, []): g(p)
        if tags or new or bp in after_bar or bp in (before_bar or {}): S.s[bp]["pre"].insert(0, f)
        k = 0
        for s in new:
            issued.add(s)
            for it in wdma_fn(s):
                S.put(bp + k, it[0], it[1]); k += 1
    assert issued >= set(first_read), sorted(set(first_read) - issued)
    return S, pro, init_need, last_use

def rot8(t, c, scale, base, ro=None):
    if OPT.get("half", 0):
        return [("s_add_u32 s%d, s%d, %d" % (t, sROH, c), None), ("s_and_b32 s%d, s%d, 3" % (t, t), None), ("s_add_u32 s%d, s%d, %d" % (t, t, c & 4), None), (scale, None),
                ("s_add_u32 s%d, s%d, s%d" % (t, t, base), None)]
    return [("s_add_u32 s%d, s%d, %d" % (t, sRO2 if ro is None else ro, c), None), ("s_and_b32 s%d, s%d, 7" % (t, t), None), (scale, None),
            ("s_add_u32 s%d, s%d, s%d" % (t, t, base), None)]

def treg(kap, th): return 16 * (kap >> 1) + 8 * (kap & 1) + 4 * th

def setup(p):
    p("s_cmp_ge_u32 s2, 256"); p("s_cbranch_scc1 K_END")
    p("s_lshr_b32 s%d, s2, 2" % sT0); p("s_and_b32 s%d, s%d, 1" % (sU1, sT0)); p("s_lshl_b32 s%d, s%d, 3" % (sT0, sU1)); p("s_add_u32 s%d, s%d, 24" % (sT0, sT0))
    p("s_load_dwordx2 s[%d:%d], s[0:1], s%d" % (R_W1, R_W1 + 1, sT0))
    for r, off in ((R_CKV, 8), (R_WS, 96), (R_X, 0), (R_WQ, 16), (R_WO, 40), (R_WG, 56), (R_WU, 64), (R_WD, 72), (R_OUT, 80), (R_DBG, 88)):
        p("s_load_dwordx2 s[%d:%d], s[0:1], %d" % (r, r + 1, off))
    for r, n in ((R_W1, 4194304), (R_CKV, 2097152), (R_WS, WS_BYTES), (R_X, 2097152), (R_WQ, 4194304), (R_WO, 4194304), (R_WG, 512 * 3584),
                 (R_WU, 512 * 3584), (R_WD, 1792 * 1024), (R_OUT, 2097152), (R_DBG, 256)):
        p("s_mov_b32 s%d, 0x%x" % (r + 2, n)); p("s_mov_b32 s%d, 0x00020000" % (r + 3))
    L, A, B, C = 96, 97, 98, 99
    p("v_lshrrev_b32 v1, 6, v0"); p("v_and_b32 v%d, 63, v0" % L)
    p("v_readfirstlane_b32 s%d, v1" % sWAVE, note="=wave")
    p("s_lshr_b32 s%d, s2, 3" % sIDX); p("s_and_b32 s%d, s2, 7" % sX8)
    p("v_lshlrev_b32 v%d, 4, v%d" % (VL16, L)); p("v_lshlrev_b32 v%d, 7, v%d" % (VL128, L))
    p("v_cmp_ne_u32 vcc, 0, v%d" % L); p("v_mov_b32 v%d, 0" % VONE); p("v_mov_b32 v%d, 0x40000000" % A)
    p("v_cndmask_b32 v%d, v%d, v%d, vcc" % (VONE, VONE, A))
    p("v_bfe_u32 v%d, v%d, 1, 2" % (A, L)); p("v_bfe_u32 v%d, v%d, 4, 1" % (B, L)); p("v_xor_b32 v%d, v%d, v%d" % (A, A, B))
    p("s_and_b32 s%d, s%d, 1" % (sT0, sWAVE)); p("s_lshl_b32 s%d, s%d, 1" % (sT0, sT0)); p("v_xor_b32 v%d, s%d, v%d" % (A, sT0, A))
    p("v_and_b32 v%d, 1, v%d" % (B, L)); p("v_lshlrev_b32 v%d, 4, v%d" % (B, B)); p("v_lshl_add_u32 v%d, v%d, 5, v%d" % (A, A, B))
    p("v_lshrrev_b32 v%d, 3, v%d" % (B, L)); p("s_lshl_b32 s%d, s%d, 3" % (sT0, sWAVE)); p("v_add_u32 v%d, s%d, v%d" % (B, sT0, B))
    p("v_lshl_add_u32 v%d, v%d, 13, v%d" % (VD8, B, A))
    p("v_mul_u32_u24 v%d, 3584, v%d" % (B, B)); p("v_add_u32 v%d, v%d, v%d" % (VDG, B, A))
    p("s_and_b32 s%d, s2, 1" % sT0); p("s_lshl_b32 s%d, s%d, 2" % (sT0, sT0)); p("s_and_b32 s%d, s%d, 3" % (sT1, sIDX))
    p("s_add_u32 s%d, s%d, s%d" % (sT0, sT0, sT1)); p("s_lshl_b32 s%d, s%d, 3" % (sT0, sT0)); p("s_add_u32 s%d, s%d, s%d" % (sO1B, sT0, sWAVE))
    p("v_lshrrev_b32 v%d, 3, v%d" % (A, L)); p("v_lshlrev_b32 v%d, 10, v%d" % (A, A)); p("s_lshl_b32 s%d, s%d, 15" % (sT0, sO1B)); p("v_add_u32 v%d, s%d, v%d" % (A, sT0, A))
    p("v_lshrrev_b32 v%d, 4, v%d" % (B, L)); p("v_and_b32 v%d, 7, v%d" % (C, L)); p("v_xor_b32 v%d, v%d, v%d" % (B, B, C))
    p("v_lshl_add_u32 v%d, v%d, 4, v%d" % (VDT, B, A)); p("v_xor_b32 v%d, 4, v%d" % (B, B)); p("v_lshl_add_u32 v%d, v%d, 4, v%d" % (VDT + 1, B, A))
    p("s_lshl_b32 s%d, s%d, 12" % (sLT, sWAVE)); p("s_add_u32 s%d, s%d, 65536" % (sLT, sLT)); p("s_lshl_b32 s%d, s%d, 10" % (sLW, sWAVE))
    p("s_lshr_b32 s%d, s%d, 2" % (sT0, sIDX)); p("s_lshl_b32 s%d, s%d, 1" % (sT1, sT1)); p("s_add_u32 s%d, s%d, s%d" % (sT1, sT1, sT0))
    if not OPT.get("rot", 1): p("s_mov_b32 s%d, 0" % sT1)
    p("s_and_b32 s%d, s2, 2" % sT2); p("s_lshl_b32 s%d, s%d, 2" % (sT2, sT2)); p("s_add_u32 s%d, s%d, s%d" % (sT2, sT2, sT0))
    p("s_lshl_b32 s%d, s%d, 20" % (sO1, sT2)); p("s_lshl_b32 s%d, s%d, 9" % (sT2, sT2))
    for c in range(8):
        p("s_add_u32 s%d, s%d, %d" % (sT0, sT1, c)); p("s_and_b32 s%d, s%d, 7" % (sT0, sT0))
        p("s_lshl_b32 s%d, s%d, 7" % (sTAB + c, sT0)); p("s_lshl_b32 s%d, s%d, 19" % (sT0, sT0)); p("s_add_u32 s%d, s%d, s%d" % (sTAB + 8 + c, sT0, sT2))
    p("s_waitcnt lgkmcnt(0)")

def setup2(p):
    L, A, B, C = 96, 97, 98, 99
    p("v_bfe_u32 v%d, v%d, 2, 2" % (A, L)); p("v_lshrrev_b32 v%d, 4, v%d" % (B, L))
    p("v_lshl_add_u32 v%d, v%d, 3, v%d" % (C, B, A)); p("v_lshlrev_b32 v%d, 7, v%d" % (C, C))
    p("v_and_b32 v100, 3, v%d" % L); p("v_lshl_add_u32 v%d, v100, 3, v%d" % (C, C))
    p("v_bfe_u32 v%d, v%d, 3, 2" % (A, L))
    for b in range(4):
        p("v_xor_b32 v100, %d, v%d" % (b, A)); p("v_lshl_add_u32 v%d, v100, 5, v%d" % (VWR + b, C))
    p("v_and_b32 v%d, 15, v%d" % (A, L)); p("v_bfe_u32 v%d, v%d, 1, 3" % (B, L)); p("v_lshrrev_b32 v%d, 4, v%d" % (C, L))
    p("v_xor_b32 v%d, v%d, v%d" % (B, B, C)); p("v_lshlrev_b32 v%d, 4, v%d" % (B, B)); p("v_lshl_add_u32 v%d, v%d, 7, v%d" % (A, A, B))
    p("v_add_u32 v%d, s%d, v%d" % (VTA, sLT, A)); p("v_xor_b32 v%d, 64, v%d" % (VTA + 1, VTA))
    p("s_lshl_b32 s%d, s%d, 24" % (sT0, sU1)); p("s_add_u32 s%d, s%d, s%d" % (sO1, sO1, sT0)); p("s_add_u32 s%d, s%d, 0x%x" % (sO1, sO1, WS_K))
    p("s_lshl_b32 s%d, s%d, 13" % (sT0, sO1B)); p("s_add_u32 s%d, s%d, s%d" % (sO1, sO1, sT0)); p("s_add_u32 s%d, s%d, 4096" % (sO1B, sO1))
    p("s_lshl_b32 s%d, s2, 3" % sLNROW); p("s_add_u32 s%d, s%d, s%d" % (sLNROW, sLNROW, sWAVE))
    p("s_lshl_b32 s%d, s%d, 2" % (sHEAD, sX8)); p("s_and_b32 s%d, s%d, 3" % (sT0, sIDX)); p("s_add_u32 s%d, s%d, s%d" % (sHEAD, sHEAD, sT0))
    p("s_and_b32 s%d, s%d, 3" % (sS4, sWAVE))
    p("s_and_b32 s%d, s%d, 28" % (sT0, sIDX))
    p("s_add_u32 s%d, s%d, 3" % (sTB, sT0)); p("s_sub_u32 s%d, s%d, s%d" % (sTB, sTB, sS4))
    p("s_sub_u32 s%d, 60, s%d" % (sT0, sT0)); p("s_add_u32 s%d, s%d, s%d" % (sT1, sT0, sS4))
    p("s_cmp_ge_u32 s%d, 4" % sWAVE); p("s_cselect_b32 s%d, s%d, s%d" % (sTB, sT1, sTB))
    p("s_add_u32 s%d, s%d, 3" % (sLAST, sT0))
    p("s_lshl_b32 s%d, s%d, 7" % (sF0, sHEAD)); p("s_lshl_b32 s%d, s%d, 6" % (sT0, sHEAD)); p("s_add_u32 s%d, s%d, 1536" % (sT0, sT0))
    p("s_cmp_ge_u32 s%d, 24" % sHEAD); p("s_cselect_b32 s%d, s%d, s%d" % (sF0, sT0, sF0))
    p("s_lshl_b32 s%d, s%d, 8" % (sQC, sHEAD))
    p("s_lshl_b32 s%d, s%d, 15" % (sXN, sTB)); p("s_add_u32 s%d, s%d, 0x%x" % (sXN, sXN, WS_XN))
    p("s_mul_i32 s%d, s%d, %d" % (sCTX, sTB, 368 * 1024)); p("s_add_u32 s%d, s%d, 0x%x" % (sCTX, sCTX, WS_CH))
    p("s_lshl_b32 s%d, s%d, 5" % (sHO, sF0)); p("s_add_u32 s%d, s%d, s%d" % (sHO, sHO, sCTX)); p("s_add_u32 s%d, s%d, %d" % (sHO, sHO, 256 * 1024))
    p("s_add_u32 s%d, s%d, 2048" % (sHO2, sHO)); p("s_cmp_ge_u32 s%d, 24" % sHEAD); p("s_cselect_b32 s%d, 0x%x, s%d" % (sHO2, OOB, sHO2))
    p("s_lshl_b32 s%d, s%d, 13" % (sT0, sHEAD)); p("s_add_u32 s%d, s%d, s%d" % (sCTX, sCTX, sT0))
    p("s_lshl_b32 s%d, s%d, 19" % (sHB, sHEAD))
    p("s_lshr_b32 s%d, s%d, 7" % (sRO2, sTAB))
    if not OPT.get("rot2", 1): p("s_mov_b32 s%d, 0" % sRO2)
    p("s_lshr_b32 s%d, s%d, 2" % (sROH, sIDX)); p("s_add_u32 s%d, s%d, s%d" % (sROH, sROH, sIDX))
    if STAMP:
        p("s_lshl_b32 s99, s2, 3"); p("s_add_u32 s99, s99, s%d" % sWAVE); p("s_lshl_b32 s99, s99, 10"); p("s_add_u32 s99, s99, 0x6000000")

WS_STAT = 0x5100000
def ln_list_a():
    q = Rec(); T0, T1, T2, XR, F = VPOLL, 98, 99, 100, 104
    for j in range(4):
        q("v_lshlrev_b32 v%d, 16, v%d" % (F + 2 * j, XR + j)); q("v_and_b32 v%d, 0xffff0000, v%d" % (F + 2 * j + 1, XR + j))
    q("v_and_b32 v%d, 0x70, v%d" % (T1, VL16)); q("v_lshlrev_b32 v%d, 6, v%d" % (T1, T1)); q("v_lshrrev_b32 v%d, 7, v%d" % (T2, VL16))
    q("v_lshl_add_u32 v%d, v%d, 4, v%d" % (T1, T2, T1))
    q("s_lshl_b32 s%d, s2, 13" % sSRC); q("s_lshl_b32 s%d, s%d, 7" % (sDST, sWAVE)); q("s_add_u32 s%d, s%d, s%d" % (sSRC, sSRC, sDST))
    q("buffer_load_dwordx4 %s, v%d, %s, s%d offen" % (vr(XR), T1, sr(R_X), sSRC))
    q("v_add_f32 v%d, v%d, v%d" % (T0, F, F + 1))
    for j in range(2, 8): q("v_add_f32 v%d, v%d, v%d" % (T0, T0, F + j))
    wave_sum(q, T0)
    q("s_nop 0"); q("v_readlane_b32 s%d, v%d, 63" % (sSRC, T0))
    q("v_mov_b32 v%d, 0x3b000000" % T1); q("s_nop 0"); q("v_mul_f32 v%d, s%d, v%d" % (T1, sSRC, T1))
    q("v_sub_f32 v%d, v%d, v%d" % (T2, F, T1)); q("v_mul_f32 v%d, v%d, v%d" % (T0, T2, T2))
    for j in range(1, 8):
        q("v_sub_f32 v%d, v%d, v%d" % (T2, F + j, T1)); q("v_fmac_f32 v%d, v%d, v%d" % (T0, T2, T2))
    wave_sum(q, T0)
    q("s_nop 0"); q("v_readlane_b32 s%d, v%d, 63" % (sSRC, T0))
    q("v_mov_b32 v%d, 0x3b000000" % T2); q("s_nop 0"); q("v_mul_f32 v%d, s%d, v%d" % (T2, sSRC, T2))
    q("v_cvt_pk_bf16_f32 v%d, v%d, v%d" % (T0, T1, T2))
    q("v_lshlrev_b32 v%d, 16, v%d" % (T1, T0)); q("v_and_b32 v%d, 0xffff0000, v%d" % (T2, T0))
    q("v_add_f32 v%d, 0x3727c5ac, v%d" % (T2, T2))
    q("v_cvt_pk_bf16_f32 v%d, v%d, v%d" % (T2, T2, T2)); q("v_lshlrev_b32 v%d, 16, v%d" % (T2, T2))
    q("v_sqrt_f32 v%d, v%d" % (T2, T2)); q("s_lshl_b32 s%d, s%d, 3" % (sSRC, sLNROW))
    q("v_cvt_pk_bf16_f32 v%d, v%d, v%d" % (T2, T2, T2)); q("v_lshlrev_b32 v%d, 16, v%d" % (T2, T2))
    q("s_add_u32 s%d, s%d, 0x%x" % (sSRC, sSRC, WS_STAT))
    L = list(q.l)
    L.append(("buffer_store_dwordx2 v[%d:%d], v%d, %s, s%d offen sc1" % (T1, T2, VONE, sr(R_WS), sSRC), "LS"))
    return L
def ln_list_b0():
    return ["v_and_b32 v104, 0x70, v%d" % VL16, "v_lshrrev_b32 v104, 1, v104", "s_lshl_b32 s%d, s2, 6" % sSRC, "s_add_u32 s%d, s%d, 0x%x" % (sSRC, sSRC, WS_STAT),
            "buffer_load_dwordx2 v[98:99], v104, %s, s%d offen sc1" % (sr(R_WS), sSRC)]
def ln_list_b():
    q = Rec(); M, SD, XR, F, R, T = 98, 99, 100, 104, VSP, VPOLL
    q("v_rcp_f32 v%d, v%d" % (R, SD))
    for j in range(4):
        q("v_lshlrev_b32 v%d, 16, v%d" % (F + 2 * j, XR + j)); q("v_and_b32 v%d, 0xffff0000, v%d" % (F + 2 * j + 1, XR + j))
    for j in range(8): q("v_sub_f32 v%d, v%d, v%d" % (F + j, F + j, M))
    for j in range(4): q("v_cvt_pk_bf16_f32 v%d, v%d, v%d" % (XR + j, F + 2 * j, F + 2 * j + 1))
    for j in range(4):
        q("v_lshlrev_b32 v%d, 16, v%d" % (F + 2 * j, XR + j)); q("v_and_b32 v%d, 0xffff0000, v%d" % (F + 2 * j + 1, XR + j))
    for j in range(8):
        q("v_mul_f32 v%d, v%d, v%d" % (T, F + j, R)); q("v_fma_f32 v%d, -v%d, v%d, v%d" % (F + j, T, SD, F + j))
        q("v_fma_f32 v%d, v%d, v%d, v%d" % (F + j, F + j, R, T))
    for j in range(4): q("v_cvt_pk_bf16_f32 v%d, v%d, v%d" % (XR + j, F + 2 * j, F + 2 * j + 1))
    q("v_and_b32 v%d, 0x200, v%d" % (T, VL16)); q("v_lshlrev_b32 v%d, 2, v%d" % (T, T))
    q("v_and_b32 v%d, 0x180, v%d" % (R, VL16)); q("v_lshl_add_u32 v%d, v%d, 1, v%d" % (T, R, T))
    q("v_and_b32 v%d, 0x70, v%d" % (R, VL16)); q("v_add_u32 v%d, v%d, v%d" % (T, T, R))
    q("s_lshr_b32 s%d, s2, 2" % sSRC); q("s_lshl_b32 s%d, s%d, 15" % (sSRC, sSRC))
    q("s_and_b32 s%d, s2, 1" % sDST); q("s_lshl_b32 s%d, s%d, 7" % (sDST, sDST)); q("s_add_u32 s%d, s%d, s%d" % (sSRC, sSRC, sDST))
    q("s_and_b32 s%d, s2, 2" % sDST); q("s_lshl_b32 s%d, s%d, 9" % (sDST, sDST)); q("s_add_u32 s%d, s%d, s%d" % (sSRC, sSRC, sDST))
    q("s_lshl_b32 s%d, s%d, 12" % (sDST, sWAVE)); q("s_add_u32 s%d, s%d, s%d" % (sSRC, sSRC, sDST))
    L = list(q.l)
    L.append(("buffer_store_dwordx4 %s, v%d, %s, s%d offen sc1" % (vr(XR), T, sr(R_WS), sSRC), "LN"))
    return L

SLOT = [0, 1, 2, 3, 0, 1, 2, 3, 0, 8, 9, 1, 4, 5, 2, 6,   3, 7, 0, 8, 9, 1, 4, 5,   2, 6, 3, 7, 8, 9, 6, 7]
def p12(p):
    setup(p)
    toks = {}
    def run(lst):
        for it in lst:
            if isinstance(it, tuple): emit_tagged(p, toks, it[0], it[1])
            else: p(it)
    def wdma(s):
        t = "W%d" % s; b = SLOT[s] * 16384
        if s < 16:
            ps, c = divmod(s, 8); so = "s%d" % (sTAB + 8 + c); L = []
            if ps: L.append(("s_add_u32 s%d, %s, 256" % (sT2, so), None)); so = "s%d" % sT2
            rs, v1, rs2, off2, m2 = R_W1, VD8, R_W1, 128, 8192 - 128
        elif s < 24:
            L = rot8(sT2, s - 16, "s_mul_i32 s%d, s%d, %d" % (sT2, sT2, 64 * 3584), sF0); so = "s%d" % sT2
            rs, v1, rs2, off2, m2 = R_WG, VDG, R_WU, 0, 8192
        else:
            L = rot8(sT2, s - 24, "s_lshl_b32 s%d, s%d, 19" % (sT2, sT2), sQC); so = "s%d" % sT2
            rs, v1, rs2, off2, m2 = R_WQ, VD8, R_WQ, 128, 8192 - 128
        return [("s_add_u32 m0, s%d, %d" % (sLW, b), "m0:" + t)] + (L or [("s_nop 0", None)]) + [
            ("buffer_load_dwordx4 v%d, %s, %s offen lds" % (v1, sr(rs), so), t),
            ("s_add_u32 m0, s%d, %d" % (sLW, b + m2), "m0:" + t), ("s_nop 0", None),
            ("buffer_load_dwordx4 v%d, %s, %s offen offset:%d lds" % (v1, sr(rs2), so, off2), t)]
    def tdma(c):
        t = "T%d" % c
        L = [("s_add_u32 m0, s%d, %d" % (sLT, (c % 3) * 32768), "m0:" + t), ("s_nop 0", None)]
        for q in range(4):
            so = "s%d" % (sTAB + c)
            if q: L.append(("s_add_u32 s%d, %s, %d" % (sT2, so, q * 7168), None)); so = "s%d" % sT2
            L.append(("buffer_load_dwordx4 v%d, %s, %s offen offset:%d lds" % (VDT + (q & 1), sr(R_CKV), so, q * 1024), t))
        return L
    run(wdma(0)); run(tdma(0)); p("s_barrier"); run(wdma(1)); run(tdma(1))
    setup2(p)
    stamp(p, 0)
    items = [(s, g) for s in range(8) for g in (EG, FG)] + [(s, EG) for s in range(8, 16)] + [(s, FG) for s in range(8, 16)]
    items += [(16, EG), (17, EG), (16, FG), (17, FG)] + [(s, g) for s in range(18, 22) for g in (EG, FG)]
    items += [(22, EG), (23, EG), (22, FG), (23, FG), (24, EG), (25, EG), (24, FG), (25, FG)] + [(s, g) for s in range(26, 32) for g in (EG, FG)]
    prev = {}
    for s in range(32):
        c = [q for q in range(s) if SLOT[q] == SLOT[s]]
        prev[s] = c[-1] if c else None
    minbar = {9: 176, 10: 176, 12: 208, 13: 208, 15: 240, 17: 240}
    MERGE = 576
    st = None
    for var in ("K", "V"):
        if var == "K":
            p("s_cmp_lg_u32 s%d, 0" % sU1); p("s_cbranch_scc1 P1_V"); st = (list(p.lq), list(p.vq), {k: list(v) for k, v in toks.items()})
        else:
            p.label("P1_V"); p.lq, p.vq = list(st[0]), list(st[1]); toks.clear(); toks.update({k: list(v) for k, v in st[2].items()})
        def mf(sl, kk, cb, th, fr):
            c = sl % 8; t = treg(2 * c + kk, th); t = "a[%d:%d]" % (t, t + 3)
            acc = vr(8 * cb + 4 * th); cc = "0" if (c == 0 and kk == 0) else acc
            if var == "V" and sl < 16: return "%s %s, %s, %s, %s" % (MF, acc, t, vr(fr), cc)
            return "%s %s, %s, %s, %s" % (MF, acc, vr(fr), t, cc)
        sc = [1]
        def st_hook(p):
            stamp(p, sc[0]); sc[0] += 1
        ab = {bp: [st_hook] for bp in (16, 48, 112, 240, 304, 400, 496, 528, 624, 752, 816, 912, 1008)} if STAMP else {}
        ab.setdefault(176, []).append(signal(0)); ab.setdefault(720, []).append(signal(64)); ab.setdefault(880, []).append(signal(128))
        ew = {80: ["LS"], 176: ["LN"], 720: ["ST1"], 880: ["STH"]}
        C0B, C1B = OPT.get("c0b", 304), OPT.get("c1b", 944)
        bb = {C0B: [poll_check(R_DBG, "0", 256, True)], C1B: [poll_check(R_DBG, "64", 256, True)]}
        S, pro, init, last_use = engine(toks, items, SLOT, mf, wdma, prev, minbar, [0, 1, 2, 3], 512, {b: 0 for b in range(4)},
                                        extra_wait=ew, after_bar=ab, before_bar=bb)
        def tread(c):
            def f(p):
                p.wait_tok(toks["T%d" % c])
                for kk in range(2):
                    ad, o = VTA + kk, (c % 3) * 32768
                    if c % 3 == 2: p("v_add_u32 v%d, 0x10000, v%d" % (96 + kk, VTA + kk)); ad, o = 96 + kk, 0
                    for th in range(2):
                        t = treg(2 * c + kk, th); p("ds_read_b128 a[%d:%d], v%d offset:%d" % (t, t + 3, ad, o + th * 2048))
            return f
        S.spread(0, wdma(2) + tdma(2) + wdma(3))
        for c in range(1, 8): S.put(32 * (c - 1) + 20, tread(c))
        for c in range(3, 8): S.spread(32 * (c - 3) + 24 + (8 if c == 3 else 0), tdma(c))
        X0 = OPT.get("x0", 1)
        S.spread(X0, ["s_lshl_b32 s%d, s%d, 10" % (sT3, sLNROW), "buffer_load_dwordx4 v[100:103], v%d, %s, s%d offen" % (VL16, sr(R_X), sT3)], per=6)
        S.spread(26, ["v_mov_b32 v104, 0", "s_lshl_b32 s%d, s2, 8" % sT3, "s_add_u32 s%d, s%d, 0x%x" % (sT3, sT3, WS_FLAG),
                      "v_lshrrev_b32 v106, 2, v%d" % VL16, "s_cmp_eq_u32 s%d, 0" % sWAVE,
                      "s_cselect_b32 s%d, s%d, 0x%x" % (sT3, sT3, OOB), ("buffer_store_dword v104, v106, %s, s%d offen sc1" % (sr(R_WS), sT3), "LN")], per=8)
        e = S.spread(28, ln_list_a(), per=3); assert e <= 64, e
        S.spread(80, ln_list_b0(), per=2)
        e = S.spread(104, ln_list_b(), per=3); assert e <= 140, e
        def cvt(grp, q):
            st0 = 96 + 4 * q
            if var == "K":
                kap, th = grp + 2 * (q >> 1), q & 1; src = [16 * kap + 4 * th, 16 * kap + 4 * th + 2, 16 * kap + 8 + 4 * th, 16 * kap + 10 + 4 * th]
            else:
                cb = 2 * grp + (q & 1) + 4 * (q >> 1); src = [8 * cb + 2 * j for j in range(4)]
            return ["v_cvt_pk_bf16_f32 v%d, v%d, v%d" % (st0 + j, src[j], src[j] + 1) for j in range(4)]
        def sto(grp, q):
            if OPT.get("nost", 0): return ("s_nop 0", None)
            if OPT.get("plain", 0): return ("buffer_store_dwordx4 %s, v%d, %s, s%d offen offset:%d" % (vr(96 + 4 * q), VL16, sr(R_WS), sO1B if q >> 1 else sO1, (2 * grp + (q & 1)) * 1024), "ST1")
            return ("buffer_store_dwordx4 %s, v%d, %s, s%d offen offset:%d sc1" % (vr(96 + 4 * q), VL16, sr(R_WS), sO1B if q >> 1 else sO1, (2 * grp + (q & 1)) * 1024), "ST1")
        S.spread(246, sum([cvt(0, q) for q in range(4)], []), per=2)
        if OPT.get("sched", 1) == 0:
            for q in range(4): S.put(258 + 28 * q, *sto(0, q))
            for q in range(4): S.spread(350 + 8 * q, cvt(1, q), step=2)
            for q in range(4): S.put(386 + 14 * q, *sto(1, q))
            S.spread(432, ["s_add_u32 s%d, s%d, 0x80000" % (sO1, sO1), "s_add_u32 s%d, s%d, 0x80000" % (sO1B, sO1B)])
            for q in range(4):
                S.spread(436 + 16 * q, cvt(0, q)); S.put(442 + 16 * q, *sto(0, q))
            S.spread(520, sum([cvt(1, q) for q in range(4)], []))
            for q in range(4): S.put(540 + 9 * q, *sto(1, q))
        else:
            for q in range(4): S.put(258 + 14 * q, *sto(0, q))
            for q in range(4):
                S.spread(306 + 16 * q, cvt(1, q), step=2); S.put(316 + 16 * q, *sto(1, q))
            S.spread(380, ["s_add_u32 s%d, s%d, 0x80000" % (sO1, sO1), "s_add_u32 s%d, s%d, 0x80000" % (sO1B, sO1B)])
            S.spread(394, sum([cvt(0, q) for q in range(4)], []), step=2)
            e0 = OPT.get("eb", 488)
            for q in range(4): S.put(e0 + ((520 - e0) // 4) * q, *sto(0, q))
            S.spread(524, sum([cvt(1, q) for q in range(4)], []))
            for q in range(4): S.put(OPT.get("fb", 600) + 25 * q, *sto(1, q))
        S.put(C0B - 24, poll_issue(R_DBG, "0"))
        def stag(f):
            def g(lo):
                def h(p):
                    sk = p.newlabel("SK")
                    p("s_cmp_%s_u32 s%d, 4" % ("ge" if lo else "lt", sWAVE)); p("s_cbranch_scc1 %s" % sk); f(p); p.label(sk)
                return h
            return g(True), g(False)
        def pf_xn(t):
            def f(p):
                p("s_lshl_b32 s%d, s%d, 16" % (sT1, sIDX)); p("s_lshl_b32 s%d, s%d, 13" % (sT0, sS4)); p("s_add_u32 s%d, s%d, s%d" % (sT0, sT1, sT0))
                cond(p, "buffer_load_dword v%d, v%d, %s, s%d offen offset:0" % (VDUM, VL128, sr(R_WS), sT0)) if t == 0 else (
                    p("s_add_u32 s%d, s%d, 32768" % (sT0, sT0)), cond(p, "buffer_load_dword v%d, v%d, %s, s%d offen" % (VDUM, VL128, sr(R_WS), sT0)))
            return f
        def pf_kv(t):
            def f(p):
                p("v_and_b32 v%d, 0x380, v%d" % (VSP, VL128)); p("v_bfe_u32 v%d, v%d, 7, 2" % (VPOLL, VL16)); p("v_lshl_add_u32 v%d, v%d, 13, v%d" % (VSP, VPOLL, VSP))
                p("v_lshrrev_b32 v%d, 9, v%d" % (VPOLL, VL16)); p("v_lshl_add_u32 v%d, v%d, 24, v%d" % (VSP, VPOLL, VSP))
                p("s_lshl_b32 s%d, s%d, 15" % (sT0, sWAVE)); p("s_add_u32 s%d, s%d, s%d" % (sT0, sT0, sHB)); p("s_and_b32 s%d, s%d, 28" % (sT1, sIDX)); p("s_lshl_b32 s%d, s%d, 8" % (sT1, sT1))
                p("s_add_u32 s%d, s%d, s%d" % (sT0, sT0, sT1)); p("s_add_u32 s%d, s%d, 0x%x" % (sT0, sT0, WS_K + t * 262144))
                cond(p, "buffer_load_dword v%d, v%d, %s, s%d offen" % (VDUM, VSP, sr(R_WS), sT0))
            return f
        if OPT.get("pf", 0):
            S.put(C0B + 9, stag(pf_xn(0))[1]); S.put(C0B + 41, stag(pf_xn(1))[1])
            S.put(OPT.get("pfw", 281), pf_p2w)
        if OPT.get("pfkv", 0):
            for t in range(2):
                a_, b_ = stag(pf_kv(t)); S.put(C1B + 8 + 40 * t, a_); S.put(C1B + 26 + 40 * t, b_)
        for c in range(8):
            L = rot8(sT3, c, "s_lshl_b32 s%d, s%d, 12" % (sT3, sT3), sXN)
            for kk in range(2):
                for th in range(2):
                    t = treg(2 * c + kk, th)
                    L.append("buffer_load_dwordx4 a[%d:%d], v%d, %s, s%d offen offset:%d sc1" % (t, t + 3, VL16, sr(R_WS), sT3, kk * 2048 + th * 1024))
            if not OPT.get("noxn", 0): S.spread(max(403 + 16 * c, 403 + OPT.get('xsp', 28) * c), L[:-4], per=5); S.spread(max(403 + 16 * c, 403 + OPT.get('xsp', 28) * c) + 1, L[-4:], per=1, step=2)
        def swiglu(grp):
            r_ = []
            for th in range(2):
                st0 = 96 + 4 * th; E = 104
                g = [8 * (2 * grp + (j >> 2)) + 4 * th + (j & 3) for j in range(8)]; u = [x + 32 for x in g]
                for j in range(8): r_.append("v_mul_f32 v%d, 0xbfb8aa3b, v%d" % (E + j, g[j]))
                for j in range(8): r_.append("v_exp_f32 v%d, v%d" % (E + j, E + j))
                for j in range(8): r_.append("v_mul_f32 v%d, v%d, v%d" % (g[j], g[j], u[j]))
                for j in range(8): r_.append("v_add_f32 v%d, 1.0, v%d" % (E + j, E + j))
                for j in range(8): r_.append("v_rcp_f32 v%d, v%d" % (E + j, E + j))
                r_.append("s_nop 0")
                for j in range(8): r_.append("v_mul_f32 v%d, v%d, v%d" % (g[j], g[j], E + j))
                for j in range(4): r_.append("v_cvt_pk_bf16_f32 v%d, v%d, v%d" % (st0 + j, g[2 * j], g[2 * j + 1]))
                r_.append(("buffer_store_dwordx4 %s, v%d, %s, s%d offen offset:%d sc1" % (vr(st0), VL16, sr(R_WS), sHO2 if grp else sHO, th * 1024), "STH"))
            return r_
        e = S.spread(736 + 5, swiglu(0), per=4); assert e <= 768, e
        e = S.spread(768 + 5, swiglu(1), per=4); assert e <= 800, e
        S.spread(1008 + 5, qepi(0), per=5)
        S.put(C1B - 14, poll_issue(R_DBG, "64"))
        kv = ["s_lshl_b32 s%d, s%d, 13" % (sT0, sWAVE), "s_add_u32 s%d, s%d, s%d" % (sT1, sHB, sT0), "s_add_u32 s%d, s%d, 0x%x" % (sT1, sT1, WS_K),
              "s_add_u32 s%d, s%d, 0x%x" % (sT3, sT1, WS_V - WS_K - 6 * 8192), "s_add_u32 s%d, s%d, %d" % (sSRC, sT0, 65536 - 6 * 8192),
              "s_cmp_ge_u32 s%d, 6" % sWAVE, "s_cselect_b32 s%d, s%d, s%d" % (sT1, sT3, sT1), "s_cselect_b32 s%d, s%d, s%d" % (sT0, sSRC, sT0)]
        S.spread(952, kv, per=8)
        kv = []
        for hf in range(2):
            kv += [("s_add_u32 m0, s%d, %d" % (sT0, hf * 4096), "m0:KV"), ("s_add_u32 s%d, s%d, %d" % (sT3, sT1, hf * 4096), None)]
            kv += [("buffer_load_dwordx4 v%d, %s, s%d offen offset:%d sc1 lds" % (VL16, sr(R_WS), sT3, j * 1024), "KV") for j in range(4)]
        S.spread(953, kv, step=2)
        assert last_use[24] < 944
        p.wait_tok(sum([toks["W%d" % s] for s in init], [])); p("s_barrier")
        tread(0)(p)
        run(pro)
        S.emit(p, toks, 0, MERGE)
        if var == "K": p("s_branch P2_M")
    p.label("P2_M")
    S.emit(p, toks, MERGE, None)
    p("s_cmp_ge_u32 s%d, 2" % sS4)
    p("s_mov_b32 s%d, 0x%x" % (sSRC, WS_K + 6 * 8192)); p("s_cselect_b32 s%d, 0x%x, s%d" % (sSRC, WS_V, sSRC))
    p("s_mov_b32 s%d, 0x%x" % (sMAX, WS_K)); p("s_cselect_b32 s%d, 0x%x, s%d" % (sMAX, WS_V, sMAX))
    p("s_mov_b32 s%d, 0" % sRB); p("s_cselect_b32 s%d, 0x10000, s%d" % (sRB, sRB))
    p("s_mov_b32 s%d, %d" % (sDST, 6 * 8192)); p("s_cselect_b32 s%d, 0, s%d" % (sDST, sDST))

    p("s_lshl_b32 s%d, s%d, 13" % (sT0, sS4)); p("s_add_u32 s%d, s%d, s%d" % (sSRC, sSRC, sT0)); p("s_add_u32 s%d, s%d, s%d" % (sSRC, sSRC, sHB))
    p("s_add_u32 s%d, s%d, s%d" % (sDST, sDST, sT0))
    p("s_lshl_b32 s%d, s%d, 13" % (sT0, sLAST)); p("s_add_u32 s%d, s%d, s%d" % (sMAX, sMAX, sT0)); p("s_add_u32 s%d, s%d, s%d" % (sMAX, sMAX, sHB))
    for t in qepi(1): p(t)
    p.wait_tok(toks["KV"]); p("s_barrier")
    stamp(p, 14)

def pf_p2w(p):
    l1, l2, l3 = p.newlabel("PF"), p.newlabel("PF"), p.newlabel("PF")
    p("s_cmp_lt_u32 s%d, 4" % sWAVE); p("s_cbranch_scc1 %s" % l3)
    p("s_cmp_ge_u32 s%d, 2" % sS4); p("s_cbranch_scc1 %s" % l1)
    p("v_and_b32 v%d, 0x380, v%d" % (VSP, VL128)); p("v_lshrrev_b32 v%d, 7, v%d" % (VPOLL, VL16)); p("v_lshl_add_u32 v%d, v%d, 13, v%d" % (VSP, VPOLL, VSP))
    p("s_lshl_b32 s%d, s%d, 1" % (sT0, sIDX)); p("s_add_u32 s%d, s%d, s%d" % (sT0, sT0, sS4)); p("s_lshl_b32 s%d, s%d, 16" % (sT0, sT0))
    p("s_lshl_b32 s%d, s%d, 10" % (sT1, sX8)); p("s_add_u32 s%d, s%d, s%d" % (sT0, sT0, sT1))
    cond(p, "buffer_load_dword v%d, v%d, %s, s%d offen" % (VDUM, VSP, sr(R_WQ), sT0))
    p("s_branch %s" % l3)
    p.label(l1)
    p("v_and_b32 v%d, 0x180, v%d" % (VSP, VL128)); p("v_lshrrev_b32 v%d, 6, v%d" % (VPOLL, VL16)); p("v_mul_u32_u24 v%d, 3584, v%d" % (VPOLL, VPOLL))
    p("v_add_u32 v%d, v%d, v%d" % (VSP, VSP, VPOLL))
    p("s_mul_i32 s%d, s%d, %d" % (sT0, sIDX, 16 * 3584)); p("s_lshl_b32 s%d, s%d, 9" % (sT1, sX8)); p("s_lshl_b32 s%d, s%d, 8" % (sT3, sX8)); p("s_add_u32 s%d, s%d, 1536" % (sT3, sT3))
    p("s_cmp_ge_u32 s%d, 6" % sX8); p("s_cselect_b32 s%d, s%d, s%d" % (sT1, sT3, sT1)); p("s_add_u32 s%d, s%d, s%d" % (sT0, sT0, sT1))
    p("s_cmp_eq_u32 s%d, 3" % sS4); p("s_cbranch_scc1 %s" % l2)
    cond(p, "buffer_load_dword v%d, v%d, %s, s%d offen" % (VDUM, VSP, sr(R_WG), sT0))
    p("s_branch %s" % l3)
    p.label(l2)
    cond(p, "buffer_load_dword v%d, v%d, %s, s%d offen" % (VDUM, VSP, sr(R_WU), sT0))
    p.label(l3)

def qepi(grp):
    r = []
    for kap in (grp, grp + 2):
        for j in range(16): r.append("v_mul_f32 v%d, %s, v%d" % (16 * kap + j, f32hex(QSCALE), 16 * kap + j))
        for th in range(2):
            b = 16 * kap + 4 * th
            for j, s_ in enumerate((b, b + 2, b + 8, b + 10)): r.append("v_cvt_pk_bf16_f32 v%d, v%d, v%d" % (b + j, s_, s_ + 1))
    return r

SREG = [[8 + (e & 7) + 16 * (e >> 3) for e in range(16)], [40 + (e & 7) + 16 * (e >> 3) for e in range(16)]]
CI, PB, E, LR, VKA, VKB, VV, VQM, TM = 64, (80, 88), 96, ((100, 101), (102, 103)), 104, 105, 106, 107, 108
def attention(p):
    AF = 64; LA = OPT.get("la", 7); KVSC = "sc1 " if OPT.get("kvsc", 1) else ""
    AFN = 8 if OPT.get("acc", 0) and LA > 7 else OPT.get("afn", 16)
    if OPT.get("acc", 0): AFN = 8
    fr = lambda j: "a[%d:%d]" % (AF + 4 * (j % AFN), AF + 4 * (j % AFN) + 3)
    O = lambda cb, qh: "a[%d:%d]" % (8 * cb + 4 * qh, 8 * cb + 4 * qh + 3)
    Q = lambda qh, kap: vr(16 * kap + 4 * qh)
    def dma_block():
        if OPT.get("nodma", 0): return
        p("s_min_u32 s%d, s%d, s%d" % (sT0, sSRC, sMAX)); p("s_and_b32 s%d, s%d, 0xffff" % (sT1, sDST)); p("s_add_u32 m0, s%d, s%d" % (sT1, sRB))
        p("s_add_u32 s%d, s%d, 4096" % (sT2, sT0))
        for j in range(4): cond(p, "buffer_load_dwordx4 v%d, %s, s%d offen offset:%d %slds" % (VL16, sr(R_WS), sT0, j * 1024, KVSC))
        p("s_add_u32 m0, m0, 4096"); p("s_add_u32 s%d, s%d, 16384" % (sSRC, sSRC))
        for j in range(4): cond(p, "buffer_load_dwordx4 v%d, %s, s%d offen offset:%d %slds" % (VL16, sr(R_WS), sT2, j * 1024, KVSC))
        p("s_add_u32 s%d, s%d, 16384" % (sDST, sDST))
    def touch():
        if not OPT.get("touch", 0): return
        p("s_add_u32 s%d, s%d, 32768" % (sT0, sSRC)); p("s_min_u32 s%d, s%d, s%d" % (sT0, sT0, sMAX)); p("s_add_u32 s%d, s%d, 16384" % (sSRC, sSRC))
        cond(p, "buffer_load_dword v%d, v%d, %s, s%d offen" % (VDUM, VL128, sr(R_WS), sT0))
    def dma_list():
        L = ["s_min_u32 s%d, s%d, s%d" % (sT0, sSRC, sMAX), "s_and_b32 s%d, s%d, 0xffff" % (sT1, sDST), "s_add_u32 m0, s%d, s%d" % (sT1, sRB), "s_add_u32 s%d, s%d, 4096" % (sT2, sT0)]
        L += [(lambda p, j=j: cond(p, "buffer_load_dwordx4 v%d, %s, s%d offen offset:%d %slds" % (VL16, sr(R_WS), sT0, j * 1024, KVSC))) for j in range(4)]
        L += ["s_add_u32 m0, m0, 4096", "s_add_u32 s%d, s%d, 16384" % (sSRC, sSRC)]
        L += [(lambda p, j=j: cond(p, "buffer_load_dwordx4 v%d, %s, s%d offen offset:%d %slds" % (VL16, sr(R_WS), sT2, j * 1024, KVSC))) for j in range(4)]
        L += ["s_add_u32 s%d, s%d, 16384" % (sDST, sDST)]
        return L
    def role(tag):
        p("s_cmp_ge_u32 s%d, 4" % sWAVE); p("s_cbranch_scc1 AT_RE%s" % tag)
        if tag == "0":
            p("s_cmp_lt_u32 s%d, 2" % sWAVE); p("s_cbranch_scc1 AT_R00"); dma_block(); p.label("AT_R00")
        dma_block()
        p.label("AT_RE%s" % tag)
    kread = lambda j, ad, off: ("ds_read_b128 %s, v%d offset:%d" % (fr(j), ad, off + j * 1024), "A%d" % j)
    vread = lambda j, off: ("ds_read_b128 %s, v%d offset:%d" % (fr(j), VV, off + (j - 8) * 1024), "A%d" % j)
    def maskprep():
        for half in range(2):
            for e in range(8 * half, 8 * half + 8):
                p("v_cmp_gt_i32 s[%d:%d], %d, v%d" % (sTAB + 2 * (e % 8), sTAB + 1 + 2 * (e % 8), 16 * ((e >> 2) & 1) + (e & 3) - 16 * (e >> 3), VQM))
            for e in range(8 * half, 8 * half + 8):
                p("v_cndmask_b32 v%d, v%d, v%d, s[%d:%d]" % (CI + e, CI + e, TM, sTAB + 2 * (e % 8), sTAB + 1 + 2 * (e % 8)))
        p("s_nop 1")
    def qk_slots(S, dst):
        for j in range(16):
            kap, kh, qh = j >> 2, (j >> 1) & 1, j & 1; e0 = 8 * qh + 4 * kh
            S.add("%s %s, %s, %s, %s" % (MF, vr(dst[e0]), fr(j >> 1), Q(qh, kap), vr(CI + e0) if kap == 0 else vr(dst[e0])))
    toks = {}
    def pairwait(S, nf):
        for f in range(0, nf, 2):
            S.s[2 * f]["pre"].append(lambda p, f=f: p.wait_tok(toks["A%d" % (f + 1)][-1]))
    def period(par, pv=True, fast=None):
        cur, nxt = SREG[par], SREG[1 - par]; koff = 0 if par else 8192
        S = Slots(); qk_slots(S, nxt)
        if pv:
            for j in range(16, 32):
                cb, qh = (j - 16) >> 1, j & 1
                S.add("%s %s, %s, %s, %s" % (MF, O(cb, qh), fr(j >> 1), vr(PB[1 - par] + 4 * qh), O(cb, qh)))
        n = len(S.s); nf = n // 2; k = n // 16
        for f in range(LA, nf): S.put(2 * (f - LA), *(kread(f, VKA, koff) if f < 8 else vread(f, koff)))
        for f in range(LA): S.put(2 * (nf - LA + f), *(kread(f, VKA, 8192) if par else kread(f, VKB, 0)))
        pairwait(S, nf)
        for e in range(16):
            qh = e >> 3; l = LR[par][qh]
            S.put(k * e, "v_add_f32 v%d, v%d, v%d" % (l, LR[1 - par][qh] if e % 8 == 0 else l, E + e % 4))
            sl = k * e + k - 1
            if e & 1: S.put(sl, "v_cvt_pk_bf16_f32 v%d, v%d, v%d" % (PB[par] + e // 2, E + (e - 1) % 4, E + e % 4))
            if e < 15: S.put(sl, "v_exp_f32 v%d, v%d" % (E + (e + 1) % 4, cur[e + 1]))
        S.put(n - k, "v_max_f32 v%d, v%d, v%d" % (TM + 1, LR[par][0], LR[par][1]))
        S.put(n - 1, "v_cmp_lt_f32 vcc, s%d, v%d" % (sTHR, TM + 1))
        if not pv: S.put(n - 1, "s_nop 7")
        S.put(n - 1, "v_exp_f32 v%d, v%d" % (E, nxt[0]))
        if fast and par:
            bp = OPT.get("abar", 8)
            S.put(1, "v_add_u32 v%d, 16384, v%d" % (VKB, VKA)); S.put(5, "v_and_b32 v%d, 0xffff, v%d" % (VKB, VKB))
            if fast == "A": S.put(bp, "s_waitcnt vmcnt(8)")
            S.put(bp, "s_barrier")
            if fast == "A" and not OPT.get("nodma", 0): S.spread(bp + 1, dma_list(), per=1)
        if fast and not par:
            S.put(17, "v_add_u32 v%d, 0x10000, v%d" % (VV, VKA)); S.put(21, "v_mov_b32 v%d, v%d" % (VKA, VKB))
            S.put(25, "s_sub_u32 s%d, s%d, 1" % (sRING, sRING)); S.put(29, "s_cmp_lg_u32 s%d, 0" % sRING)
        S.emit(p, toks)
    def rowred(op, a, b):
        for sw in ("v_permlane16_swap_b32", "v_permlane32_swap_b32"):
            p("v_mov_b32 v%d, v%d" % (b, a)); p("s_nop 1"); p("%s v%d, v%d" % (sw, b, a)); p("s_nop 1"); p("%s v%d, v%d, v%d" % (op, a, a, b))
    def rowmax(cur, qh, d, t):
        c = cur[8 * qh]
        p("v_max3_f32 v%d, v%d, v%d, v%d" % (d, c, c + 1, c + 2)); p("v_max3_f32 v%d, v%d, v%d, v%d" % (d, d, c + 3, c + 4))
        p("v_max3_f32 v%d, v%d, v%d, v%d" % (d, d, c + 5, c + 6)); p("v_max_f32 v%d, v%d, v%d" % (d, d, c + 7))
        rowred("v_max_f32", d, t)
    def fixup(par, back):
        cur, nxt = SREG[par], SREG[1 - par]
        p.nop(8)
        if STAMP and OPT.get("acc", 0):
            p("v_accvgpr_read_b32 v%d, a127" % VPOLL); p("s_nop 0"); p("v_add_u32 v%d, 1, v%d" % (VPOLL, VPOLL)); p("s_nop 0"); p("v_accvgpr_write_b32 a127, v%d" % VPOLL)
        for qh in range(2):
            D, Fc = TM + 1, TM + 2
            rowmax(cur, qh, D, Fc)
            p("v_ceil_f32 v%d, v%d" % (D, D)); p("v_max_f32 v%d, 0, v%d" % (D, D)); p("v_exp_f32 v%d, -v%d" % (Fc, D))
            for e in range(8 * qh, 8 * qh + 8):
                p("v_sub_f32 v%d, v%d, v%d" % (cur[e], cur[e], D)); p("v_sub_f32 v%d, v%d, v%d" % (nxt[e], nxt[e], D)); p("v_sub_f32 v%d, v%d, v%d" % (CI + e, CI + e, D))
            for cb in range(8):
                for r in range(4):
                    a = 8 * cb + 4 * qh + r
                    p("v_accvgpr_read_b32 v%d, a%d" % (E + r, a)); p("v_mul_f32 v%d, v%d, v%d" % (E + r, E + r, Fc)); p("v_accvgpr_write_b32 a%d, v%d" % (a, E + r))
            l = LR[par][qh]
            p("v_mul_f32 v%d, v%d, v%d" % (l, LR[1 - par][qh], Fc))
            for e in range(8 * qh, 8 * qh + 8, 2):
                p("v_exp_f32 v%d, v%d" % (E, cur[e])); p("v_exp_f32 v%d, v%d" % (E + 1, cur[e + 1])); p("s_nop 0")
                p("v_add_f32 v%d, v%d, v%d" % (l, l, E)); p("v_add_f32 v%d, v%d, v%d" % (l, l, E + 1))
                p("v_cvt_pk_bf16_f32 v%d, v%d, v%d" % (PB[par] + e // 2, E, E + 1))
        p("v_exp_f32 v%d, v%d" % (E, nxt[0]))
        p("s_cmp_eq_u32 s%d, 0" % sPF); p("s_cbranch_scc1 AT_B%d" % par)
        lb = p.newlabel("FXB")
        p("s_cmp_eq_u32 s%d, 2" % sPF); p("s_cbranch_scc1 %s" % lb)
        p("s_cmp_lg_u32 s%d, 0" % sRING); p("s_branch AT_FA_B%d" % par)
        p.label(lb)
        p("s_cmp_lg_u32 s%d, 0" % sRING); p("s_branch AT_FB_B%d" % par)
    p("v_mov_b32 v%d, v%d" % (VKA, VL16)); p("v_add_u32 v%d, 16384, v%d" % (VKB, VL16)); p("v_mov_b32 v%d, v%d" % (VV, VL16))
    for f in range(LA): emit_tagged(p, toks, *kread(f, VKA, 0))
    p("v_bfe_u32 v%d, v%d, 4, 4" % (VQM, VL16)); p("v_lshrrev_b32 v%d, 8, v%d" % (TM, VL16)); p("v_lshlrev_b32 v%d, 2, v%d" % (TM, TM))
    p("v_sub_u32 v%d, v%d, v%d" % (VQM, VQM, TM)); p("v_mov_b32 v%d, 0xff800000" % TM)
    for r in range(16): p("v_mov_b32 v%d, 0" % (CI + r))
    for r in range(64): p("v_accvgpr_write_b32 a%d, 0" % r)
    p("v_mov_b32 v%d, 0" % LR[1][0]); p("v_mov_b32 v%d, 0" % LR[1][1])
    p("s_mov_b32 s%d, %s" % (sTHR, f32hex(THR))); p("s_max_u32 s%d, s%d, 2" % (sRING, sTB)); p("s_sub_u32 s%d, s%d, 2" % (sRING, sRING)); p("s_lshr_b32 s%d, s%d, 1" % (sRING, sRING))
    if not OPT.get("fast", 1): p("s_mov_b32 s%d, 0" % sRING)
    p("s_lshl_b32 s%d, s%d, 1" % (sUU, sRING)); p("s_add_u32 s%d, s%d, 1" % (sUU, sUU)); p("s_mov_b32 s%d, 0" % sPF)
    p.vq = []
    if STAMP and OPT.get("acc", 0):
        for i in range(8): p("v_accvgpr_write_b32 a%d, 0" % (120 + i))
        p("s_mov_b32 s98, s100")
    role("0")
    p("s_cmp_lg_u32 s%d, 0" % sTB); p("s_cbranch_scc1 AT_NM0"); maskprep(); p.label("AT_NM0")
    S = Slots(); qk_slots(S, SREG[0])
    for f in range(LA, 8): S.put(2 * (f - LA), *kread(f, VKA, 0))
    for f in range(LA): S.put(2 * (8 - LA + f), *kread(f, VKA, 8192))
    S.emit(p, toks)
    p.nop(6)
    for qh in range(2):
        rowmax(SREG[0], qh, E + 1, E + 2)
        for e in range(8 * qh, 8 * qh + 8): p("v_sub_f32 v%d, 0, v%d" % (CI + e, E + 1))
        for e in range(8 * qh, 8 * qh + 8): p("v_sub_f32 v%d, v%d, v%d" % (SREG[0][e], SREG[0][e], E + 1))
    p("v_exp_f32 v%d, v%d" % (E, SREG[0][0]))
    p("s_cmp_lg_u32 s%d, 1" % sTB); p("s_cbranch_scc1 AT_NM1"); maskprep(); p.label("AT_NM1")
    period(0, pv=False)
    sig0 = [sorted(e["regs"]) for e in p.lq]
    chk = lambda: [sorted(e["regs"]) for e in p.lq] == sig0
    lq0 = list(p.lq)
    p("s_cmp_eq_u32 s%d, 0" % sRING); p("s_cbranch_scc1 AT_STEPEND")
    p("v_add_u32 v%d, 0x10000, v%d" % (VV, VKA)); p("v_mov_b32 v%d, v%d" % (VKA, VKB))
    p("s_mov_b32 s%d, 2" % sPF)
    p("s_cmp_ge_u32 s%d, 4" % sWAVE); p("s_cbranch_scc1 AT_FB")
    p("s_mov_b32 s%d, 1" % sPF)
    for fa in ("A", "B"):
        p.lq = list(lq0)
        p.raw(".p2align 6") if fa == "B" else None
        p.label("AT_F%s" % fa)
        for par in (1, 0):
            period(par, fast=fa)
            p("s_cbranch_vccnz AT_FIX%d" % par)
            p.label("AT_F%s_B%d" % (fa, par))
            assert chk()
        p("s_cbranch_scc1 AT_F%s" % fa)
        p("s_mov_b32 s%d, 0" % sPF)
        p("s_branch AT_STEPEND2")
    p.lq = list(lq0)
    p.label("AT_STEPEND")
    p("v_add_u32 v%d, 0x10000, v%d" % (VV, VKA)); p("v_mov_b32 v%d, v%d" % (VKA, VKB))
    p.label("AT_STEPEND2")
    p("v_add_u32 v%d, 16384, v%d" % (VKB, VKA)); p("v_and_b32 v%d, 0xffff, v%d" % (VKB, VKB))
    acc_stamp(p, 0)
    p("s_waitcnt vmcnt(8)")
    acc_stamp(p, 1)
    p("s_barrier")
    acc_stamp(p, 2)
    role("1")
    acc_stamp(p, 3)
    lqs = {}
    for par in (1, 0):
        p("s_add_u32 s%d, s%d, 1" % (sUU, sUU)); p("s_cmp_ge_u32 s%d, s%d" % (sUU, sTB)); p("s_cbranch_scc1 AT_H%d" % par)
        p.label("AT_P%d" % par)
        lqs[par] = list(p.lq)
        period(par)
        p("s_cbranch_vccnz AT_FIX%d" % par)
        p.label("AT_B%d" % par)
        assert [sorted(e["regs"]) for e in p.lq] == sig0
    p("s_branch AT_STEPEND")
    for par in (1, 0):
        p.lq = list(lqs[par])
        p.label("AT_FIX%d" % par); fixup(par, "AT_B%d" % par)
        p.label("AT_H%d" % par)
        p("s_sub_u32 s%d, s%d, s%d" % (sT0, sUU, sTB)); p("s_cmp_eq_u32 s%d, 1" % sT0); p("s_cbranch_scc1 AT_P%d" % par)
        p("s_cmp_eq_u32 s%d, 2" % sT0); p("s_cbranch_scc1 AT_T%d" % par)
        maskprep(); p("s_branch AT_P%d" % par)
        p.label("AT_T%d" % par)
        p("s_waitcnt lgkmcnt(0)")
        off = 0 if par else 8192
        for f in range(8, 16): p(vread(f, off)[0])
        p("v_mov_b32 v%d, v%d" % (TM + 1, LR[1 - par][0])); p("v_mov_b32 v%d, v%d" % (TM + 2, LR[1 - par][1]))
        for j in range(16, 32):
            cb, qh = (j - 16) >> 1, j & 1
            p("%s %s, %s, %s, %s" % (MF, O(cb, qh), fr(j >> 1), vr(PB[1 - par] + 4 * qh), O(cb, qh)))
        p("s_branch AT_EPI")
    p.label("AT_EPI")
    p("s_sub_u32 s%d, s%d, 4" % (sT0, sWAVE)); p("s_cmp_gt_u32 s%d, 1" % sT0); p("s_cbranch_scc1 AT_EPI2")
    p("s_barrier")
    p.label("AT_EPI2")
    p(poll_issue(R_DBG, "128"))
    for qh in range(2):
        rowred("v_add_f32", TM + 1 + qh, E); p("v_rcp_f32 v%d, v%d" % (TM + 1 + qh, TM + 1 + qh))
    p("s_add_u32 s%d, s%d, 4096" % (sT1, sCTX))
    for q in range(8):
        kap, qh = q >> 1, q & 1; st = 8 * q
        for j in range(8): p("v_accvgpr_read_b32 v%d, a%d" % (st + j, 16 * kap + 8 * (j >> 2) + 4 * qh + (j & 3)))
        for j in range(8): p("v_mul_f32 v%d, v%d, v%d" % (st + j, st + j, TM + 1 + qh))
        for j in range(4): p("v_cvt_pk_bf16_f32 v%d, v%d, v%d" % (st + j, st + 2 * j, st + 2 * j + 1))
        p("buffer_store_dwordx4 %s, v%d, %s, s%d offen offset:%d sc1" % (vr(st), VL16, sr(R_WS), sT1 if q >= 4 else sCTX, (q % 4) * 1024))
    stamp(p, 15)
    p4_setup(p)
    p("s_lshl_b32 s%d, s%d, 10" % (sT0, sTB)); p("s_lshr_b32 s%d, s%d, 3" % (sT1, sHEAD)); p("s_lshl_b32 s%d, s%d, 8" % (sT1, sT1))
    p("s_add_u32 s%d, s%d, s%d" % (sTE, sT0, sT1)); p("s_add_u32 s%d, s%d, 0x%x" % (sTE, sTE, WS_FLAG)); p("v_mov_b32 v%d, 1" % VSP)
    p("s_cmp_lt_u32 s%d, 4" % sWAVE); p("s_cbranch_scc1 AT_LDA")
    vq0 = list(p.vq)
    p("s_waitcnt vmcnt(0)")
    p("buffer_atomic_add v%d, v%d, %s, s%d offen sc1" % (VSP, VONE, sr(R_WS), sTE))
    poll_check(R_DBG, "128", 256)(p)
    p("s_branch P4_ENTRY")
    p.vq = vq0
    p.label("AT_LDA")
    p("s_lshr_b32 s%d, s%d, 1" % (sUU, sUU)); p("s_lshr_b32 s%d, s%d, 1" % (sLAST, sLAST))
    p("s_waitcnt vmcnt(16)"); p("s_barrier")
    p("s_cmp_gt_u32 s%d, s%d" % (sSRC, sMAX)); p("s_cbranch_scc1 AT_LDA1")
    dma_block()
    p("s_waitcnt vmcnt(8)"); p("s_branch AT_LDA2")
    p.label("AT_LDA1"); p("s_waitcnt vmcnt(0)"); p.label("AT_LDA2")
    p("buffer_atomic_add v%d, v%d, %s, s%d offen sc1" % (VSP, VONE, sr(R_WS), sTE))
    poll_check(R_DBG, "128", 256)(p)
    p("s_add_u32 s%d, s%d, 1" % (sUU, sUU))
    p.label("AT_LD")
    p("s_cmp_lg_u32 s%d, 0" % sPF); p("s_cbranch_scc1 AT_LD2")
    p("s_add_u32 s%d, s%d, 6" % (sT0, sUU)); p("s_cmp_lt_u32 s%d, s%d" % (sT0, sLAST)); p("s_cbranch_scc1 AT_LD2")
    npf = p4_early(p)
    p("s_mov_b32 s%d, 1" % sPF)
    p.label("AT_LD2")
    p("s_cmp_gt_u32 s%d, s%d" % (sUU, sLAST)); p("s_cbranch_scc1 AT_LDX")
    acc_stamp(p, 4)
    p("s_barrier")
    acc_stamp(p, 5)
    p("s_add_u32 s%d, s%d, 1" % (sUU, sUU))
    p("s_cmp_le_u32 s%d, s%d" % (sSRC, sMAX)); p("s_cbranch_scc1 AT_LD4")
    p("s_cmp_eq_u32 s%d, 1" % sPF); p("s_cbranch_scc1 AT_LD5")
    p("s_waitcnt vmcnt(0)"); p("s_branch AT_LD")
    p.label("AT_LD5")
    p("s_mov_b32 s%d, 2" % sPF); p("s_waitcnt vmcnt(%d)" % npf); p("s_branch AT_LD")
    p.label("AT_LD4")
    dma_block()
    acc_stamp(p, 6)
    p("s_cmp_eq_u32 s%d, 1" % sPF); p("s_cbranch_scc1 AT_LD3")
    p("s_waitcnt vmcnt(8)")
    p("s_branch AT_LD")
    p.label("AT_LD3")
    p("s_mov_b32 s%d, 2" % sPF); p("s_waitcnt vmcnt(%d)" % (8 + npf))
    p("s_branch AT_LD")
    p.label("AT_LDX")
    p4_early2(p)

sJ, sNT, sMT, sG, sTB4, sXO, sWD, sWO, sH, sC, sRC, sCF, sRHG, sPB, sFL, sRCG = range(sTAB, sTAB + 16)
SL4 = lambda r: ((r + 4) % 5) * 2
def p4_setup(p):
    A, B, C, L = 96, 97, 98, 99
    p("s_and_b32 s%d, s2, 3" % sJ); p("s_and_b32 s%d, s%d, 3" % (sNT, sIDX))
    p("s_lshr_b32 s%d, s%d, 2" % (sMT, sIDX)); p("s_and_b32 s%d, s2, 4" % sT0); p("s_lshl_b32 s%d, s%d, 1" % (sT0, sT0)); p("s_add_u32 s%d, s%d, s%d" % (sMT, sMT, sT0))
    p("s_lshr_b32 s%d, s%d, 2" % (sG, sWAVE)); p("s_lshl_b32 s%d, s%d, 2" % (sTB4, sMT)); p("s_add_u32 s%d, s%d, s%d" % (sTB4, sTB4, sS4))
    p("v_lshrrev_b32 v%d, 4, v%d" % (L, VL16))
    p("v_lshrrev_b32 v%d, 2, v%d" % (C, L)); p("v_lshlrev_b32 v%d, 7, v%d" % (C, C)); p("v_and_b32 v%d, 3, v%d" % (B, L)); p("v_lshl_add_u32 v%d, v%d, 3, v%d" % (C, B, C))
    p("s_lshl_b32 s%d, s%d, 14" % (sT0, sG)); p("v_add_u32 v%d, s%d, v%d" % (C, sT0, C)); p("v_bfe_u32 v%d, v%d, 3, 2" % (A, L))
    for b in range(4):
        p("v_xor_b32 v%d, %d, v%d" % (B, b, A)); p("v_lshl_add_u32 v%d, v%d, 5, v%d" % (VWR + b, B, C))
    p("v_bfe_u32 v%d, v%d, 1, 2" % (A, L)); p("v_lshrrev_b32 v%d, 4, v%d" % (B, L)); p("v_xor_b32 v%d, v%d, v%d" % (A, A, B))
    p("v_and_b32 v%d, 1, v%d" % (B, L)); p("v_lshlrev_b32 v%d, 4, v%d" % (B, B)); p("v_lshl_add_u32 v%d, v%d, 5, v%d" % (A, A, B))
    p("v_lshrrev_b32 v%d, 3, v%d" % (B, L)); p("v_lshl_add_u32 v%d, v%d, 10, v%d" % (VD8, B, A))
    p("s_lshl_b32 s%d, s%d, 13" % (sT0, sWAVE)); p("v_add_u32 v%d, s%d, v%d" % (VDG, sT0, VD8))
    p("v_and_b32 v%d, 15, v%d" % (A, L)); p("v_lshrrev_b32 v%d, 4, v%d" % (B, L)); p("v_lshlrev_b32 v%d, 3, v%d" % (B, B)); p("v_lshl_add_u32 v%d, v%d, 10, v%d" % (VDT, A, B))
    p("v_add_u32 v%d, 16384, v%d" % (VDT + 1, VDT))
    p("s_lshl_b32 s%d, s%d, 15" % (sXO, sTB4)); p("s_lshl_b32 s%d, s%d, 8" % (sT0, sNT)); p("s_add_u32 s%d, s%d, s%d" % (sXO, sXO, sT0))
    p("s_lshl_b32 s%d, s%d, 6" % (sT1, sJ)); p("s_add_u32 s%d, s%d, s%d" % (sXO, sXO, sT1))
    p("s_mul_i32 s%d, s%d, %d" % (sWD, sJ, 448 * 1024)); p("s_add_u32 s%d, s%d, s%d" % (sWD, sWD, sT0))
    p("s_lshl_b32 s%d, s%d, 20" % (sWO, sJ)); p("s_add_u32 s%d, s%d, s%d" % (sWO, sWO, sT0))
    p("s_mul_i32 s%d, s%d, %d" % (sT1, sTB4, 368 * 1024)); p("s_add_u32 s%d, s%d, 0x%x" % (sT1, sT1, WS_CH))
    p("s_mul_i32 s%d, s%d, %d" % (sH, sJ, 28 * 1024)); p("s_add_u32 s%d, s%d, s%d" % (sH, sH, sT1)); p("s_add_u32 s%d, s%d, %d" % (sH, sH, 256 * 1024))
    p("s_lshl_b32 s%d, s%d, 16" % (sC, sJ)); p("s_add_u32 s%d, s%d, s%d" % (sC, sC, sT1))
    p("s_min_u32 s%d, s%d, 6" % (sROH, sRO2)); p("s_lshl_b32 s%d, s%d, 1" % (sRC, sRO2))
    if not OPT.get("rot4", 1): p("s_mov_b32 s%d, 0" % sROH); p("s_mov_b32 s%d, 0" % sRC)
    p("s_lshl_b32 s%d, s%d, 10" % (sCF, sTB4)); p("s_lshl_b32 s%d, s%d, 8" % (sT0, sJ)); p("s_add_u32 s%d, s%d, s%d" % (sCF, sCF, sT0)); p("s_add_u32 s%d, s%d, 0x%x" % (sCF, sCF, WS_FLAG))

def w4off(t, sg, sh, hb, cb):
    if sg < 7:
        return [("s_add_u32 s%d, s%d, %d" % (t, sROH, sg), None), ("s_sub_u32 s%d, s%d, 7" % (sUU, t), None), ("s_min_u32 s%d, s%d, s%d" % (t, t, sUU), None),
                ("s_lshl_b32 s%d, s%d, %d" % (t, t, sh), None), ("s_add_u32 s%d, s%d, s%d" % (t, t, hb), None)]
    return [("s_add_u32 s%d, s%d, %d" % (t, sRC, sg - 7), None), ("s_and_b32 s%d, s%d, 15" % (t, t), None),
            ("s_lshl_b32 s%d, s%d, %d" % (t, t, sh), None), ("s_add_u32 s%d, s%d, s%d" % (t, t, cb), None)]
def a_dma(p, r):
    for g in range(2):
        sg = 2 * r + g; rs = R_WD if sg < 7 else R_WO
        p("s_mov_b32 s%d, s%d" % (sT3, sUU))
        for it in w4off(sT2, sg, 16, sWD, sWO): p(it[0])
        p("s_mov_b32 s%d, s%d" % (sUU, sT3))
        p("s_lshl_b32 s%d, s%d, 14" % (sT0, sS4)); p("s_add_u32 s%d, s%d, s%d" % (sT0, sT0, sT2)); p("s_lshl_b32 s%d, s%d, 11" % (sT1, sS4))
        for pc in range(2):
            if pc: p("s_add_u32 s%d, s%d, 8192" % (sT0, sT0))
            for sub in range(2):
                p("s_add_u32 m0, s%d, %d" % (sT1, (SL4(r) + g) * 16384 + pc * 1024 + sub * (8192 - 128))); p("s_nop 0")
                cond(p, "buffer_load_dwordx4 v%d, %s, s%d offen offset:%d lds" % (VD8, sr(rs), sT0, sub * 128))
def p4_early(p):
    a_dma(p, 0)
    if not OPT.get("pf", 0): return 8
    p("v_lshrrev_b32 v%d, 7, v%d" % (VPOLL, VL16)); p("v_and_b32 v%d, 0x380, v%d" % (VSP, VL128)); p("v_lshl_add_u32 v%d, v%d, 10, v%d" % (VSP, VPOLL, VSP))
    p("s_lshl_b32 s%d, s%d, 2" % (sT0, sIDX)); p("s_add_u32 s%d, s%d, s%d" % (sT0, sT0, sS4)); p("s_lshl_b32 s%d, s%d, 13" % (sT0, sT0))
    p("s_lshl_b32 s%d, s%d, 20" % (sT1, sJ)); p("s_add_u32 s%d, s%d, s%d" % (sT0, sT0, sT1))
    cond(p, "buffer_load_dword v%d, v%d, %s, s%d offen" % (VDUM, VSP, sr(R_WO), sT0))
    p("s_mul_i32 s%d, s%d, %d" % (sT0, sIDX, 14 * 1024)); p("s_mul_i32 s%d, s%d, %d" % (sT1, sJ, 448 * 1024)); p("s_add_u32 s%d, s%d, s%d" % (sT0, sT0, sT1))
    p("s_lshl_b32 s%d, s%d, 13" % (sT1, sS4)); p("s_add_u32 s%d, s%d, s%d" % (sT0, sT0, sT1))
    p("s_cmp_ge_u32 s%d, 2" % sS4); p("s_cselect_b32 s%d, 0x%x, s%d" % (sT0, OOB, sT0))
    cond(p, "buffer_load_dword v%d, v%d, %s, s%d offen" % (VDUM, VSP, sr(R_WD), sT0))
    p("s_and_b32 s%d, s2, 4" % sT0); p("s_lshl_b32 s%d, s%d, 3" % (sT0, sT0)); p("s_add_u32 s%d, s%d, s%d" % (sT0, sT0, sIDX)); p("s_mul_i32 s%d, s%d, %d" % (sT0, sT0, 368 * 1024))
    p("s_mul_i32 s%d, s%d, %d" % (sT1, sJ, 28 * 1024)); p("s_add_u32 s%d, s%d, s%d" % (sT0, sT0, sT1)); p("s_mul_i32 s%d, s%d, %d" % (sT1, sS4, 20 * 1024 // 3 // 128 * 128))
    p("s_add_u32 s%d, s%d, s%d" % (sT0, sT0, sT1)); p("s_add_u32 s%d, s%d, 0x%x" % (sT0, sT0, WS_CH + 256 * 1024))
    cond(p, "buffer_load_dword v%d, v%d, %s, s%d offen" % (VDUM, VL128, sr(R_WS), sT0))
    return 11
def p4_early2(p):
    a_dma(p, 1); a_dma(p, 2)

def phase4(p):
    p.label("P4_ENTRY")
    p.lq, p.vq = [], []
    stamp(p, 16)
    acc_flush(p)
    toks = {}
    NR, TR = 12, 8
    def wdma(r):
        out = []
        for g in range(2):
            sg = 2 * r + g
            if sg > 22: continue
            rs = R_WD if sg < 7 else R_WO; t = "W%d" % r; b = (SL4(r) + g) * 16384
            out += [("s_add_u32 m0, s%d, %d" % (sLW, b), "m0:" + t)] + w4off(sT2, sg, 16, sWD, sWO) + [
                    ("buffer_load_dwordx4 v%d, %s, s%d offen lds" % (VDG, sr(rs), sT2), t),
                    ("s_add_u32 m0, s%d, %d" % (sLW, b + 8192 - 128), "m0:" + t), ("s_nop 0", None),
                    ("buffer_load_dwordx4 v%d, %s, s%d offen offset:128 lds" % (VDG, sr(rs), sT2), t)]
        return out
    def tld(r):
        def one(p):
            c0 = w4off(sT3, 2 * r, 12, sH, sC)
            for it in c0: p(it[0])
            if r < NR - 1:
                for it in w4off(sT0, 2 * r + 1, 12, sH, sC): p(it[0])
            else: p("s_mov_b32 s%d, 0x%x" % (sT0, OOB))
            p("s_cmp_eq_u32 s%d, 1" % sG); p("s_cselect_b32 s%d, s%d, s%d" % (sT3, sT0, sT3))
        out = [one]
        for kk in range(2):
            for th in range(2):
                t = treg(2 * (r % TR) + kk, th)
                out.append(("buffer_load_dwordx4 a[%d:%d], v%d, %s, s%d offen offset:%d sc1" % (t, t + 3, VL16, sr(R_WS), sT3, kk * 2048 + th * 1024), "T4_%d" % r))
        return out
    def run(lst):
        for it in lst:
            if isinstance(it, tuple): emit_tagged(p, toks, it[0], it[1])
            elif callable(it): it(p)
            else: p(it)
    run(tld(0) + tld(1) + tld(2))
    items = [(r, g) for r in range(NR) for g in (EG, FG)]
    def mf(r, kk, cb, th, fr):
        t = treg(2 * (r % TR) + kk, th); acc = vr(8 * cb + 4 * th); cc = "0" if (r == 0 and kk == 0) else acc
        return "%s %s, %s, a[%d:%d], %s" % (MF, acc, vr(fr), t, t + 3, cc)
    prev = {r: (r - 5 if r >= 5 else None) for r in range(NR)}
    sc = [18]
    def st_hook(p):
        stamp(p, sc[0]); sc[0] += 1
    ab = {bp: [st_hook] for bp in (48, 112, 176, 240, 304)} if STAMP else {}
    S, pro, init, last_use = engine(toks, items, [SL4(r) for r in range(NR)], mf, wdma, prev, {}, [0, 1, 2, 3, 4], 2048, {b: 0 for b in range(4)},
                                    after_bar=ab, maxnew=1)
    S.spread(0, wdma(3) + wdma(4))
    S.put(24, poll_issue(R_WS, "s%d" % sCF)); S.put(OPT.get("cpoll", 40), poll_check(R_WS, "s%d" % sCF, 8))
    e = OPT.get("cpoll", 40) + 1
    for r in range(3, NR):
        e = S.spread(max(e, 32 * (r - TR + 1) + 1, 32 * (r - 5)), tld(r), per=1, step=1)
    p.wait_tok(toks["T4_0"]); p("s_barrier")
    stamp(p, 17)
    run(pro)
    def leave(p):
        p("s_cmp_eq_u32 s%d, 1" % sG); p("s_cbranch_scc1 OUT_RED")
    S.s[32 * (NR - 1)]["pre"].insert(0, leave)
    S.emit(p, toks)
    p.label("OUT_RED")
    p("s_waitcnt lgkmcnt(0)")
    stamp(p, 23)
    for q in range(4): p("buffer_load_dwordx2 v[%d:%d], v%d, %s, s%d offen offset:%d" % (88 + 2 * q, 89 + 2 * q, VDT + (q & 1), sr(R_X), sXO, (q >> 1) * 32))
    p("s_barrier")
    p("s_lshl_b32 s%d, s%d, 13" % (sT0, sWAVE)); p("v_add_u32 v96, s%d, v%d" % (sT0, VL16))
    p("s_xor_b32 s%d, s%d, 0x8000" % (sT0, sT0)); p("v_add_u32 v97, s%d, v%d" % (sT0, VL16))
    p.nop(4)
    p("s_cmp_eq_u32 s%d, 1" % sG); p("s_cbranch_scc1 OUT_G1")
    st = (list(p.lq), list(p.vq))
    for g in range(2):
        if g == 1:
            p.label("OUT_G1"); p.lq, p.vq = list(st[0]), list(st[1])
        give = 32 * (1 - g); keep = 32 * g
        for q in range(8): p("ds_write_b128 v96, %s offset:%d" % (vr(give + 4 * q), q * 1024))
        p("s_waitcnt lgkmcnt(0)"); p("s_barrier")
        for q in range(8): p("ds_read_b128 %s, v97 offset:%d" % (vr(give + 4 * q), q * 1024))
        for r in range(32): p("v_add_f32 v%d, v%d, v%d" % (r, keep + r, give + r))
        if g == 0: p("s_branch OUT_X")
    p.label("OUT_X")
    p("s_lshl_b32 s%d, s%d, 2" % (sT0, sMT)); p("s_add_u32 s%d, s%d, s%d" % (sT0, sT0, sNT))
    p("s_lshl_b32 s%d, s%d, 18" % (sPB, sT0)); p("s_add_u32 s%d, s%d, 0x%x" % (sPB, sPB, WS_PART)); p("s_lshl_b32 s%d, s%d, 12" % (sT1, sS4)); p("s_add_u32 s%d, s%d, s%d" % (sPB, sPB, sT1))
    p("s_lshl_b32 s%d, s%d, 8" % (sFL, sT0)); p("s_add_u32 s%d, s%d, 0x%x" % (sFL, sFL, WS_FLAG + 128))
    p("s_lshl_b32 s%d, s%d, 14" % (sT0, sJ)); p("s_add_u32 s%d, s%d, s%d" % (sT0, sT0, sPB)); p("s_lshl_b32 s%d, s%d, 17" % (sT1, sG)); p("s_add_u32 s%d, s%d, s%d" % (sT0, sT0, sT1))
    p("s_lshl_b32 s%d, s%d, 1" % (sT1, sG))
    for bb in range(2):
        p("s_add_u32 s%d, s%d, %d" % (sT2, sT0, bb * 65536)); p("s_add_u32 s%d, s%d, %d" % (sT3, sT1, bb)); p("s_cmp_eq_u32 s%d, s%d" % (sT3, sJ))
        p("s_cselect_b32 s%d, 0x%x, s%d" % (sT2, OOB, sT2))
        for q in range(4): p("buffer_store_dwordx4 %s, v%d, %s, s%d offen offset:%d sc1" % (vr(16 * bb + 4 * q), VL16, sr(R_WS), sT2, q * 1024))
    p("s_waitcnt vmcnt(0)"); p("s_barrier")
    stamp(p, 24)
    p("s_lshr_b32 s%d, s%d, 1" % (sT0, sJ)); p("s_cmp_lg_u32 s%d, s%d" % (sT0, sG)); p("s_cbranch_scc1 K_END")
    p("s_cmp_lg_u32 s%d, 0" % sS4); p("s_cbranch_scc1 OUT_NOFLAG")
    p("v_mov_b32 v%d, 1" % VSP)
    cond(p, "buffer_atomic_add v%d, v%d, %s, s%d offen sc1" % (VSP, VONE, sr(R_WS), sFL))
    p.label("OUT_NOFLAG")
    p(poll_issue(R_WS, "s%d" % sFL))
    p("s_and_b32 s%d, s%d, 1" % (sT0, sJ)); p("s_cmp_eq_u32 s%d, 0" % sT0); p("s_cbranch_scc1 OUT_OWN")
    for r in range(16): p("v_mov_b32 v%d, v%d" % (r, 16 + r))
    p.label("OUT_OWN")
    for q in range(4):
        d = 64 + 8 * (q >> 1) + 4 * (q & 1)
        for e in range(2):
            p("v_lshlrev_b32 v%d, 16, v%d" % (d + 2 * e, 88 + 2 * q + e)); p("v_and_b32 v%d, 0xffff0000, v%d" % (d + 2 * e + 1, 88 + 2 * q + e))
    for r in range(16): p("v_add_f32 v%d, v%d, v%d" % (r, r, 64 + r))
    poll_check(R_WS, "s%d" % sFL, 4)(p)
    stamp(p, 25)
    p("s_lshl_b32 s%d, s%d, 16" % (sT3, sJ)); p("s_add_u32 s%d, s%d, s%d" % (sT3, sT3, sPB))
    for k in range(1, 4):
        p("s_add_u32 s%d, s%d, %d" % (sT0, sJ, k)); p("s_and_b32 s%d, s%d, 3" % (sT0, sT0)); p("s_lshl_b32 s%d, s%d, 14" % (sT0, sT0)); p("s_add_u32 s%d, s%d, s%d" % (sT0, sT0, sT3))
        for q in range(4): p("buffer_load_dwordx4 %s, v%d, %s, s%d offen offset:%d sc1" % (vr(16 * k + 4 * q), VL16, sr(R_WS), sT0, q * 1024))
    for k in range(1, 4):
        for r in range(16): p("v_add_f32 v%d, v%d, v%d" % (r, r, 16 * k + r))
    for q in range(4):
        a = 8 * (q >> 1) + 4 * (q & 1)
        p("v_cvt_pk_bf16_f32 v%d, v%d, v%d" % (64 + 2 * q, a, a + 1)); p("v_cvt_pk_bf16_f32 v%d, v%d, v%d" % (65 + 2 * q, a + 2, a + 3))
        p("buffer_store_dwordx2 v[%d:%d], v%d, %s, s%d offen offset:%d" % (64 + 2 * q, 65 + 2 * q, VDT + (q & 1), sr(R_OUT), sXO, (q >> 1) * 32))
    stamp(p, 26)

def build():
    p = Prog()
    hdr = open("cdna_kernels/%s.s.ref" % NAME).read().split("; Override launch")[0]
    p.raw(hdr.rstrip())
    p.raw("; @launch grid=(256,1,1) block=(512,1,1) lds=163840")
    p.raw('.amdgcn_target "amdgcn-amd-amdhsa--gfx950"'); p.raw(".text")
    kernel_begin(p, KN)
    p12(p); attention(p); phase4(p)
    p.label("K_END"); p("s_endpgm")
    p.raw('.section .rodata,"a"'); p.raw(kernel_desc(KN, 256, 128, 102))
    return p

def selfcheck(p):
    bad = []
    for wg, wave in [(0, 0), (0, 3), (0, 4), (0, 7), (5, 2), (100, 1), (100, 6), (255, 2), (255, 5), (255, 0), (30, 4), (3, 7)]:
        for fx in (False, True):
            tr = trace(p, KN, wg, wave, vcc_taken=(lambda i, n: n % 3 == 1) if fx else (lambda i, n: False))
            pr = check_trace(tr, "wg%d w%d" % (wg, wave))
            nb = sum(1 for i in tr if i.mn == "s_barrier"); nm = sum(1 for i in tr if i.kind == "mfma")
            if not fx: print("wg%d w%d: %d instrs, %d mfma, %d barriers, %d problems" % (wg, wave, len(tr), nm, nb, len(pr)))
            bad += pr
    for b in sorted(set(bad))[:40]: print(b)
    return not bad

if __name__ == "__main__":
    for o in sys.argv[2:]:
        if o == "stamp": STAMP = True
        else:
            k, v = o.split("="); OPT[k] = int(v) if v.isdigit() else v
    p = build()
    ok = selfcheck(p)
    open(sys.argv[1], "w").write(p.text())
    import subprocess
    r = subprocess.run(["clang", "-x", "assembler", "-target", "amdgcn-amd-amdhsa", "-mcpu=gfx950", "-c", sys.argv[1], "-o", "chk.o"], capture_output=True, text=True)
    print("written", sys.argv[1], "OK" if ok else "PROBLEMS", "ASM-OK" if r.returncode == 0 else "ASM-FAIL\n" + r.stderr[:2000])
```

```python
import sys, struct
from fw import *

NAME = "parallel_sum__compressed_kv_cla__swiglu_ffn__prompt"
KN = NAME + "_kernel"
WS_XN = 0x0000000
WS_K = 0x0200000
WS_V = 0x1200000
WS_CH = 0x2200000
WS_PART = 0x4000000
WS_FLAG = 0x5000000
WS_BYTES = 0x10000000
OOB = 0x20000000
MF = "v_mfma_f32_16x16x32_bf16"
STAMP = False
OPT = {}
def f32hex(x): return "0x%08x" % struct.unpack("<I", struct.pack("<f", x))[0]
QSCALE = 1.4426950408889634 / (128 ** 0.5)
THR = float(2 ** 20)

R_WS, R_W1, R_CKV, R_X, R_WQ, R_WG, R_WU, R_WO, R_WD, R_OUT, R_DBG = 8, 12, 16, 20, 24, 28, 32, 36, 40, 44, 48
def sr(r): return "s[%d:%d]" % (r, r + 3)
sWAVE, sIDX, sX8, sT0, sT1, sT2, sT3 = 3, 4, 5, 6, 7, 52, 53
sU1, sO1, sO1B, sLW, sLT, sLNROW = 54, 55, 56, 57, 58, 59
sHEAD, sTB, sLAST, sS4, sF0, sQC, sXN, sHO, sHO2, sCTX, sHB = 60, 61, 62, 63, 64, 65, 66, 67, 68, 69, 70
sSRC, sDST, sMAX, sRB, sRING, sTHR, sUU, sTE, sPF = 71, 72, 73, 74, 75, 76, 77, 78, 79
sTAB = 80
sRO2, sROH = 96, 97
VL16, VWR, VD8, VDG, VDT, VTA, VONE, VDUM, VPOLL, VL128, VSP = 112, 113, 117, 118, 119, 121, 123, 124, 125, 126, 127
FRB, FR = 64, 8
EG = [(0, 0), (0, 1), (1, 0), (1, 1)]
FG = [(0, 2), (0, 3), (1, 2), (1, 3)]

def emit_tagged(p, toks, text, tag):
    if tag is not None and tag.startswith("m0:"):
        p.m0own = tag[3:]; p(text); return
    if text.endswith(" lds"):
        assert getattr(p, "m0own", None) == tag, ("m0 owner mismatch", text, tag, p.m0own)
    t = p(text)
    if tag is not None: toks.setdefault(tag, []).append(t)

class Slots:
    def __init__(self): self.s = []
    def add(self, mfma): self.s.append(dict(m=mfma, pre=[], f=[])); return len(self.s) - 1
    def put(self, slot, text, tag=None):
        assert 0 <= slot < len(self.s), slot
        self.s[slot]["f"].append((text, tag))
    def spread(self, start, items, per=1, step=1):
        k = 0
        for it in items:
            sl = start + (k // per) * step
            if isinstance(it, tuple): self.put(sl, it[0], it[1])
            else: self.put(sl, it)
            k += 1
        return start + ((k + per - 1) // per) * step
    def group(self, t0, lst, per=1):
        if not hasattr(self, "busy"): self.busy = set()
        n = (len(lst) + per - 1) // per
        while any((t0 + i) in self.busy for i in range(n)): t0 += 1
        self.busy |= set(range(t0, t0 + n))
        return self.spread(t0, lst, per=per)
    def emit(self, p, toks, lo=0, hi=None):
        for sl in self.s[lo:hi]:
            for it in sl["pre"]: it(p)
            p(sl["m"])
            for text, tag in sl["f"]:
                if callable(text): text(p)
                else: emit_tagged(p, toks, text, tag)

def stamp(p, i):
    if not STAMP: return
    lq, vq = list(p.lq), list(p.vq)
    p.auto = False
    if OPT.get("few", 0) and i not in (0, 3, 4, 7, 10, 13, 14, 15, 16, 17, 19, 23, 24, 25, 26, 27, 28, 29):
        p.auto = True; return
    p("%s s[100:101]" % ("s_memrealtime" if OPT.get("rt", 0) else "s_memtime")); p("s_waitcnt lgkmcnt(0)")
    p("v_mov_b32 v%d, s100" % VDUM, note="diag")
    p("buffer_store_dword v%d, v%d, %s, s99 offen offset:%d" % (VDUM, VONE, sr(R_WS), 4 * i), note="diag")
    if OPT.get("rt", 0):
        p("s_memtime s[100:101]"); p("s_waitcnt lgkmcnt(0)"); p("v_mov_b32 v%d, s100" % VSP, note="diag") if False else p("v_mov_b32 v%d, s100" % VDUM, note="diag")
        p("buffer_store_dword v%d, v%d, %s, s99 offen offset:%d" % (VDUM, VONE, sr(R_WS), 4 * (128 + i)), note="diag")
    p.auto = True
    p.lq, p.vq = [], vq

def acc_stamp(p, i):
    if not (STAMP and OPT.get("acc", 0)): return
    lq = list(p.lq); p.auto = False
    p("s_memtime s[100:101]"); p("s_waitcnt lgkmcnt(0)"); p("s_sub_u32 s101, s100, s98"); p("s_mov_b32 s98, s100")
    p("v_accvgpr_read_b32 v%d, a%d" % (VPOLL, 120 + i)); p("s_nop 0"); p("v_add_u32 v%d, s101, v%d" % (VPOLL, VPOLL)); p("s_nop 0"); p("v_accvgpr_write_b32 a%d, v%d" % (120 + i, VPOLL))
    p.auto = True; p.lq = lq
def acc_flush(p):
    if not (STAMP and OPT.get("acc", 0)): return
    vq = list(p.vq)
    for i in range(8):
        p("v_accvgpr_read_b32 v%d, a%d" % (96 + i, 120 + i))
        p("s_nop 0")
        p("buffer_store_dword v%d, v%d, %s, s99 offen offset:%d" % (96 + i, VONE, sr(R_WS), 4 * (32 + i)))
    p.vq = vq

def cond(p, text):
    p(text); p.vq.pop()

def wave_sum(q, v):
    for sh in (1, 2, 4, 8):
        q("s_nop 1"); q("v_add_f32_dpp v%d, v%d, v%d row_shr:%d row_mask:0xf bank_mask:0xf bound_ctrl:0" % (v, v, v, sh))
    q("s_nop 1"); q("v_add_f32_dpp v%d, v%d, v%d row_bcast:15 row_mask:0xa bank_mask:0xf" % (v, v, v))
    q("s_nop 1"); q("v_add_f32_dpp v%d, v%d, v%d row_bcast:31 row_mask:0xc bank_mask:0xf" % (v, v, v))

class Rec:
    def __init__(self): self.l = []
    def __call__(self, t, note=None): self.l.append(t)

def poll_issue(srd, soff):
    if soff.isdigit(): soff = "0 offset:" + soff
    return "buffer_load_dword v%d, off, %s, %s sc1" % (VPOLL, sr(srd), soff)
def poll_check(srd, soff, expect, w0=False, sleep=4):
    def f(p):
        ok, lp = p.newlabel("PK"), p.newlabel("PL")
        if w0: p("v_mov_b32 v%d, v%d" % (VPOLL, VPOLL)); p("s_cmp_lg_u32 s%d, 0" % sWAVE); p("s_cbranch_scc1 %s" % ok)
        p("v_readfirstlane_b32 s%d, v%d" % (sT0, VPOLL), note="=val %d" % expect); p("s_mov_b32 s%d, 0" % sT1)
        p("s_cmp_ge_u32 s%d, %d" % (sT0, expect)); p("s_cbranch_scc1 %s" % ok)
        lq, vq = list(p.lq), list(p.vq)
        p.label(lp)
        p("s_sleep %d" % sleep); p(poll_issue(srd, soff)); p("s_add_u32 s%d, s%d, 1" % (sT1, sT1)); p("s_waitcnt vmcnt(0)")
        p("v_readfirstlane_b32 s%d, v%d" % (sT0, VPOLL), note="=val %d" % expect)
        p("s_cmp_ge_u32 s%d, 0x40000" % sT1); p("s_cbranch_scc1 %s" % ok)
        p("s_cmp_lt_u32 s%d, %d" % (sT0, expect)); p("s_cbranch_scc1 %s" % lp)
        p.lq, p.vq = lq, vq
        p.label(ok)
    return f
def signal(off):
    def f(p):
        sk = p.newlabel("SG")
        p("s_cmp_lg_u32 s%d, 0" % sWAVE); p("s_cbranch_scc1 %s" % sk)
        p("v_mov_b32 v%d, 1" % VSP)
        cond(p, "buffer_atomic_add v%d, v%d, %s, 0 offen offset:%d sc1" % (VSP, VONE, sr(R_DBG), off))
        p.label(sk)
    return f

def engine(toks, items, base_of, mfma_fn, wdma_fn, prev, minbar, issued, rd2, cur_base, LA=6, extra_wait=None, after_bar=None, before_bar=None, maxnew=2, nobar=False):
    S = Slots(); frags = []
    for (sl, cols) in items:
        for kk in range(2):
            for col in cols: frags.append((sl, kk) + tuple(col))
    for n, (sl, kk, so, cbp, at) in enumerate(frags):
        for th in range(2): S.add(mfma_fn(sl, kk, at, th, FRB + 4 * (n % FR)))
    n2 = len(S.s)
    first_read, last_use, pro = {}, {}, []
    for n, (sl, kk, so, cbp, at) in enumerate(frags):
        fr = FRB + 4 * (n % FR); rs = 2 * (n - LA); win = base_of[sl] & ~0xffff
        if OPT.get("win48", 0) or rd2 == 2048: win = base_of[sl] & ~0x7fff
        L = []
        if cur_base[cbp] != win:
            L.append(("v_add_u32 v%d, 0x%x, v%d" % (VWR + cbp, (win - cur_base[cbp]) & 0xffffffff, VWR + cbp), None)); cur_base[cbp] = win
        o = base_of[sl] - win + so + kk * 4096
        L.append(("ds_read_b64_tr_b16 %s, v%d offset:%d" % (vr(fr, 2), VWR + cbp, o), "F%d" % n))
        L2 = ("ds_read_b64_tr_b16 %s, v%d offset:%d" % (vr(fr + 2, 2), VWR + cbp, o + rd2), "F%d" % n)
        if rs < 0: pro += L + [L2]
        else:
            for it in L: S.put(rs, it[0], it[1])
            S.put(rs + 1, L2[0], L2[1])
        first_read.setdefault(sl, rs); last_use[sl] = 2 * n + 1
        if n % 2 == 0 and n + 1 < len(frags):
            S.s[2 * n]["pre"].append(lambda p, n=n: p.wait_tok(toks["F%d" % (n + 1)]))
    if nobar: return S, pro, [], last_use
    bpos = list(range(16, n2, 32))
    waited = set(s for s in first_read if first_read[s] < bpos[0]); init_need = sorted(waited)
    issued = set(issued); extra_wait = extra_wait or {}; after_bar = after_bar or {}
    order = sorted(first_read, key=lambda s: first_read[s])
    S.dma_end = {}
    for bi, bp in enumerate(bpos):
        nxt = bpos[bi + 1] if bi + 1 < len(bpos) else n2 + 100
        need = [s for s in order if s not in waited and first_read[s] < nxt]
        for s in need: assert s in issued, ("unit %d needed at barrier %d but not issued" % (s, bp))
        waited |= set(need)
        new = [s for s in order if s not in issued and all(last_use[q] < bp for q in prev.get(s, [])) and minbar.get(s, 0) <= bp][:maxnew]
        tags = ["W%d" % s for s in need] + extra_wait.get(bp, [])
        def f(p, tags=tags, bp=bp):
            fine = OPT.get("fine", 0) and n2 > 512
            if fine: stamp(p, 64 + 3 * (bp // 32))
            for g in (before_bar or {}).get(bp, []): g(p)
            p.wait_tok(sum([toks.get(t, []) for t in tags], []))
            if fine: stamp(p, 65 + 3 * (bp // 32))
            p("s_barrier")
            if fine: stamp(p, 66 + 3 * (bp // 32))
            for g in after_bar.get(bp, []): g(p)
        if tags or new or bp in after_bar or bp in (before_bar or {}): S.s[bp]["pre"].insert(0, f)
        for s in new:
            issued.add(s); S.group(bp, wdma_fn(s))
    assert issued >= set(first_read), sorted(set(first_read) - issued)
    return S, pro, init_need, last_use

XG = [(0, c, c) for c in range(4)]
YG = [(8192, c, 4 + c) for c in range(4)]
GE = [(0, 0, 0), (0, 1, 1), (8192, 0, 2), (8192, 1, 3)]
GF = [(0, 2, 4), (0, 3, 5), (8192, 2, 6), (8192, 3, 7)]

def rot8(t, c, scale, base, ro=None):
    if OPT.get("half", 0):
        return [("s_add_u32 s%d, s%d, %d" % (t, sROH, c), None), ("s_and_b32 s%d, s%d, 3" % (t, t), None), ("s_add_u32 s%d, s%d, %d" % (t, t, c & 4), None), (scale, None),
                ("s_add_u32 s%d, s%d, s%d" % (t, t, base), None)]
    return [("s_add_u32 s%d, s%d, %d" % (t, sRO2 if ro is None else ro, c), None), ("s_and_b32 s%d, s%d, 7" % (t, t), None), (scale, None),
            ("s_add_u32 s%d, s%d, s%d" % (t, t, base), None)]

def treg(kap, th): return 16 * (kap >> 1) + 8 * (kap & 1) + 4 * th

def setup(p):
    p("s_cmp_ge_u32 s2, 256"); p("s_cbranch_scc1 K_END")
    p("s_lshr_b32 s%d, s2, 2" % sT0); p("s_and_b32 s%d, s%d, 1" % (sU1, sT0))
    if OPT.get("flipv", 0): p("s_xor_b32 s%d, s%d, 1" % (sU1, sU1))
    p("s_lshl_b32 s%d, s%d, 3" % (sT0, sU1)); p("s_add_u32 s%d, s%d, 24" % (sT0, sT0))
    p("s_load_dwordx2 s[%d:%d], s[0:1], s%d" % (R_W1, R_W1 + 1, sT0))
    for r, off in ((R_CKV, 8), (R_WS, 96), (R_X, 0), (R_WQ, 16), (R_WO, 40), (R_WG, 56), (R_WU, 64), (R_WD, 72), (R_OUT, 80), (R_DBG, 88)):
        p("s_load_dwordx2 s[%d:%d], s[0:1], %d" % (r, r + 1, off))
    for r, n in ((R_W1, 4194304), (R_CKV, 2097152), (R_WS, WS_BYTES), (R_X, 2097152), (R_WQ, 4194304), (R_WO, 4194304), (R_WG, 512 * 3584),
                 (R_WU, 512 * 3584), (R_WD, 1792 * 1024), (R_OUT, 2097152), (R_DBG, 256)):
        p("s_mov_b32 s%d, 0x%x" % (r + 2, n)); p("s_mov_b32 s%d, 0x00020000" % (r + 3))
    L, A, B, C = 96, 97, 98, 99
    p("v_lshrrev_b32 v1, 6, v0"); p("v_and_b32 v%d, 63, v0" % L)
    p("v_readfirstlane_b32 s%d, v1" % sWAVE, note="=wave")
    p("s_lshr_b32 s%d, s2, 3" % sIDX); p("s_and_b32 s%d, s2, 7" % sX8)
    p("v_lshlrev_b32 v%d, 4, v%d" % (VL16, L)); p("v_lshlrev_b32 v%d, 7, v%d" % (VL128, L))
    p("v_cmp_ne_u32 vcc, 0, v%d" % L); p("v_mov_b32 v%d, 0" % VONE); p("v_mov_b32 v%d, 0x40000000" % A)
    p("v_cndmask_b32 v%d, v%d, v%d, vcc" % (VONE, VONE, A))
    p("v_bfe_u32 v%d, v%d, 1, 2" % (A, L)); p("v_bfe_u32 v%d, v%d, 4, 1" % (B, L)); p("v_xor_b32 v%d, v%d, v%d" % (A, A, B))
    p("s_and_b32 s%d, s%d, 1" % (sT0, sWAVE)); p("s_lshl_b32 s%d, s%d, 1" % (sT0, sT0)); p("v_xor_b32 v%d, s%d, v%d" % (A, sT0, A))
    p("v_and_b32 v%d, 1, v%d" % (B, L)); p("v_lshlrev_b32 v%d, 4, v%d" % (B, B)); p("v_lshl_add_u32 v%d, v%d, 5, v%d" % (A, A, B))
    p("v_lshrrev_b32 v%d, 3, v%d" % (B, L)); p("s_lshl_b32 s%d, s%d, 3" % (sT0, sWAVE)); p("v_add_u32 v%d, s%d, v%d" % (B, sT0, B))
    p("v_lshl_add_u32 v%d, v%d, 13, v%d" % (VD8, B, A))
    p("v_mul_u32_u24 v%d, 3584, v%d" % (B, B)); p("v_add_u32 v%d, v%d, v%d" % (VDG, B, A))
    p("s_and_b32 s%d, s2, 1" % sT0); p("s_lshl_b32 s%d, s%d, 2" % (sT0, sT0)); p("s_and_b32 s%d, s%d, 3" % (sT1, sIDX))
    p("s_add_u32 s%d, s%d, s%d" % (sT0, sT0, sT1)); p("s_lshl_b32 s%d, s%d, 3" % (sT0, sT0)); p("s_add_u32 s%d, s%d, s%d" % (sO1B, sT0, sWAVE))
    p("v_lshrrev_b32 v%d, 3, v%d" % (A, L)); p("v_lshlrev_b32 v%d, 10, v%d" % (A, A)); p("s_lshl_b32 s%d, s%d, 15" % (sT0, sO1B)); p("v_add_u32 v%d, s%d, v%d" % (A, sT0, A))
    p("v_lshrrev_b32 v%d, 4, v%d" % (B, L)); p("v_and_b32 v%d, 7, v%d" % (C, L)); p("v_xor_b32 v%d, v%d, v%d" % (B, B, C))
    p("v_lshl_add_u32 v%d, v%d, 4, v%d" % (VDT, B, A)); p("v_xor_b32 v%d, 4, v%d" % (B, B)); p("v_lshl_add_u32 v%d, v%d, 4, v%d" % (VDT + 1, B, A))
    p("s_lshl_b32 s%d, s%d, 12" % (sLT, sWAVE)); p("s_add_u32 s%d, s%d, 65536" % (sLT, sLT)); p("s_lshl_b32 s%d, s%d, 10" % (sLW, sWAVE))
    p("s_lshr_b32 s%d, s%d, 2" % (sT0, sIDX)); p("s_lshl_b32 s%d, s%d, 1" % (sT1, sT1)); p("s_add_u32 s%d, s%d, s%d" % (sT1, sT1, sT0))
    if not OPT.get("rot", 1): p("s_mov_b32 s%d, 0" % sT1)
    if OPT.get("rot", 1) == 2: p("s_mov_b32 s%d, s%d" % (sT1, sT0))
    if OPT.get("rot", 1) == 3: p("s_sub_u32 s%d, s%d, s%d" % (sT1, sT1, sT0))
    p("s_and_b32 s%d, s2, 2" % sT2); p("s_lshl_b32 s%d, s%d, 2" % (sT2, sT2)); p("s_add_u32 s%d, s%d, s%d" % (sT2, sT2, sT0))
    p("s_lshl_b32 s%d, s%d, 20" % (sO1, sT2)); p("s_lshl_b32 s%d, s%d, 9" % (sT2, sT2))
    for c in range(8):
        p("s_add_u32 s%d, s%d, %d" % (sT0, sT1, c)); p("s_and_b32 s%d, s%d, 7" % (sT0, sT0))
        p("s_lshl_b32 s%d, s%d, 7" % (sTAB + c, sT0)); p("s_lshl_b32 s%d, s%d, 19" % (sT0, sT0)); p("s_add_u32 s%d, s%d, s%d" % (sTAB + 8 + c, sT0, sT2))
    p("s_waitcnt lgkmcnt(0)")

def setup2(p):
    L, A, B, C = 96, 97, 98, 99
    p("v_bfe_u32 v%d, v%d, 2, 2" % (A, L)); p("v_lshrrev_b32 v%d, 4, v%d" % (B, L))
    p("v_lshl_add_u32 v%d, v%d, 3, v%d" % (C, B, A)); p("v_lshlrev_b32 v%d, 7, v%d" % (C, C))
    p("v_and_b32 v100, 3, v%d" % L); p("v_lshl_add_u32 v%d, v100, 3, v%d" % (C, C))
    p("v_bfe_u32 v%d, v%d, 3, 2" % (A, L))
    for b in range(4):
        p("v_xor_b32 v100, %d, v%d" % (b, A)); p("v_lshl_add_u32 v%d, v100, 5, v%d" % (VWR + b, C))
    p("v_and_b32 v%d, 15, v%d" % (A, L)); p("v_bfe_u32 v%d, v%d, 1, 3" % (B, L)); p("v_lshrrev_b32 v%d, 4, v%d" % (C, L))
    p("v_xor_b32 v%d, v%d, v%d" % (B, B, C)); p("v_lshlrev_b32 v%d, 4, v%d" % (B, B)); p("v_lshl_add_u32 v%d, v%d, 7, v%d" % (A, A, B))
    p("v_add_u32 v%d, s%d, v%d" % (VTA, sLT, A)); p("v_xor_b32 v%d, 64, v%d" % (VTA + 1, VTA))
    p("s_lshl_b32 s%d, s%d, 24" % (sT0, sU1)); p("s_add_u32 s%d, s%d, s%d" % (sO1, sO1, sT0)); p("s_add_u32 s%d, s%d, 0x%x" % (sO1, sO1, WS_K))
    p("s_lshl_b32 s%d, s%d, 13" % (sT0, sO1B)); p("s_add_u32 s%d, s%d, s%d" % (sO1, sO1, sT0)); p("s_add_u32 s%d, s%d, 4096" % (sO1B, sO1))
    p("s_lshl_b32 s%d, s2, 3" % sLNROW); p("s_add_u32 s%d, s%d, s%d" % (sLNROW, sLNROW, sWAVE))
    p("s_lshl_b32 s%d, s%d, 2" % (sHEAD, sX8)); p("s_and_b32 s%d, s%d, 3" % (sT0, sIDX)); p("s_add_u32 s%d, s%d, s%d" % (sHEAD, sHEAD, sT0))
    p("s_and_b32 s%d, s%d, 3" % (sS4, sWAVE))
    p("s_and_b32 s%d, s%d, 28" % (sT0, sIDX))
    p("s_add_u32 s%d, s%d, 3" % (sTB, sT0)); p("s_sub_u32 s%d, s%d, s%d" % (sTB, sTB, sS4))
    p("s_sub_u32 s%d, 60, s%d" % (sT0, sT0)); p("s_add_u32 s%d, s%d, s%d" % (sT1, sT0, sS4))
    p("s_cmp_ge_u32 s%d, 4" % sWAVE); p("s_cselect_b32 s%d, s%d, s%d" % (sTB, sT1, sTB))
    p("s_add_u32 s%d, s%d, 3" % (sLAST, sT0))
    p("s_lshl_b32 s%d, s%d, 7" % (sF0, sHEAD)); p("s_lshl_b32 s%d, s%d, 6" % (sT0, sHEAD)); p("s_add_u32 s%d, s%d, 1536" % (sT0, sT0))
    p("s_cmp_ge_u32 s%d, 24" % sHEAD); p("s_cselect_b32 s%d, s%d, s%d" % (sF0, sT0, sF0))
    p("s_lshl_b32 s%d, s%d, 8" % (sQC, sHEAD))
    p("s_lshl_b32 s%d, s%d, 15" % (sXN, sTB)); p("s_add_u32 s%d, s%d, 0x%x" % (sXN, sXN, WS_XN))
    p("s_mul_i32 s%d, s%d, %d" % (sCTX, sTB, 368 * 1024)); p("s_add_u32 s%d, s%d, 0x%x" % (sCTX, sCTX, WS_CH))
    p("s_lshl_b32 s%d, s%d, 5" % (sHO, sF0)); p("s_add_u32 s%d, s%d, s%d" % (sHO, sHO, sCTX)); p("s_add_u32 s%d, s%d, %d" % (sHO, sHO, 256 * 1024))
    p("s_add_u32 s%d, s%d, 2048" % (sHO2, sHO)); p("s_cmp_ge_u32 s%d, 24" % sHEAD); p("s_cselect_b32 s%d, 0x%x, s%d" % (sHO2, OOB, sHO2))
    p("s_lshl_b32 s%d, s%d, 13" % (sT0, sHEAD)); p("s_add_u32 s%d, s%d, s%d" % (sCTX, sCTX, sT0))
    p("s_lshl_b32 s%d, s%d, 19" % (sHB, sHEAD))
    p("s_and_b32 s%d, s%d, 3" % (sRO2, sIDX)); p("s_lshl_b32 s%d, s%d, 1" % (sRO2, sRO2)); p("s_lshr_b32 s%d, s%d, 2" % (sT0, sIDX))
    p("s_add_u32 s%d, s%d, s%d" % (sRO2, sRO2, sT0)); p("s_and_b32 s%d, s%d, 7" % (sRO2, sRO2))
    if not OPT.get("rot2", 1): p("s_mov_b32 s%d, 0" % sRO2)
    if OPT.get("rot2", 1) == 2: p("s_lshr_b32 s%d, s%d, 2" % (sRO2, sIDX))
    if OPT.get("rot2", 1) == 3: p("s_and_b32 s%d, s%d, 3" % (sRO2, sIDX)); p("s_lshl_b32 s%d, s%d, 1" % (sRO2, sRO2))
    p("s_lshr_b32 s%d, s%d, 2" % (sROH, sIDX)); p("s_add_u32 s%d, s%d, s%d" % (sROH, sROH, sIDX))
    if STAMP:
        p("s_lshl_b32 s99, s2, 3"); p("s_add_u32 s99, s99, s%d" % sWAVE); p("s_lshl_b32 s99, s99, 10"); p("s_add_u32 s99, s99, 0x6000000")

WS_STAT = 0x5100000
def ln_list_a():
    q = Rec(); T0, T1, T2, XR, F = VPOLL, 98, 99, 100, 104
    for j in range(4):
        q("v_lshlrev_b32 v%d, 16, v%d" % (F + 2 * j, XR + j)); q("v_and_b32 v%d, 0xffff0000, v%d" % (F + 2 * j + 1, XR + j))
    q("v_and_b32 v%d, 0x70, v%d" % (T1, VL16)); q("v_lshlrev_b32 v%d, 6, v%d" % (T1, T1)); q("v_lshrrev_b32 v%d, 7, v%d" % (T2, VL16))
    q("v_lshl_add_u32 v%d, v%d, 4, v%d" % (T1, T2, T1))
    q("s_lshl_b32 s%d, s2, 13" % sSRC); q("s_lshl_b32 s%d, s%d, 7" % (sDST, sWAVE)); q("s_add_u32 s%d, s%d, s%d" % (sSRC, sSRC, sDST))
    q("buffer_load_dwordx4 %s, v%d, %s, s%d offen" % (vr(XR), T1, sr(R_X), sSRC))
    q("v_add_f32 v%d, v%d, v%d" % (T0, F, F + 1))
    for j in range(2, 8): q("v_add_f32 v%d, v%d, v%d" % (T0, T0, F + j))
    wave_sum(q, T0)
    q("s_nop 0"); q("v_readlane_b32 s%d, v%d, 63" % (sSRC, T0))
    q("v_mov_b32 v%d, 0x3b000000" % T1); q("s_nop 0"); q("v_mul_f32 v%d, s%d, v%d" % (T1, sSRC, T1))
    q("v_sub_f32 v%d, v%d, v%d" % (T2, F, T1)); q("v_mul_f32 v%d, v%d, v%d" % (T0, T2, T2))
    for j in range(1, 8):
        q("v_sub_f32 v%d, v%d, v%d" % (T2, F + j, T1)); q("v_fmac_f32 v%d, v%d, v%d" % (T0, T2, T2))
    wave_sum(q, T0)
    q("s_nop 0"); q("v_readlane_b32 s%d, v%d, 63" % (sSRC, T0))
    q("v_mov_b32 v%d, 0x3b000000" % T2); q("s_nop 0"); q("v_mul_f32 v%d, s%d, v%d" % (T2, sSRC, T2))
    q("v_cvt_pk_bf16_f32 v%d, v%d, v%d" % (T0, T1, T2))
    q("v_lshlrev_b32 v%d, 16, v%d" % (T1, T0)); q("v_and_b32 v%d, 0xffff0000, v%d" % (T2, T0))
    q("v_add_f32 v%d, 0x3727c5ac, v%d" % (T2, T2))
    q("v_cvt_pk_bf16_f32 v%d, v%d, v%d" % (T2, T2, T2)); q("v_lshlrev_b32 v%d, 16, v%d" % (T2, T2))
    q("v_sqrt_f32 v%d, v%d" % (T2, T2)); q("s_lshl_b32 s%d, s%d, 3" % (sSRC, sLNROW))
    q("v_cvt_pk_bf16_f32 v%d, v%d, v%d" % (T2, T2, T2)); q("v_lshlrev_b32 v%d, 16, v%d" % (T2, T2))
    q("s_add_u32 s%d, s%d, 0x%x" % (sSRC, sSRC, WS_STAT))
    L = list(q.l)
    L.append(("buffer_store_dwordx2 v[%d:%d], v%d, %s, s%d offen sc1" % (T1, T2, VONE, sr(R_WS), sSRC), "LS"))
    return L
def ln_list_b0():
    return ["v_and_b32 v104, 0x70, v%d" % VL16, "v_lshrrev_b32 v104, 1, v104", "s_lshl_b32 s%d, s2, 6" % sSRC, "s_add_u32 s%d, s%d, 0x%x" % (sSRC, sSRC, WS_STAT),
            "buffer_load_dwordx2 v[98:99], v104, %s, s%d offen sc1" % (sr(R_WS), sSRC)]
def ln_list_b():
    q = Rec(); M, SD, XR, F, R, T = 98, 99, 100, 104, VSP, VPOLL
    q("v_rcp_f32 v%d, v%d" % (R, SD))
    for j in range(4):
        q("v_lshlrev_b32 v%d, 16, v%d" % (F + 2 * j, XR + j)); q("v_and_b32 v%d, 0xffff0000, v%d" % (F + 2 * j + 1, XR + j))
    for j in range(8): q("v_sub_f32 v%d, v%d, v%d" % (F + j, F + j, M))
    for j in range(4): q("v_cvt_pk_bf16_f32 v%d, v%d, v%d" % (XR + j, F + 2 * j, F + 2 * j + 1))
    for j in range(4):
        q("v_lshlrev_b32 v%d, 16, v%d" % (F + 2 * j, XR + j)); q("v_and_b32 v%d, 0xffff0000, v%d" % (F + 2 * j + 1, XR + j))
    for j in range(8):
        q("v_mul_f32 v%d, v%d, v%d" % (T, F + j, R)); q("v_fma_f32 v%d, -v%d, v%d, v%d" % (F + j, T, SD, F + j))
        q("v_fma_f32 v%d, v%d, v%d, v%d" % (F + j, F + j, R, T))
    for j in range(4): q("v_cvt_pk_bf16_f32 v%d, v%d, v%d" % (XR + j, F + 2 * j, F + 2 * j + 1))
    q("v_and_b32 v%d, 0x200, v%d" % (T, VL16)); q("v_lshlrev_b32 v%d, 2, v%d" % (T, T))
    q("v_and_b32 v%d, 0x180, v%d" % (R, VL16)); q("v_lshl_add_u32 v%d, v%d, 1, v%d" % (T, R, T))
    q("v_and_b32 v%d, 0x70, v%d" % (R, VL16)); q("v_add_u32 v%d, v%d, v%d" % (T, T, R))
    q("s_lshr_b32 s%d, s2, 2" % sSRC); q("s_lshl_b32 s%d, s%d, 15" % (sSRC, sSRC))
    q("s_and_b32 s%d, s2, 1" % sDST); q("s_lshl_b32 s%d, s%d, 7" % (sDST, sDST)); q("s_add_u32 s%d, s%d, s%d" % (sSRC, sSRC, sDST))
    q("s_and_b32 s%d, s2, 2" % sDST); q("s_lshl_b32 s%d, s%d, 9" % (sDST, sDST)); q("s_add_u32 s%d, s%d, s%d" % (sSRC, sSRC, sDST))
    q("s_lshl_b32 s%d, s%d, 12" % (sDST, sWAVE)); q("s_add_u32 s%d, s%d, s%d" % (sSRC, sSRC, sDST))
    L = list(q.l)
    L.append(("buffer_store_dwordx4 %s, v%d, %s, s%d offen sc1" % (vr(XR), T, sr(R_WS), sSRC), "LN"))
    return L

UB = [(u % 8) * 8192 for u in range(32)] + [16384 * x for x in (4, 5, 6, 7, 8, 9, 0, 1, 2, 3, 4, 5, 6, 7, 8, 9)]
def p12(p):
    setup(p)
    toks = {}
    def run(lst):
        for it in lst:
            if isinstance(it, tuple): emit_tagged(p, toks, it[0], it[1])
            else: p(it)
    def wdma(s):
        t = "W%d" % s; b = UB[s]
        if s < 32:
            ps, c = divmod(s, 8); so = "s%d" % (sTAB + 8 + c); L = [("s_nop 0", None)]
            if ps: L = [("s_add_u32 s%d, %s, %d" % (sT2, so, ps * 128), None)]; so = "s%d" % sT2
            return [("s_add_u32 m0, s%d, %d" % (sLW, b), "m0:" + t)] + L + [("buffer_load_dwordx4 v%d, %s, %s offen lds" % (VD8, sr(R_W1), so), t)]
        elif s < 40:
            L = rot8(sT2, s - 32, "s_mul_i32 s%d, s%d, %d" % (sT2, sT2, 64 * 3584), sF0); so = "s%d" % sT2
            rs, v1, rs2, off2, m2 = R_WG, VDG, R_WU, 0, 8192
        else:
            L = rot8(sT2, s - 40, "s_lshl_b32 s%d, s%d, 19" % (sT2, sT2), sQC); so = "s%d" % sT2
            rs, v1, rs2, off2, m2 = R_WQ, VD8, R_WQ, 128, 8192 - 128
        return [("s_add_u32 m0, s%d, %d" % (sLW, b), "m0:" + t)] + L + [
            ("buffer_load_dwordx4 v%d, %s, %s offen lds" % (v1, sr(rs), so), t),
            ("s_add_u32 m0, s%d, %d" % (sLW, b + m2), "m0:" + t), ("s_nop 0", None),
            ("buffer_load_dwordx4 v%d, %s, %s offen offset:%d lds" % (v1, sr(rs2), so, off2), t)]
    def tdma(c):
        t = "T%d" % c
        L = [("s_add_u32 m0, s%d, %d" % (sLT, (c % 3) * 32768), "m0:" + t), ("s_nop 0", None)]
        for q in range(4):
            so = "s%d" % (sTAB + c)
            if q: L.append(("s_add_u32 s%d, %s, %d" % (sT2, so, q * 7168), None)); so = "s%d" % sT2
            L.append(("buffer_load_dwordx4 v%d, %s, %s offen offset:%d lds" % (VDT + (q & 1), sr(R_CKV), so, q * 1024), t))
        return L
    run(wdma(0)); run(tdma(0)); run(wdma(1)); p("s_barrier"); run(tdma(1)); run(wdma(2)); run(tdma(2)); run(wdma(3))
    if OPT.get("cpf", 1):
        p("s_cmp_lg_u32 s%d, 7" % sWAVE); p("s_cbranch_scc1 K_NOCPF")
        p("s_getpc_b64 s[100:101]")
        p("s_and_b32 s%d, s%d, 7" % (sT0, sIDX)); p("s_lshl_b32 s%d, s%d, 13" % (sT0, sT0)); p("v_add_u32 v%d, s%d, v%d" % (VSP, sT0, VL128))
        p("v_min_u32 v%d, 0x%x, v%d" % (VSP, OPT.get("reach", 0x1000), VSP))
        cond(p, "global_load_dword v%d, v%d, s[100:101]" % (VDUM, VSP))
        p.label("K_CPFREF")
        p.label("K_NOCPF")
    setup2(p)
    stamp(p, 0)
    items = [(u, [(0, c, 4 * ((u >> 3) & 1) + c) for c in range(4)]) for u in range(32)]
    items += [(32, GE), (33, GE), (32, GF), (33, GF)] + [(s, g) for s in range(34, 38) for g in (GE, GF)]
    items += [(38, GE), (39, GE), (38, GF), (39, GF), (40, XG), (41, XG), (40, YG), (41, YG)] + [(s, g) for s in range(42, 48) for g in (XG, YG)]
    prev = {}
    for s in range(48):
        sz = 8192 if s < 32 else 16384
        ov = [q for q in range(s) if UB[q] < UB[s] + sz and UB[s] < UB[q] + (8192 if q < 32 else 16384)]
        prev[s] = ov[-2:]
    g0 = OPT.get("g0", 176)
    minbar = {32 + i: g0 + 32 * i for i in range(6)}
    MERGE = 576
    st = None
    for var in ("K", "V"):
        if var == "K":
            p("s_cmp_lg_u32 s%d, 0" % sU1); p("s_cbranch_scc1 P1_V"); st = (list(p.lq), list(p.vq), {k: list(v) for k, v in toks.items()})
        else:
            p.label("P1_V"); p.lq, p.vq = list(st[0]), list(st[1]); toks.clear(); toks.update({k: list(v) for k, v in st[2].items()})
        def mf(sl, kk, at, th, fr):
            c = sl % 8; t = treg(2 * c + kk, th); t = "a[%d:%d]" % (t, t + 3)
            acc = vr(8 * at + 4 * th); cc = "0" if (c == 0 and kk == 0) else acc
            if var == "V" and sl < 32: return "%s %s, %s, %s, %s" % (MF, acc, t, vr(fr), cc)
            return "%s %s, %s, %s, %s" % (MF, acc, vr(fr), t, cc)
        sc = [1]
        def st_hook(p):
            stamp(p, sc[0]); sc[0] += 1
        ab = {bp: [st_hook] for bp in (16, 48, 112, 240, 304, 400, 496, 528, 624, 752, 816, 912, 1008)} if STAMP else {}
        ab.setdefault(176, []).append(signal(0)); ab.setdefault(880, []).append(signal(128))
        def wbl2(p):
            sk = p.newlabel("WB")
            p("s_cmp_lg_u32 s%d, 0" % sWAVE); p("s_cbranch_scc1 %s" % sk); cond(p, "buffer_wbl2 sc1"); p.label(sk)
        if OPT.get("wb", 0):
            for bp_ in ((720,) if OPT["wb"] == 1 else (400, 720)): ab.setdefault(bp_, []).append(wbl2)
            ab.setdefault(880, []).append(signal(64))
        else: ab.setdefault(720, []).append(signal(64))
        ew = {80: ["LS"], 176: ["LN"], 720: ["ST1"], 880: ["STH"]}
        if OPT.get("wb", 0) == 2: ew[400] = ["ST1"]
        C0B, C1B = OPT.get("c0b", 368), OPT.get("c1b", 944)
        bb = {C0B: [poll_check(R_DBG, "0", 256, True)], C1B: [poll_check(R_DBG, "64", 256, True)]}
        S, pro, init, last_use = engine(toks, items, UB, mf, wdma, prev, minbar, range(8), 512, {b: 0 for b in range(4)},
                                        extra_wait=ew, after_bar=ab, before_bar=bb, maxnew=3)
        def tread(c):
            def f(p):
                p.wait_tok(toks["T%d" % c])
                for kk in range(2):
                    ad, o = VTA + kk, (c % 3) * 32768
                    if c % 3 == 2: p("v_add_u32 v%d, 0x10000, v%d" % (96 + kk, VTA + kk)); ad, o = 96 + kk, 0
                    for th in range(2):
                        t = treg(2 * c + kk, th); p("ds_read_b128 a[%d:%d], v%d offset:%d" % (t, t + 3, ad, o + th * 2048))
            return f
        S.group(0, wdma(4)); S.group(0, wdma(5))
        for c in range(1, 8): S.put(16 * (c - 1) + 6, tread(c))
        S.group(10, tdma(3), per=2); S.group(16, wdma(6)); S.group(16, wdma(7))
        for c in range(4, 8): S.group(16 * (c - 3) + 10, tdma(c), per=2)
        X0 = OPT.get("x0", 1)
        S.spread(X0, ["s_lshl_b32 s%d, s%d, 10" % (sT3, sLNROW), "buffer_load_dwordx4 v[100:103], v%d, %s, s%d offen" % (VL16, sr(R_X), sT3)], per=6)
        S.spread(26, ["v_mov_b32 v104, 0", "s_lshl_b32 s%d, s2, 8" % sT3, "s_add_u32 s%d, s%d, 0x%x" % (sT3, sT3, WS_FLAG),
                      "v_lshrrev_b32 v106, 2, v%d" % VL16, "s_cmp_eq_u32 s%d, 0" % sWAVE,
                      "s_cselect_b32 s%d, s%d, 0x%x" % (sT3, sT3, OOB), ("buffer_store_dword v104, v106, %s, s%d offen sc1" % (sr(R_WS), sT3), "LN")], per=8)
        e = S.spread(28, ln_list_a(), per=3); assert e <= 64, e
        S.spread(80, ln_list_b0(), per=2)
        e = S.spread(100, ln_list_b(), per=3); assert e <= 134, e
        def cvt(grp, q):
            st0 = 96 + 4 * q
            if var == "K":
                kap, th = 2 * grp + (q >> 1), q & 1; src = [16 * kap + 4 * th, 16 * kap + 4 * th + 2, 16 * kap + 8 + 4 * th, 16 * kap + 10 + 4 * th]
            else:
                cb = 4 * grp + q; src = [8 * cb + 2 * j for j in range(4)]
            return ["v_cvt_pk_bf16_f32 v%d, v%d, v%d" % (st0 + j, src[j], src[j] + 1) for j in range(4)]
        def sto(grp, q):
            if OPT.get("nost", 0): return ("s_nop 0", None)
            return ("buffer_store_dwordx4 %s, v%d, %s, s%d offen offset:%d%s" % (vr(96 + 4 * q), VL16, sr(R_WS), sO1B if grp else sO1, q * 1024, "" if OPT.get("wb", 0) else " sc1"), "ST1")
        for ps in range(3):
            for q in range(4):
                t0 = 128 * (ps + 1) + 8 + (28 if ps < 2 else OPT.get("s2", 12)) * q
                S.spread(t0, cvt(ps & 1, q)); S.put(t0 + 6, *sto(ps & 1, q))
        S.put(250, "s_add_u32 s%d, s%d, 0x80000" % (sO1, sO1)); S.put(378, "s_add_u32 s%d, s%d, 0x80000" % (sO1B, sO1B))
        S.spread(522, sum([cvt(1, q) for q in range(4)], []))
        for q in range(4): S.put(OPT.get("fb", 600) + 25 * q, *sto(1, q))
        S.put(C0B - 24, poll_issue(R_DBG, "0"))
        def stag(f):
            def g(lo):
                def h(p):
                    sk = p.newlabel("SK")
                    p("s_cmp_%s_u32 s%d, 4" % ("ge" if lo else "lt", sWAVE)); p("s_cbranch_scc1 %s" % sk); f(p); p.label(sk)
                return h
            return g(True), g(False)
        def pf_xn(t):
            def f(p):
                p("s_lshl_b32 s%d, s%d, 16" % (sT1, sIDX)); p("s_lshl_b32 s%d, s%d, 13" % (sT0, sS4)); p("s_add_u32 s%d, s%d, s%d" % (sT0, sT1, sT0))
                cond(p, "buffer_load_dword v%d, v%d, %s, s%d offen offset:0" % (VDUM, VL128, sr(R_WS), sT0)) if t == 0 else (
                    p("s_add_u32 s%d, s%d, 32768" % (sT0, sT0)), cond(p, "buffer_load_dword v%d, v%d, %s, s%d offen" % (VDUM, VL128, sr(R_WS), sT0)))
            return f
        def pf_kv(t):
            def f(p):
                p("v_and_b32 v%d, 0x380, v%d" % (VSP, VL128)); p("v_bfe_u32 v%d, v%d, 7, 2" % (VPOLL, VL16)); p("v_lshl_add_u32 v%d, v%d, 13, v%d" % (VSP, VPOLL, VSP))
                p("v_lshrrev_b32 v%d, 9, v%d" % (VPOLL, VL16)); p("v_lshl_add_u32 v%d, v%d, 24, v%d" % (VSP, VPOLL, VSP))
                p("s_lshl_b32 s%d, s%d, 15" % (sT0, sWAVE)); p("s_add_u32 s%d, s%d, s%d" % (sT0, sT0, sHB)); p("s_and_b32 s%d, s%d, 28" % (sT1, sIDX)); p("s_lshl_b32 s%d, s%d, 8" % (sT1, sT1))
                p("s_add_u32 s%d, s%d, s%d" % (sT0, sT0, sT1)); p("s_add_u32 s%d, s%d, 0x%x" % (sT0, sT0, WS_K + t * 262144))
                cond(p, "buffer_load_dword v%d, v%d, %s, s%d offen" % (VDUM, VSP, sr(R_WS), sT0))
            return f
        if OPT.get("pf", 0):
            S.put(C0B + 9, stag(pf_xn(0))[1]); S.put(C0B + 41, stag(pf_xn(1))[1])
        if OPT.get("pfw", 0): S.put(OPT["pfw"], pf_p2w)
        if OPT.get("pfkv", 0):
            for t in range(2):
                a_, b_ = stag(pf_kv(t)); S.put(C1B + 8 + 40 * t, a_); S.put(C1B + 26 + 40 * t, b_)
        for c in range(8):
            L = rot8(sT3, c, "s_lshl_b32 s%d, s%d, 12" % (sT3, sT3), sXN)
            for kk in range(2):
                for th in range(2):
                    t = treg(2 * c + kk, th)
                    L.append("buffer_load_dwordx4 a[%d:%d], v%d, %s, s%d offen offset:%d sc1" % (t, t + 3, VL16, sr(R_WS), sT3, kk * 2048 + th * 1024))
            need = 512 + (16 * c if c < 2 else 32 * c)
            t0 = max(401 + 16 * c, need - OPT.get("xla", 100))
            if not OPT.get("noxn", 0): S.spread(t0, L[:-4], per=5); S.spread(t0 + 1, L[-4:], per=1, step=2)
        def swiglu(grp):
            r_ = []
            for th in range(2):
                st0 = 96 + 4 * th; E = 104
                g = [8 * (4 * grp + (j >> 2)) + 4 * th + (j & 3) for j in range(8)]; u = [x + 16 for x in g]
                for j in range(8): r_.append("v_mul_f32 v%d, 0xbfb8aa3b, v%d" % (E + j, g[j]))
                for j in range(8): r_.append("v_exp_f32 v%d, v%d" % (E + j, E + j))
                for j in range(8): r_.append("v_mul_f32 v%d, v%d, v%d" % (g[j], g[j], u[j]))
                for j in range(8): r_.append("v_add_f32 v%d, 1.0, v%d" % (E + j, E + j))
                for j in range(8): r_.append("v_rcp_f32 v%d, v%d" % (E + j, E + j))
                r_.append("s_nop 0")
                for j in range(8): r_.append("v_mul_f32 v%d, v%d, v%d" % (g[j], g[j], E + j))
                for j in range(4): r_.append("v_cvt_pk_bf16_f32 v%d, v%d, v%d" % (st0 + j, g[2 * j], g[2 * j + 1]))
                r_.append(("buffer_store_dwordx4 %s, v%d, %s, s%d offen offset:%d sc1" % (vr(st0), VL16, sr(R_WS), sHO2 if grp else sHO, th * 1024), "STH"))
            return r_
        e = S.spread(736 + 5, swiglu(0), per=4); assert e <= 768, e
        e = S.spread(768 + 5, swiglu(1), per=4); assert e <= 800, e
        S.spread(1008 + 5, qepi(0), per=5)
        S.spread(900, ["v_accvgpr_write_b32 a%d, 0" % r for r in range(64)], per=1)
        S.put(C1B - 14, poll_issue(R_DBG, "64"))
        kv = ["s_lshl_b32 s%d, s%d, 13" % (sT0, sWAVE), "s_add_u32 s%d, s%d, s%d" % (sT1, sHB, sT0), "s_add_u32 s%d, s%d, 0x%x" % (sT1, sT1, WS_K),
              "s_add_u32 s%d, s%d, 0x%x" % (sT3, sT1, WS_V - WS_K - 6 * 8192), "s_add_u32 s%d, s%d, %d" % (sSRC, sT0, 65536 - 6 * 8192),
              "s_cmp_ge_u32 s%d, 6" % sWAVE, "s_cselect_b32 s%d, s%d, s%d" % (sT1, sT3, sT1), "s_cselect_b32 s%d, s%d, s%d" % (sT0, sSRC, sT0)]
        S.spread(952, kv, per=8)
        kv = []
        for hf in range(2):
            kv += [("s_add_u32 m0, s%d, %d" % (sT0, hf * 4096), "m0:KV"), ("s_add_u32 s%d, s%d, %d" % (sT3, sT1, hf * 4096), None)]
            kv += [("buffer_load_dwordx4 v%d, %s, s%d offen offset:%d sc1 lds" % (VL16, sr(R_WS), sT3, j * 1024), "KV") for j in range(4)]
        assert not (set(range(953, 980)) & S.busy)
        S.spread(953, kv, step=2)
        assert max(last_use[40], last_use[42]) < 944
        p.wait_tok(sum([toks["W%d" % s] for s in init], [])); p("s_barrier")
        tread(0)(p)
        run(pro)
        S.emit(p, toks, 0, MERGE)
        if var == "K": p("s_branch P2_M")
    p.label("P2_M")
    S.emit(p, toks, MERGE, None)
    p("s_cmp_ge_u32 s%d, 2" % sS4)
    p("s_mov_b32 s%d, 0x%x" % (sSRC, WS_K + 6 * 8192)); p("s_cselect_b32 s%d, 0x%x, s%d" % (sSRC, WS_V, sSRC))
    p("s_mov_b32 s%d, 0x%x" % (sMAX, WS_K)); p("s_cselect_b32 s%d, 0x%x, s%d" % (sMAX, WS_V, sMAX))
    p("s_mov_b32 s%d, 0" % sRB); p("s_cselect_b32 s%d, 0x10000, s%d" % (sRB, sRB))
    p("s_mov_b32 s%d, %d" % (sDST, 6 * 8192)); p("s_cselect_b32 s%d, 0, s%d" % (sDST, sDST))

    p("s_lshl_b32 s%d, s%d, 13" % (sT0, sS4)); p("s_add_u32 s%d, s%d, s%d" % (sSRC, sSRC, sT0)); p("s_add_u32 s%d, s%d, s%d" % (sSRC, sSRC, sHB))
    p("s_add_u32 s%d, s%d, s%d" % (sDST, sDST, sT0))
    p("s_lshl_b32 s%d, s%d, 13" % (sT0, sLAST)); p("s_add_u32 s%d, s%d, s%d" % (sMAX, sMAX, sT0)); p("s_add_u32 s%d, s%d, s%d" % (sMAX, sMAX, sHB))
    for t in qepi(1): p(t)
    p.wait_tok(toks["KV"]); p("s_barrier")
    stamp(p, 14)

def pf_p2w(p):
    l1, l2, l3 = p.newlabel("PF"), p.newlabel("PF"), p.newlabel("PF")
    p("s_cmp_lt_u32 s%d, 4" % sWAVE); p("s_cbranch_scc1 %s" % l3)
    p("s_cmp_ge_u32 s%d, 2" % sS4); p("s_cbranch_scc1 %s" % l1)
    p("v_and_b32 v%d, 0x380, v%d" % (VSP, VL128)); p("v_lshrrev_b32 v%d, 7, v%d" % (VPOLL, VL16)); p("v_lshl_add_u32 v%d, v%d, 13, v%d" % (VSP, VPOLL, VSP))
    p("s_lshl_b32 s%d, s%d, 1" % (sT0, sIDX)); p("s_add_u32 s%d, s%d, s%d" % (sT0, sT0, sS4)); p("s_lshl_b32 s%d, s%d, 16" % (sT0, sT0))
    p("s_lshl_b32 s%d, s%d, 10" % (sT1, sX8)); p("s_add_u32 s%d, s%d, s%d" % (sT0, sT0, sT1))
    cond(p, "buffer_load_dword v%d, v%d, %s, s%d offen" % (VDUM, VSP, sr(R_WQ), sT0))
    p("s_branch %s" % l3)
    p.label(l1)
    p("v_and_b32 v%d, 0x180, v%d" % (VSP, VL128)); p("v_lshrrev_b32 v%d, 6, v%d" % (VPOLL, VL16)); p("v_mul_u32_u24 v%d, 3584, v%d" % (VPOLL, VPOLL))
    p("v_add_u32 v%d, v%d, v%d" % (VSP, VSP, VPOLL))
    p("s_mul_i32 s%d, s%d, %d" % (sT0, sIDX, 16 * 3584)); p("s_lshl_b32 s%d, s%d, 9" % (sT1, sX8)); p("s_lshl_b32 s%d, s%d, 8" % (sT3, sX8)); p("s_add_u32 s%d, s%d, 1536" % (sT3, sT3))
    p("s_cmp_ge_u32 s%d, 6" % sX8); p("s_cselect_b32 s%d, s%d, s%d" % (sT1, sT3, sT1)); p("s_add_u32 s%d, s%d, s%d" % (sT0, sT0, sT1))
    p("s_cmp_eq_u32 s%d, 3" % sS4); p("s_cbranch_scc1 %s" % l2)
    cond(p, "buffer_load_dword v%d, v%d, %s, s%d offen" % (VDUM, VSP, sr(R_WG), sT0))
    p("s_branch %s" % l3)
    p.label(l2)
    cond(p, "buffer_load_dword v%d, v%d, %s, s%d offen" % (VDUM, VSP, sr(R_WU), sT0))
    p.label(l3)

def qepi(grp):
    r = []
    for kap in (2 * grp, 2 * grp + 1):
        for j in range(16): r.append("v_mul_f32 v%d, %s, v%d" % (16 * kap + j, f32hex(QSCALE), 16 * kap + j))
        for th in range(2):
            b = 16 * kap + 4 * th
            for j, s_ in enumerate((b, b + 2, b + 8, b + 10)): r.append("v_cvt_pk_bf16_f32 v%d, v%d, v%d" % (b + j, s_, s_ + 1))
    return r

SREG = [[8 + (e & 7) + 16 * (e >> 3) for e in range(16)], [40 + (e & 7) + 16 * (e >> 3) for e in range(16)]]
CI, PB, E, LR, VKA, VKB, VV, VQM, TM = 64, (80, 88), 96, ((100, 101), (102, 103)), 104, 105, 106, 107, 108
def attention(p):
    AF = 64; LA = OPT.get("la", 7); KVSC = "sc1 " if OPT.get("kvsc", 1) else ""
    AFN = 8 if OPT.get("acc", 0) and LA > 7 else OPT.get("afn", 16)
    if OPT.get("acc", 0): AFN = 8
    fr = lambda j: "a[%d:%d]" % (AF + 4 * (j % AFN), AF + 4 * (j % AFN) + 3)
    O = lambda cb, qh: "a[%d:%d]" % (8 * cb + 4 * qh, 8 * cb + 4 * qh + 3)
    Q = lambda qh, kap: vr(16 * kap + 4 * qh)
    def dma_block():
        if OPT.get("nodma", 0): return
        p("s_min_u32 s%d, s%d, s%d" % (sT0, sSRC, sMAX)); p("s_and_b32 s%d, s%d, 0xffff" % (sT1, sDST)); p("s_add_u32 m0, s%d, s%d" % (sT1, sRB))
        p("s_add_u32 s%d, s%d, 4096" % (sT2, sT0))
        for j in range(4): cond(p, "buffer_load_dwordx4 v%d, %s, s%d offen offset:%d %slds" % (VL16, sr(R_WS), sT0, j * 1024, KVSC))
        p("s_add_u32 m0, m0, 4096"); p("s_add_u32 s%d, s%d, 16384" % (sSRC, sSRC))
        for j in range(4): cond(p, "buffer_load_dwordx4 v%d, %s, s%d offen offset:%d %slds" % (VL16, sr(R_WS), sT2, j * 1024, KVSC))
        p("s_add_u32 s%d, s%d, 16384" % (sDST, sDST))
    def touch():
        if not OPT.get("touch", 0): return
        p("s_add_u32 s%d, s%d, 32768" % (sT0, sSRC)); p("s_min_u32 s%d, s%d, s%d" % (sT0, sT0, sMAX)); p("s_add_u32 s%d, s%d, 16384" % (sSRC, sSRC))
        cond(p, "buffer_load_dword v%d, v%d, %s, s%d offen" % (VDUM, VL128, sr(R_WS), sT0))
    def dma_list():
        L = ["s_min_u32 s%d, s%d, s%d" % (sT0, sSRC, sMAX), "s_and_b32 s%d, s%d, 0xffff" % (sT1, sDST), "s_add_u32 m0, s%d, s%d" % (sT1, sRB), "s_add_u32 s%d, s%d, 4096" % (sT2, sT0)]
        L += [(lambda p, j=j: cond(p, "buffer_load_dwordx4 v%d, %s, s%d offen offset:%d %slds" % (VL16, sr(R_WS), sT0, j * 1024, KVSC))) for j in range(4)]
        L += ["s_add_u32 m0, m0, 4096", "s_add_u32 s%d, s%d, 16384" % (sSRC, sSRC)]
        L += [(lambda p, j=j: cond(p, "buffer_load_dwordx4 v%d, %s, s%d offen offset:%d %slds" % (VL16, sr(R_WS), sT2, j * 1024, KVSC))) for j in range(4)]
        L += ["s_add_u32 s%d, s%d, 16384" % (sDST, sDST)]
        return L
    def role(tag):
        p("s_cmp_ge_u32 s%d, 4" % sWAVE); p("s_cbranch_scc1 AT_RE%s" % tag)
        if tag == "0":
            p("s_cmp_lt_u32 s%d, 2" % sWAVE); p("s_cbranch_scc1 AT_R00"); dma_block(); p.label("AT_R00")
        dma_block()
        p.label("AT_RE%s" % tag)
    kread = lambda j, ad, off: ("ds_read_b128 %s, v%d offset:%d" % (fr(j), ad, off + j * 1024), "A%d" % j)
    vread = lambda j, off: ("ds_read_b128 %s, v%d offset:%d" % (fr(j), VV, off + (j - 8) * 1024), "A%d" % j)
    def maskprep():
        for half in range(2):
            for e in range(8 * half, 8 * half + 8):
                p("v_cmp_gt_i32 s[%d:%d], %d, v%d" % (sTAB + 2 * (e % 8), sTAB + 1 + 2 * (e % 8), 16 * ((e >> 2) & 1) + (e & 3) - 16 * (e >> 3), VQM))
            for e in range(8 * half, 8 * half + 8):
                p("v_cndmask_b32 v%d, v%d, v%d, s[%d:%d]" % (CI + e, CI + e, TM, sTAB + 2 * (e % 8), sTAB + 1 + 2 * (e % 8)))
        p("s_nop 1")
    def qk_slots(S, dst):
        for j in range(16):
            kap, kh, qh = j >> 2, (j >> 1) & 1, j & 1; e0 = 8 * qh + 4 * kh
            S.add("%s %s, %s, %s, %s" % (MF, vr(dst[e0]), fr(j >> 1), Q(qh, kap), vr(CI + e0) if kap == 0 else vr(dst[e0])))
    toks = {}
    def pairwait(S, nf):
        for f in range(0, nf, 2):
            S.s[2 * f]["pre"].append(lambda p, f=f: p.wait_tok(toks["A%d" % (f + 1)][-1]))
    def period(par, pv=True, fast=None):
        cur, nxt = SREG[par], SREG[1 - par]; koff = 0 if par else 8192
        S = Slots(); qk_slots(S, nxt)
        if pv:
            for j in range(16, 32):
                cb, qh = (j - 16) >> 1, j & 1
                S.add("%s %s, %s, %s, %s" % (MF, O(cb, qh), fr(j >> 1), vr(PB[1 - par] + 4 * qh), O(cb, qh)))
        n = len(S.s); nf = n // 2; k = n // 16
        for f in range(LA, nf): S.put(2 * (f - LA), *(kread(f, VKA, koff) if f < 8 else vread(f, koff)))
        for f in range(LA): S.put(2 * (nf - LA + f), *(kread(f, VKA, 8192) if par else kread(f, VKB, 0)))
        pairwait(S, nf)
        for e in range(16):
            qh = e >> 3; l = LR[par][qh]
            add = "v_add_f32 v%d, v%d, v%d" % (l, LR[1 - par][qh] if e % 8 == 0 else l, E + e % 4)
            pe = max(e - 1, 0) if pv else e
            sl = k * pe + k - 1
            if pv and e == 1: S.put(sl, "s_nop 0"); S.put(sl, add)
            else: S.put(k * pe, add)
            if e & 1: S.put(sl, "v_cvt_pk_bf16_f32 v%d, v%d, v%d" % (PB[par] + e // 2, E + (e - 1) % 4, E + e % 4))
            if e < 15: S.put(sl, "v_exp_f32 v%d, v%d" % (E + (e + 1) % 4, cur[e + 1]))
        if pv:
            S.put(30, "v_max_f32 v%d, v%d, v%d" % (TM + 1, LR[par][0], LR[par][1]))
            S.put(30, "v_cmp_lt_f32 vcc, s%d, v%d" % (sTHR, TM + 1))
        else: S.put(n - 1, "s_nop 7")
        S.put(n - 1, "v_exp_f32 v%d, v%d" % (E, nxt[0]))
        if fast and par:
            bp = OPT.get("abar", 8)
            S.put(1, "v_add_u32 v%d, 16384, v%d" % (VKB, VKA)); S.put(5, "v_and_b32 v%d, 0xffff, v%d" % (VKB, VKB))
            if fast == "A": S.put(bp, "s_waitcnt vmcnt(8)")
            S.put(bp, "s_barrier")
            if fast == "A" and not OPT.get("nodma", 0): S.spread(bp + 1, dma_list(), per=1)
        if fast and not par:
            S.put(17, "v_add_u32 v%d, 0x10000, v%d" % (VV, VKA)); S.put(21, "v_mov_b32 v%d, v%d" % (VKA, VKB))
            S.put(25, "s_sub_u32 s%d, s%d, 1" % (sRING, sRING)); S.put(29, "s_cmp_lg_u32 s%d, 0" % sRING)
        S.emit(p, toks)
    def rowred(op, a, b):
        for sw in ("v_permlane16_swap_b32", "v_permlane32_swap_b32"):
            p("v_mov_b32 v%d, v%d" % (b, a)); p("s_nop 1"); p("%s v%d, v%d" % (sw, b, a)); p("s_nop 1"); p("%s v%d, v%d, v%d" % (op, a, a, b))
    def rowmax(cur, qh, d, t):
        c = cur[8 * qh]
        p("v_max3_f32 v%d, v%d, v%d, v%d" % (d, c, c + 1, c + 2)); p("v_max3_f32 v%d, v%d, v%d, v%d" % (d, d, c + 3, c + 4))
        p("v_max3_f32 v%d, v%d, v%d, v%d" % (d, d, c + 5, c + 6)); p("v_max_f32 v%d, v%d, v%d" % (d, d, c + 7))
        rowred("v_max_f32", d, t)
    def fixup(par, back):
        cur, nxt = SREG[par], SREG[1 - par]
        p.nop(8)
        if STAMP and OPT.get("acc", 0):
            p("v_accvgpr_read_b32 v%d, a127" % VPOLL); p("s_nop 0"); p("v_add_u32 v%d, 1, v%d" % (VPOLL, VPOLL)); p("s_nop 0"); p("v_accvgpr_write_b32 a127, v%d" % VPOLL)
        for qh in range(2):
            D, Fc = TM + 1, TM + 2
            rowmax(cur, qh, D, Fc)
            p("v_ceil_f32 v%d, v%d" % (D, D)); p("v_max_f32 v%d, 0, v%d" % (D, D)); p("v_exp_f32 v%d, -v%d" % (Fc, D))
            for e in range(8 * qh, 8 * qh + 8):
                p("v_sub_f32 v%d, v%d, v%d" % (cur[e], cur[e], D)); p("v_sub_f32 v%d, v%d, v%d" % (nxt[e], nxt[e], D)); p("v_sub_f32 v%d, v%d, v%d" % (CI + e, CI + e, D))
            for cb in range(8):
                for r in range(4):
                    a = 8 * cb + 4 * qh + r
                    p("v_accvgpr_read_b32 v%d, a%d" % (E + r, a)); p("v_mul_f32 v%d, v%d, v%d" % (E + r, E + r, Fc)); p("v_accvgpr_write_b32 a%d, v%d" % (a, E + r))
            l = LR[par][qh]
            p("v_mul_f32 v%d, v%d, v%d" % (l, LR[1 - par][qh], Fc))
            for e in range(8 * qh, 8 * qh + 8, 2):
                p("v_exp_f32 v%d, v%d" % (E, cur[e])); p("v_exp_f32 v%d, v%d" % (E + 1, cur[e + 1])); p("s_nop 0")
                p("v_add_f32 v%d, v%d, v%d" % (l, l, E)); p("v_add_f32 v%d, v%d, v%d" % (l, l, E + 1))
                p("v_cvt_pk_bf16_f32 v%d, v%d, v%d" % (PB[par] + e // 2, E, E + 1))
        p("v_exp_f32 v%d, v%d" % (E, nxt[0]))
        p("s_cmp_eq_u32 s%d, 0" % sPF); p("s_cbranch_scc1 AT_B%d" % par)
        lb = p.newlabel("FXB")
        p("s_cmp_eq_u32 s%d, 2" % sPF); p("s_cbranch_scc1 %s" % lb)
        p("s_cmp_lg_u32 s%d, 0" % sRING); p("s_branch AT_FA_B%d" % par)
        p.label(lb)
        p("s_cmp_lg_u32 s%d, 0" % sRING); p("s_branch AT_FB_B%d" % par)
    p("v_mov_b32 v%d, v%d" % (VKA, VL16)); p("v_add_u32 v%d, 16384, v%d" % (VKB, VL16)); p("v_mov_b32 v%d, v%d" % (VV, VL16))
    for f in range(LA): emit_tagged(p, toks, *kread(f, VKA, 0))
    p("v_bfe_u32 v%d, v%d, 4, 4" % (VQM, VL16)); p("v_lshrrev_b32 v%d, 8, v%d" % (TM, VL16)); p("v_lshlrev_b32 v%d, 2, v%d" % (TM, TM))
    p("v_sub_u32 v%d, v%d, v%d" % (VQM, VQM, TM)); p("v_mov_b32 v%d, 0xff800000" % TM)
    for r in range(16): p("v_mov_b32 v%d, 0" % (CI + r))
    p4_setup(p)
    p("v_mov_b32 v%d, 0" % LR[1][0]); p("v_mov_b32 v%d, 0" % LR[1][1])
    p("s_mov_b32 s%d, %s" % (sTHR, f32hex(THR))); p("s_max_u32 s%d, s%d, 2" % (sRING, sTB)); p("s_sub_u32 s%d, s%d, 2" % (sRING, sRING)); p("s_lshr_b32 s%d, s%d, 1" % (sRING, sRING))
    if not OPT.get("fast", 1): p("s_mov_b32 s%d, 0" % sRING)
    p("s_lshl_b32 s%d, s%d, 1" % (sUU, sRING)); p("s_add_u32 s%d, s%d, 1" % (sUU, sUU)); p("s_mov_b32 s%d, 0" % sPF)
    p.vq = []
    if STAMP and OPT.get("acc", 0):
        for i in range(8): p("v_accvgpr_write_b32 a%d, 0" % (120 + i))
        p("s_mov_b32 s98, s100")
    role("0")
    if OPT.get("pfkv2", 0):
        u0 = OPT.get("pfu0", 24)
        p("s_cmp_lt_u32 s%d, 16" % sIDX); p("s_cbranch_scc1 AT_NOPF")
        p("v_and_b32 v%d, 0x780, v%d" % (VSP, VL128)); p("v_bfe_u32 v%d, v%d, 8, 1" % (VPOLL, VL16)); p("v_lshl_add_u32 v%d, v%d, 13, v%d" % (VSP, VPOLL, VSP))
        p("v_lshrrev_b32 v%d, 9, v%d" % (VPOLL, VL16)); p("v_lshl_add_u32 v%d, v%d, 24, v%d" % (VSP, VPOLL, VSP))
        p("s_lshl_b32 s%d, s%d, 14" % (sT0, sWAVE)); p("s_add_u32 s%d, s%d, s%d" % (sT0, sT0, sHB)); p("s_and_b32 s%d, s%d, 12" % (sT1, sIDX)); p("s_lshl_b32 s%d, s%d, 9" % (sT1, sT1))
        p("s_add_u32 s%d, s%d, s%d" % (sT0, sT0, sT1)); p("s_add_u32 s%d, s%d, 0x%x" % (sT0, sT0, WS_K + u0 * 8192))
        for t in range((64 - u0 + 15) // 16):
            if u0 + 16 * (t + 1) > 64:
                p("s_cmp_ge_u32 s%d, %d" % (sWAVE, (64 - u0 - 16 * t) // 2)); p("s_cbranch_scc1 AT_NOPF")
            cond(p, "buffer_load_dword v%d, v%d, %s, s%d offen" % (VDUM, VSP, sr(R_WS), sT0))
            p("s_add_u32 s%d, s%d, 0x20000" % (sT0, sT0))
        p.label("AT_NOPF")
    p("s_cmp_lg_u32 s%d, 0" % sTB); p("s_cbranch_scc1 AT_NM0"); maskprep(); p.label("AT_NM0")
    S = Slots(); qk_slots(S, SREG[0])
    for f in range(LA, 8): S.put(2 * (f - LA), *kread(f, VKA, 0))
    for f in range(LA): S.put(2 * (8 - LA + f), *kread(f, VKA, 8192))
    S.emit(p, toks)
    p.nop(6)
    for qh in range(2):
        rowmax(SREG[0], qh, E + 1, E + 2)
        for e in range(8 * qh, 8 * qh + 8): p("v_sub_f32 v%d, 0, v%d" % (CI + e, E + 1))
        for e in range(8 * qh, 8 * qh + 8): p("v_sub_f32 v%d, v%d, v%d" % (SREG[0][e], SREG[0][e], E + 1))
    p("v_exp_f32 v%d, v%d" % (E, SREG[0][0]))
    p("s_cmp_lg_u32 s%d, 1" % sTB); p("s_cbranch_scc1 AT_NM1"); maskprep(); p.label("AT_NM1")
    period(0, pv=False)
    sig0 = [sorted(e["regs"]) for e in p.lq]
    chk = lambda: [sorted(e["regs"]) for e in p.lq] == sig0
    lq0 = list(p.lq)
    stamp(p, 27); p.lq = list(lq0)
    p("s_cmp_eq_u32 s%d, 0" % sRING); p("s_cbranch_scc1 AT_STEPEND")
    p("v_add_u32 v%d, 0x10000, v%d" % (VV, VKA)); p("v_mov_b32 v%d, v%d" % (VKA, VKB))
    p("s_mov_b32 s%d, 2" % sPF)
    if OPT.get("prio", 0) == 1:
        p("s_cmp_lt_u32 s%d, 4" % sWAVE); p("s_cbranch_scc1 AT_NP"); p("s_setprio 1"); p.label("AT_NP")
    if OPT.get("prio", 0) == 2:
        p("s_sub_u32 s%d, 63, s%d" % (sT0, sLAST)); p("s_lshr_b32 s%d, s%d, 1" % (sT0, sT0)); p("s_add_u32 s%d, s%d, 2" % (sT0, sT0))
        p("s_min_u32 s%d, s%d, s%d" % (sT0, sT0, sRING)); p("s_sub_u32 s%d, s%d, s%d" % (sLNROW, sRING, sT0))
        p("s_cmp_ge_u32 s%d, 4" % sWAVE); p("s_cselect_b32 s%d, s%d, s%d" % (sRING, sT0, sRING))
    p("s_cmp_ge_u32 s%d, 4" % sWAVE); p("s_cbranch_scc1 AT_FB")
    p("s_mov_b32 s%d, 1" % sPF)
    for fa in ("A", "B"):
        p.lq = list(lq0)
        p.raw(".p2align 6") if fa == "B" else None
        p.label("AT_F%s" % fa)
        for par in (1, 0):
            period(par, fast=fa)
            p("s_cbranch_vccnz AT_FIX%d" % par)
            p.label("AT_F%s_B%d" % (fa, par))
            assert chk()
        p("s_cbranch_scc1 AT_F%s" % fa)
        if OPT.get("prio", 0) == 2 and fa == "B":
            p("s_mov_b32 s%d, s%d" % (sRING, sLNROW)); p("s_mov_b32 s%d, 0" % sLNROW); p("s_setprio 1")
            p("s_cmp_lg_u32 s%d, 0" % sRING); p("s_cbranch_scc1 AT_FB")
        p("s_mov_b32 s%d, 0" % sPF)
        stamp(p, 28); p.lq = list(lq0)
        p("s_branch AT_STEPEND2")
    p.lq = list(lq0)
    p.label("AT_STEPEND")
    p("v_add_u32 v%d, 0x10000, v%d" % (VV, VKA)); p("v_mov_b32 v%d, v%d" % (VKA, VKB))
    p.label("AT_STEPEND2")
    p("v_add_u32 v%d, 16384, v%d" % (VKB, VKA)); p("v_and_b32 v%d, 0xffff, v%d" % (VKB, VKB))
    acc_stamp(p, 0)
    p("s_waitcnt vmcnt(8)")
    acc_stamp(p, 1)
    p("s_barrier")
    acc_stamp(p, 2)
    if OPT.get("hm", 0):
        p("s_cmp_lg_u32 s%d, 0" % sHMB); p("s_cbranch_scc1 AT_GPP")
        cond(p, poll_issue(R_DBG, "128")); p("s_branch AT_GPQ")
        p.label("AT_GPP"); cond(p, poll_issue(R_WS, "s%d" % sCF)); p.label("AT_GPQ")
    else: cond(p, poll_issue(R_DBG, "128"))
    role("1")
    acc_stamp(p, 3)
    lqs = {}
    for par in (1, 0):
        p("s_add_u32 s%d, s%d, 1" % (sUU, sUU)); p("s_cmp_ge_u32 s%d, s%d" % (sUU, sTB)); p("s_cbranch_scc1 AT_H%d" % par)
        p.label("AT_P%d" % par)
        lqs[par] = list(p.lq)
        period(par)
        p("s_cbranch_vccnz AT_FIX%d" % par)
        p.label("AT_B%d" % par)
        assert [sorted(e["regs"]) for e in p.lq] == sig0
    p("s_branch AT_STEPEND")
    for par in (1, 0):
        p.lq = list(lqs[par])
        p.label("AT_FIX%d" % par); fixup(par, "AT_B%d" % par)
        p.label("AT_H%d" % par)
        p("s_sub_u32 s%d, s%d, s%d" % (sT0, sUU, sTB)); p("s_cmp_eq_u32 s%d, 1" % sT0); p("s_cbranch_scc1 AT_N%d" % par)
        p("s_cmp_eq_u32 s%d, 2" % sT0); p("s_cbranch_scc1 AT_T%d" % par)
        maskprep(); p("s_branch AT_P%d" % par)
        p.label("AT_N%d" % par)
        p("s_waitcnt lgkmcnt(0)")
        cur = SREG[par]; off = 0 if par else 8192
        for f in range(8, 16): p(vread(f, off)[0])
        p("s_cmp_lt_u32 s%d, 4" % sWAVE); p("s_cbranch_scc1 AT_N%dA" % par)
        if OPT.get("hm", 0): p("s_cmp_lg_u32 s%d, 0" % sHM); p("s_cbranch_scc1 AT_N%dA" % par)
        p("s_waitcnt vmcnt(0)")
        poll_check(R_DBG, "128", 256)(p)
        for r in range(2): p4_tld(p, FULL, r)
        p.vq = []
        p.label("AT_N%dA" % par)
        S = Slots()
        for j in range(16, 32):
            cb, qh = (j - 16) >> 1, j & 1
            S.add("%s %s, %s, %s, %s" % (MF, O(cb, qh), fr(j >> 1), vr(PB[1 - par] + 4 * qh), O(cb, qh)))
        for e in range(16):
            qh = e >> 3; l = LR[par][qh]
            S.put(e, "v_add_f32 v%d, v%d, v%d" % (l, LR[1 - par][qh] if e % 8 == 0 else l, E + e % 4))
            if e & 1: S.put(e, "v_cvt_pk_bf16_f32 v%d, v%d, v%d" % (PB[par] + e // 2, E + (e - 1) % 4, E + e % 4))
            if e < 15: S.put(e, "v_exp_f32 v%d, v%d" % (E + (e + 1) % 4, cur[e + 1]))
        S.put(15, "v_max_f32 v%d, v%d, v%d" % (TM + 1, LR[par][0], LR[par][1])); S.put(15, "v_cmp_lt_f32 vcc, s%d, v%d" % (sTHR, TM + 1))
        S.emit(p, {})
        p("s_cbranch_vccnz AT_FIX%d" % par); p("s_branch AT_B%d" % par)
        p.label("AT_T%d" % par)
        p("s_waitcnt lgkmcnt(0)")
        off = 0 if par else 8192
        for f in range(8, 16): p(vread(f, off)[0])
        p("v_mov_b32 v%d, v%d" % (TM + 1, LR[1 - par][0])); p("v_mov_b32 v%d, v%d" % (TM + 2, LR[1 - par][1]))
        for j in range(16, 32):
            cb, qh = (j - 16) >> 1, j & 1
            p("%s %s, %s, %s, %s" % (MF, O(cb, qh), fr(j >> 1), vr(PB[1 - par] + 4 * qh), O(cb, qh)))
        p("s_branch AT_EPI")
    p.label("AT_EPI")
    p("s_cmp_lt_u32 s%d, 4" % sWAVE); p("s_cbranch_scc1 AT_EPI2")
    p("s_cmp_gt_u32 s%d, 5" % sWAVE); p("s_cbranch_scc1 AT_EPI1")
    p("s_barrier")
    p.label("AT_EPI1")
    if not OPT.get("hm", 0): p4_tld(p, FULL, 2); p.vq = []
    else:
        p("s_cmp_lg_u32 s%d, 0" % sHM); p("s_cbranch_scc1 AT_EPI1H")
        p4_tld(p, FULL, 2); p("s_branch AT_EPI2")
        p.label("AT_EPI1H")
        p("s_waitcnt vmcnt(0)")
        p("v_readfirstlane_b32 s%d, v%d" % (sT0, VPOLL), note="=val %d" % (8 if OPT.get("early_ok", 1) else 0)); p("s_nop 0")
        p("s_cmp_lt_u32 s%d, 8" % sT0); p("s_cbranch_scc1 AT_EPI2")
        p("s_mov_b32 s%d, 2" % sHMB)
        for r in range(3): p4_tld(p, CRUN, r)
        p.vq = []
    p.label("AT_EPI2")
    stamp(p, 29)
    for qh in range(2):
        rowred("v_add_f32", TM + 1 + qh, E)
    for qh in range(2):
        p("v_rcp_f32 v%d, v%d" % (E + 2 * qh, TM + 1 + qh)); p("v_rcp_f32 v%d, v%d" % (E + 2 * qh + 1, TM + 1 + qh))
    p("v_mov_b32 v%d, 1" % VSP)
    p("s_lshr_b32 s%d, s%d, 1" % (sUU, sUU)); p("s_lshr_b32 s%d, s%d, 1" % (sLAST, sLAST))
    for q in range(8):
        kap, qh = q >> 1, q & 1; st = 8 * q
        if q == 4:
            p("s_add_u32 s%d, s%d, 4096" % (sCTX, sCTX))
            p("s_cmp_ge_u32 s%d, 4" % sWAVE); p("s_cbranch_scc1 AT_EPI3")
            p("s_waitcnt vmcnt(12)"); p("s_barrier")
            p("s_cmp_gt_u32 s%d, s%d" % (sSRC, sMAX)); p("s_cbranch_scc1 AT_EPI3")
            dma_block()
            p.label("AT_EPI3")
        for j in range(8): p("v_accvgpr_read_b32 v%d, a%d" % (st + j, 16 * kap + 8 * (j >> 2) + 4 * qh + (j & 3)))
        for j in range(4): p("v_pk_mul_f32 %s, %s, %s" % (vr(st + 2 * j, 2), vr(st + 2 * j, 2), vr(E + 2 * qh, 2)))
        for j in range(4): p("v_cvt_pk_bf16_f32 v%d, v%d, v%d" % (st + j, st + 2 * j, st + 2 * j + 1))
        p("buffer_store_dwordx4 %s, v%d, %s, s%d offen offset:%d sc1" % (vr(st), VL16, sr(R_WS), sCTX, (q % 4) * 1024))
    stamp(p, 15)
    if OPT.get("hm", 0): p("s_cmp_lg_u32 s%d, 0" % sHMB); p("s_cbranch_scc1 P4_JOINC")
    p("s_cmp_ge_u32 s%d, 4" % sWAVE); p("s_cbranch_scc1 P4_JOINF")
    poll_check(R_DBG, "128", 256)(p)
    p("s_add_u32 s%d, s%d, 1" % (sUU, sUU))
    p("s_cmp_gt_u32 s%d, s%d" % (sSRC, sMAX)); p("s_cbranch_scc1 AT_LDA1")
    p("s_waitcnt vmcnt(12)"); p("s_branch AT_LD")
    p.label("AT_LDA1"); p("s_waitcnt vmcnt(4)")
    p.label("AT_LD")
    p("s_cmp_lg_u32 s%d, 0" % sPF); p("s_cbranch_scc1 AT_LD2")
    p("s_add_u32 s%d, s%d, %d" % (sT0, sUU, OPT.get("pfat", 12))); p("s_cmp_lt_u32 s%d, s%d" % (sT0, sLAST)); p("s_cbranch_scc1 AT_LD2")
    npf = p4_early(p)
    p("s_mov_b32 s%d, 1" % sPF)
    p.label("AT_LD2")
    if OPT.get("hm", 0):
        p("s_add_u32 s%d, s%d, 9" % (sT0, sUU)); p("s_cmp_eq_u32 s%d, s%d" % (sT0, sLAST)); p("s_cselect_b32 s%d, s%d, 0" % (sT0, sHM))
        p("s_cmp_lg_u32 s%d, 0" % sT0); p("s_cbranch_scc1 AT_HM")
    p("s_cmp_gt_u32 s%d, s%d" % (sUU, sLAST)); p("s_cbranch_scc1 AT_LDX")
    acc_stamp(p, 4)
    p("s_barrier")
    acc_stamp(p, 5)
    p("s_add_u32 s%d, s%d, 1" % (sUU, sUU))
    p("s_cmp_le_u32 s%d, s%d" % (sSRC, sMAX)); p("s_cbranch_scc1 AT_LD4")
    p("s_cmp_eq_u32 s%d, 1" % sPF); p("s_cbranch_scc1 AT_LD5")
    p("s_waitcnt vmcnt(0)"); p("s_branch AT_LDS")
    p.label("AT_LD5")
    p("s_mov_b32 s%d, 2" % sPF); p("s_waitcnt vmcnt(%d)" % npf); p("s_branch AT_LDS")
    p.label("AT_LD4")
    dma_block()
    acc_stamp(p, 6)
    p("s_cmp_eq_u32 s%d, 1" % sPF); p("s_cbranch_scc1 AT_LD3")
    p("s_waitcnt vmcnt(8)")
    p("s_branch AT_LDS")
    p.label("AT_LD3")
    p("s_mov_b32 s%d, 2" % sPF); p("s_waitcnt vmcnt(%d)" % (8 + npf))
    p.label("AT_LDS")
    p("s_cmp_eq_u32 s%d, 0x%x" % (sTE, OOB)); p("s_cbranch_scc1 AT_LD")
    p("v_mov_b32 v%d, 1" % VSP)
    cond(p, "buffer_atomic_add v%d, v%d, %s, s%d offen sc1" % (VSP, VONE, sr(R_WS), sTE))
    p("s_mov_b32 s%d, 0x%x" % (sTE, OOB))
    p("s_branch AT_LD")
    if OPT.get("hm", 0):
        p.label("AT_HM")
        for b_ in range(4): p("v_add_u32 v%d, 0x20000, v%d" % (VWR + b_, VWR + b_))
        for it in range(10):
            p.lq, p.vq = [], []
            p("s_barrier")
            if it == 9: break
            if it < 7:
                a_dma1(p, ("h", it), 8 + (it & 1))
                p("s_add_u32 s%d, s%d, %d" % (sT3, sH, it * 4096))
                for kk in range(2):
                    for th in range(2):
                        t = treg(8 + 2 * (it & 1) + kk, th)
                        cond(p, "buffer_load_dwordx4 a[%d:%d], v%d, %s, s%d offen offset:%d sc1" % (t, t + 3, VL16, sr(R_WS), sT3, kk * 2048 + th * 1024))
            if it == 8: a_dma(p, CRUN[0], 8)
            l1, l2, l3 = p.newlabel("HM"), p.newlabel("HM"), p.newlabel("HM")
            p("s_cmp_gt_u32 s%d, s%d" % (sSRC, sMAX)); p("s_cbranch_scc1 %s" % l1)
            dma_block()
            p.label(l1)
            if 1 <= it <= 7:
                k = it - 1
                def mfh(u, kk, at, th, fr_, k=k):
                    t = treg(8 + 2 * (k & 1) + kk, th); acc = vr(8 * at + 4 * th)
                    return "%s %s, %s, a[%d:%d], %s" % (MF, acc, vr(fr_), t, t + 3, "0" if (k == 0 and kk == 0) else acc)
                tk = {}
                S, pro, init, lu = engine(tk, [(0, XG), (0, YG)], [(k & 1) * 16384], mfh, None, {}, {}, [0], 2048, {b_: 0 for b_ in range(4)}, nobar=True)
                for t_ in pro: emit_tagged(p, tk, *t_)
                S.emit(p, tk)
            p("s_cmp_gt_u32 s%d, s%d" % (sSRC, sMAX)); p("s_cbranch_scc1 %s" % l2)
            p("s_waitcnt vmcnt(8)"); p("s_branch %s" % l3)
            p.label(l2); p("s_waitcnt vmcnt(0)"); p.label(l3)
        for b_ in range(4): p("v_add_u32 v%d, 0xfffe0000, v%d" % (VWR + b_, VWR + b_))
        p(poll_issue(R_WS, "s%d" % sCF))
        a_dma(p, CRUN[1], SL4(1)); a_dma(p, CRUN[2], SL4(2))
        p("s_waitcnt vmcnt(16)")
        poll_check(R_WS, "s%d" % sCF, 8)(p)
        for r in range(3): p4_tld(p, CRUN, r)
        p("s_branch P4_JOINC")
    p.label("AT_LDX")
    a_dma(p, FULL[1], SL4(1)); a_dma(p, FULL[2], SL4(2))
    for r in range(3): p4_tld(p, FULL, r)

sJ, sNT, sMT, sG, sTB4, sXO, sWD, sWO = range(12, 20)
sH, sC, sH3, sCF, sPB, sFL, sHM, sHMB = range(24, 32)
FULL = [("h", 0), ("h", 2), ("h", 4), ("h", 6)] + [("c", 2 * r) for r in range(8)]
CRUN = FULL[4:]
SL4 = lambda r: ((r + 4) % 5) * 2
def p4_setup(p):
    A, B, C, L = 96, 97, 98, 99
    p("s_and_b32 s%d, s2, 3" % sJ); p("s_and_b32 s%d, s%d, 3" % (sNT, sIDX))
    p("s_lshr_b32 s%d, s%d, 2" % (sMT, sIDX)); p("s_and_b32 s%d, s2, 4" % sT0); p("s_lshl_b32 s%d, s%d, 1" % (sT0, sT0)); p("s_add_u32 s%d, s%d, s%d" % (sMT, sMT, sT0))
    p("s_lshr_b32 s%d, s%d, 2" % (sG, sWAVE)); p("s_lshl_b32 s%d, s%d, 2" % (sTB4, sMT)); p("s_add_u32 s%d, s%d, s%d" % (sTB4, sTB4, sS4))
    p("v_lshrrev_b32 v%d, 4, v%d" % (L, VL16))
    p("v_lshrrev_b32 v%d, 2, v%d" % (C, L)); p("v_lshlrev_b32 v%d, 7, v%d" % (C, C)); p("v_and_b32 v%d, 3, v%d" % (B, L)); p("v_lshl_add_u32 v%d, v%d, 3, v%d" % (C, B, C))
    p("s_lshl_b32 s%d, s%d, 14" % (sT0, sG)); p("v_add_u32 v%d, s%d, v%d" % (C, sT0, C)); p("v_bfe_u32 v%d, v%d, 3, 2" % (A, L))
    for b in range(4):
        p("v_xor_b32 v%d, %d, v%d" % (B, b, A)); p("v_lshl_add_u32 v%d, v%d, 5, v%d" % (VWR + b, B, C))
    p("v_bfe_u32 v%d, v%d, 1, 2" % (A, L)); p("v_lshrrev_b32 v%d, 4, v%d" % (B, L)); p("v_xor_b32 v%d, v%d, v%d" % (A, A, B))
    p("v_and_b32 v%d, 1, v%d" % (B, L)); p("v_lshlrev_b32 v%d, 4, v%d" % (B, B)); p("v_lshl_add_u32 v%d, v%d, 5, v%d" % (A, A, B))
    p("v_lshrrev_b32 v%d, 3, v%d" % (B, L)); p("v_lshl_add_u32 v%d, v%d, 10, v%d" % (VD8, B, A))
    p("s_lshl_b32 s%d, s%d, 13" % (sT0, sWAVE)); p("v_add_u32 v%d, s%d, v%d" % (VDG, sT0, VD8))
    p("v_and_b32 v%d, 15, v%d" % (A, L)); p("v_lshrrev_b32 v%d, 4, v%d" % (B, L)); p("v_lshlrev_b32 v%d, 3, v%d" % (B, B)); p("v_lshl_add_u32 v%d, v%d, 10, v%d" % (VDT, A, B))
    p("v_add_u32 v%d, 16384, v%d" % (VDT + 1, VDT))
    p("s_lshl_b32 s%d, s%d, 15" % (sXO, sTB4)); p("s_lshl_b32 s%d, s%d, 8" % (sT0, sNT)); p("s_add_u32 s%d, s%d, s%d" % (sXO, sXO, sT0))
    p("s_lshl_b32 s%d, s%d, 6" % (sT1, sJ)); p("s_add_u32 s%d, s%d, s%d" % (sXO, sXO, sT1))
    p("s_mul_i32 s%d, s%d, %d" % (sWD, sJ, 448 * 1024)); p("s_add_u32 s%d, s%d, s%d" % (sWD, sWD, sT0))
    p("s_lshl_b32 s%d, s%d, 20" % (sWO, sJ)); p("s_add_u32 s%d, s%d, s%d" % (sWO, sWO, sT0))
    p("s_mul_i32 s%d, s%d, %d" % (sT1, sTB4, 368 * 1024)); p("s_add_u32 s%d, s%d, 0x%x" % (sT1, sT1, WS_CH))
    p("s_mul_i32 s%d, s%d, %d" % (sH, sJ, 28 * 1024)); p("s_add_u32 s%d, s%d, s%d" % (sH, sH, sT1)); p("s_add_u32 s%d, s%d, %d" % (sH, sH, 256 * 1024))
    p("s_lshl_b32 s%d, s%d, 16" % (sC, sJ)); p("s_add_u32 s%d, s%d, s%d" % (sC, sC, sT1))
    p("s_add_u32 s%d, s%d, %d" % (sH3, sH, 6 * 4096)); p("s_cmp_eq_u32 s%d, 1" % sG); p("s_cselect_b32 s%d, 0x%x, s%d" % (sH3, OOB, sH3))
    p("s_lshl_b32 s%d, s%d, 12" % (sT0, sG)); p("s_add_u32 s%d, s%d, s%d" % (sH, sH, sT0)); p("s_add_u32 s%d, s%d, s%d" % (sC, sC, sT0))
    p("s_cmp_ge_u32 s%d, %d" % (sLAST, 47 if OPT.get("hm", 0) else 99)); p("s_cselect_b32 s%d, 1, 0" % sHM); p("s_and_b32 s%d, s%d, s%d" % (sHMB, sHM, sG))
    p("s_lshl_b32 s%d, s%d, 10" % (sCF, sTB4)); p("s_lshl_b32 s%d, s%d, 8" % (sT0, sJ)); p("s_add_u32 s%d, s%d, s%d" % (sCF, sCF, sT0)); p("s_add_u32 s%d, s%d, 0x%x" % (sCF, sCF, WS_FLAG))

    p("s_lshl_b32 s%d, s%d, 10" % (sT0, sTB)); p("s_lshr_b32 s%d, s%d, 3" % (sT1, sHEAD)); p("s_lshl_b32 s%d, s%d, 8" % (sT1, sT1))
    p("s_add_u32 s%d, s%d, s%d" % (sTE, sT0, sT1)); p("s_add_u32 s%d, s%d, 0x%x" % (sTE, sTE, WS_FLAG))
    p("s_lshl_b32 s%d, s%d, 2" % (sT0, sMT)); p("s_add_u32 s%d, s%d, s%d" % (sT0, sT0, sNT))
    p("s_lshl_b32 s%d, s%d, 17" % (sPB, sT0)); p("s_add_u32 s%d, s%d, 0x%x" % (sPB, sPB, WS_PART)); p("s_lshl_b32 s%d, s%d, 11" % (sT1, sS4)); p("s_add_u32 s%d, s%d, s%d" % (sPB, sPB, sT1))
    p("s_lshl_b32 s%d, s%d, 10" % (sFL, sT0)); p("s_add_u32 s%d, s%d, 0x%x" % (sFL, sFL, WS_FLAG + 128)); p("s_lshl_b32 s%d, s%d, 2" % (sT1, sS4)); p("s_add_u32 s%d, s%d, s%d" % (sFL, sFL, sT1))

def w4src(spec, g):
    kind, k = spec
    if kind == "h": return R_WD, sWD, min(k + g, 6) * 65536
    return R_WO, sWO, (k + g) * 65536
def a_dma1(p, spec, slot, g=0):
    rs, sb, o = w4src(spec, g)
    p("s_lshl_b32 s%d, s%d, 14" % (sT0, sS4)); p("s_add_u32 s%d, s%d, s%d" % (sT0, sT0, sb)); p("s_add_u32 s%d, s%d, %d" % (sT0, sT0, o)); p("s_lshl_b32 s%d, s%d, 11" % (sT1, sS4))
    for pc in range(2):
        if pc: p("s_add_u32 s%d, s%d, 8192" % (sT0, sT0))
        for sub in range(2):
            p("s_add_u32 m0, s%d, %d" % (sT1, slot * 16384 + pc * 1024 + sub * (8192 - 128))); p("s_nop 0")
            cond(p, "buffer_load_dwordx4 v%d, %s, s%d offen offset:%d lds" % (VD8, sr(rs), sT0, sub * 128))
def a_dma(p, spec, slot):
    for g in range(2): a_dma1(p, spec, slot + g, g)
def p4_early(p):
    if OPT.get("hm", 0): p("s_cmp_lg_u32 s%d, 0" % sHM); p("s_cbranch_scc1 P4E_H")
    a_dma(p, FULL[0], 8)
    p.label("P4E_H")
    p("v_lshrrev_b32 v%d, 7, v%d" % (VPOLL, VL16)); p("v_and_b32 v%d, 0x380, v%d" % (VSP, VL128)); p("v_lshl_add_u32 v%d, v%d, 10, v%d" % (VSP, VPOLL, VSP))
    p("s_lshl_b32 s%d, s%d, 2" % (sT0, sIDX)); p("s_add_u32 s%d, s%d, s%d" % (sT0, sT0, sS4)); p("s_lshl_b32 s%d, s%d, 13" % (sT0, sT0))
    p("s_lshl_b32 s%d, s%d, 20" % (sT1, sJ)); p("s_add_u32 s%d, s%d, s%d" % (sT0, sT0, sT1))
    cond(p, "buffer_load_dword v%d, v%d, %s, s%d offen" % (VDUM, VSP, sr(R_WO), sT0))
    p("s_mul_i32 s%d, s%d, %d" % (sT0, sIDX, 14 * 1024)); p("s_mul_i32 s%d, s%d, %d" % (sT1, sJ, 448 * 1024)); p("s_add_u32 s%d, s%d, s%d" % (sT0, sT0, sT1))
    p("s_lshl_b32 s%d, s%d, 13" % (sT1, sS4)); p("s_add_u32 s%d, s%d, s%d" % (sT0, sT0, sT1))
    p("s_cmp_ge_u32 s%d, 2" % sS4); p("s_cselect_b32 s%d, 0x%x, s%d" % (sT0, OOB, sT0))
    cond(p, "buffer_load_dword v%d, v%d, %s, s%d offen" % (VDUM, VSP, sr(R_WD), sT0))
    return 2 if OPT.get("hm", 0) else 10
    p("s_and_b32 s%d, s2, 4" % sT0); p("s_lshl_b32 s%d, s%d, 3" % (sT0, sT0)); p("s_add_u32 s%d, s%d, s%d" % (sT0, sT0, sIDX)); p("s_mul_i32 s%d, s%d, %d" % (sT0, sT0, 368 * 1024))
    p("s_mul_i32 s%d, s%d, %d" % (sT1, sJ, 28 * 1024)); p("s_add_u32 s%d, s%d, s%d" % (sT0, sT0, sT1)); p("s_mul_i32 s%d, s%d, %d" % (sT1, sS4, 20 * 1024 // 3 // 128 * 128))
    p("s_add_u32 s%d, s%d, s%d" % (sT0, sT0, sT1)); p("s_add_u32 s%d, s%d, 0x%x" % (sT0, sT0, WS_CH + 256 * 1024))
    cond(p, "buffer_load_dword v%d, v%d, %s, s%d offen" % (VDUM, VL128, sr(R_WS), sT0))
    return 11
def t4reg(r, kk, th): return treg(2 * ((r + 4) % 8) + kk, th)
def p4_tld_list(run, r):
    kind, k = run[r]
    if (kind, k) == ("h", 6): out = ["s_nop 0"]; so = sH3
    else: out = ["s_add_u32 s%d, s%d, %d" % (sT3, sH if kind == "h" else sC, k * 4096)]; so = sT3
    for kk in range(2):
        for th in range(2):
            t = t4reg(r, kk, th)
            out.append(("buffer_load_dwordx4 a[%d:%d], v%d, %s, s%d offen offset:%d sc1" % (t, t + 3, VL16, sr(R_WS), so, kk * 2048 + th * 1024), "T4_%d" % r))
    return out
def p4_tld(p, run, r):
    for it in p4_tld_list(run, r): p(it[0] if isinstance(it, tuple) else it)

def phase4_run(p, run, tag):
    NR, TR = len(run), 8
    p.label("P4_JOIN" + tag)
    p.lq, p.vq = [], []
    stamp(p, 16)
    p("v_mov_b32 v%d, 1" % VSP)
    p("s_waitcnt vmcnt(0)")
    p("buffer_atomic_add v%d, v%d, %s, s%d offen sc1" % (VSP, VONE, sr(R_WS), sTE))
    if OPT.get("prio", 0): p("s_setprio 0")
    if tag == "C":
        p("s_cmp_lg_u32 s%d, 1" % sHMB); p("s_cbranch_scc1 P4C_OK")
        vq = list(p.vq)
        p(poll_issue(R_WS, "s%d" % sCF)); poll_check(R_WS, "s%d" % sCF, 8, sleep=1)(p)
        for r in range(3): p4_tld(p, CRUN, r)
        p("s_waitcnt vmcnt(0)")
        p.vq = vq
        p.label("P4C_OK")
    p("s_barrier")
    stamp(p, 17)
    def wdma(r):
        out = []
        for g in range(2):
            rs, sb, o = w4src(run[r], g); t = "W%d" % r; b = (SL4(r) + g) * 16384
            out += [("s_add_u32 m0, s%d, %d" % (sLW, b), "m0:" + t), ("s_add_u32 s%d, s%d, %d" % (sT2, sb, o), None),
                    ("buffer_load_dwordx4 v%d, %s, s%d offen lds" % (VDG, sr(rs), sT2), t),
                    ("s_add_u32 m0, s%d, %d" % (sLW, b + 8192 - 128), "m0:" + t), ("s_nop 0", None),
                    ("buffer_load_dwordx4 v%d, %s, s%d offen offset:128 lds" % (VDG, sr(rs), sT2), t)]
        return out
    items = [(r, g) for r in range(NR) for g in (XG, YG)]
    prev = {r: ([r - 5] if r >= 5 else []) for r in range(NR)}
    st = (list(p.lq), list(p.vq))
    variants = (True,) if tag == "F" else (True, False)
    if tag == "C": p("s_cmp_eq_u32 s%d, 0" % sG); p("s_cbranch_scc1 P4C_G0")
    for zi in variants:
        toks = {}
        if not zi: p.label("P4C_G0"); p.lq, p.vq = list(st[0]), list(st[1])
        def mf(r, kk, cb, th, fr):
            t = t4reg(r, kk, th); acc = vr(8 * cb + 4 * th); cc = "0" if (r == 0 and kk == 0 and zi) else acc
            return "%s %s, %s, a[%d:%d], %s" % (MF, acc, vr(fr), t, t + 3, cc)
        ab = {32 * (NR - 8) - 16 if NR > 8 else 16: [lambda p: stamp(p, 19)]} if STAMP else {}
        S, pro, init, last_use = engine(toks, items, [SL4(r) * 16384 for r in range(NR)], mf, wdma, prev, {}, [0, 1, 2, 3, 4], 2048, {b: 0 for b in range(4)},
                                        after_bar=ab, maxnew=1)
        S.group(0, wdma(3)); S.group(0, wdma(4))
        e = 1
        for r in range(3, NR):
            if tag == "F" and r == 4:
                cp = OPT.get("cpoll", 40)
                S.put(cp - 16, poll_issue(R_WS, "s%d" % sCF)); S.put(cp, poll_check(R_WS, "s%d" % sCF, 8)); e = max(e, cp + 1)
            e = S.spread(max(e, 32 * (r - TR + 1) + 1, 32 * (r - OPT.get("tla", 4))), p4_tld_list(run, r))
        for t_ in pro: emit_tagged(p, toks, *t_)
        if tag == "C":
            S.emit(p, toks, 0, 32)
            if zi: p("s_branch P4C_M")
        else: S.emit(p, toks)
    if tag == "C":
        p.label("P4C_M"); S.emit(p, toks, 32, None)

def phase4(p):
    phase4_run(p, FULL, "F")
    if OPT.get("hm", 0):
        p("s_branch OUT_RED")
        phase4_run(p, CRUN, "C")
    p.label("OUT_RED")
    p("s_waitcnt lgkmcnt(0)")
    stamp(p, 23)
    for q in range(4): p("buffer_load_dwordx2 v[%d:%d], v%d, %s, s%d offen offset:%d" % (88 + 2 * q, 89 + 2 * q, VDT + (q & 1), sr(R_X), sXO, (q >> 1) * 32))
    p("s_barrier")
    p("s_lshl_b32 s%d, s%d, 13" % (sT0, sWAVE)); p("v_add_u32 v96, s%d, v%d" % (sT0, VL16))
    p("s_xor_b32 s%d, s%d, 0x8000" % (sT0, sT0)); p("v_add_u32 v97, s%d, v%d" % (sT0, VL16))
    p.nop(4)
    p("s_cmp_eq_u32 s%d, 1" % sG); p("s_cbranch_scc1 OUT_G1")
    st = (list(p.lq), list(p.vq))
    for g in range(2):
        if g == 1:
            p.label("OUT_G1"); p.lq, p.vq = list(st[0]), list(st[1])
        give = 32 * (1 - g); keep = 32 * g
        for q in range(8): p("ds_write_b128 v96, %s offset:%d" % (vr(give + 4 * q), q * 1024))
        p("s_waitcnt lgkmcnt(0)"); p("s_barrier")
        for q in range(8): p("ds_read_b128 %s, v97 offset:%d" % (vr(give + 4 * q), q * 1024))
        for r in range(32): p("v_add_f32 v%d, v%d, v%d" % (r, keep + r, give + r))
        if g == 0: p("s_branch OUT_X")
    p.label("OUT_X")
    p("s_lshl_b32 s%d, s%d, 13" % (sT0, sJ)); p("s_add_u32 s%d, s%d, s%d" % (sT0, sT0, sPB)); p("s_lshl_b32 s%d, s%d, 16" % (sT1, sG)); p("s_add_u32 s%d, s%d, s%d" % (sT0, sT0, sT1))
    p("s_lshl_b32 s%d, s%d, 9" % (sT1, sG)); p("s_add_u32 s%d, s%d, s%d" % (sH, sT1, sFL)); p("s_lshl_b32 s%d, s%d, 1" % (sT1, sG))
    for bb in range(2):
        p("s_add_u32 s%d, s%d, %d" % (sT2, sT0, bb * 32768)); p("s_add_u32 s%d, s%d, %d" % (sC + bb, sH, bb * 256))
        p("s_add_u32 s%d, s%d, %d" % (sT3, sT1, bb)); p("s_cmp_eq_u32 s%d, s%d" % (sT3, sJ))
        p("s_cselect_b32 s%d, 0x%x, s%d" % (sT2, OOB, sT2)); p("s_cselect_b32 s%d, 0x%x, s%d" % (sC + bb, OOB, sC + bb))
        for j in range(8): p("v_cvt_pk_bf16_f32 v%d, v%d, v%d" % (32 + 8 * bb + j, 16 * bb + 2 * j, 16 * bb + 2 * j + 1))
        for q in range(2): p("buffer_store_dwordx4 %s, v%d, %s, s%d offen offset:%d sc1" % (vr(32 + 8 * bb + 4 * q), VL16, sr(R_WS), sT2, q * 1024))
    p("v_mov_b32 v%d, 1" % VSP)
    p("s_lshl_b32 s%d, s%d, 8" % (sT0, sJ)); p("s_add_u32 s%d, s%d, s%d" % (sFL, sFL, sT0))
    p("s_waitcnt vmcnt(0)")
    for bb in range(2): p("buffer_atomic_add v%d, v%d, %s, s%d offen sc1" % (VSP, VONE, sr(R_WS), sC + bb))
    stamp(p, 24)
    p("s_lshr_b32 s%d, s%d, 1" % (sT0, sJ)); p("s_cmp_lg_u32 s%d, s%d" % (sT0, sG)); p("s_cbranch_scc1 K_END")
    p(poll_issue(R_WS, "s%d" % sFL))
    p("s_and_b32 s%d, s%d, 1" % (sT0, sJ)); p("s_cmp_eq_u32 s%d, 0" % sT0); p("s_cbranch_scc1 OUT_OWN")
    for r in range(16): p("v_mov_b32 v%d, v%d" % (r, 16 + r))
    p.label("OUT_OWN")
    for q in range(4):
        d = 64 + 8 * (q >> 1) + 4 * (q & 1)
        for e in range(2):
            p("v_lshlrev_b32 v%d, 16, v%d" % (d + 2 * e, 88 + 2 * q + e)); p("v_and_b32 v%d, 0xffff0000, v%d" % (d + 2 * e + 1, 88 + 2 * q + e))
    for r in range(16): p("v_add_f32 v%d, v%d, v%d" % (r, r, 64 + r))
    poll_check(R_WS, "s%d" % sFL, 3, sleep=1)(p)
    stamp(p, 25)
    p("s_lshl_b32 s%d, s%d, 15" % (sT3, sJ)); p("s_add_u32 s%d, s%d, s%d" % (sT3, sT3, sPB))
    for k in range(1, 4):
        p("s_add_u32 s%d, s%d, %d" % (sT0, sJ, k)); p("s_and_b32 s%d, s%d, 3" % (sT0, sT0)); p("s_lshl_b32 s%d, s%d, 13" % (sT0, sT0)); p("s_add_u32 s%d, s%d, s%d" % (sT0, sT0, sT3))
        for q in range(2): p("buffer_load_dwordx4 %s, v%d, %s, s%d offen offset:%d sc1" % (vr(16 + 8 * k + 4 * q), VL16, sr(R_WS), sT0, q * 1024))
    for k in range(1, 4):
        for j in range(8):
            p("v_lshlrev_b32 v64, 16, v%d" % (16 + 8 * k + j)); p("v_and_b32 v65, 0xffff0000, v%d" % (16 + 8 * k + j))
            p("v_add_f32 v%d, v%d, v64" % (2 * j, 2 * j)); p("v_add_f32 v%d, v%d, v65" % (2 * j + 1, 2 * j + 1))
    for q in range(4):
        a = 8 * (q >> 1) + 4 * (q & 1)
        p("v_cvt_pk_bf16_f32 v%d, v%d, v%d" % (64 + 2 * q, a, a + 1)); p("v_cvt_pk_bf16_f32 v%d, v%d, v%d" % (65 + 2 * q, a + 2, a + 3))
        p("buffer_store_dwordx2 v[%d:%d], v%d, %s, s%d offen offset:%d" % (64 + 2 * q, 65 + 2 * q, VDT + (q & 1), sr(R_OUT), sXO, (q >> 1) * 32))
    stamp(p, 26)

def build():
    p = Prog()
    hdr = open("cdna_kernels/%s.s.ref" % NAME).read().split("; Override launch")[0]
    p.raw(hdr.rstrip())
    p.raw("; @launch grid=(256,1,1) block=(512,1,1) lds=163840")
    p.raw('.amdgcn_target "amdgcn-amd-amdhsa--gfx950"'); p.raw(".text")
    kernel_begin(p, KN)
    p12(p); attention(p); phase4(p)
    p.label("K_END"); p("s_endpgm")
    p.raw('.section .rodata,"a"'); p.raw(kernel_desc(KN, 256, 128, 102))
    return p

def selfcheck(p):
    bad = []
    for wg, wave in [(0, 0), (0, 3), (0, 4), (0, 7), (5, 2), (100, 1), (100, 6), (255, 2), (255, 5), (255, 0), (30, 4), (3, 7)]:
        for fx in (False, True):
            tr = trace(p, KN, wg, wave, vcc_taken=(lambda i, n: n % 3 == 1) if fx else (lambda i, n: False))
            pr = check_trace(tr, "wg%d w%d" % (wg, wave))
            nb = sum(1 for i in tr if i.mn == "s_barrier"); nm = sum(1 for i in tr if i.kind == "mfma")
            if not fx: print("wg%d w%d: %d instrs, %d mfma, %d barriers, %d problems" % (wg, wave, len(tr), nm, nb, len(pr)))
            bad += pr
    for b in sorted(set(bad))[:40]: print(b)
    return not bad

if __name__ == "__main__":
    for o in sys.argv[2:]:
        if o == "stamp": STAMP = True
        else:
            k, v = o.split("="); OPT[k] = int(v) if v.isdigit() else v
    import subprocess
    if OPT.get("cpf", 1):
        open("pass1.s", "w").write(build().text())
        subprocess.run(["clang", "-x", "assembler", "-target", "amdgcn-amd-amdhsa", "-mcpu=gfx950", "-c", "pass1.s", "-o", "pass1.o"], check=True)
        sym = subprocess.run(["llvm-objdump", "-t", "pass1.o"], capture_output=True, text=True).stdout
        ad = {l.split()[-1]: int(l.split()[0], 16) for l in sym.splitlines() if ".text" in l and len(l.split()) >= 5}
        OPT["reach"] = ad["K_END"] - ad["K_CPFREF"]
    p = build()
    ok = selfcheck(p)
    open(sys.argv[1], "w").write(p.text())
    import subprocess
    r = subprocess.run(["clang", "-x", "assembler", "-target", "amdgcn-amd-amdhsa", "-mcpu=gfx950", "-c", sys.argv[1], "-o", "chk.o"], capture_output=True, text=True)
    print("written", sys.argv[1], "OK" if ok else "PROBLEMS", "ASM-OK" if r.returncode == 0 else "ASM-FAIL\n" + r.stderr[:2000])
```

```python
import sys, struct
from fw import *

NAME = "parallel_sum__compressed_kv_cla__swiglu_ffn__prompt"
KN = NAME + "_kernel"
WS_XN = 0x0000000
WS_K = 0x0200000
WS_V = 0x1200000
WS_CH = 0x2200000
WS_PART = 0x4000000
WS_FLAG = 0x5000000
WS_BYTES = 0x10000000
OOB = 0x20000000
MF = "v_mfma_f32_16x16x32_bf16"
STAMP = False
OPT = {}
def f32hex(x): return "0x%08x" % struct.unpack("<I", struct.pack("<f", x))[0]
QSCALE = 1.4426950408889634 / (128 ** 0.5)
THR = float(2 ** 20)

R_WS, R_W1, R_CKV, R_X, R_WQ, R_WG, R_WU, R_WO, R_WD, R_OUT, R_DBG = 8, 12, 16, 20, 24, 28, 32, 36, 40, 44, 48
def sr(r): return "s[%d:%d]" % (r, r + 3)
sWAVE, sIDX, sX8, sT0, sT1, sT2, sT3 = 3, 4, 5, 6, 7, 52, 53
sU1, sO1, sO1B, sLW, sLT, sLNROW = 54, 55, 56, 57, 58, 59
sHEAD, sTB, sLAST, sS4, sF0, sQC, sXN, sHO, sHO2, sCTX, sHB = 60, 61, 62, 63, 64, 65, 66, 67, 68, 69, 70
sSRC, sDST, sMAX, sRB, sRING, sTHR, sUU, sTE, sPF = 71, 72, 73, 74, 75, 76, 77, 78, 79
sTAB = 80
sRO2, sROH = 96, 97
VL16, VWR, VD8, VDG, VDT, VTA, VONE, VDUM, VPOLL, VL128, VSP = 112, 113, 117, 118, 119, 121, 123, 124, 125, 126, 127
FRB, FR = 64, 8
EG = [(0, 0), (0, 1), (1, 0), (1, 1)]
FG = [(0, 2), (0, 3), (1, 2), (1, 3)]

def emit_tagged(p, toks, text, tag):
    if tag is not None and tag.startswith("m0:"):
        p.m0own = tag[3:]; p(text); return
    if text.endswith(" lds"):
        assert getattr(p, "m0own", None) == tag, ("m0 owner mismatch", text, tag, p.m0own)
    t = p(text)
    if tag is not None: toks.setdefault(tag, []).append(t)

class Slots:
    def __init__(self): self.s = []
    def add(self, mfma): self.s.append(dict(m=mfma, pre=[], f=[])); return len(self.s) - 1
    def put(self, slot, text, tag=None):
        assert 0 <= slot < len(self.s), slot
        self.s[slot]["f"].append((text, tag))
    def spread(self, start, items, per=1, step=1):
        k = 0
        for it in items:
            sl = start + (k // per) * step
            if isinstance(it, tuple): self.put(sl, it[0], it[1])
            else: self.put(sl, it)
            k += 1
        return start + ((k + per - 1) // per) * step
    def group(self, t0, lst, per=1):
        if not hasattr(self, "busy"): self.busy = set()
        n = (len(lst) + per - 1) // per
        while any((t0 + i) in self.busy for i in range(n)): t0 += 1
        self.busy |= set(range(t0, t0 + n))
        return self.spread(t0, lst, per=per)
    def emit(self, p, toks, lo=0, hi=None):
        for sl in self.s[lo:hi]:
            for it in sl["pre"]: it(p)
            p(sl["m"])
            for text, tag in sl["f"]:
                if callable(text): text(p)
                else: emit_tagged(p, toks, text, tag)

def stamp(p, i):
    if not STAMP: return
    lq, vq = list(p.lq), list(p.vq)
    p.auto = False
    if OPT.get("few", 0) and i not in (0, 1, 3, 4, 7, 10, 13, 14, 15, 16, 17, 19, 23, 24, 25, 26, 27, 28, 29):
        p.auto = True; return
    p("%s s[100:101]" % ("s_memrealtime" if OPT.get("rt", 0) else "s_memtime")); p("s_waitcnt lgkmcnt(0)")
    p("v_mov_b32 v%d, s100" % VDUM, note="diag")
    p("buffer_store_dword v%d, v%d, %s, s99 offen offset:%d" % (VDUM, VONE, sr(R_WS), 4 * i), note="diag")
    if OPT.get("rt", 0):
        p("s_memtime s[100:101]"); p("s_waitcnt lgkmcnt(0)"); p("v_mov_b32 v%d, s100" % VSP, note="diag") if False else p("v_mov_b32 v%d, s100" % VDUM, note="diag")
        p("buffer_store_dword v%d, v%d, %s, s99 offen offset:%d" % (VDUM, VONE, sr(R_WS), 4 * (128 + i)), note="diag")
    p.auto = True
    p.lq, p.vq = [], vq

def acc_stamp(p, i):
    if not (STAMP and OPT.get("acc", 0)): return
    lq = list(p.lq); p.auto = False
    p("s_memtime s[100:101]"); p("s_waitcnt lgkmcnt(0)"); p("s_sub_u32 s101, s100, s98"); p("s_mov_b32 s98, s100")
    p("v_accvgpr_read_b32 v%d, a%d" % (VPOLL, 120 + i)); p("s_nop 0"); p("v_add_u32 v%d, s101, v%d" % (VPOLL, VPOLL)); p("s_nop 0"); p("v_accvgpr_write_b32 a%d, v%d" % (120 + i, VPOLL))
    p.auto = True; p.lq = lq
def acc_flush(p):
    if not (STAMP and OPT.get("acc", 0)): return
    vq = list(p.vq)
    for i in range(8):
        p("v_accvgpr_read_b32 v%d, a%d" % (96 + i, 120 + i))
        p("s_nop 0")
        p("buffer_store_dword v%d, v%d, %s, s99 offen offset:%d" % (96 + i, VONE, sr(R_WS), 4 * (32 + i)))
    p.vq = vq

def cond(p, text):
    p(text); p.vq.pop()

def wave_sum(q, v):
    for sh in (1, 2, 4, 8):
        q("s_nop 1"); q("v_add_f32_dpp v%d, v%d, v%d row_shr:%d row_mask:0xf bank_mask:0xf bound_ctrl:0" % (v, v, v, sh))
    q("s_nop 1"); q("v_add_f32_dpp v%d, v%d, v%d row_bcast:15 row_mask:0xa bank_mask:0xf" % (v, v, v))
    q("s_nop 1"); q("v_add_f32_dpp v%d, v%d, v%d row_bcast:31 row_mask:0xc bank_mask:0xf" % (v, v, v))

class Rec:
    def __init__(self): self.l = []
    def __call__(self, t, note=None): self.l.append(t)

def poll_issue(srd, soff):
    if soff.isdigit(): soff = "0 offset:" + soff
    return "buffer_load_dword v%d, off, %s, %s sc1" % (VPOLL, sr(srd), soff)
def poll_check(srd, soff, expect, w0=False, sleep=4):
    def f(p):
        ok, lp = p.newlabel("PK"), p.newlabel("PL")
        if w0: p("v_mov_b32 v%d, v%d" % (VPOLL, VPOLL)); p("s_cmp_lg_u32 s%d, 0" % sWAVE); p("s_cbranch_scc1 %s" % ok)
        p("v_readfirstlane_b32 s%d, v%d" % (sT0, VPOLL), note="=val %d" % expect); p("s_mov_b32 s%d, 0" % sT1)
        p("s_cmp_ge_u32 s%d, %d" % (sT0, expect)); p("s_cbranch_scc1 %s" % ok)
        lq, vq = list(p.lq), list(p.vq)
        p.label(lp)
        p("s_sleep %d" % sleep); p(poll_issue(srd, soff)); p("s_add_u32 s%d, s%d, 1" % (sT1, sT1)); p("s_waitcnt vmcnt(0)")
        p("v_readfirstlane_b32 s%d, v%d" % (sT0, VPOLL), note="=val %d" % expect)
        p("s_cmp_ge_u32 s%d, 0x40000" % sT1); p("s_cbranch_scc1 %s" % ok)
        p("s_cmp_lt_u32 s%d, %d" % (sT0, expect)); p("s_cbranch_scc1 %s" % lp)
        p.lq, p.vq = lq, vq
        p.label(ok)
    return f
def signal(off):
    def f(p):
        sk = p.newlabel("SG")
        p("s_cmp_lg_u32 s%d, 0" % sWAVE); p("s_cbranch_scc1 %s" % sk)
        p("v_mov_b32 v%d, 1" % VSP)
        cond(p, "buffer_atomic_add v%d, v%d, %s, 0 offen offset:%d sc1" % (VSP, VONE, sr(R_DBG), off))
        p.label(sk)
    return f

def engine(toks, items, base_of, mfma_fn, wdma_fn, prev, minbar, issued, rd2, cur_base, LA=6, extra_wait=None, after_bar=None, before_bar=None, maxnew=2, nobar=False):
    S = Slots(); frags = []
    for (sl, cols) in items:
        for kk in range(2):
            for col in cols: frags.append((sl, kk) + tuple(col))
    for n, (sl, kk, so, cbp, at) in enumerate(frags):
        for th in range(2): S.add(mfma_fn(sl, kk, at, th, FRB + 4 * (n % FR)))
    n2 = len(S.s)
    first_read, last_use, pro = {}, {}, []
    for n, (sl, kk, so, cbp, at) in enumerate(frags):
        fr = FRB + 4 * (n % FR); rs = 2 * (n - LA); win = base_of[sl] & ~0xffff
        if OPT.get("win48", 0) or rd2 == 2048: win = base_of[sl] & ~0x7fff
        L = []
        if cur_base[cbp] != win:
            L.append(("v_add_u32 v%d, 0x%x, v%d" % (VWR + cbp, (win - cur_base[cbp]) & 0xffffffff, VWR + cbp), None)); cur_base[cbp] = win
        o = base_of[sl] - win + so + kk * 4096
        L.append(("ds_read_b64_tr_b16 %s, v%d offset:%d" % (vr(fr, 2), VWR + cbp, o), "F%d" % n))
        L2 = ("ds_read_b64_tr_b16 %s, v%d offset:%d" % (vr(fr + 2, 2), VWR + cbp, o + rd2), "F%d" % n)
        if rs < 0: pro += L + [L2]
        else:
            for it in L: S.put(rs, it[0], it[1])
            S.put(rs + 1, L2[0], L2[1])
        first_read.setdefault(sl, rs); last_use[sl] = 2 * n + 1
        if n % 2 == 0 and n + 1 < len(frags):
            S.s[2 * n]["pre"].append(lambda p, n=n: p.wait_tok(toks["F%d" % (n + 1)]))
    if nobar: return S, pro, [], last_use
    bpos = list(range(16, n2, 32))
    waited = set(s for s in first_read if first_read[s] < bpos[0]); init_need = sorted(waited)
    issued = set(issued); extra_wait = extra_wait or {}; after_bar = after_bar or {}
    order = sorted(first_read, key=lambda s: first_read[s])
    S.dma_end = {}
    for bi, bp in enumerate(bpos):
        nxt = bpos[bi + 1] if bi + 1 < len(bpos) else n2 + 100
        need = [s for s in order if s not in waited and first_read[s] < nxt]
        for s in need: assert s in issued, ("unit %d needed at barrier %d but not issued" % (s, bp))
        waited |= set(need)
        new = [s for s in order if s not in issued and all(last_use[q] < bp for q in prev.get(s, [])) and minbar.get(s, 0) <= bp][:maxnew]
        tags = ["W%d" % s for s in need] + extra_wait.get(bp, [])
        def f(p, tags=tags, bp=bp):
            fine = OPT.get("fine", 0) and n2 > 512
            if fine: stamp(p, 64 + 3 * (bp // 32))
            for g in (before_bar or {}).get(bp, []): g(p)
            p.wait_tok(sum([toks.get(t, []) for t in tags], []))
            if fine: stamp(p, 65 + 3 * (bp // 32))
            p("s_barrier")
            if fine: stamp(p, 66 + 3 * (bp // 32))
            for g in after_bar.get(bp, []): g(p)
        if tags or new or bp in after_bar or bp in (before_bar or {}): S.s[bp]["pre"].insert(0, f)
        for s in new:
            issued.add(s); S.group(bp, wdma_fn(s))
    assert issued >= set(first_read), sorted(set(first_read) - issued)
    return S, pro, init_need, last_use

XG = [(0, c, c) for c in range(4)]
YG = [(8192, c, 4 + c) for c in range(4)]
GE = [(0, 0, 0), (0, 1, 1), (8192, 0, 2), (8192, 1, 3)]
GF = [(0, 2, 4), (0, 3, 5), (8192, 2, 6), (8192, 3, 7)]

def rot8(t, c, scale, base, ro=None):
    if OPT.get("half", 0):
        return [("s_add_u32 s%d, s%d, %d" % (t, sROH, c), None), ("s_and_b32 s%d, s%d, 3" % (t, t), None), ("s_add_u32 s%d, s%d, %d" % (t, t, c & 4), None), (scale, None),
                ("s_add_u32 s%d, s%d, s%d" % (t, t, base), None)]
    return [("s_add_u32 s%d, s%d, %d" % (t, sRO2 if ro is None else ro, c), None), ("s_and_b32 s%d, s%d, 7" % (t, t), None), (scale, None),
            ("s_add_u32 s%d, s%d, s%d" % (t, t, base), None)]

def treg(kap, th): return 16 * (kap >> 1) + 8 * (kap & 1) + 4 * th

def setup(p):
    p("s_cmp_ge_u32 s2, 256"); p("s_cbranch_scc1 K_END")
    if STAMP: p("s_memrealtime s[62:63]")
    p("s_lshr_b32 s%d, s2, 2" % sT0); p("s_and_b32 s%d, s%d, 1" % (sU1, sT0))
    if OPT.get("flipv", 0): p("s_xor_b32 s%d, s%d, 1" % (sU1, sU1))
    p("s_lshl_b32 s%d, s%d, 3" % (sT0, sU1)); p("s_add_u32 s%d, s%d, 24" % (sT0, sT0))
    p("s_load_dwordx2 s[%d:%d], s[0:1], s%d" % (R_W1, R_W1 + 1, sT0))
    for r, off in ((R_CKV, 8), (R_WS, 96), (R_X, 0), (R_WQ, 16), (R_WO, 40), (R_WG, 56), (R_WU, 64), (R_WD, 72), (R_OUT, 80), (R_DBG, 88)):
        p("s_load_dwordx2 s[%d:%d], s[0:1], %d" % (r, r + 1, off))
    for r, n in ((R_W1, 4194304), (R_CKV, 2097152), (R_WS, WS_BYTES), (R_X, 2097152), (R_WQ, 4194304), (R_WO, 4194304), (R_WG, 512 * 3584),
                 (R_WU, 512 * 3584), (R_WD, 1792 * 1024), (R_OUT, 2097152), (R_DBG, 256)):
        p("s_mov_b32 s%d, 0x%x" % (r + 2, n)); p("s_mov_b32 s%d, 0x00020000" % (r + 3))
    L, A, B, C = 96, 97, 98, 99
    p("v_lshrrev_b32 v1, 6, v0"); p("v_and_b32 v%d, 63, v0" % L)
    p("v_readfirstlane_b32 s%d, v1" % sWAVE, note="=wave")
    p("s_lshr_b32 s%d, s2, 3" % sIDX); p("s_and_b32 s%d, s2, 7" % sX8)
    p("v_lshlrev_b32 v%d, 4, v%d" % (VL16, L)); p("v_lshlrev_b32 v%d, 7, v%d" % (VL128, L))
    p("v_cmp_ne_u32 vcc, 0, v%d" % L); p("v_mov_b32 v%d, 0" % VONE); p("v_mov_b32 v%d, 0x40000000" % A)
    p("v_cndmask_b32 v%d, v%d, v%d, vcc" % (VONE, VONE, A))
    p("v_bfe_u32 v%d, v%d, 1, 2" % (A, L)); p("v_bfe_u32 v%d, v%d, 4, 1" % (B, L)); p("v_xor_b32 v%d, v%d, v%d" % (A, A, B))
    p("s_and_b32 s%d, s%d, 1" % (sT0, sWAVE)); p("s_lshl_b32 s%d, s%d, 1" % (sT0, sT0)); p("v_xor_b32 v%d, s%d, v%d" % (A, sT0, A))
    p("v_and_b32 v%d, 1, v%d" % (B, L)); p("v_lshlrev_b32 v%d, 4, v%d" % (B, B)); p("v_lshl_add_u32 v%d, v%d, 5, v%d" % (A, A, B))
    p("v_lshrrev_b32 v%d, 3, v%d" % (B, L)); p("s_lshl_b32 s%d, s%d, 3" % (sT0, sWAVE)); p("v_add_u32 v%d, s%d, v%d" % (B, sT0, B))
    p("v_lshl_add_u32 v%d, v%d, 13, v%d" % (VD8, B, A))
    p("v_mul_u32_u24 v%d, 3584, v%d" % (B, B)); p("v_add_u32 v%d, v%d, v%d" % (VDG, B, A))
    p("s_and_b32 s%d, s2, 1" % sT0); p("s_lshl_b32 s%d, s%d, 2" % (sT0, sT0)); p("s_and_b32 s%d, s%d, 3" % (sT1, sIDX))
    p("s_add_u32 s%d, s%d, s%d" % (sT0, sT0, sT1)); p("s_lshl_b32 s%d, s%d, 3" % (sT0, sT0)); p("s_add_u32 s%d, s%d, s%d" % (sO1B, sT0, sWAVE))
    p("v_lshrrev_b32 v%d, 3, v%d" % (A, L)); p("v_lshlrev_b32 v%d, 10, v%d" % (A, A)); p("s_lshl_b32 s%d, s%d, 15" % (sT0, sO1B)); p("v_add_u32 v%d, s%d, v%d" % (A, sT0, A))
    p("v_lshrrev_b32 v%d, 4, v%d" % (B, L)); p("v_and_b32 v%d, 7, v%d" % (C, L)); p("v_xor_b32 v%d, v%d, v%d" % (B, B, C))
    p("v_lshl_add_u32 v%d, v%d, 4, v%d" % (VDT, B, A)); p("v_xor_b32 v%d, 4, v%d" % (B, B)); p("v_lshl_add_u32 v%d, v%d, 4, v%d" % (VDT + 1, B, A))
    p("s_lshl_b32 s%d, s%d, 12" % (sLT, sWAVE)); p("s_add_u32 s%d, s%d, 65536" % (sLT, sLT)); p("s_lshl_b32 s%d, s%d, 10" % (sLW, sWAVE))
    p("s_lshr_b32 s%d, s%d, 2" % (sT0, sIDX)); p("s_lshl_b32 s%d, s%d, 1" % (sT1, sT1)); p("s_add_u32 s%d, s%d, s%d" % (sT1, sT1, sT0))
    if not OPT.get("rot", 1): p("s_mov_b32 s%d, 0" % sT1)
    if OPT.get("rot", 1) == 2: p("s_mov_b32 s%d, s%d" % (sT1, sT0))
    if OPT.get("rot", 1) == 3: p("s_sub_u32 s%d, s%d, s%d" % (sT1, sT1, sT0))
    p("s_and_b32 s%d, s2, 2" % sT2); p("s_lshl_b32 s%d, s%d, 2" % (sT2, sT2)); p("s_add_u32 s%d, s%d, s%d" % (sT2, sT2, sT0))
    p("s_lshl_b32 s%d, s%d, 20" % (sO1, sT2)); p("s_lshl_b32 s%d, s%d, 9" % (sT2, sT2))
    for c in range(8):
        hy = OPT.get("hy", 0)
        if hy and c < hy: p("s_mov_b32 s%d, %d" % (sT0, c))
        elif hy:
            if c == hy:
                p("s_and_b32 s%d, s%d, 7" % (sT1, sT1)); p("s_sub_u32 s%d, s%d, %d" % (sT0, sT1, 8 - hy)); p("s_min_u32 s%d, s%d, s%d" % (sT1, sT1, sT0))
            p("s_add_u32 s%d, s%d, %d" % (sT0, sT1, c - hy)); p("s_sub_u32 s%d, s%d, %d" % (sT3, sT0, 8 - hy)); p("s_min_u32 s%d, s%d, s%d" % (sT0, sT0, sT3))
            p("s_add_u32 s%d, s%d, %d" % (sT0, sT0, hy))
        else:
            p("s_add_u32 s%d, s%d, %d" % (sT0, sT1, c)); p("s_and_b32 s%d, s%d, 7" % (sT0, sT0))
        p("s_lshl_b32 s%d, s%d, 7" % (sTAB + c, sT0)); p("s_lshl_b32 s%d, s%d, 19" % (sT0, sT0)); p("s_add_u32 s%d, s%d, s%d" % (sTAB + 8 + c, sT0, sT2))
    p("s_waitcnt lgkmcnt(0)")

def setup2(p):
    L, A, B, C = 96, 97, 98, 99
    p("v_bfe_u32 v%d, v%d, 2, 2" % (A, L)); p("v_lshrrev_b32 v%d, 4, v%d" % (B, L))
    p("v_lshl_add_u32 v%d, v%d, 3, v%d" % (C, B, A)); p("v_lshlrev_b32 v%d, 7, v%d" % (C, C))
    p("v_and_b32 v100, 3, v%d" % L); p("v_lshl_add_u32 v%d, v100, 3, v%d" % (C, C))
    p("v_bfe_u32 v%d, v%d, 3, 2" % (A, L))
    for b in range(4):
        p("v_xor_b32 v100, %d, v%d" % (b, A)); p("v_lshl_add_u32 v%d, v100, 5, v%d" % (VWR + b, C))
    p("v_and_b32 v%d, 15, v%d" % (A, L)); p("v_bfe_u32 v%d, v%d, 1, 3" % (B, L)); p("v_lshrrev_b32 v%d, 4, v%d" % (C, L))
    p("v_xor_b32 v%d, v%d, v%d" % (B, B, C)); p("v_lshlrev_b32 v%d, 4, v%d" % (B, B)); p("v_lshl_add_u32 v%d, v%d, 7, v%d" % (A, A, B))
    p("v_add_u32 v%d, s%d, v%d" % (VTA, sLT, A)); p("v_xor_b32 v%d, 64, v%d" % (VTA + 1, VTA))
    p("s_lshl_b32 s%d, s%d, 24" % (sT0, sU1)); p("s_add_u32 s%d, s%d, s%d" % (sO1, sO1, sT0)); p("s_add_u32 s%d, s%d, 0x%x" % (sO1, sO1, WS_K))
    p("s_lshl_b32 s%d, s%d, 13" % (sT0, sO1B)); p("s_add_u32 s%d, s%d, s%d" % (sO1, sO1, sT0)); p("s_add_u32 s%d, s%d, 4096" % (sO1B, sO1))
    p("s_lshl_b32 s%d, s2, 3" % sLNROW); p("s_add_u32 s%d, s%d, s%d" % (sLNROW, sLNROW, sWAVE))
    p("s_lshl_b32 s%d, s%d, 2" % (sHEAD, sX8)); p("s_and_b32 s%d, s%d, 3" % (sT0, sIDX)); p("s_add_u32 s%d, s%d, s%d" % (sHEAD, sHEAD, sT0))
    p("s_and_b32 s%d, s%d, 3" % (sS4, sWAVE))
    p("s_and_b32 s%d, s%d, 28" % (sT0, sIDX))
    p("s_add_u32 s%d, s%d, 3" % (sTB, sT0)); p("s_sub_u32 s%d, s%d, s%d" % (sTB, sTB, sS4))
    p("s_sub_u32 s%d, 60, s%d" % (sT0, sT0)); p("s_add_u32 s%d, s%d, s%d" % (sT1, sT0, sS4))
    p("s_cmp_ge_u32 s%d, 4" % sWAVE); p("s_cselect_b32 s%d, s%d, s%d" % (sTB, sT1, sTB))
    p("s_add_u32 s%d, s%d, 3" % (sLAST, sT0))
    p("s_lshl_b32 s%d, s%d, 7" % (sF0, sHEAD)); p("s_lshl_b32 s%d, s%d, 6" % (sT0, sHEAD)); p("s_add_u32 s%d, s%d, 1536" % (sT0, sT0))
    p("s_cmp_ge_u32 s%d, 24" % sHEAD); p("s_cselect_b32 s%d, s%d, s%d" % (sF0, sT0, sF0))
    p("s_lshl_b32 s%d, s%d, 8" % (sQC, sHEAD))
    p("s_lshl_b32 s%d, s%d, 15" % (sXN, sTB)); p("s_add_u32 s%d, s%d, 0x%x" % (sXN, sXN, WS_XN))
    p("s_mul_i32 s%d, s%d, %d" % (sCTX, sTB, 368 * 1024)); p("s_add_u32 s%d, s%d, 0x%x" % (sCTX, sCTX, WS_CH))
    p("s_lshl_b32 s%d, s%d, 5" % (sHO, sF0)); p("s_add_u32 s%d, s%d, s%d" % (sHO, sHO, sCTX)); p("s_add_u32 s%d, s%d, %d" % (sHO, sHO, 256 * 1024))
    p("s_add_u32 s%d, s%d, 2048" % (sHO2, sHO)); p("s_cmp_ge_u32 s%d, 24" % sHEAD); p("s_cselect_b32 s%d, 0x%x, s%d" % (sHO2, OOB, sHO2))
    p("s_lshl_b32 s%d, s%d, 13" % (sT0, sHEAD)); p("s_add_u32 s%d, s%d, s%d" % (sCTX, sCTX, sT0))
    p("s_lshl_b32 s%d, s%d, 19" % (sHB, sHEAD))
    p("s_and_b32 s%d, s%d, 3" % (sRO2, sIDX)); p("s_lshl_b32 s%d, s%d, 1" % (sRO2, sRO2)); p("s_lshr_b32 s%d, s%d, 2" % (sT0, sIDX))
    p("s_add_u32 s%d, s%d, s%d" % (sRO2, sRO2, sT0)); p("s_and_b32 s%d, s%d, 7" % (sRO2, sRO2))
    if not OPT.get("rot2", 1): p("s_mov_b32 s%d, 0" % sRO2)
    if OPT.get("rot2", 1) == 2: p("s_lshr_b32 s%d, s%d, 2" % (sRO2, sIDX))
    if OPT.get("rot2", 1) == 3: p("s_and_b32 s%d, s%d, 3" % (sRO2, sIDX)); p("s_lshl_b32 s%d, s%d, 1" % (sRO2, sRO2))
    p("s_lshr_b32 s%d, s%d, 2" % (sROH, sIDX)); p("s_add_u32 s%d, s%d, s%d" % (sROH, sROH, sIDX))
    if STAMP:
        p("s_lshl_b32 s99, s2, 3"); p("s_add_u32 s99, s99, s%d" % sWAVE); p("s_lshl_b32 s99, s99, 10"); p("s_add_u32 s99, s99, 0x6000000")

WS_STAT = 0x5100000
def ln_list_a():
    q = Rec(); T0, T1, T2, XR, F = VPOLL, 98, 99, 100, 104
    for j in range(4):
        q("v_lshlrev_b32 v%d, 16, v%d" % (F + 2 * j, XR + j)); q("v_and_b32 v%d, 0xffff0000, v%d" % (F + 2 * j + 1, XR + j))
    q("v_and_b32 v%d, 0x70, v%d" % (T1, VL16)); q("v_lshlrev_b32 v%d, 6, v%d" % (T1, T1)); q("v_lshrrev_b32 v%d, 7, v%d" % (T2, VL16))
    q("v_lshl_add_u32 v%d, v%d, 4, v%d" % (T1, T2, T1))
    q("s_lshl_b32 s%d, s2, 13" % sSRC); q("s_lshl_b32 s%d, s%d, 7" % (sDST, sWAVE)); q("s_add_u32 s%d, s%d, s%d" % (sSRC, sSRC, sDST))
    q("buffer_load_dwordx4 %s, v%d, %s, s%d offen" % (vr(XR), T1, sr(R_X), sSRC))
    q("v_add_f32 v%d, v%d, v%d" % (T0, F, F + 1))
    for j in range(2, 8): q("v_add_f32 v%d, v%d, v%d" % (T0, T0, F + j))
    wave_sum(q, T0)
    q("s_nop 0"); q("v_readlane_b32 s%d, v%d, 63" % (sSRC, T0))
    q("v_mov_b32 v%d, 0x3b000000" % T1); q("s_nop 0"); q("v_mul_f32 v%d, s%d, v%d" % (T1, sSRC, T1))
    q("v_sub_f32 v%d, v%d, v%d" % (T2, F, T1)); q("v_mul_f32 v%d, v%d, v%d" % (T0, T2, T2))
    for j in range(1, 8):
        q("v_sub_f32 v%d, v%d, v%d" % (T2, F + j, T1)); q("v_fmac_f32 v%d, v%d, v%d" % (T0, T2, T2))
    wave_sum(q, T0)
    q("s_nop 0"); q("v_readlane_b32 s%d, v%d, 63" % (sSRC, T0))
    q("v_mov_b32 v%d, 0x3b000000" % T2); q("s_nop 0"); q("v_mul_f32 v%d, s%d, v%d" % (T2, sSRC, T2))
    q("v_cvt_pk_bf16_f32 v%d, v%d, v%d" % (T0, T1, T2))
    q("v_lshlrev_b32 v%d, 16, v%d" % (T1, T0)); q("v_and_b32 v%d, 0xffff0000, v%d" % (T2, T0))
    q("v_add_f32 v%d, 0x3727c5ac, v%d" % (T2, T2))
    q("v_cvt_pk_bf16_f32 v%d, v%d, v%d" % (T2, T2, T2)); q("v_lshlrev_b32 v%d, 16, v%d" % (T2, T2))
    q("v_sqrt_f32 v%d, v%d" % (T2, T2)); q("s_lshl_b32 s%d, s%d, 3" % (sSRC, sLNROW))
    q("v_cvt_pk_bf16_f32 v%d, v%d, v%d" % (T2, T2, T2)); q("v_lshlrev_b32 v%d, 16, v%d" % (T2, T2))
    q("s_add_u32 s%d, s%d, 0x%x" % (sSRC, sSRC, WS_STAT))
    L = list(q.l)
    L.append(("buffer_store_dwordx2 v[%d:%d], v%d, %s, s%d offen sc1" % (T1, T2, VONE, sr(R_WS), sSRC), "LS"))
    return L
def ln_list_b0():
    return ["v_and_b32 v104, 0x70, v%d" % VL16, "v_lshrrev_b32 v104, 1, v104", "s_lshl_b32 s%d, s2, 6" % sSRC, "s_add_u32 s%d, s%d, 0x%x" % (sSRC, sSRC, WS_STAT),
            "buffer_load_dwordx2 v[98:99], v104, %s, s%d offen sc1" % (sr(R_WS), sSRC)]
def ln_list_b():
    q = Rec(); M, SD, XR, F, R, T = 98, 99, 100, 104, VSP, VPOLL
    q("v_rcp_f32 v%d, v%d" % (R, SD))
    for j in range(4):
        q("v_lshlrev_b32 v%d, 16, v%d" % (F + 2 * j, XR + j)); q("v_and_b32 v%d, 0xffff0000, v%d" % (F + 2 * j + 1, XR + j))
    for j in range(8): q("v_sub_f32 v%d, v%d, v%d" % (F + j, F + j, M))
    for j in range(4): q("v_cvt_pk_bf16_f32 v%d, v%d, v%d" % (XR + j, F + 2 * j, F + 2 * j + 1))
    for j in range(4):
        q("v_lshlrev_b32 v%d, 16, v%d" % (F + 2 * j, XR + j)); q("v_and_b32 v%d, 0xffff0000, v%d" % (F + 2 * j + 1, XR + j))
    for j in range(8):
        q("v_mul_f32 v%d, v%d, v%d" % (T, F + j, R)); q("v_fma_f32 v%d, -v%d, v%d, v%d" % (F + j, T, SD, F + j))
        q("v_fma_f32 v%d, v%d, v%d, v%d" % (F + j, F + j, R, T))
    for j in range(4): q("v_cvt_pk_bf16_f32 v%d, v%d, v%d" % (XR + j, F + 2 * j, F + 2 * j + 1))
    q("v_and_b32 v%d, 0x200, v%d" % (T, VL16)); q("v_lshlrev_b32 v%d, 2, v%d" % (T, T))
    q("v_and_b32 v%d, 0x180, v%d" % (R, VL16)); q("v_lshl_add_u32 v%d, v%d, 1, v%d" % (T, R, T))
    q("v_and_b32 v%d, 0x70, v%d" % (R, VL16)); q("v_add_u32 v%d, v%d, v%d" % (T, T, R))
    q("s_lshr_b32 s%d, s2, 2" % sSRC); q("s_lshl_b32 s%d, s%d, 15" % (sSRC, sSRC))
    q("s_and_b32 s%d, s2, 1" % sDST); q("s_lshl_b32 s%d, s%d, 7" % (sDST, sDST)); q("s_add_u32 s%d, s%d, s%d" % (sSRC, sSRC, sDST))
    q("s_and_b32 s%d, s2, 2" % sDST); q("s_lshl_b32 s%d, s%d, 9" % (sDST, sDST)); q("s_add_u32 s%d, s%d, s%d" % (sSRC, sSRC, sDST))
    q("s_lshl_b32 s%d, s%d, 12" % (sDST, sWAVE)); q("s_add_u32 s%d, s%d, s%d" % (sSRC, sSRC, sDST))
    L = list(q.l)
    L.append(("buffer_store_dwordx4 %s, v%d, %s, s%d offen sc1" % (vr(XR), T, sr(R_WS), sSRC), "LN"))
    return L

UB = [(u % 8) * 8192 for u in range(32)] + [16384 * x for x in (4, 5, 6, 7, 8, 9, 0, 1, 2, 3, 4, 5, 6, 7, 8, 9)]
def p12(p):
    setup(p)
    toks = {}
    def run(lst):
        for it in lst:
            if isinstance(it, tuple): emit_tagged(p, toks, it[0], it[1])
            else: p(it)
    def wdma(s):
        t = "W%d" % s; b = UB[s]
        if s < 32:
            ps, c = divmod(s, 8); so = "s%d" % (sTAB + 8 + c); L = [("s_nop 0", None)]
            if ps: L = [("s_add_u32 s%d, %s, %d" % (sT2, so, ps * 128), None)]; so = "s%d" % sT2
            return [("s_add_u32 m0, s%d, %d" % (sLW, b), "m0:" + t)] + L + [("buffer_load_dwordx4 v%d, %s, %s offen lds" % (VD8, sr(R_W1), so), t)]
        elif s < 40:
            L = rot8(sT2, s - 32, "s_mul_i32 s%d, s%d, %d" % (sT2, sT2, 64 * 3584), sF0); so = "s%d" % sT2
            rs, v1, rs2, off2, m2 = R_WG, VDG, R_WU, 0, 8192
        else:
            L = rot8(sT2, s - 40, "s_lshl_b32 s%d, s%d, 19" % (sT2, sT2), sQC); so = "s%d" % sT2
            rs, v1, rs2, off2, m2 = R_WQ, VD8, R_WQ, 128, 8192 - 128
        return [("s_add_u32 m0, s%d, %d" % (sLW, b), "m0:" + t)] + L + [
            ("buffer_load_dwordx4 v%d, %s, %s offen lds" % (v1, sr(rs), so), t),
            ("s_add_u32 m0, s%d, %d" % (sLW, b + m2), "m0:" + t), ("s_nop 0", None),
            ("buffer_load_dwordx4 v%d, %s, %s offen offset:%d lds" % (v1, sr(rs2), so, off2), t)]
    def tdma(c):
        t = "T%d" % c
        L = [("s_add_u32 m0, s%d, %d" % (sLT, (c % 3) * 32768), "m0:" + t), ("s_nop 0", None)]
        for q in range(4):
            so = "s%d" % (sTAB + c)
            if q: L.append(("s_add_u32 s%d, %s, %d" % (sT2, so, q * 7168), None)); so = "s%d" % sT2
            L.append(("buffer_load_dwordx4 v%d, %s, %s offen offset:%d lds" % (VDT + (q & 1), sr(R_CKV), so, q * 1024), t))
        return L
    if STAMP: p("s_memrealtime s[64:65]"); p("s_waitcnt lgkmcnt(0)"); p("v_mov_b32 v110, s62"); p("v_mov_b32 v111, s64")
    run(wdma(0)); run(tdma(0)); run(wdma(1)); p("s_barrier"); run(tdma(1))
    if not OPT.get("lazy", 0): run(wdma(2)); run(tdma(2)); run(wdma(3))
    if OPT.get("cpf", 1):
        p("s_cmp_lg_u32 s%d, 7" % sWAVE); p("s_cbranch_scc1 K_NOCPF")
        p("s_getpc_b64 s[100:101]")
        p("s_and_b32 s%d, s%d, 7" % (sT0, sIDX)); p("s_lshl_b32 s%d, s%d, 13" % (sT0, sT0)); p("v_add_u32 v%d, s%d, v%d" % (VSP, sT0, VL128))
        p("v_min_u32 v%d, 0x%x, v%d" % (VSP, OPT.get("reach", 0x1000), VSP))
        cond(p, "global_load_dword v%d, v%d, s[100:101]" % (VDUM, VSP))
        p.label("K_CPFREF")
        p.label("K_NOCPF")
    setup2(p)
    if STAMP:
        p("buffer_store_dwordx2 v[110:111], v%d, %s, s99 offen offset:120" % (VONE, sr(R_WS)), note="diag"); p.vq.pop()
    stamp(p, 0)
    items = [(u, [(0, c, 4 * ((u >> 3) & 1) + c) for c in range(4)]) for u in range(32)]
    items += [(32, GE), (33, GE), (32, GF), (33, GF)] + [(s, g) for s in range(34, 38) for g in (GE, GF)]
    items += [(38, GE), (39, GE), (38, GF), (39, GF), (40, XG), (41, XG), (40, YG), (41, YG)] + [(s, g) for s in range(42, 48) for g in (XG, YG)]
    prev = {}
    for s in range(48):
        sz = 8192 if s < 32 else 16384
        ov = [q for q in range(s) if UB[q] < UB[s] + sz and UB[s] < UB[q] + (8192 if q < 32 else 16384)]
        prev[s] = ov[-2:]
    g0 = OPT.get("g0", 304)
    minbar = {32 + i: g0 + OPT.get('gs', 32) * i for i in range(6)}
    MERGE = 576
    st = None
    for var in ("K", "V"):
        if var == "K":
            p("s_cmp_lg_u32 s%d, 0" % sU1); p("s_cbranch_scc1 P1_V"); st = (list(p.lq), list(p.vq), {k: list(v) for k, v in toks.items()})
        else:
            p.label("P1_V"); p.lq, p.vq = list(st[0]), list(st[1]); toks.clear(); toks.update({k: list(v) for k, v in st[2].items()})
        def mf(sl, kk, at, th, fr):
            c = sl % 8; t = treg(2 * c + kk, th); t = "a[%d:%d]" % (t, t + 3)
            acc = vr(8 * at + 4 * th); cc = "0" if (c == 0 and kk == 0) else acc
            if var == "V" and sl < 32: return "%s %s, %s, %s, %s" % (MF, acc, t, vr(fr), cc)
            return "%s %s, %s, %s, %s" % (MF, acc, vr(fr), t, cc)
        sc = [1]
        def st_hook(p):
            stamp(p, sc[0]); sc[0] += 1
        ab = {bp: [st_hook] for bp in (16, 48, 112, 240, 304, 400, 496, 528, 624, 752, 816, 912, 1008)} if STAMP else {}
        ab.setdefault(176, []).append(signal(0)); ab.setdefault(880, []).append(signal(128))
        def wbl2(p):
            sk = p.newlabel("WB")
            p("s_cmp_lg_u32 s%d, 0" % sWAVE); p("s_cbranch_scc1 %s" % sk); cond(p, "buffer_wbl2 sc1"); p.label(sk)
        if OPT.get("wb", 0):
            for bp_ in ((720,) if OPT["wb"] == 1 else (400, 720)): ab.setdefault(bp_, []).append(wbl2)
            ab.setdefault(880, []).append(signal(64))
        else: ab.setdefault(OPT.get("c1s", 752), []).append(signal(64))
        ew = {80: ["LS"], 176: ["LN"], OPT.get("c1s", 752): ["ST1"], 880: ["STH"], 1008: ["KV"]}
        if OPT.get("wb", 0) == 2: ew[400] = ["ST1"]
        C0B, C1B = OPT.get("c0b", 368), OPT.get("c1b", 944)
        bb = {C0B: [poll_check(R_DBG, "0", 256, True)], C1B: [poll_check(R_DBG, "64", 256, True)]}
        S, pro, init, last_use = engine(toks, items, UB, mf, wdma, prev, minbar, range(8), 512, {b: 0 for b in range(4)},
                                        extra_wait=ew, after_bar=ab, before_bar=bb, maxnew=3)
        def tread(c):
            def f(p):
                p.wait_tok(toks["T%d" % c])
                for kk in range(2):
                    ad, o = VTA + kk, (c % 3) * 32768
                    if c % 3 == 2: p("v_add_u32 v%d, 0x10000, v%d" % (96 + kk, VTA + kk)); ad, o = 96 + kk, 0
                    for th in range(2):
                        t = treg(2 * c + kk, th); p("ds_read_b128 a[%d:%d], v%d offset:%d" % (t, t + 3, ad, o + th * 2048))
            return f
        if OPT.get("lazy", 0):
            S.group(0, wdma(2) + tdma(2) + wdma(3), per=3); S.group(16, wdma(4) + wdma(5), per=2)
        else: S.group(0, wdma(4)); S.group(0, wdma(5))
        for c in range(1, 8): S.put(16 * (c - 1) + 6, tread(c))
        S.group(10, tdma(3), per=2); S.group(16, wdma(6)); S.group(16, wdma(7))
        for c in range(4, 8): S.group(16 * (c - 3) + 10, tdma(c), per=2)
        X0 = OPT.get("x0", 1)
        S.spread(X0, ["s_lshl_b32 s%d, s%d, 10" % (sT3, sLNROW), "buffer_load_dwordx4 v[100:103], v%d, %s, s%d offen" % (VL16, sr(R_X), sT3)], per=6)
        S.spread(26, ["v_mov_b32 v104, 0", "s_lshl_b32 s%d, s2, 8" % sT3, "s_add_u32 s%d, s%d, 0x%x" % (sT3, sT3, WS_FLAG),
                      "v_lshrrev_b32 v106, 2, v%d" % VL16, "s_cmp_eq_u32 s%d, 0" % sWAVE,
                      "s_cselect_b32 s%d, s%d, 0x%x" % (sT3, sT3, OOB), ("buffer_store_dword v104, v106, %s, s%d offen sc1" % (sr(R_WS), sT3), "LN")], per=8)
        e = S.spread(28, ln_list_a(), per=3); assert e <= 64, e
        S.spread(80, ln_list_b0(), per=2)
        e = S.spread(100, ln_list_b(), per=3); assert e <= 134, e
        def cvt(grp, q):
            st0 = 96 + 4 * q
            if var == "K":
                kap, th = 2 * grp + (q >> 1), q & 1; src = [16 * kap + 4 * th, 16 * kap + 4 * th + 2, 16 * kap + 8 + 4 * th, 16 * kap + 10 + 4 * th]
            else:
                cb = 4 * grp + q; src = [8 * cb + 2 * j for j in range(4)]
            return ["v_cvt_pk_bf16_f32 v%d, v%d, v%d" % (st0 + j, src[j], src[j] + 1) for j in range(4)]
        def sto(grp, q):
            if OPT.get("nost", 0): return ("s_nop 0", None)
            return ("buffer_store_dwordx4 %s, v%d, %s, s%d offen offset:%d%s" % (vr(96 + 4 * q), VL16, sr(R_WS), sO1B if grp else sO1, q * 1024, "" if OPT.get("wb", 0) else " sc1"), "ST1")
        for ps in range(3):
            for q in range(4):
                t0 = 128 * (ps + 1) + 8 + (28 if ps < 2 else OPT.get("s2", 12)) * q
                S.spread(t0, cvt(ps & 1, q)); S.put(t0 + 6, *sto(ps & 1, q))
        S.put(250, "s_add_u32 s%d, s%d, 0x80000" % (sO1, sO1)); S.put(378, "s_add_u32 s%d, s%d, 0x80000" % (sO1B, sO1B))
        S.spread(522, sum([cvt(1, q) for q in range(4)], []))
        for q in range(4): S.put(OPT.get("fb", 660) + OPT.get("fs", 20) * q, *sto(1, q))
        S.put(C0B - 24, poll_issue(R_DBG, "0"))
        def stag(f):
            def g(lo):
                def h(p):
                    sk = p.newlabel("SK")
                    p("s_cmp_%s_u32 s%d, 4" % ("ge" if lo else "lt", sWAVE)); p("s_cbranch_scc1 %s" % sk); f(p); p.label(sk)
                return h
            return g(True), g(False)
        def pf_xn(t):
            def f(p):
                p("s_lshl_b32 s%d, s%d, 16" % (sT1, sIDX)); p("s_lshl_b32 s%d, s%d, 13" % (sT0, sS4)); p("s_add_u32 s%d, s%d, s%d" % (sT0, sT1, sT0))
                cond(p, "buffer_load_dword v%d, v%d, %s, s%d offen offset:0" % (VDUM, VL128, sr(R_WS), sT0)) if t == 0 else (
                    p("s_add_u32 s%d, s%d, 32768" % (sT0, sT0)), cond(p, "buffer_load_dword v%d, v%d, %s, s%d offen" % (VDUM, VL128, sr(R_WS), sT0)))
            return f
        def pf_kv(t):
            def f(p):
                p("v_and_b32 v%d, 0x380, v%d" % (VSP, VL128)); p("v_bfe_u32 v%d, v%d, 7, 2" % (VPOLL, VL16)); p("v_lshl_add_u32 v%d, v%d, 13, v%d" % (VSP, VPOLL, VSP))
                p("v_lshrrev_b32 v%d, 9, v%d" % (VPOLL, VL16)); p("v_lshl_add_u32 v%d, v%d, 24, v%d" % (VSP, VPOLL, VSP))
                p("s_lshl_b32 s%d, s%d, 15" % (sT0, sWAVE)); p("s_add_u32 s%d, s%d, s%d" % (sT0, sT0, sHB)); p("s_and_b32 s%d, s%d, 28" % (sT1, sIDX)); p("s_lshl_b32 s%d, s%d, 8" % (sT1, sT1))
                p("s_add_u32 s%d, s%d, s%d" % (sT0, sT0, sT1)); p("s_add_u32 s%d, s%d, 0x%x" % (sT0, sT0, WS_K + t * 262144))
                cond(p, "buffer_load_dword v%d, v%d, %s, s%d offen" % (VDUM, VSP, sr(R_WS), sT0))
            return f
        if OPT.get("pf", 0):
            S.put(C0B + 9, stag(pf_xn(0))[1]); S.put(C0B + 41, stag(pf_xn(1))[1])
        if OPT.get("pfw", 0): S.put(OPT["pfw"], pf_p2w)
        if OPT.get("gw", 0):
            a_, b_ = stag(global_warm); S.put(OPT["gw"], b_); S.put(OPT["gw"] + OPT.get("gw2", 32), a_)
        if OPT.get("pfx", 0):
            def pf_own(p):
                p("v_lshrrev_b32 v%d, 9, v%d" % (VSP, VL16)); p("v_add_u32 v%d, s%d, v%d" % (VSP, sRO2, VSP)); p("v_and_b32 v%d, 7, v%d" % (VSP, VSP))
                p("v_and_b32 v%d, 0xf80, v%d" % (VPOLL, VL128)); p("v_lshl_add_u32 v%d, v%d, 12, v%d" % (VSP, VSP, VPOLL))
                cond(p, "buffer_load_dword v%d, v%d, %s, s%d offen" % (VDUM, VSP, sr(R_WS), sXN))
            a_, b_ = stag(pf_own); S.put(C0B + OPT.get("pfx1", 12), b_); S.put(C0B + OPT.get("pfx2", 44), a_)
        if OPT.get("pfkv", 0):
            for t in range(2):
                a_, b_ = stag(pf_kv(t)); S.put(C1B + 8 + 40 * t, a_); S.put(C1B + 26 + 40 * t, b_)
        for c in range(8):
            L = rot8(sT3, c, "s_lshl_b32 s%d, s%d, 12" % (sT3, sT3), sXN)
            for kk in range(2):
                for th in range(2):
                    t = treg(2 * c + kk, th)
                    L.append("buffer_load_dwordx4 a[%d:%d], v%d, %s, s%d offen offset:%d sc1" % (t, t + 3, VL16, sr(R_WS), sT3, kk * 2048 + th * 1024))
            need = 512 + (16 * c if c < 2 else 32 * c)
            t0 = max(401 + 16 * c, need - OPT.get("xla", 100))
            if not OPT.get("noxn", 0): S.spread(t0, L[:-4], per=5); S.spread(t0 + 1, L[-4:], per=1, step=2)
        def swiglu(grp):
            r_ = []
            for th in range(2):
                st0 = 96 + 4 * th; E = 104
                g = [8 * (4 * grp + (j >> 2)) + 4 * th + (j & 3) for j in range(8)]; u = [x + 16 for x in g]
                for j in range(8): r_.append("v_mul_f32 v%d, 0xbfb8aa3b, v%d" % (E + j, g[j]))
                for j in range(8): r_.append("v_exp_f32 v%d, v%d" % (E + j, E + j))
                for j in range(8): r_.append("v_mul_f32 v%d, v%d, v%d" % (g[j], g[j], u[j]))
                for j in range(8): r_.append("v_add_f32 v%d, 1.0, v%d" % (E + j, E + j))
                for j in range(8): r_.append("v_rcp_f32 v%d, v%d" % (E + j, E + j))
                r_.append("s_nop 0")
                for j in range(8): r_.append("v_mul_f32 v%d, v%d, v%d" % (g[j], g[j], E + j))
                for j in range(4): r_.append("v_cvt_pk_bf16_f32 v%d, v%d, v%d" % (st0 + j, g[2 * j], g[2 * j + 1]))
                r_.append(("buffer_store_dwordx4 %s, v%d, %s, s%d offen offset:%d sc1" % (vr(st0), VL16, sr(R_WS), sHO2 if grp else sHO, th * 1024), "STH"))
            return r_
        e = S.spread(736 + 5, swiglu(0), per=4); assert e <= 768, e
        e = S.spread(768 + 5, swiglu(1), per=4); assert e <= 800, e
        S.spread(1008 + 5, qepi(0), per=5)
        S.spread(900, ["v_accvgpr_write_b32 a%d, 0" % r for r in range(64)], per=1)
        S.put(C1B - 14, poll_issue(R_DBG, "64"))
        kv = ["s_lshl_b32 s%d, s%d, 13" % (sT0, sWAVE), "s_add_u32 s%d, s%d, s%d" % (sT1, sHB, sT0), "s_add_u32 s%d, s%d, 0x%x" % (sT1, sT1, WS_K),
              "s_add_u32 s%d, s%d, 0x%x" % (sT3, sT1, WS_V - WS_K - 6 * 8192), "s_add_u32 s%d, s%d, %d" % (sSRC, sT0, 65536 - 6 * 8192),
              "s_cmp_ge_u32 s%d, 6" % sWAVE, "s_cselect_b32 s%d, s%d, s%d" % (sT1, sT3, sT1), "s_cselect_b32 s%d, s%d, s%d" % (sT0, sSRC, sT0)]
        S.spread(952, kv, per=8)
        kv = []
        for hf in range(2):
            kv += [("s_add_u32 m0, s%d, %d" % (sT0, hf * 4096), "m0:KV"), ("s_add_u32 s%d, s%d, %d" % (sT3, sT1, hf * 4096), None)]
            kv += [("buffer_load_dwordx4 v%d, %s, s%d offen offset:%d sc1 lds" % (VL16, sr(R_WS), sT3, j * 1024), "KV") for j in range(4)]
        assert max(S.busy) < 882, max(S.busy)
        LS0, LS1 = late_setup()
        e = S.spread(884, LS1, per=2); assert e <= 943, e
        S.spread(980, LS0, per=1)
        for f in range(OPT.get("la", 7)): S.put(1009 + 2 * f, "ds_read_b128 a[%d:%d], v%d offset:%d" % (64 + 4 * f, 67 + 4 * f, VKA, f * 1024), "A%d" % f)
        S.spread(953, kv, step=2)
        assert max(last_use[40], last_use[42]) < 944
        p.wait_tok(sum([toks["W%d" % s] for s in init], [])); p("s_barrier")
        tread(0)(p)
        run(pro)
        S.emit(p, toks, 0, MERGE)
        if var == "K": p("s_branch P2_M")
    p.label("P2_M")
    S.emit(p, toks, MERGE, None)
    stamp(p, 14)
    return toks

def late_setup():
    p = Rec()
    p("s_cmp_ge_u32 s%d, 2" % sS4)
    p("s_mov_b32 s%d, 0x%x" % (sSRC, WS_K + 6 * 8192)); p("s_cselect_b32 s%d, 0x%x, s%d" % (sSRC, WS_V, sSRC))
    p("s_mov_b32 s%d, 0x%x" % (sMAX, WS_K)); p("s_cselect_b32 s%d, 0x%x, s%d" % (sMAX, WS_V, sMAX))
    p("s_mov_b32 s%d, 0" % sRB); p("s_cselect_b32 s%d, 0x10000, s%d" % (sRB, sRB))
    p("s_mov_b32 s%d, %d" % (sDST, 6 * 8192)); p("s_cselect_b32 s%d, 0, s%d" % (sDST, sDST))

    p("s_lshl_b32 s%d, s%d, 13" % (sT0, sS4)); p("s_add_u32 s%d, s%d, s%d" % (sSRC, sSRC, sT0)); p("s_add_u32 s%d, s%d, s%d" % (sSRC, sSRC, sHB))
    p("s_add_u32 s%d, s%d, s%d" % (sDST, sDST, sT0))
    p("s_lshl_b32 s%d, s%d, 13" % (sT0, sLAST)); p("s_add_u32 s%d, s%d, s%d" % (sMAX, sMAX, sT0)); p("s_add_u32 s%d, s%d, s%d" % (sMAX, sMAX, sHB))
    nld = len(p.l)
    p4_setup(p)
    p("v_mov_b32 v%d, v%d" % (VKA, VL16)); p("v_add_u32 v%d, 16384, v%d" % (VKB, VL16)); p("v_mov_b32 v%d, v%d" % (VV, VL16))
    p("v_bfe_u32 v%d, v%d, 4, 4" % (VQM, VL16)); p("v_lshrrev_b32 v%d, 8, v%d" % (TM, VL16)); p("v_lshlrev_b32 v%d, 2, v%d" % (TM, TM))
    p("v_sub_u32 v%d, v%d, v%d" % (VQM, VQM, TM)); p("v_mov_b32 v%d, 0xff800000" % TM)
    for r in range(4): p("v_cmp_gt_i32 s[%d:%d], %d, v%d" % (sTAB + 2 * r, sTAB + 1 + 2 * r, r, VQM))
    p("v_mov_b32 v%d, 0" % LR[1][0]); p("v_mov_b32 v%d, 0" % LR[1][1])
    p("s_mov_b32 s%d, %s" % (sTHR, f32hex(THR))); p("s_max_u32 s%d, s%d, 2" % (sRING, sTB)); p("s_sub_u32 s%d, s%d, 2" % (sRING, sRING)); p("s_lshr_b32 s%d, s%d, 1" % (sRING, sRING))
    if not OPT.get("fast", 1): p("s_mov_b32 s%d, 0" % sRING)
    p("s_lshl_b32 s%d, s%d, 1" % (sUU, sRING)); p("s_add_u32 s%d, s%d, 1" % (sUU, sUU)); p("s_mov_b32 s%d, 0" % sPF)
    return p.l[:nld], p.l[nld:]

def global_warm(p):
    end = p.newlabel("GW")
    p("s_mov_b32 s%d, s%d" % (sT0, sLNROW))
    for rs, n in ((R_WG, 224), (R_WU, 224), (R_WQ, 512), (R_WD, 224), (R_WO, 512)):
        nx = p.newlabel("GW")
        p("s_cmp_ge_u32 s%d, %d" % (sT0, n)); p("s_cbranch_scc1 %s" % nx)
        p("s_lshl_b32 s%d, s%d, 13" % (sT0, sT0))
        cond(p, "buffer_load_dword v%d, v%d, %s, s%d offen" % (VDUM, VL128, sr(rs), sT0))
        p("s_branch %s" % end)
        p.label(nx); p("s_sub_u32 s%d, s%d, %d" % (sT0, sT0, n))
    p.label(end)

def pf_p2w(p):
    l1, l2, l3 = p.newlabel("PF"), p.newlabel("PF"), p.newlabel("PF")
    p("s_cmp_lt_u32 s%d, 4" % sWAVE); p("s_cbranch_scc1 %s" % l3)
    p("s_cmp_ge_u32 s%d, 2" % sS4); p("s_cbranch_scc1 %s" % l1)
    p("v_and_b32 v%d, 0x380, v%d" % (VSP, VL128)); p("v_lshrrev_b32 v%d, 7, v%d" % (VPOLL, VL16)); p("v_lshl_add_u32 v%d, v%d, 13, v%d" % (VSP, VPOLL, VSP))
    p("s_lshl_b32 s%d, s%d, 1" % (sT0, sIDX)); p("s_add_u32 s%d, s%d, s%d" % (sT0, sT0, sS4)); p("s_lshl_b32 s%d, s%d, 16" % (sT0, sT0))
    p("s_lshl_b32 s%d, s%d, 10" % (sT1, sX8)); p("s_add_u32 s%d, s%d, s%d" % (sT0, sT0, sT1))
    cond(p, "buffer_load_dword v%d, v%d, %s, s%d offen" % (VDUM, VSP, sr(R_WQ), sT0))
    p("s_branch %s" % l3)
    p.label(l1)
    p("v_and_b32 v%d, 0x180, v%d" % (VSP, VL128)); p("v_lshrrev_b32 v%d, 6, v%d" % (VPOLL, VL16)); p("v_mul_u32_u24 v%d, 3584, v%d" % (VPOLL, VPOLL))
    p("v_add_u32 v%d, v%d, v%d" % (VSP, VSP, VPOLL))
    p("s_mul_i32 s%d, s%d, %d" % (sT0, sIDX, 16 * 3584)); p("s_lshl_b32 s%d, s%d, 9" % (sT1, sX8)); p("s_lshl_b32 s%d, s%d, 8" % (sT3, sX8)); p("s_add_u32 s%d, s%d, 1536" % (sT3, sT3))
    p("s_cmp_ge_u32 s%d, 6" % sX8); p("s_cselect_b32 s%d, s%d, s%d" % (sT1, sT3, sT1)); p("s_add_u32 s%d, s%d, s%d" % (sT0, sT0, sT1))
    p("s_cmp_eq_u32 s%d, 3" % sS4); p("s_cbranch_scc1 %s" % l2)
    cond(p, "buffer_load_dword v%d, v%d, %s, s%d offen" % (VDUM, VSP, sr(R_WG), sT0))
    p("s_branch %s" % l3)
    p.label(l2)
    cond(p, "buffer_load_dword v%d, v%d, %s, s%d offen" % (VDUM, VSP, sr(R_WU), sT0))
    p.label(l3)

def qepi(grp):
    r = []
    for kap in (2 * grp, 2 * grp + 1):
        for j in range(16): r.append("v_mul_f32 v%d, %s, v%d" % (16 * kap + j, f32hex(QSCALE), 16 * kap + j))
        for th in range(2):
            b = 16 * kap + 4 * th
            for j, s_ in enumerate((b, b + 2, b + 8, b + 10)): r.append("v_cvt_pk_bf16_f32 v%d, v%d, v%d" % (b + j, s_, s_ + 1))
    return r

SREG = [[8 + (e & 7) + 16 * (e >> 3) for e in range(16)], [40 + (e & 7) + 16 * (e >> 3) for e in range(16)]]
CI, PB, E, LR, VKA, VKB, VV, VQM, TM = 64, (80, 88), 96, ((100, 101), (102, 103)), 104, 105, 106, 107, 108
def attention(p, toks0):
    AF = 64; LA = OPT.get("la", 7); KVSC = "sc1 " if OPT.get("kvsc", 1) else ""
    AFN = 8 if OPT.get("acc", 0) and LA > 7 else OPT.get("afn", 16)
    if OPT.get("acc", 0): AFN = 8
    fr = lambda j: "a[%d:%d]" % (AF + 4 * (j % AFN), AF + 4 * (j % AFN) + 3)
    O = lambda cb, qh: "a[%d:%d]" % (8 * cb + 4 * qh, 8 * cb + 4 * qh + 3)
    Q = lambda qh, kap: vr(16 * kap + 4 * qh)
    def dma_block():
        if OPT.get("nodma", 0): return
        p("s_min_u32 s%d, s%d, s%d" % (sT0, sSRC, sMAX)); p("s_and_b32 s%d, s%d, 0xffff" % (sT1, sDST)); p("s_add_u32 m0, s%d, s%d" % (sT1, sRB))
        p("s_add_u32 s%d, s%d, 4096" % (sT2, sT0))
        for j in range(4): cond(p, "buffer_load_dwordx4 v%d, %s, s%d offen offset:%d %slds" % (VL16, sr(R_WS), sT0, j * 1024, KVSC))
        p("s_add_u32 m0, m0, 4096"); p("s_add_u32 s%d, s%d, 16384" % (sSRC, sSRC))
        for j in range(4): cond(p, "buffer_load_dwordx4 v%d, %s, s%d offen offset:%d %slds" % (VL16, sr(R_WS), sT2, j * 1024, KVSC))
        p("s_add_u32 s%d, s%d, 16384" % (sDST, sDST))
    def touch():
        if not OPT.get("touch", 0): return
        p("s_add_u32 s%d, s%d, 32768" % (sT0, sSRC)); p("s_min_u32 s%d, s%d, s%d" % (sT0, sT0, sMAX)); p("s_add_u32 s%d, s%d, 16384" % (sSRC, sSRC))
        cond(p, "buffer_load_dword v%d, v%d, %s, s%d offen" % (VDUM, VL128, sr(R_WS), sT0))
    def dma_list():
        L = ["s_min_u32 s%d, s%d, s%d" % (sT0, sSRC, sMAX), "s_and_b32 s%d, s%d, 0xffff" % (sT1, sDST), "s_add_u32 m0, s%d, s%d" % (sT1, sRB), "s_add_u32 s%d, s%d, 4096" % (sT2, sT0)]
        L += [(lambda p, j=j: cond(p, "buffer_load_dwordx4 v%d, %s, s%d offen offset:%d %slds" % (VL16, sr(R_WS), sT0, j * 1024, KVSC))) for j in range(4)]
        L += ["s_add_u32 m0, m0, 4096", "s_add_u32 s%d, s%d, 16384" % (sSRC, sSRC)]
        L += [(lambda p, j=j: cond(p, "buffer_load_dwordx4 v%d, %s, s%d offen offset:%d %slds" % (VL16, sr(R_WS), sT2, j * 1024, KVSC))) for j in range(4)]
        L += ["s_add_u32 s%d, s%d, 16384" % (sDST, sDST)]
        return L
    def role(tag):
        p("s_cmp_ge_u32 s%d, 4" % sWAVE); p("s_cbranch_scc1 AT_RE%s" % tag)
        if tag == "0":
            p("s_cmp_lt_u32 s%d, 2" % sWAVE); p("s_cbranch_scc1 AT_R00"); dma_block(); p.label("AT_R00")
        dma_block()
        p.label("AT_RE%s" % tag)
    kread = lambda j, ad, off: ("ds_read_b128 %s, v%d offset:%d" % (fr(j), ad, off + j * 1024), "A%d" % j)
    vread = lambda j, off: ("ds_read_b128 %s, v%d offset:%d" % (fr(j), VV, off + (j - 8) * 1024), "A%d" % j)
    def maskprep(R=None):
        R = R or [CI + e for e in range(16)]
        for r in range(4):
            p("v_mov_b32 v%d, v%d" % (R[4 + r], TM))
            for e in (r, 12 + r): p("v_cndmask_b32 v%d, v%d, v%d, s[%d:%d]" % (R[e], R[e], TM, sTAB + 2 * r, sTAB + 1 + 2 * r))
        p("s_nop 1")
    def qk_slots(S, dst, zero=False):
        for j in range(16):
            kap, kh, qh = j >> 2, (j >> 1) & 1, j & 1; e0 = 8 * qh + 4 * kh
            S.add("%s %s, %s, %s, %s" % (MF, vr(dst[e0]), fr(j >> 1), Q(qh, kap), ("0" if zero else vr(CI + e0)) if kap == 0 else vr(dst[e0])))
    toks = {}
    def pairwait(S, nf):
        for f in range(0, nf, 2):
            S.s[2 * f]["pre"].append(lambda p, f=f: p.wait_tok(toks["A%d" % (f + 1)][-1]))
    def period(par, pv=True, fast=None):
        cur, nxt = SREG[par], SREG[1 - par]; koff = 0 if par else 8192
        S = Slots(); qk_slots(S, nxt)
        if pv:
            for j in range(16, 32):
                cb, qh = (j - 16) >> 1, j & 1
                S.add("%s %s, %s, %s, %s" % (MF, O(cb, qh), fr(j >> 1), vr(PB[1 - par] + 4 * qh), O(cb, qh)))
        n = len(S.s); nf = n // 2; k = n // 16
        for f in range(LA, nf): S.put(2 * (f - LA), *(kread(f, VKA, koff) if f < 8 else vread(f, koff)))
        for f in range(LA): S.put(2 * (nf - LA + f), *(kread(f, VKA, 8192) if par else kread(f, VKB, 0)))
        pairwait(S, nf)
        for e in range(16):
            qh = e >> 3; l = LR[par][qh]
            add = "v_add_f32 v%d, v%d, v%d" % (l, LR[1 - par][qh] if e % 8 == 0 else l, E + e % 4)
            pe = max(e - 1, 0) if pv else e
            sl = k * pe + k - 1
            if pv and e == 1: S.put(sl, "s_nop 0"); S.put(sl, add)
            else: S.put(k * pe, add)
            if e & 1: S.put(sl, "v_cvt_pk_bf16_f32 v%d, v%d, v%d" % (PB[par] + e // 2, E + (e - 1) % 4, E + e % 4))
            if e < 15: S.put(sl, "v_exp_f32 v%d, v%d" % (E + (e + 1) % 4, cur[e + 1]))
        if pv:
            S.put(30, "v_max_f32 v%d, v%d, v%d" % (TM + 1, LR[par][0], LR[par][1]))
            S.put(30, "v_cmp_lt_f32 vcc, s%d, v%d" % (sTHR, TM + 1))
        else: S.put(n - 1, "s_nop 7")
        S.put(n - 1, "v_exp_f32 v%d, v%d" % (E, nxt[0]))
        if fast and par:
            bp = OPT.get("abar", 8)
            S.put(1, "v_add_u32 v%d, 16384, v%d" % (VKB, VKA)); S.put(5, "v_and_b32 v%d, 0xffff, v%d" % (VKB, VKB))
            if fast == "A": S.put(bp, "s_waitcnt vmcnt(8)")
            S.put(bp, "s_barrier")
            if fast == "A" and not OPT.get("nodma", 0): S.spread(bp + 1, dma_list(), per=1)
        if fast and not par:
            S.put(17, "v_add_u32 v%d, 0x10000, v%d" % (VV, VKA)); S.put(21, "v_mov_b32 v%d, v%d" % (VKA, VKB))
            S.put(25, "s_sub_u32 s%d, s%d, 1" % (sRING, sRING)); S.put(29, "s_cmp_lg_u32 s%d, 0" % sRING)
        S.emit(p, toks)
    def rowred(op, a, b):
        for sw in ("v_permlane16_swap_b32", "v_permlane32_swap_b32"):
            p("v_mov_b32 v%d, v%d" % (b, a)); p("s_nop 1"); p("%s v%d, v%d" % (sw, b, a)); p("s_nop 1"); p("%s v%d, v%d, v%d" % (op, a, a, b))
    def rowmax(cur, qh, d, t):
        c = cur[8 * qh]
        p("v_max3_f32 v%d, v%d, v%d, v%d" % (d, c, c + 1, c + 2)); p("v_max3_f32 v%d, v%d, v%d, v%d" % (d, d, c + 3, c + 4))
        p("v_max3_f32 v%d, v%d, v%d, v%d" % (d, d, c + 5, c + 6)); p("v_max_f32 v%d, v%d, v%d" % (d, d, c + 7))
        rowred("v_max_f32", d, t)
    def fixup(par, back):
        cur, nxt = SREG[par], SREG[1 - par]
        p.nop(8)
        if STAMP and OPT.get("acc", 0):
            p("v_accvgpr_read_b32 v%d, a127" % VPOLL); p("s_nop 0"); p("v_add_u32 v%d, 1, v%d" % (VPOLL, VPOLL)); p("s_nop 0"); p("v_accvgpr_write_b32 a127, v%d" % VPOLL)
        for qh in range(2):
            D, Fc = TM + 1, TM + 2
            rowmax(cur, qh, D, Fc)
            p("v_ceil_f32 v%d, v%d" % (D, D)); p("v_max_f32 v%d, 0, v%d" % (D, D)); p("v_exp_f32 v%d, -v%d" % (Fc, D))
            for e in range(8 * qh, 8 * qh + 8):
                p("v_sub_f32 v%d, v%d, v%d" % (cur[e], cur[e], D)); p("v_sub_f32 v%d, v%d, v%d" % (nxt[e], nxt[e], D)); p("v_sub_f32 v%d, v%d, v%d" % (CI + e, CI + e, D))
            for cb in range(8):
                for r in range(4):
                    a = 8 * cb + 4 * qh + r
                    p("v_accvgpr_read_b32 v%d, a%d" % (E + r, a)); p("v_mul_f32 v%d, v%d, v%d" % (E + r, E + r, Fc)); p("v_accvgpr_write_b32 a%d, v%d" % (a, E + r))
            l = LR[par][qh]
            p("v_mul_f32 v%d, v%d, v%d" % (l, LR[1 - par][qh], Fc))
            for e in range(8 * qh, 8 * qh + 8, 2):
                p("v_exp_f32 v%d, v%d" % (E, cur[e])); p("v_exp_f32 v%d, v%d" % (E + 1, cur[e + 1])); p("s_nop 0")
                p("v_add_f32 v%d, v%d, v%d" % (l, l, E)); p("v_add_f32 v%d, v%d, v%d" % (l, l, E + 1))
                p("v_cvt_pk_bf16_f32 v%d, v%d, v%d" % (PB[par] + e // 2, E, E + 1))
        p("v_exp_f32 v%d, v%d" % (E, nxt[0]))
        p("s_cmp_eq_u32 s%d, 0" % sPF); p("s_cbranch_scc1 AT_B%d" % par)
        lb = p.newlabel("FXB")
        p("s_cmp_eq_u32 s%d, 2" % sPF); p("s_cbranch_scc1 %s" % lb)
        p("s_cmp_lg_u32 s%d, 0" % sRING); p("s_branch AT_FA_B%d" % par)
        p.label(lb)
        p("s_cmp_lg_u32 s%d, 0" % sRING); p("s_branch AT_FB_B%d" % par)
    for f in range(LA): toks["A%d" % f] = [toks0["A%d" % f][-1]]
    p.vq = []
    if STAMP and OPT.get("acc", 0):
        for i in range(8): p("v_accvgpr_write_b32 a%d, 0" % (120 + i))
        p("s_mov_b32 s98, s100")
    role("0")
    if OPT.get("pfkv2", 0):
        u0 = OPT.get("pfu0", 24)
        p("s_cmp_lt_u32 s%d, 16" % sIDX); p("s_cbranch_scc1 AT_NOPF")
        p("v_and_b32 v%d, 0x780, v%d" % (VSP, VL128)); p("v_bfe_u32 v%d, v%d, 8, 1" % (VPOLL, VL16)); p("v_lshl_add_u32 v%d, v%d, 13, v%d" % (VSP, VPOLL, VSP))
        p("v_lshrrev_b32 v%d, 9, v%d" % (VPOLL, VL16)); p("v_lshl_add_u32 v%d, v%d, 24, v%d" % (VSP, VPOLL, VSP))
        p("s_lshl_b32 s%d, s%d, 14" % (sT0, sWAVE)); p("s_add_u32 s%d, s%d, s%d" % (sT0, sT0, sHB)); p("s_and_b32 s%d, s%d, 12" % (sT1, sIDX)); p("s_lshl_b32 s%d, s%d, 9" % (sT1, sT1))
        p("s_add_u32 s%d, s%d, s%d" % (sT0, sT0, sT1)); p("s_add_u32 s%d, s%d, 0x%x" % (sT0, sT0, WS_K + u0 * 8192))
        for t in range((64 - u0 + 15) // 16):
            if u0 + 16 * (t + 1) > 64:
                p("s_cmp_ge_u32 s%d, %d" % (sWAVE, (64 - u0 - 16 * t) // 2)); p("s_cbranch_scc1 AT_NOPF")
            cond(p, "buffer_load_dword v%d, v%d, %s, s%d offen" % (VDUM, VSP, sr(R_WS), sT0))
            p("s_add_u32 s%d, s%d, 0x20000" % (sT0, sT0))
        p.label("AT_NOPF")
    S = Slots(); qk_slots(S, SREG[0], zero=True)
    for f in range(LA, 8): S.put(2 * (f - LA), *kread(f, VKA, 0))
    for f in range(LA): S.put(2 * (8 - LA + f), *kread(f, VKA, 8192))
    q1 = qepi(1)
    S.spread(0, q1[:24], per=4); S.spread(6, q1[24:], per=4)
    S.spread(12, ["v_xor_b32 v%d, %d, v%d" % (VWR + b_, 32 * b_, VTA) for b_ in range(4)], per=1)
    S.emit(p, toks)
    p.nop(6)
    p("s_cmp_lg_u32 s%d, 0" % sTB); p("s_cbranch_scc1 AT_NM0"); maskprep(SREG[0]); p.label("AT_NM0")
    for qh in range(2):
        rowmax(SREG[0], qh, E + 1, E + 2)
        for e in range(8 * qh, 8 * qh + 8): p("v_sub_f32 v%d, 0, v%d" % (CI + e, E + 1))
        for e in range(8 * qh, 8 * qh + 8): p("v_sub_f32 v%d, v%d, v%d" % (SREG[0][e], SREG[0][e], E + 1))
    p("v_exp_f32 v%d, v%d" % (E, SREG[0][0]))
    p("s_cmp_lg_u32 s%d, 1" % sTB); p("s_cbranch_scc1 AT_NM1"); maskprep(); p.label("AT_NM1")
    period(0, pv=False)
    sig0 = [sorted(e["regs"]) for e in p.lq]
    chk = lambda: [sorted(e["regs"]) for e in p.lq] == sig0
    lq0 = list(p.lq)
    stamp(p, 27); p.lq = list(lq0)
    p("s_cmp_eq_u32 s%d, 0" % sRING); p("s_cbranch_scc1 AT_STEPEND")
    p("v_add_u32 v%d, 0x10000, v%d" % (VV, VKA)); p("v_mov_b32 v%d, v%d" % (VKA, VKB))
    p("s_mov_b32 s%d, 2" % sPF)
    if OPT.get("prio", 0) == 1:
        p("s_cmp_lt_u32 s%d, 4" % sWAVE); p("s_cbranch_scc1 AT_NP"); p("s_setprio 1"); p.label("AT_NP")
    if OPT.get("prio", 0) == 2:
        p("s_sub_u32 s%d, 63, s%d" % (sT0, sLAST)); p("s_lshr_b32 s%d, s%d, 1" % (sT0, sT0)); p("s_add_u32 s%d, s%d, 2" % (sT0, sT0))
        p("s_min_u32 s%d, s%d, s%d" % (sT0, sT0, sRING)); p("s_sub_u32 s%d, s%d, s%d" % (sLNROW, sRING, sT0))
        p("s_cmp_ge_u32 s%d, 4" % sWAVE); p("s_cselect_b32 s%d, s%d, s%d" % (sRING, sT0, sRING))
    p("s_cmp_ge_u32 s%d, 4" % sWAVE); p("s_cbranch_scc1 AT_FB")
    p("s_mov_b32 s%d, 1" % sPF)
    for fa in ("A", "B"):
        p.lq = list(lq0)
        p.raw(".p2align 6") if fa == "B" else None
        p.label("AT_F%s" % fa)
        for par in (1, 0):
            period(par, fast=fa)
            p("s_cbranch_vccnz AT_FIX%d" % par)
            p.label("AT_F%s_B%d" % (fa, par))
            assert chk()
        p("s_cbranch_scc1 AT_F%s" % fa)
        if OPT.get("prio", 0) == 2 and fa == "B":
            p("s_mov_b32 s%d, s%d" % (sRING, sLNROW)); p("s_mov_b32 s%d, 0" % sLNROW); p("s_setprio 1")
            p("s_cmp_lg_u32 s%d, 0" % sRING); p("s_cbranch_scc1 AT_FB")
        p("s_mov_b32 s%d, 0" % sPF)
        stamp(p, 28); p.lq = list(lq0)
        p("s_branch AT_STEPEND2")
    p.lq = list(lq0)
    p.label("AT_STEPEND")
    p("v_add_u32 v%d, 0x10000, v%d" % (VV, VKA)); p("v_mov_b32 v%d, v%d" % (VKA, VKB))
    p.label("AT_STEPEND2")
    p("v_add_u32 v%d, 16384, v%d" % (VKB, VKA)); p("v_and_b32 v%d, 0xffff, v%d" % (VKB, VKB))
    acc_stamp(p, 0)
    p("s_waitcnt vmcnt(8)")
    acc_stamp(p, 1)
    p("s_barrier")
    acc_stamp(p, 2)
    if OPT.get("hm", 0):
        p("s_cmp_lg_u32 s%d, 0" % sHMB); p("s_cbranch_scc1 AT_GPP")
        cond(p, poll_issue(R_DBG, "128")); p("s_branch AT_GPQ")
        p.label("AT_GPP"); cond(p, poll_issue(R_WS, "s%d" % sCF)); p.label("AT_GPQ")
    else: cond(p, poll_issue(R_DBG, "128"))
    role("1")
    acc_stamp(p, 3)
    lqs = {}
    for par in (1, 0):
        p("s_add_u32 s%d, s%d, 1" % (sUU, sUU)); p("s_cmp_ge_u32 s%d, s%d" % (sUU, sTB)); p("s_cbranch_scc1 AT_H%d" % par)
        p.label("AT_P%d" % par)
        lqs[par] = list(p.lq)
        period(par)
        p("s_cbranch_vccnz AT_FIX%d" % par)
        p.label("AT_B%d" % par)
        assert [sorted(e["regs"]) for e in p.lq] == sig0
    p("s_branch AT_STEPEND")
    for par in (1, 0):
        p.lq = list(lqs[par])
        p.label("AT_FIX%d" % par); fixup(par, "AT_B%d" % par)
        p.label("AT_H%d" % par)
        p("s_sub_u32 s%d, s%d, s%d" % (sT0, sUU, sTB)); p("s_cmp_eq_u32 s%d, 1" % sT0); p("s_cbranch_scc1 AT_N%d" % par)
        p("s_cmp_eq_u32 s%d, 2" % sT0); p("s_cbranch_scc1 AT_T%d" % par)
        maskprep(); p("s_branch AT_P%d" % par)
        p.label("AT_N%d" % par)
        p("s_waitcnt lgkmcnt(0)")
        cur = SREG[par]; off = 0 if par else 8192
        for f in range(8, 16): p(vread(f, off)[0])
        p("s_cmp_lt_u32 s%d, 4" % sWAVE); p("s_cbranch_scc1 AT_N%dA" % par)
        p("s_waitcnt vmcnt(0)")
        poll_check(R_DBG, "128", 256)(p)
        p.label("AT_N%dA" % par)
        S = Slots()
        for j in range(16, 32):
            cb, qh = (j - 16) >> 1, j & 1
            S.add("%s %s, %s, %s, %s" % (MF, O(cb, qh), fr(j >> 1), vr(PB[1 - par] + 4 * qh), O(cb, qh)))
        for e in range(16):
            qh = e >> 3; l = LR[par][qh]
            S.put(e, "v_add_f32 v%d, v%d, v%d" % (l, LR[1 - par][qh] if e % 8 == 0 else l, E + e % 4))
            if e & 1: S.put(e, "v_cvt_pk_bf16_f32 v%d, v%d, v%d" % (PB[par] + e // 2, E + (e - 1) % 4, E + e % 4))
            if e < 15: S.put(e, "v_exp_f32 v%d, v%d" % (E + (e + 1) % 4, cur[e + 1]))
        S.put(15, "v_max_f32 v%d, v%d, v%d" % (TM + 1, LR[par][0], LR[par][1])); S.put(15, "v_cmp_lt_f32 vcc, s%d, v%d" % (sTHR, TM + 1))
        def btl(r):
            def f(p):
                sk = p.newlabel("BT")
                p("s_cmp_lt_u32 s%d, 4" % sWAVE); p("s_cbranch_scc1 %s" % sk); p4_tld(p, FULL, r); p.vq = []; p.label(sk)
            return f
        S.put(OPT.get("bt0", 9), btl(0)); S.put(15, btl(1))
        S.emit(p, {})
        p("s_cbranch_vccnz AT_FIX%d" % par); p("s_branch AT_B%d" % par)
        p.label("AT_T%d" % par)
        p("s_waitcnt lgkmcnt(0)")
        off = 0 if par else 8192
        for f in range(8, 16): p(vread(f, off)[0])
        p("v_mov_b32 v%d, v%d" % (TM + 1, LR[1 - par][0])); p("v_mov_b32 v%d, v%d" % (TM + 2, LR[1 - par][1]))
        for j in range(16, 32):
            cb, qh = (j - 16) >> 1, j & 1
            p("%s %s, %s, %s, %s" % (MF, O(cb, qh), fr(j >> 1), vr(PB[1 - par] + 4 * qh), O(cb, qh)))
        p("s_branch AT_EPI")
    p.label("AT_EPI")
    p("s_cmp_lt_u32 s%d, 4" % sWAVE); p("s_cbranch_scc1 AT_EPI2")
    p("s_cmp_gt_u32 s%d, 5" % sWAVE); p("s_cbranch_scc1 AT_EPI1")
    p("s_barrier")
    p.label("AT_EPI1")
    if not OPT.get("hm", 0): p4_tld(p, FULL, 2); p.vq = []
    else:
        p("s_cmp_lg_u32 s%d, 0" % sHM); p("s_cbranch_scc1 AT_EPI1H")
        p4_tld(p, FULL, 2); p("s_branch AT_EPI2")
        p.label("AT_EPI1H")
        p("s_waitcnt vmcnt(0)")
        p("v_readfirstlane_b32 s%d, v%d" % (sT0, VPOLL), note="=val %d" % (8 if OPT.get("early_ok", 1) else 0)); p("s_nop 0")
        p("s_cmp_lt_u32 s%d, 8" % sT0); p("s_cbranch_scc1 AT_EPI2")
        p("s_mov_b32 s%d, 2" % sHMB)
        for r in range(3): p4_tld(p, CRUN, r)
        p.vq = []
    p.label("AT_EPI2")
    stamp(p, 29)
    for qh in range(2):
        rowred("v_add_f32", TM + 1 + qh, E)
    for qh in range(2):
        p("v_rcp_f32 v%d, v%d" % (E + 2 * qh, TM + 1 + qh)); p("v_rcp_f32 v%d, v%d" % (E + 2 * qh + 1, TM + 1 + qh))
    p("v_mov_b32 v%d, 1" % VSP)
    p("s_lshr_b32 s%d, s%d, 1" % (sUU, sUU)); p("s_lshr_b32 s%d, s%d, 1" % (sLAST, sLAST))
    for q in range(8):
        kap, qh = q >> 1, q & 1; st = 8 * q
        if q == 4:
            p("s_add_u32 s%d, s%d, 4096" % (sCTX, sCTX))
            p("s_cmp_ge_u32 s%d, 4" % sWAVE); p("s_cbranch_scc1 AT_EPI3")
            p("s_waitcnt vmcnt(12)"); p("s_barrier")
            p("s_cmp_gt_u32 s%d, s%d" % (sSRC, sMAX)); p("s_cbranch_scc1 AT_EPI3")
            dma_block()
            p.label("AT_EPI3")
        for j in range(8): p("v_accvgpr_read_b32 v%d, a%d" % (st + j, 16 * kap + 8 * (j >> 2) + 4 * qh + (j & 3)))
        for j in range(4): p("v_pk_mul_f32 %s, %s, %s" % (vr(st + 2 * j, 2), vr(st + 2 * j, 2), vr(E + 2 * qh, 2)))
        for j in range(4): p("v_cvt_pk_bf16_f32 v%d, v%d, v%d" % (st + j, st + 2 * j, st + 2 * j + 1))
        p("buffer_store_dwordx4 %s, v%d, %s, s%d offen offset:%d sc1" % (vr(st), VL16, sr(R_WS), sCTX, (q % 4) * 1024))
    stamp(p, 15)
    if OPT.get("hm", 0): p("s_cmp_lg_u32 s%d, 0" % sHMB); p("s_cbranch_scc1 P4_JOINC")
    p("s_cmp_ge_u32 s%d, 4" % sWAVE); p("s_cbranch_scc1 P4_JOINF")
    poll_check(R_DBG, "128", 256)(p)
    p("s_add_u32 s%d, s%d, 1" % (sUU, sUU))
    p("s_cmp_gt_u32 s%d, s%d" % (sSRC, sMAX)); p("s_cbranch_scc1 AT_LDA1")
    p("s_waitcnt vmcnt(12)")
    p("s_sub_u32 s%d, s%d, %d" % (sT0, sIDX, 4 * OPT.get("tp0", 2))); p("s_cmp_lt_u32 s%d, 16" % sT0); p("s_cbranch_scc1 AT_TS")
    p("s_branch AT_LD")
    p.label("AT_LDA1"); p("s_waitcnt vmcnt(4)")
    p.label("AT_LD")
    p("s_cmp_lg_u32 s%d, 0" % sPF); p("s_cbranch_scc1 AT_LD2")
    p("s_add_u32 s%d, s%d, %d" % (sT0, sUU, OPT.get("pfat", 9))); p("s_cmp_lt_u32 s%d, s%d" % (sT0, sLAST)); p("s_cbranch_scc1 AT_LD2")
    p("s_cmp_eq_u32 s%d, s%d" % (sT0, sLAST)); p("s_cbranch_scc1 AT_PS")
    p("s_add_u32 s%d, s%d, %d" % (sT0, sUU, OPT.get("pfl", 4))); p("s_cmp_lt_u32 s%d, s%d" % (sT0, sLAST)); p("s_cbranch_scc1 AT_LD2")
    npf = p4_early(p)
    p("s_mov_b32 s%d, 1" % sPF)
    p.label("AT_LD2")
    if OPT.get("hm", 0):
        p("s_add_u32 s%d, s%d, 9" % (sT0, sUU)); p("s_cmp_eq_u32 s%d, s%d" % (sT0, sLAST)); p("s_cselect_b32 s%d, s%d, 0" % (sT0, sHM))
        p("s_cmp_lg_u32 s%d, 0" % sT0); p("s_cbranch_scc1 AT_HM")
    p("s_cmp_gt_u32 s%d, s%d" % (sUU, sLAST)); p("s_cbranch_scc1 AT_LDX")
    acc_stamp(p, 4)
    p("s_barrier")
    acc_stamp(p, 5)
    p("s_add_u32 s%d, s%d, 1" % (sUU, sUU))
    p("s_cmp_le_u32 s%d, s%d" % (sSRC, sMAX)); p("s_cbranch_scc1 AT_LD4")
    p("s_cmp_eq_u32 s%d, 1" % sPF); p("s_cbranch_scc1 AT_LD5")
    p("s_waitcnt vmcnt(0)"); p("s_branch AT_LDS")
    p.label("AT_LD5")
    p("s_mov_b32 s%d, 2" % sPF); p("s_waitcnt vmcnt(%d)" % npf); p("s_branch AT_LDS")
    p.label("AT_LD4")
    dma_block()
    acc_stamp(p, 6)
    p("s_cmp_eq_u32 s%d, 1" % sPF); p("s_cbranch_scc1 AT_LD3")
    p("s_waitcnt vmcnt(8)")
    p("s_branch AT_LDS")
    p.label("AT_LD3")
    p("s_mov_b32 s%d, 2" % sPF); p("s_waitcnt vmcnt(%d)" % (8 + npf))
    p.label("AT_LDS")
    p("s_cmp_eq_u32 s%d, 0x%x" % (sTE, OOB)); p("s_cbranch_scc1 AT_LD")
    p("v_mov_b32 v%d, 1" % VSP)
    cond(p, "buffer_atomic_add v%d, v%d, %s, s%d offen sc1" % (VSP, VONE, sr(R_WS), sTE))
    p("s_mov_b32 s%d, 0x%x" % (sTE, OOB))
    p("s_branch AT_LD")
    if OPT.get("hm", 0):
        p.label("AT_HM")
        for b_ in range(4): p("v_add_u32 v%d, 0x20000, v%d" % (VWR + b_, VWR + b_))
        for it in range(10):
            p.lq, p.vq = [], []
            p("s_barrier")
            if it == 9: break
            if it < 7:
                a_dma1(p, ("h", it), 8 + (it & 1))
                p("s_add_u32 s%d, s%d, %d" % (sT3, sH, it * 4096))
                for kk in range(2):
                    for th in range(2):
                        t = treg(8 + 2 * (it & 1) + kk, th)
                        cond(p, "buffer_load_dwordx4 a[%d:%d], v%d, %s, s%d offen offset:%d sc1" % (t, t + 3, VL16, sr(R_WS), sT3, kk * 2048 + th * 1024))
            if it == 8: a_dma(p, CRUN[0], 8)
            l1, l2, l3 = p.newlabel("HM"), p.newlabel("HM"), p.newlabel("HM")
            p("s_cmp_gt_u32 s%d, s%d" % (sSRC, sMAX)); p("s_cbranch_scc1 %s" % l1)
            dma_block()
            p.label(l1)
            if 1 <= it <= 7:
                k = it - 1
                def mfh(u, kk, at, th, fr_, k=k):
                    t = treg(8 + 2 * (k & 1) + kk, th); acc = vr(8 * at + 4 * th)
                    return "%s %s, %s, a[%d:%d], %s" % (MF, acc, vr(fr_), t, t + 3, "0" if (k == 0 and kk == 0) else acc)
                tk = {}
                S, pro, init, lu = engine(tk, [(0, XG), (0, YG)], [(k & 1) * 16384], mfh, None, {}, {}, [0], 2048, {b_: 0 for b_ in range(4)}, nobar=True)
                for t_ in pro: emit_tagged(p, tk, *t_)
                S.emit(p, tk)
            p("s_cmp_gt_u32 s%d, s%d" % (sSRC, sMAX)); p("s_cbranch_scc1 %s" % l2)
            p("s_waitcnt vmcnt(8)"); p("s_branch %s" % l3)
            p.label(l2); p("s_waitcnt vmcnt(0)"); p.label(l3)
        for b_ in range(4): p("v_add_u32 v%d, 0xfffe0000, v%d" % (VWR + b_, VWR + b_))
        p(poll_issue(R_WS, "s%d" % sCF))
        a_dma(p, CRUN[1], SL4(1)); a_dma(p, CRUN[2], SL4(2))
        p("s_waitcnt vmcnt(16)")
        poll_check(R_WS, "s%d" % sCF, 8)(p)
        for r in range(3): p4_tld(p, CRUN, r)
        p("s_branch P4_JOINC")
    if OPT.get("pfs", 1):
        p.label("AT_PS")
        prevn = 0
        for f, k in p4_pieces()[3:]:
            p("s_barrier"); dma_block(); f(p)
            p("s_waitcnt vmcnt(%d)" % (8 + k + prevn)); prevn = k
        p("s_add_u32 s%d, s%d, %d" % (sUU, sUU, len(p4_pieces()) - 3)); p("s_mov_b32 s%d, 2" % sPF)
        p("s_branch AT_LDS")
        p.label("AT_TS")
        prevn = 0
        for f, k in p4_pieces()[:3]:
            p("s_barrier"); dma_block(); f(p)
            p("s_waitcnt vmcnt(%d)" % (8 + k + prevn)); prevn = k
        p("s_add_u32 s%d, s%d, 3" % (sUU, sUU))
        p("s_branch AT_LDS")
    p.label("AT_LDX")
    a_dma(p, FULL[1], SL4(1)); a_dma(p, FULL[2], SL4(2))

sJ, sNT, sMT, sG, sTB4, sXO, sWD, sWO = range(12, 20)
sH, sC, sH3, sCF, sPB, sFL, sHM, sHMB = range(24, 32)
FULL = [("h", 0), ("h", 2), ("h", 4), ("h", 6)] + [("c", 2 * r) for r in range(8)]
CRUN = FULL[4:]
SL4 = lambda r: ((r + 4) % 5) * 2
def p4_setup(p):
    A, B, C, L = 96, 97, 98, 99
    p("s_and_b32 s%d, s2, 3" % sJ); p("s_and_b32 s%d, s%d, 3" % (sNT, sIDX))
    p("s_lshr_b32 s%d, s%d, 2" % (sMT, sIDX)); p("s_and_b32 s%d, s2, 4" % sT0); p("s_lshl_b32 s%d, s%d, 1" % (sT0, sT0)); p("s_add_u32 s%d, s%d, s%d" % (sMT, sMT, sT0))
    p("s_lshr_b32 s%d, s%d, 2" % (sG, sWAVE)); p("s_lshl_b32 s%d, s%d, 2" % (sTB4, sMT)); p("s_add_u32 s%d, s%d, s%d" % (sTB4, sTB4, sS4))
    p("v_lshrrev_b32 v%d, 4, v%d" % (L, VL16))
    p("v_lshrrev_b32 v%d, 2, v%d" % (C, L)); p("v_lshlrev_b32 v%d, 7, v%d" % (C, C)); p("v_and_b32 v%d, 3, v%d" % (B, L)); p("v_lshl_add_u32 v%d, v%d, 3, v%d" % (C, B, C))
    p("s_lshl_b32 s%d, s%d, 14" % (sT0, sG)); p("v_add_u32 v%d, s%d, v%d" % (C, sT0, C)); p("v_bfe_u32 v%d, v%d, 3, 2" % (A, L))
    p("v_lshl_add_u32 v%d, v%d, 5, v%d" % (VTA, A, C))
    p("v_bfe_u32 v%d, v%d, 1, 2" % (A, L)); p("v_lshrrev_b32 v%d, 4, v%d" % (B, L)); p("v_xor_b32 v%d, v%d, v%d" % (A, A, B))
    p("v_and_b32 v%d, 1, v%d" % (B, L)); p("v_lshlrev_b32 v%d, 4, v%d" % (B, B)); p("v_lshl_add_u32 v%d, v%d, 5, v%d" % (A, A, B))
    p("v_lshrrev_b32 v%d, 3, v%d" % (B, L)); p("v_lshl_add_u32 v%d, v%d, 10, v%d" % (VD8, B, A))
    p("s_lshl_b32 s%d, s%d, 13" % (sT0, sWAVE)); p("v_add_u32 v%d, s%d, v%d" % (VDG, sT0, VD8))
    p("v_and_b32 v%d, 15, v%d" % (A, L)); p("v_lshrrev_b32 v%d, 4, v%d" % (B, L)); p("v_lshlrev_b32 v%d, 3, v%d" % (B, B)); p("v_lshl_add_u32 v%d, v%d, 10, v%d" % (VDT, A, B))
    p("v_add_u32 v%d, 16384, v%d" % (VDT + 1, VDT))
    p("s_lshl_b32 s%d, s%d, 15" % (sXO, sTB4)); p("s_lshl_b32 s%d, s%d, 8" % (sT0, sNT)); p("s_add_u32 s%d, s%d, s%d" % (sXO, sXO, sT0))
    p("s_lshl_b32 s%d, s%d, 6" % (sT1, sJ)); p("s_add_u32 s%d, s%d, s%d" % (sXO, sXO, sT1))
    p("s_mul_i32 s%d, s%d, %d" % (sWD, sJ, 448 * 1024)); p("s_add_u32 s%d, s%d, s%d" % (sWD, sWD, sT0))
    p("s_lshl_b32 s%d, s%d, 20" % (sWO, sJ)); p("s_add_u32 s%d, s%d, s%d" % (sWO, sWO, sT0))
    p("s_mul_i32 s%d, s%d, %d" % (sT1, sTB4, 368 * 1024)); p("s_add_u32 s%d, s%d, 0x%x" % (sT1, sT1, WS_CH))
    p("s_mul_i32 s%d, s%d, %d" % (sH, sJ, 28 * 1024)); p("s_add_u32 s%d, s%d, s%d" % (sH, sH, sT1)); p("s_add_u32 s%d, s%d, %d" % (sH, sH, 256 * 1024))
    p("s_lshl_b32 s%d, s%d, 16" % (sC, sJ)); p("s_add_u32 s%d, s%d, s%d" % (sC, sC, sT1))
    p("s_add_u32 s%d, s%d, %d" % (sH3, sH, 6 * 4096)); p("s_cmp_eq_u32 s%d, 1" % sG); p("s_cselect_b32 s%d, 0x%x, s%d" % (sH3, OOB, sH3))
    p("s_lshl_b32 s%d, s%d, 12" % (sT0, sG)); p("s_add_u32 s%d, s%d, s%d" % (sH, sH, sT0)); p("s_add_u32 s%d, s%d, s%d" % (sC, sC, sT0))
    p("s_cmp_ge_u32 s%d, %d" % (sLAST, 47 if OPT.get("hm", 0) else 99)); p("s_cselect_b32 s%d, 1, 0" % sHM); p("s_and_b32 s%d, s%d, s%d" % (sHMB, sHM, sG))
    p("s_lshl_b32 s%d, s%d, 10" % (sCF, sTB4)); p("s_lshl_b32 s%d, s%d, 8" % (sT0, sJ)); p("s_add_u32 s%d, s%d, s%d" % (sCF, sCF, sT0)); p("s_add_u32 s%d, s%d, 0x%x" % (sCF, sCF, WS_FLAG))

    p("s_lshl_b32 s%d, s%d, 10" % (sT0, sTB)); p("s_lshr_b32 s%d, s%d, 3" % (sT1, sHEAD)); p("s_lshl_b32 s%d, s%d, 8" % (sT1, sT1))
    p("s_add_u32 s%d, s%d, s%d" % (sTE, sT0, sT1)); p("s_add_u32 s%d, s%d, 0x%x" % (sTE, sTE, WS_FLAG))
    p("s_lshl_b32 s%d, s%d, 2" % (sT0, sMT)); p("s_add_u32 s%d, s%d, s%d" % (sT0, sT0, sNT))
    p("s_lshl_b32 s%d, s%d, 17" % (sPB, sT0)); p("s_add_u32 s%d, s%d, 0x%x" % (sPB, sPB, WS_PART)); p("s_lshl_b32 s%d, s%d, 11" % (sT1, sS4)); p("s_add_u32 s%d, s%d, s%d" % (sPB, sPB, sT1))
    p("s_lshl_b32 s%d, s%d, 10" % (sFL, sT0)); p("s_add_u32 s%d, s%d, 0x%x" % (sFL, sFL, WS_FLAG + 128)); p("s_lshl_b32 s%d, s%d, 2" % (sT1, sS4)); p("s_add_u32 s%d, s%d, s%d" % (sFL, sFL, sT1))

def w4src(spec, g):
    kind, k = spec
    if kind == "h": return R_WD, sWD, min(k + g, 6) * 65536
    return R_WO, sWO, (k + g) * 65536
def a_dma1(p, spec, slot, g=0):
    rs, sb, o = w4src(spec, g)
    p("s_lshl_b32 s%d, s%d, 14" % (sT0, sS4)); p("s_add_u32 s%d, s%d, s%d" % (sT0, sT0, sb)); p("s_add_u32 s%d, s%d, %d" % (sT0, sT0, o)); p("s_lshl_b32 s%d, s%d, 11" % (sT1, sS4))
    for pc in range(2):
        if pc: p("s_add_u32 s%d, s%d, 8192" % (sT0, sT0))
        for sub in range(2):
            p("s_add_u32 m0, s%d, %d" % (sT1, slot * 16384 + pc * 1024 + sub * (8192 - 128))); p("s_nop 0")
            cond(p, "buffer_load_dwordx4 v%d, %s, s%d offen offset:%d lds" % (VD8, sr(rs), sT0, sub * 128))
def a_dma(p, spec, slot):
    for g in range(2): a_dma1(p, spec, slot + g, g)
def p4_touch(p, which):
    p("v_lshrrev_b32 v%d, 7, v%d" % (VPOLL, VL16)); p("v_and_b32 v%d, 0x380, v%d" % (VSP, VL128)); p("v_lshl_add_u32 v%d, v%d, 10, v%d" % (VSP, VPOLL, VSP))
    p("s_lshl_b32 s%d, s%d, 2" % (sT0, sIDX)); p("s_add_u32 s%d, s%d, s%d" % (sT0, sT0, sS4)); p("s_sub_u32 s%d, s%d, %d" % (sT0, sT0, 16 * OPT.get("tp0", 2)))
    if which < 2:
        if which: p("s_add_u32 s%d, s%d, 64" % (sT0, sT0))
        p("s_cmp_ge_u32 s%d, 128" % sT0); p("s_cselect_b32 s%d, 0x%x, 0" % (sT2, OOB))
        p("s_lshl_b32 s%d, s%d, 13" % (sT0, sT0)); p("s_lshl_b32 s%d, s%d, 20" % (sT1, sJ)); rs = R_WO
    else:
        p("s_cmp_ge_u32 s%d, 56" % sT0); p("s_cselect_b32 s%d, 0x%x, 0" % (sT2, OOB))
        p("s_lshl_b32 s%d, s%d, 13" % (sT0, sT0)); p("s_mul_i32 s%d, s%d, %d" % (sT1, sJ, 448 * 1024)); rs = R_WD
    p("s_add_u32 s%d, s%d, s%d" % (sT0, sT0, sT1)); p("s_add_u32 s%d, s%d, s%d" % (sT0, sT0, sT2))
    cond(p, "buffer_load_dword v%d, v%d, %s, s%d offen" % (VDUM, VSP, sr(rs), sT0))
def p4_pieces():
    def tl(r):
        def f(p):
            vq = list(p.vq); p4_tld(p, FULL, r); p.vq = vq
        return f
    return [(lambda p: p4_touch(p, 2), 1), (lambda p: p4_touch(p, 0), 1), (lambda p: p4_touch(p, 1), 1), (tl(0), 4), (tl(1), 4), (tl(2), 4),
            (lambda p: a_dma1(p, FULL[0], 8, 0), 4), (lambda p: a_dma1(p, FULL[0], 9, 1), 4)]
def p4_early(p):
    n = 0
    for f, k in p4_pieces()[3:]: f(p); n += k
    return n

def t4reg(r, kk, th): return treg(2 * ((r + 4) % 8) + kk, th)
def p4_tld_list(run, r):
    kind, k = run[r]
    if (kind, k) == ("h", 6): out = ["s_nop 0"]; so = sH3
    else: out = ["s_add_u32 s%d, s%d, %d" % (sT3, sH if kind == "h" else sC, k * 4096)]; so = sT3
    for kk in range(2):
        for th in range(2):
            t = t4reg(r, kk, th)
            out.append(("buffer_load_dwordx4 a[%d:%d], v%d, %s, s%d offen offset:%d sc1" % (t, t + 3, VL16, sr(R_WS), so, kk * 2048 + th * 1024), "T4_%d" % r))
    return out
def p4_tld(p, run, r):
    for it in p4_tld_list(run, r): p(it[0] if isinstance(it, tuple) else it)

def phase4_run(p, run, tag):
    NR, TR = len(run), 8
    p.label("P4_JOIN" + tag)
    p.lq, p.vq = [], []
    stamp(p, 16)
    p("v_mov_b32 v%d, 1" % VSP)
    p("s_waitcnt vmcnt(0)")
    p("buffer_atomic_add v%d, v%d, %s, s%d offen sc1" % (VSP, VONE, sr(R_WS), sTE))
    if OPT.get("prio", 0): p("s_setprio 0")
    if tag == "C":
        p("s_cmp_lg_u32 s%d, 1" % sHMB); p("s_cbranch_scc1 P4C_OK")
        vq = list(p.vq)
        p(poll_issue(R_WS, "s%d" % sCF)); poll_check(R_WS, "s%d" % sCF, 8, sleep=1)(p)
        for r in range(3): p4_tld(p, CRUN, r)
        p("s_waitcnt vmcnt(0)")
        p.vq = vq
        p.label("P4C_OK")
    p("s_barrier")
    stamp(p, 17)
    def wdma(r):
        out = []
        for g in range(2):
            rs, sb, o = w4src(run[r], g); t = "W%d" % r; b = (SL4(r) + g) * 16384
            out += [("s_add_u32 m0, s%d, %d" % (sLW, b), "m0:" + t), ("s_add_u32 s%d, s%d, %d" % (sT2, sb, o), None),
                    ("buffer_load_dwordx4 v%d, %s, s%d offen lds" % (VDG, sr(rs), sT2), t),
                    ("s_add_u32 m0, s%d, %d" % (sLW, b + 8192 - 128), "m0:" + t), ("s_nop 0", None),
                    ("buffer_load_dwordx4 v%d, %s, s%d offen offset:128 lds" % (VDG, sr(rs), sT2), t)]
        return out
    items = [(r, g) for r in range(NR) for g in (XG, YG)]
    prev = {r: ([r - 5] if r >= 5 else []) for r in range(NR)}
    st = (list(p.lq), list(p.vq))
    variants = (True,) if tag == "F" else (True, False)
    if tag == "C": p("s_cmp_eq_u32 s%d, 0" % sG); p("s_cbranch_scc1 P4C_G0")
    for zi in variants:
        toks = {}
        if not zi: p.label("P4C_G0"); p.lq, p.vq = list(st[0]), list(st[1])
        def mf(r, kk, cb, th, fr):
            t = t4reg(r, kk, th); acc = vr(8 * cb + 4 * th); cc = "0" if (r == 0 and kk == 0 and zi) else acc
            return "%s %s, %s, a[%d:%d], %s" % (MF, acc, vr(fr), t, t + 3, cc)
        ab = {32 * (NR - 8) - 16 if NR > 8 else 16: [lambda p: stamp(p, 19)]} if STAMP else {}
        S, pro, init, last_use = engine(toks, items, [SL4(r) * 16384 for r in range(NR)], mf, wdma, prev, {}, [0, 1, 2, 3, 4], 2048, {b: 0 for b in range(4)},
                                        after_bar=ab, maxnew=1)
        S.group(0, wdma(3)); S.group(0, wdma(4))
        e = 1
        for r in range(3, NR):
            if tag == "F" and r == 4:
                cp = OPT.get("cpoll", 40)
                S.put(cp - 16, poll_issue(R_WS, "s%d" % sCF)); S.put(cp, poll_check(R_WS, "s%d" % sCF, 8)); e = max(e, cp + 1)
            e = S.spread(max(e, 32 * (r - TR + 1) + 1, 32 * (r - OPT.get("tla", 4))), p4_tld_list(run, r))
        assert tag == "F" and [SL4(r) for r in (7, 8, 9)] == [2, 4, 6]
        S.spread(32 * NR - 40, ["buffer_load_dwordx2 v[%d:%d], v%d, %s, s%d offen offset:%d" % (100 + 2 * q, 101 + 2 * q, VDT + (q & 1), sr(R_X), sXO, (q >> 1) * 32) for q in range(4)] +
                 ["s_lshl_b32 s%d, s%d, 13" % (sT0, sWAVE), "s_add_u32 s%d, s%d, 0x8000" % (sT1, sT0), "v_add_u32 v96, s%d, v%d" % (sT1, VL16),
                  "s_xor_b32 s%d, s%d, 0x8000" % (sT0, sT0), "s_add_u32 s%d, s%d, 0x8000" % (sT0, sT0), "v_add_u32 v97, s%d, v%d" % (sT0, VL16)], step=2)
        for t_ in pro: emit_tagged(p, toks, *t_)
        if tag == "C":
            S.emit(p, toks, 0, 32)
            if zi: p("s_branch P4C_M")
        else: S.emit(p, toks)
    if tag == "C":
        p.label("P4C_M"); S.emit(p, toks, 32, None)

def phase4(p):
    phase4_run(p, FULL, "F")
    if OPT.get("hm", 0):
        p("s_branch OUT_RED")
        phase4_run(p, CRUN, "C")
    p.label("OUT_RED")
    p("s_waitcnt lgkmcnt(0)")
    stamp(p, 23)
    p.nop(6)
    p("s_cmp_eq_u32 s%d, 1" % sG); p("s_cbranch_scc1 OUT_G1")
    st = (list(p.lq), list(p.vq))
    for g in range(2):
        if g == 1:
            p.label("OUT_G1"); p.lq, p.vq = list(st[0]), list(st[1])
        give = 32 * (1 - g); keep = 32 * g
        for q in range(8): p("ds_write_b128 v96, %s offset:%d" % (vr(give + 4 * q), q * 1024))
        p("s_waitcnt lgkmcnt(0)"); p("s_barrier")
        for q in range(8): p("ds_read_b128 %s, v97 offset:%d" % (vr(give + 4 * q), q * 1024))
        for r in range(32): p("v_add_f32 v%d, v%d, v%d" % (r, keep + r, give + r))
        if g == 0: p("s_branch OUT_X")
    p.label("OUT_X")
    p("s_lshl_b32 s%d, s%d, 13" % (sT0, sJ)); p("s_add_u32 s%d, s%d, s%d" % (sT0, sT0, sPB)); p("s_lshl_b32 s%d, s%d, 16" % (sT1, sG)); p("s_add_u32 s%d, s%d, s%d" % (sT0, sT0, sT1))
    p("s_lshl_b32 s%d, s%d, 9" % (sT1, sG)); p("s_add_u32 s%d, s%d, s%d" % (sH, sT1, sFL)); p("s_lshl_b32 s%d, s%d, 1" % (sT1, sG))
    for bb in range(2):
        p("s_add_u32 s%d, s%d, %d" % (sT2, sT0, bb * 32768)); p("s_add_u32 s%d, s%d, %d" % (sC + bb, sH, bb * 256))
        p("s_add_u32 s%d, s%d, %d" % (sT3, sT1, bb)); p("s_cmp_eq_u32 s%d, s%d" % (sT3, sJ))
        p("s_cselect_b32 s%d, 0x%x, s%d" % (sT2, OOB, sT2)); p("s_cselect_b32 s%d, 0x%x, s%d" % (sC + bb, OOB, sC + bb))
        for j in range(8): p("v_cvt_pk_bf16_f32 v%d, v%d, v%d" % (32 + 8 * bb + j, 16 * bb + 2 * j, 16 * bb + 2 * j + 1))
        for q in range(2): p("buffer_store_dwordx4 %s, v%d, %s, s%d offen offset:%d sc1" % (vr(32 + 8 * bb + 4 * q), VL16, sr(R_WS), sT2, q * 1024))
    p("v_mov_b32 v%d, 1" % VSP)
    p("s_lshl_b32 s%d, s%d, 8" % (sT0, sJ)); p("s_add_u32 s%d, s%d, s%d" % (sFL, sFL, sT0))
    p("s_waitcnt vmcnt(0)")
    for bb in range(2): p("buffer_atomic_add v%d, v%d, %s, s%d offen sc1" % (VSP, VONE, sr(R_WS), sC + bb))
    stamp(p, 24)
    p("s_lshr_b32 s%d, s%d, 1" % (sT0, sJ)); p("s_cmp_lg_u32 s%d, s%d" % (sT0, sG)); p("s_cbranch_scc1 K_END")
    p(poll_issue(R_WS, "s%d" % sFL))
    p("s_and_b32 s%d, s%d, 1" % (sT0, sJ)); p("s_cmp_eq_u32 s%d, 0" % sT0); p("s_cbranch_scc1 OUT_OWN")
    for r in range(16): p("v_mov_b32 v%d, v%d" % (r, 16 + r))
    p.label("OUT_OWN")
    for q in range(4):
        d = 64 + 8 * (q >> 1) + 4 * (q & 1)
        for e in range(2):
            p("v_lshlrev_b32 v%d, 16, v%d" % (d + 2 * e, 100 + 2 * q + e)); p("v_and_b32 v%d, 0xffff0000, v%d" % (d + 2 * e + 1, 100 + 2 * q + e))
    for r in range(16): p("v_add_f32 v%d, v%d, v%d" % (r, r, 64 + r))
    poll_check(R_WS, "s%d" % sFL, 3, sleep=1)(p)
    stamp(p, 25)
    p("s_lshl_b32 s%d, s%d, 15" % (sT3, sJ)); p("s_add_u32 s%d, s%d, s%d" % (sT3, sT3, sPB))
    for k in range(1, 4):
        p("s_add_u32 s%d, s%d, %d" % (sT0, sJ, k)); p("s_and_b32 s%d, s%d, 3" % (sT0, sT0)); p("s_lshl_b32 s%d, s%d, 13" % (sT0, sT0)); p("s_add_u32 s%d, s%d, s%d" % (sT0, sT0, sT3))
        for q in range(2): p("buffer_load_dwordx4 %s, v%d, %s, s%d offen offset:%d sc1" % (vr(16 + 8 * k + 4 * q), VL16, sr(R_WS), sT0, q * 1024))
    for k in range(1, 4):
        for j in range(8):
            p("v_lshlrev_b32 v64, 16, v%d" % (16 + 8 * k + j)); p("v_and_b32 v65, 0xffff0000, v%d" % (16 + 8 * k + j))
            p("v_add_f32 v%d, v%d, v64" % (2 * j, 2 * j)); p("v_add_f32 v%d, v%d, v65" % (2 * j + 1, 2 * j + 1))
    for q in range(4):
        a = 8 * (q >> 1) + 4 * (q & 1)
        p("v_cvt_pk_bf16_f32 v%d, v%d, v%d" % (64 + 2 * q, a, a + 1)); p("v_cvt_pk_bf16_f32 v%d, v%d, v%d" % (65 + 2 * q, a + 2, a + 3))
        p("buffer_store_dwordx2 v[%d:%d], v%d, %s, s%d offen offset:%d" % (64 + 2 * q, 65 + 2 * q, VDT + (q & 1), sr(R_OUT), sXO, (q >> 1) * 32))
    stamp(p, 26)

def build():
    p = Prog()
    hdr = open("cdna_kernels/%s.s.ref" % NAME).read().split("; Override launch")[0]
    p.raw(hdr.rstrip())
    p.raw("; @launch grid=(256,1,1) block=(512,1,1) lds=163840")
    p.raw('.amdgcn_target "amdgcn-amd-amdhsa--gfx950"'); p.raw(".text")
    kernel_begin(p, KN)
    t0 = p12(p); attention(p, t0); phase4(p)
    p.label("K_END"); p("s_endpgm")
    p.raw('.section .rodata,"a"'); p.raw(kernel_desc(KN, 256, 128, 102))
    return p

def selfcheck(p):
    bad = []
    for wg, wave in [(0, 0), (0, 3), (0, 4), (0, 7), (5, 2), (100, 1), (100, 6), (255, 2), (255, 5), (255, 0), (30, 4), (3, 7)]:
        for fx in (False, True):
            tr = trace(p, KN, wg, wave, vcc_taken=(lambda i, n: n % 3 == 1) if fx else (lambda i, n: False))
            pr = check_trace(tr, "wg%d w%d" % (wg, wave))
            nb = sum(1 for i in tr if i.mn == "s_barrier"); nm = sum(1 for i in tr if i.kind == "mfma")
            if not fx: print("wg%d w%d: %d instrs, %d mfma, %d barriers, %d problems" % (wg, wave, len(tr), nm, nb, len(pr)))
            bad += pr
    for b in sorted(set(bad))[:40]: print(b)
    return not bad

if __name__ == "__main__":
    for o in sys.argv[2:]:
        if o == "stamp": STAMP = True
        else:
            k, v = o.split("="); OPT[k] = int(v) if v.isdigit() else v
    import subprocess
    if OPT.get("cpf", 1):
        open("pass1.s", "w").write(build().text())
        subprocess.run(["clang", "-x", "assembler", "-target", "amdgcn-amd-amdhsa", "-mcpu=gfx950", "-c", "pass1.s", "-o", "pass1.o"], check=True)
        sym = subprocess.run(["llvm-objdump", "-t", "pass1.o"], capture_output=True, text=True).stdout
        ad = {l.split()[-1]: int(l.split()[0], 16) for l in sym.splitlines() if ".text" in l and len(l.split()) >= 5}
        OPT["reach"] = ad["K_END"] - ad["K_CPFREF"]
    p = build()
    ok = selfcheck(p)
    open(sys.argv[1], "w").write(p.text())
    import subprocess
    r = subprocess.run(["clang", "-x", "assembler", "-target", "amdgcn-amd-amdhsa", "-mcpu=gfx950", "-c", sys.argv[1], "-o", "chk.o"], capture_output=True, text=True)
    print("written", sys.argv[1], "OK" if ok else "PROBLEMS", "ASM-OK" if r.returncode == 0 else "ASM-FAIL\n" + r.stderr[:2000])
```

```python
import sys, struct
from fw import *

NAME = "parallel_sum__compressed_kv_cla__swiglu_ffn__prompt"
KN = NAME + "_kernel"
WS_XN = 0x0000000
WS_K = 0x0200000
WS_V = 0x1200000
WS_CH = 0x2200000
WS_PART = 0x4000000
WS_FLAG = 0x5000000
WS_BYTES = 0x10000000
OOB = 0x20000000
MF = "v_mfma_f32_16x16x32_bf16"
STAMP = False
OPT = {}
def f32hex(x): return "0x%08x" % struct.unpack("<I", struct.pack("<f", x))[0]
QSCALE = 1.4426950408889634 / (128 ** 0.5)
THR = float(2 ** 20)

R_WS, R_W1, R_CKV, R_X, R_WQ, R_WG, R_WU, R_WO, R_WD, R_OUT, R_DBG = 8, 12, 16, 20, 24, 28, 32, 36, 40, 44, 48
def sr(r): return "s[%d:%d]" % (r, r + 3)
sWAVE, sIDX, sX8, sT0, sT1, sT2, sT3 = 3, 4, 5, 6, 7, 52, 53
sU1, sO1, sO1B, sLW, sLT, sLNROW = 54, 55, 56, 57, 58, 59
sHEAD, sTB, sLAST, sS4, sF0, sQC, sXN, sHO, sHO2, sCTX, sHB = 60, 61, 62, 63, 64, 65, 66, 67, 68, 69, 70
sSRC, sDST, sMAX, sRB, sRING, sTHR, sUU, sTE, sPF = 71, 72, 73, 74, 75, 76, 77, 78, 79
sTAB = 80
sRO2, sROH = 96, 97
VL16, VWR, VD8, VDG, VDT, VTA, VONE, VDUM, VPOLL, VL128, VSP = 112, 113, 117, 118, 119, 121, 123, 124, 125, 126, 127
FRB, FR = 64, 8
EG = [(0, 0), (0, 1), (1, 0), (1, 1)]
FG = [(0, 2), (0, 3), (1, 2), (1, 3)]

def emit_tagged(p, toks, text, tag):
    if tag is not None and tag.startswith("m0:"):
        p.m0own = tag[3:]; p(text); return
    if text.endswith(" lds"):
        assert getattr(p, "m0own", None) == tag, ("m0 owner mismatch", text, tag, p.m0own)
    t = p(text)
    if tag is not None: toks.setdefault(tag, []).append(t)

class Slots:
    def __init__(self): self.s = []
    def add(self, mfma): self.s.append(dict(m=mfma, pre=[], f=[])); return len(self.s) - 1
    def put(self, slot, text, tag=None):
        assert 0 <= slot < len(self.s), slot
        self.s[slot]["f"].append((text, tag))
    def spread(self, start, items, per=1, step=1):
        k = 0
        for it in items:
            sl = start + (k // per) * step
            if isinstance(it, tuple): self.put(sl, it[0], it[1])
            else: self.put(sl, it)
            k += 1
        return start + ((k + per - 1) // per) * step
    def group(self, t0, lst, per=1):
        if not hasattr(self, "busy"): self.busy = set()
        n = (len(lst) + per - 1) // per
        while any((t0 + i) in self.busy for i in range(n)): t0 += 1
        self.busy |= set(range(t0, t0 + n))
        return self.spread(t0, lst, per=per)
    def emit(self, p, toks, lo=0, hi=None):
        for sl in self.s[lo:hi]:
            for it in sl["pre"]: it(p)
            p(sl["m"])
            for text, tag in sl["f"]:
                if callable(text): text(p)
                else: emit_tagged(p, toks, text, tag)

def stamp(p, i):
    if not STAMP: return
    lq, vq = list(p.lq), list(p.vq)
    p.auto = False
    if OPT.get("few", 0) and i not in (0, 1, 3, 4, 7, 10, 13, 14, 15, 16, 17, 19, 23, 24, 25, 26, 27, 28, 29):
        p.auto = True; return
    p("%s s[100:101]" % ("s_memrealtime" if OPT.get("rt", 0) else "s_memtime")); p("s_waitcnt lgkmcnt(0)")
    p("v_mov_b32 v%d, s100" % VDUM, note="diag")
    p("buffer_store_dword v%d, v%d, %s, s99 offen offset:%d" % (VDUM, VONE, sr(R_WS), 4 * i), note="diag")
    if OPT.get("rt", 0):
        p("s_memtime s[100:101]"); p("s_waitcnt lgkmcnt(0)"); p("v_mov_b32 v%d, s100" % VSP, note="diag") if False else p("v_mov_b32 v%d, s100" % VDUM, note="diag")
        p("buffer_store_dword v%d, v%d, %s, s99 offen offset:%d" % (VDUM, VONE, sr(R_WS), 4 * (128 + i)), note="diag")
    p.auto = True
    p.lq, p.vq = [], vq

def acc_stamp(p, i):
    if not (STAMP and OPT.get("acc", 0)): return
    lq = list(p.lq); p.auto = False
    p("s_memtime s[100:101]"); p("s_waitcnt lgkmcnt(0)"); p("s_sub_u32 s101, s100, s98"); p("s_mov_b32 s98, s100")
    p("v_accvgpr_read_b32 v%d, a%d" % (VPOLL, 120 + i)); p("s_nop 0"); p("v_add_u32 v%d, s101, v%d" % (VPOLL, VPOLL)); p("s_nop 0"); p("v_accvgpr_write_b32 a%d, v%d" % (120 + i, VPOLL))
    p.auto = True; p.lq = lq
def acc_flush(p):
    if not (STAMP and OPT.get("acc", 0)): return
    vq = list(p.vq)
    for i in range(8):
        p("v_accvgpr_read_b32 v%d, a%d" % (96 + i, 120 + i))
        p("s_nop 0")
        p("buffer_store_dword v%d, v%d, %s, s99 offen offset:%d" % (96 + i, VONE, sr(R_WS), 4 * (32 + i)))
    p.vq = vq

def cond(p, text):
    p(text); p.vq.pop()

def wave_sum(q, v):
    for sh in (1, 2, 4, 8):
        q("s_nop 1"); q("v_add_f32_dpp v%d, v%d, v%d row_shr:%d row_mask:0xf bank_mask:0xf bound_ctrl:0" % (v, v, v, sh))
    q("s_nop 1"); q("v_add_f32_dpp v%d, v%d, v%d row_bcast:15 row_mask:0xa bank_mask:0xf" % (v, v, v))
    q("s_nop 1"); q("v_add_f32_dpp v%d, v%d, v%d row_bcast:31 row_mask:0xc bank_mask:0xf" % (v, v, v))

class Rec:
    def __init__(self): self.l = []
    def __call__(self, t, note=None): self.l.append(t)

def poll_issue(srd, soff):
    if soff.isdigit(): soff = "0 offset:" + soff
    return "buffer_load_dword v%d, off, %s, %s sc1" % (VPOLL, sr(srd), soff)
def poll_check(srd, soff, expect, w0=False, sleep=4):
    def f(p):
        ok, lp = p.newlabel("PK"), p.newlabel("PL")
        if w0: p("v_mov_b32 v%d, v%d" % (VPOLL, VPOLL)); p("s_cmp_lg_u32 s%d, 0" % sWAVE); p("s_cbranch_scc1 %s" % ok)
        p("v_readfirstlane_b32 s%d, v%d" % (sT0, VPOLL), note="=val %d" % expect); p("s_mov_b32 s%d, 0" % sT1)
        p("s_cmp_ge_u32 s%d, %d" % (sT0, expect)); p("s_cbranch_scc1 %s" % ok)
        lq, vq = list(p.lq), list(p.vq)
        p.label(lp)
        p("s_sleep %d" % sleep); p(poll_issue(srd, soff)); p("s_add_u32 s%d, s%d, 1" % (sT1, sT1)); p("s_waitcnt vmcnt(0)")
        p("v_readfirstlane_b32 s%d, v%d" % (sT0, VPOLL), note="=val %d" % expect)
        p("s_cmp_ge_u32 s%d, 0x40000" % sT1); p("s_cbranch_scc1 %s" % ok)
        p("s_cmp_lt_u32 s%d, %d" % (sT0, expect)); p("s_cbranch_scc1 %s" % lp)
        p.lq, p.vq = lq, vq
        p.label(ok)
    return f
def signal(off):
    def f(p):
        sk = p.newlabel("SG")
        p("s_cmp_lg_u32 s%d, 0" % sWAVE); p("s_cbranch_scc1 %s" % sk)
        p("v_mov_b32 v%d, 1" % VSP)
        cond(p, "buffer_atomic_add v%d, v%d, %s, 0 offen offset:%d sc1" % (VSP, VONE, sr(R_DBG), off))
        p.label(sk)
    return f

def engine(toks, items, base_of, mfma_fn, wdma_fn, prev, minbar, issued, rd2, cur_base, LA=6, extra_wait=None, after_bar=None, before_bar=None, maxnew=2, nobar=False):
    S = Slots(); frags = []
    for (sl, cols) in items:
        for kk in range(2):
            for col in cols: frags.append((sl, kk) + tuple(col))
    for n, (sl, kk, so, cbp, at) in enumerate(frags):
        for th in range(2): S.add(mfma_fn(sl, kk, at, th, FRB + 4 * (n % FR)))
    n2 = len(S.s)
    first_read, last_use, pro = {}, {}, []
    for n, (sl, kk, so, cbp, at) in enumerate(frags):
        fr = FRB + 4 * (n % FR); rs = 2 * (n - LA); win = base_of[sl] & ~0xffff
        if OPT.get("win48", 0) or rd2 == 2048: win = base_of[sl] & ~0x7fff
        L = []
        if cur_base[cbp] != win:
            L.append(("v_add_u32 v%d, 0x%x, v%d" % (VWR + cbp, (win - cur_base[cbp]) & 0xffffffff, VWR + cbp), None)); cur_base[cbp] = win
        o = base_of[sl] - win + so + kk * 4096
        L.append(("ds_read_b64_tr_b16 %s, v%d offset:%d" % (vr(fr, 2), VWR + cbp, o), "F%d" % n))
        L2 = ("ds_read_b64_tr_b16 %s, v%d offset:%d" % (vr(fr + 2, 2), VWR + cbp, o + rd2), "F%d" % n)
        if rs < 0: pro += L + [L2]
        else:
            for it in L: S.put(rs, it[0], it[1])
            S.put(rs + 1, L2[0], L2[1])
        first_read.setdefault(sl, rs); last_use[sl] = 2 * n + 1
        if n % 2 == 0 and n + 1 < len(frags):
            S.s[2 * n]["pre"].append(lambda p, n=n: p.wait_tok(toks["F%d" % (n + 1)]))
    if nobar: return S, pro, [], last_use
    bpos = list(range(16, n2, 32))
    waited = set(s for s in first_read if first_read[s] < bpos[0]); init_need = sorted(waited)
    issued = set(issued); extra_wait = extra_wait or {}; after_bar = after_bar or {}
    order = sorted(first_read, key=lambda s: first_read[s])
    S.dma_end = {}
    for bi, bp in enumerate(bpos):
        nxt = bpos[bi + 1] if bi + 1 < len(bpos) else n2 + 100
        need = [s for s in order if s not in waited and first_read[s] < nxt]
        for s in need: assert s in issued, ("unit %d needed at barrier %d but not issued" % (s, bp))
        waited |= set(need)
        new = [s for s in order if s not in issued and all(last_use[q] < bp for q in prev.get(s, [])) and minbar.get(s, 0) <= bp][:maxnew]
        tags = ["W%d" % s for s in need] + extra_wait.get(bp, [])
        def f(p, tags=tags, bp=bp):
            fine = OPT.get("fine", 0) and n2 > 512
            if fine: stamp(p, 64 + 3 * (bp // 32))
            for g in (before_bar or {}).get(bp, []): g(p)
            p.wait_tok(sum([toks.get(t, []) for t in tags], []))
            if fine: stamp(p, 65 + 3 * (bp // 32))
            p("s_barrier")
            if fine: stamp(p, 66 + 3 * (bp // 32))
            for g in after_bar.get(bp, []): g(p)
        if tags or new or bp in after_bar or bp in (before_bar or {}): S.s[bp]["pre"].insert(0, f)
        for s in new:
            issued.add(s); S.group(bp, wdma_fn(s))
    assert issued >= set(first_read), sorted(set(first_read) - issued)
    return S, pro, init_need, last_use

XG = [(0, c, c) for c in range(4)]
YG = [(8192, c, 4 + c) for c in range(4)]
GE = [(0, 0, 0), (0, 1, 1), (8192, 0, 2), (8192, 1, 3)]
GF = [(0, 2, 4), (0, 3, 5), (8192, 2, 6), (8192, 3, 7)]

def rot8(t, c, scale, base, ro=None):
    if OPT.get("half", 0):
        return [("s_add_u32 s%d, s%d, %d" % (t, sROH, c), None), ("s_and_b32 s%d, s%d, 3" % (t, t), None), ("s_add_u32 s%d, s%d, %d" % (t, t, c & 4), None), (scale, None),
                ("s_add_u32 s%d, s%d, s%d" % (t, t, base), None)]
    return [("s_add_u32 s%d, s%d, %d" % (t, sRO2 if ro is None else ro, c), None), ("s_and_b32 s%d, s%d, 7" % (t, t), None), (scale, None),
            ("s_add_u32 s%d, s%d, s%d" % (t, t, base), None)]

def treg(kap, th): return 16 * (kap >> 1) + 8 * (kap & 1) + 4 * th

def setup(p):
    p("s_cmp_ge_u32 s2, 256"); p("s_cbranch_scc1 K_END")
    if STAMP: p("s_memrealtime s[62:63]")
    p("s_lshr_b32 s%d, s2, 2" % sT0); p("s_and_b32 s%d, s%d, 1" % (sU1, sT0))
    if OPT.get("flipv", 0): p("s_xor_b32 s%d, s%d, 1" % (sU1, sU1))
    p("s_lshl_b32 s%d, s%d, 3" % (sT0, sU1)); p("s_add_u32 s%d, s%d, 24" % (sT0, sT0))
    p("s_load_dwordx2 s[%d:%d], s[0:1], s%d" % (R_W1, R_W1 + 1, sT0))
    for r, off in ((R_CKV, 8), (R_WS, 96), (R_X, 0), (R_WQ, 16), (R_WO, 40), (R_WG, 56), (R_WU, 64), (R_WD, 72), (R_OUT, 80), (R_DBG, 88)):
        p("s_load_dwordx2 s[%d:%d], s[0:1], %d" % (r, r + 1, off))
    for r, n in ((R_W1, 4194304), (R_CKV, 2097152), (R_WS, WS_BYTES), (R_X, 2097152), (R_WQ, 4194304), (R_WO, 4194304), (R_WG, 512 * 3584),
                 (R_WU, 512 * 3584), (R_WD, 1792 * 1024), (R_OUT, 2097152), (R_DBG, 256)):
        p("s_mov_b32 s%d, 0x%x" % (r + 2, n)); p("s_mov_b32 s%d, 0x00020000" % (r + 3))
    L, A, B, C = 96, 97, 98, 99
    p("v_lshrrev_b32 v1, 6, v0"); p("v_and_b32 v%d, 63, v0" % L)
    p("v_readfirstlane_b32 s%d, v1" % sWAVE, note="=wave")
    p("s_lshr_b32 s%d, s2, 3" % sIDX); p("s_and_b32 s%d, s2, 7" % sX8)
    p("v_lshlrev_b32 v%d, 4, v%d" % (VL16, L)); p("v_lshlrev_b32 v%d, 7, v%d" % (VL128, L))
    p("v_cmp_ne_u32 vcc, 0, v%d" % L); p("v_mov_b32 v%d, 0" % VONE); p("v_mov_b32 v%d, 0x40000000" % A)
    p("v_cndmask_b32 v%d, v%d, v%d, vcc" % (VONE, VONE, A))
    p("v_bfe_u32 v%d, v%d, 1, 2" % (A, L)); p("v_bfe_u32 v%d, v%d, 4, 1" % (B, L)); p("v_xor_b32 v%d, v%d, v%d" % (A, A, B))
    p("s_and_b32 s%d, s%d, 1" % (sT0, sWAVE)); p("s_lshl_b32 s%d, s%d, 1" % (sT0, sT0)); p("v_xor_b32 v%d, s%d, v%d" % (A, sT0, A))
    p("v_and_b32 v%d, 1, v%d" % (B, L)); p("v_lshlrev_b32 v%d, 4, v%d" % (B, B)); p("v_lshl_add_u32 v%d, v%d, 5, v%d" % (A, A, B))
    p("v_lshrrev_b32 v%d, 3, v%d" % (B, L)); p("s_lshl_b32 s%d, s%d, 3" % (sT0, sWAVE)); p("v_add_u32 v%d, s%d, v%d" % (B, sT0, B))
    p("v_lshl_add_u32 v%d, v%d, 13, v%d" % (VD8, B, A))
    p("v_mul_u32_u24 v%d, 3584, v%d" % (B, B)); p("v_add_u32 v%d, v%d, v%d" % (VDG, B, A))
    p("s_and_b32 s%d, s2, 1" % sT0); p("s_lshl_b32 s%d, s%d, 2" % (sT0, sT0)); p("s_and_b32 s%d, s%d, 3" % (sT1, sIDX))
    p("s_add_u32 s%d, s%d, s%d" % (sT0, sT0, sT1)); p("s_lshl_b32 s%d, s%d, 3" % (sT0, sT0)); p("s_add_u32 s%d, s%d, s%d" % (sO1B, sT0, sWAVE))
    p("v_lshrrev_b32 v%d, 3, v%d" % (A, L)); p("v_lshlrev_b32 v%d, 10, v%d" % (A, A)); p("s_lshl_b32 s%d, s%d, 15" % (sT0, sO1B)); p("v_add_u32 v%d, s%d, v%d" % (A, sT0, A))
    p("v_lshrrev_b32 v%d, 4, v%d" % (B, L)); p("v_and_b32 v%d, 7, v%d" % (C, L)); p("v_xor_b32 v%d, v%d, v%d" % (B, B, C))
    p("v_lshl_add_u32 v%d, v%d, 4, v%d" % (VDT, B, A)); p("v_xor_b32 v%d, 4, v%d" % (B, B)); p("v_lshl_add_u32 v%d, v%d, 4, v%d" % (VDT + 1, B, A))
    p("s_lshl_b32 s%d, s%d, 12" % (sLT, sWAVE)); p("s_add_u32 s%d, s%d, 65536" % (sLT, sLT)); p("s_lshl_b32 s%d, s%d, 10" % (sLW, sWAVE))
    p("s_lshr_b32 s%d, s%d, 2" % (sT0, sIDX)); p("s_lshl_b32 s%d, s%d, 1" % (sT1, sT1)); p("s_add_u32 s%d, s%d, s%d" % (sT1, sT1, sT0))
    if not OPT.get("rot", 1): p("s_mov_b32 s%d, 0" % sT1)
    if OPT.get("rot", 1) == 2: p("s_mov_b32 s%d, s%d" % (sT1, sT0))
    if OPT.get("rot", 1) == 3: p("s_sub_u32 s%d, s%d, s%d" % (sT1, sT1, sT0))
    p("s_and_b32 s%d, s2, 2" % sT2); p("s_lshl_b32 s%d, s%d, 2" % (sT2, sT2)); p("s_add_u32 s%d, s%d, s%d" % (sT2, sT2, sT0))
    p("s_lshl_b32 s%d, s%d, 20" % (sO1, sT2)); p("s_lshl_b32 s%d, s%d, 9" % (sT2, sT2))
    for c in range(8):
        hy = OPT.get("hy", 0)
        if hy and c < hy: p("s_mov_b32 s%d, %d" % (sT0, c))
        elif hy:
            if c == hy:
                p("s_and_b32 s%d, s%d, 7" % (sT1, sT1)); p("s_sub_u32 s%d, s%d, %d" % (sT0, sT1, 8 - hy)); p("s_min_u32 s%d, s%d, s%d" % (sT1, sT1, sT0))
            p("s_add_u32 s%d, s%d, %d" % (sT0, sT1, c - hy)); p("s_sub_u32 s%d, s%d, %d" % (sT3, sT0, 8 - hy)); p("s_min_u32 s%d, s%d, s%d" % (sT0, sT0, sT3))
            p("s_add_u32 s%d, s%d, %d" % (sT0, sT0, hy))
        else:
            p("s_add_u32 s%d, s%d, %d" % (sT0, sT1, c)); p("s_and_b32 s%d, s%d, 7" % (sT0, sT0))
        p("s_lshl_b32 s%d, s%d, 7" % (sTAB + c, sT0)); p("s_lshl_b32 s%d, s%d, 19" % (sT0, sT0)); p("s_add_u32 s%d, s%d, s%d" % (sTAB + 8 + c, sT0, sT2))
    p("s_waitcnt lgkmcnt(0)")

def setup2(p):
    L, A, B, C = 96, 97, 98, 99
    p("v_bfe_u32 v%d, v%d, 2, 2" % (A, L)); p("v_lshrrev_b32 v%d, 4, v%d" % (B, L))
    p("v_lshl_add_u32 v%d, v%d, 3, v%d" % (C, B, A)); p("v_lshlrev_b32 v%d, 7, v%d" % (C, C))
    p("v_and_b32 v100, 3, v%d" % L); p("v_lshl_add_u32 v%d, v100, 3, v%d" % (C, C))
    p("v_bfe_u32 v%d, v%d, 3, 2" % (A, L))
    for b in range(4):
        p("v_xor_b32 v100, %d, v%d" % (b, A)); p("v_lshl_add_u32 v%d, v100, 5, v%d" % (VWR + b, C))
    p("v_and_b32 v%d, 15, v%d" % (A, L)); p("v_bfe_u32 v%d, v%d, 1, 3" % (B, L)); p("v_lshrrev_b32 v%d, 4, v%d" % (C, L))
    p("v_xor_b32 v%d, v%d, v%d" % (B, B, C)); p("v_lshlrev_b32 v%d, 4, v%d" % (B, B)); p("v_lshl_add_u32 v%d, v%d, 7, v%d" % (A, A, B))
    p("v_add_u32 v%d, s%d, v%d" % (VTA, sLT, A)); p("v_xor_b32 v%d, 64, v%d" % (VTA + 1, VTA))
    p("s_lshl_b32 s%d, s%d, 24" % (sT0, sU1)); p("s_add_u32 s%d, s%d, s%d" % (sO1, sO1, sT0)); p("s_add_u32 s%d, s%d, 0x%x" % (sO1, sO1, WS_K))
    p("s_lshl_b32 s%d, s%d, 13" % (sT0, sO1B)); p("s_add_u32 s%d, s%d, s%d" % (sO1, sO1, sT0)); p("s_add_u32 s%d, s%d, 4096" % (sO1B, sO1))
    p("s_lshl_b32 s%d, s2, 3" % sLNROW); p("s_add_u32 s%d, s%d, s%d" % (sLNROW, sLNROW, sWAVE))
    p("s_lshl_b32 s%d, s%d, 2" % (sHEAD, sX8)); p("s_and_b32 s%d, s%d, 3" % (sT0, sIDX)); p("s_add_u32 s%d, s%d, s%d" % (sHEAD, sHEAD, sT0))
    p("s_and_b32 s%d, s%d, 3" % (sS4, sWAVE))
    p("s_and_b32 s%d, s%d, 28" % (sT0, sIDX))
    p("s_add_u32 s%d, s%d, 3" % (sTB, sT0)); p("s_sub_u32 s%d, s%d, s%d" % (sTB, sTB, sS4))
    p("s_sub_u32 s%d, 60, s%d" % (sT0, sT0)); p("s_add_u32 s%d, s%d, s%d" % (sT1, sT0, sS4))
    p("s_cmp_ge_u32 s%d, 4" % sWAVE); p("s_cselect_b32 s%d, s%d, s%d" % (sTB, sT1, sTB))
    p("s_add_u32 s%d, s%d, 3" % (sLAST, sT0))
    p("s_lshl_b32 s%d, s%d, 7" % (sF0, sHEAD)); p("s_lshl_b32 s%d, s%d, 6" % (sT0, sHEAD)); p("s_add_u32 s%d, s%d, 1536" % (sT0, sT0))
    p("s_cmp_ge_u32 s%d, 24" % sHEAD); p("s_cselect_b32 s%d, s%d, s%d" % (sF0, sT0, sF0))
    p("s_lshl_b32 s%d, s%d, 8" % (sQC, sHEAD))
    p("s_lshl_b32 s%d, s%d, 15" % (sXN, sTB)); p("s_add_u32 s%d, s%d, 0x%x" % (sXN, sXN, WS_XN))
    p("s_mul_i32 s%d, s%d, %d" % (sCTX, sTB, 368 * 1024)); p("s_add_u32 s%d, s%d, 0x%x" % (sCTX, sCTX, WS_CH))
    p("s_lshl_b32 s%d, s%d, 5" % (sHO, sF0)); p("s_add_u32 s%d, s%d, s%d" % (sHO, sHO, sCTX)); p("s_add_u32 s%d, s%d, %d" % (sHO, sHO, 256 * 1024))
    p("s_add_u32 s%d, s%d, 2048" % (sHO2, sHO)); p("s_cmp_ge_u32 s%d, 24" % sHEAD); p("s_cselect_b32 s%d, 0x%x, s%d" % (sHO2, OOB, sHO2))
    p("s_lshl_b32 s%d, s%d, 13" % (sT0, sHEAD)); p("s_add_u32 s%d, s%d, s%d" % (sCTX, sCTX, sT0))
    p("s_lshl_b32 s%d, s%d, 19" % (sHB, sHEAD))
    p("s_and_b32 s%d, s%d, 3" % (sRO2, sIDX)); p("s_lshl_b32 s%d, s%d, 1" % (sRO2, sRO2)); p("s_lshr_b32 s%d, s%d, 2" % (sT0, sIDX))
    p("s_add_u32 s%d, s%d, s%d" % (sRO2, sRO2, sT0)); p("s_and_b32 s%d, s%d, 7" % (sRO2, sRO2))
    if not OPT.get("rot2", 1): p("s_mov_b32 s%d, 0" % sRO2)
    if OPT.get("rot2", 1) == 2: p("s_lshr_b32 s%d, s%d, 2" % (sRO2, sIDX))
    if OPT.get("rot2", 1) == 3: p("s_and_b32 s%d, s%d, 3" % (sRO2, sIDX)); p("s_lshl_b32 s%d, s%d, 1" % (sRO2, sRO2))
    p("s_lshr_b32 s%d, s%d, 2" % (sROH, sIDX)); p("s_add_u32 s%d, s%d, s%d" % (sROH, sROH, sIDX))
    if STAMP:
        p("s_lshl_b32 s99, s2, 3"); p("s_add_u32 s99, s99, s%d" % sWAVE); p("s_lshl_b32 s99, s99, 10"); p("s_add_u32 s99, s99, 0x6000000")

WS_STAT = 0x5100000
def ln_list_a():
    q = Rec(); T0, T1, T2, XR, F = VPOLL, 98, 99, 100, 104
    for j in range(4):
        q("v_lshlrev_b32 v%d, 16, v%d" % (F + 2 * j, XR + j)); q("v_and_b32 v%d, 0xffff0000, v%d" % (F + 2 * j + 1, XR + j))
    q("v_and_b32 v%d, 0x70, v%d" % (T1, VL16)); q("v_lshlrev_b32 v%d, 6, v%d" % (T1, T1)); q("v_lshrrev_b32 v%d, 7, v%d" % (T2, VL16))
    q("v_lshl_add_u32 v%d, v%d, 4, v%d" % (T1, T2, T1))
    q("s_lshl_b32 s%d, s2, 13" % sSRC); q("s_lshl_b32 s%d, s%d, 7" % (sDST, sWAVE)); q("s_add_u32 s%d, s%d, s%d" % (sSRC, sSRC, sDST))
    q("buffer_load_dwordx4 %s, v%d, %s, s%d offen" % (vr(XR), T1, sr(R_X), sSRC))
    q("v_add_f32 v%d, v%d, v%d" % (T0, F, F + 1))
    for j in range(2, 8): q("v_add_f32 v%d, v%d, v%d" % (T0, T0, F + j))
    wave_sum(q, T0)
    q("s_nop 0"); q("v_readlane_b32 s%d, v%d, 63" % (sSRC, T0))
    q("v_mov_b32 v%d, 0x3b000000" % T1); q("s_nop 0"); q("v_mul_f32 v%d, s%d, v%d" % (T1, sSRC, T1))
    q("v_sub_f32 v%d, v%d, v%d" % (T2, F, T1)); q("v_mul_f32 v%d, v%d, v%d" % (T0, T2, T2))
    for j in range(1, 8):
        q("v_sub_f32 v%d, v%d, v%d" % (T2, F + j, T1)); q("v_fmac_f32 v%d, v%d, v%d" % (T0, T2, T2))
    wave_sum(q, T0)
    q("s_nop 0"); q("v_readlane_b32 s%d, v%d, 63" % (sSRC, T0))
    q("v_mov_b32 v%d, 0x3b000000" % T2); q("s_nop 0"); q("v_mul_f32 v%d, s%d, v%d" % (T2, sSRC, T2))
    q("v_cvt_pk_bf16_f32 v%d, v%d, v%d" % (T0, T1, T2))
    q("v_lshlrev_b32 v%d, 16, v%d" % (T1, T0)); q("v_and_b32 v%d, 0xffff0000, v%d" % (T2, T0))
    q("v_add_f32 v%d, 0x3727c5ac, v%d" % (T2, T2))
    q("v_cvt_pk_bf16_f32 v%d, v%d, v%d" % (T2, T2, T2)); q("v_lshlrev_b32 v%d, 16, v%d" % (T2, T2))
    q("v_sqrt_f32 v%d, v%d" % (T2, T2)); q("s_lshl_b32 s%d, s%d, 3" % (sSRC, sLNROW))
    q("v_cvt_pk_bf16_f32 v%d, v%d, v%d" % (T2, T2, T2)); q("v_lshlrev_b32 v%d, 16, v%d" % (T2, T2))
    q("s_add_u32 s%d, s%d, 0x%x" % (sSRC, sSRC, WS_STAT))
    L = list(q.l)
    L.append(("buffer_store_dwordx2 v[%d:%d], v%d, %s, s%d offen sc1" % (T1, T2, VONE, sr(R_WS), sSRC), "LS"))
    return L
def ln_list_b0():
    return ["v_and_b32 v104, 0x70, v%d" % VL16, "v_lshrrev_b32 v104, 1, v104", "s_lshl_b32 s%d, s2, 6" % sSRC, "s_add_u32 s%d, s%d, 0x%x" % (sSRC, sSRC, WS_STAT),
            "buffer_load_dwordx2 v[98:99], v104, %s, s%d offen sc1" % (sr(R_WS), sSRC)]
def ln_list_b():
    q = Rec(); M, SD, XR, F, R, T = 98, 99, 100, 104, VSP, VPOLL
    q("v_rcp_f32 v%d, v%d" % (R, SD))
    for j in range(4):
        q("v_lshlrev_b32 v%d, 16, v%d" % (F + 2 * j, XR + j)); q("v_and_b32 v%d, 0xffff0000, v%d" % (F + 2 * j + 1, XR + j))
    for j in range(8): q("v_sub_f32 v%d, v%d, v%d" % (F + j, F + j, M))
    for j in range(4): q("v_cvt_pk_bf16_f32 v%d, v%d, v%d" % (XR + j, F + 2 * j, F + 2 * j + 1))
    for j in range(4):
        q("v_lshlrev_b32 v%d, 16, v%d" % (F + 2 * j, XR + j)); q("v_and_b32 v%d, 0xffff0000, v%d" % (F + 2 * j + 1, XR + j))
    for j in range(8):
        q("v_mul_f32 v%d, v%d, v%d" % (T, F + j, R)); q("v_fma_f32 v%d, -v%d, v%d, v%d" % (F + j, T, SD, F + j))
        q("v_fma_f32 v%d, v%d, v%d, v%d" % (F + j, F + j, R, T))
    for j in range(4): q("v_cvt_pk_bf16_f32 v%d, v%d, v%d" % (XR + j, F + 2 * j, F + 2 * j + 1))
    q("v_and_b32 v%d, 0x200, v%d" % (T, VL16)); q("v_lshlrev_b32 v%d, 2, v%d" % (T, T))
    q("v_and_b32 v%d, 0x180, v%d" % (R, VL16)); q("v_lshl_add_u32 v%d, v%d, 1, v%d" % (T, R, T))
    q("v_and_b32 v%d, 0x70, v%d" % (R, VL16)); q("v_add_u32 v%d, v%d, v%d" % (T, T, R))
    q("s_lshr_b32 s%d, s2, 2" % sSRC); q("s_lshl_b32 s%d, s%d, 15" % (sSRC, sSRC))
    q("s_and_b32 s%d, s2, 1" % sDST); q("s_lshl_b32 s%d, s%d, 7" % (sDST, sDST)); q("s_add_u32 s%d, s%d, s%d" % (sSRC, sSRC, sDST))
    q("s_and_b32 s%d, s2, 2" % sDST); q("s_lshl_b32 s%d, s%d, 9" % (sDST, sDST)); q("s_add_u32 s%d, s%d, s%d" % (sSRC, sSRC, sDST))
    q("s_lshl_b32 s%d, s%d, 12" % (sDST, sWAVE)); q("s_add_u32 s%d, s%d, s%d" % (sSRC, sSRC, sDST))
    L = list(q.l)
    L.append(("buffer_store_dwordx4 %s, v%d, %s, s%d offen sc1" % (vr(XR), T, sr(R_WS), sSRC), "LN"))
    return L

UB = [(u % 8) * 8192 for u in range(32)] + [16384 * x for x in (4, 5, 6, 7, 8, 9, 0, 1, 2, 3, 4, 5, 6, 7, 8, 9)]
def p12(p):
    setup(p)
    toks = {}
    def run(lst):
        for it in lst:
            if isinstance(it, tuple): emit_tagged(p, toks, it[0], it[1])
            else: p(it)
    def wdma(s):
        t = "W%d" % s; b = UB[s]
        if s < 32:
            ps, c = divmod(s, 8); so = "s%d" % (sTAB + 8 + c); L = [("s_nop 0", None)]
            if ps: L = [("s_add_u32 s%d, %s, %d" % (sT2, so, ps * 128), None)]; so = "s%d" % sT2
            return [("s_add_u32 m0, s%d, %d" % (sLW, b), "m0:" + t)] + L + [("buffer_load_dwordx4 v%d, %s, %s offen lds" % (VD8, sr(R_W1), so), t)]
        elif s < 40:
            L = rot8(sT2, s - 32, "s_mul_i32 s%d, s%d, %d" % (sT2, sT2, 64 * 3584), sF0); so = "s%d" % sT2
            rs, v1, rs2, off2, m2 = R_WG, VDG, R_WU, 0, 8192
        else:
            L = rot8(sT2, s - 40, "s_lshl_b32 s%d, s%d, 19" % (sT2, sT2), sQC); so = "s%d" % sT2
            rs, v1, rs2, off2, m2 = R_WQ, VD8, R_WQ, 128, 8192 - 128
        return [("s_add_u32 m0, s%d, %d" % (sLW, b), "m0:" + t)] + L + [
            ("buffer_load_dwordx4 v%d, %s, %s offen lds" % (v1, sr(rs), so), t),
            ("s_add_u32 m0, s%d, %d" % (sLW, b + m2), "m0:" + t), ("s_nop 0", None),
            ("buffer_load_dwordx4 v%d, %s, %s offen offset:%d lds" % (v1, sr(rs2), so, off2), t)]
    def tdma(c):
        t = "T%d" % c
        L = [("s_add_u32 m0, s%d, %d" % (sLT, (c % 3) * 32768), "m0:" + t), ("s_nop 0", None)]
        for q in range(4):
            so = "s%d" % (sTAB + c)
            if q: L.append(("s_add_u32 s%d, %s, %d" % (sT2, so, q * 7168), None)); so = "s%d" % sT2
            L.append(("buffer_load_dwordx4 v%d, %s, %s offen offset:%d lds" % (VDT + (q & 1), sr(R_CKV), so, q * 1024), t))
        return L
    if STAMP: p("s_memrealtime s[64:65]"); p("s_waitcnt lgkmcnt(0)"); p("v_mov_b32 v110, s62"); p("v_mov_b32 v111, s64")
    run(wdma(0)); run(tdma(0)); run(wdma(1)); p("s_barrier"); run(tdma(1))
    if not OPT.get("lazy", 0): run(wdma(2)); run(tdma(2)); run(wdma(3))
    if OPT.get("cpf", 0):
        p("s_cmp_lg_u32 s%d, 7" % sWAVE); p("s_cbranch_scc1 K_NOCPF")
        p("s_getpc_b64 s[100:101]")
        p("s_and_b32 s%d, s%d, 7" % (sT0, sIDX)); p("s_lshl_b32 s%d, s%d, 13" % (sT0, sT0)); p("v_add_u32 v%d, s%d, v%d" % (VSP, sT0, VL128))
        p("v_min_u32 v%d, 0x%x, v%d" % (VSP, OPT.get("reach", 0x1000), VSP))
        cond(p, "global_load_dword v%d, v%d, s[100:101]" % (VDUM, VSP))
        p.label("K_CPFREF")
        p.label("K_NOCPF")
    setup2(p)
    if STAMP:
        p("buffer_store_dwordx2 v[110:111], v%d, %s, s99 offen offset:120" % (VONE, sr(R_WS)), note="diag"); p.vq.pop()
    stamp(p, 0)
    items = [(u, [(0, c, 4 * ((u >> 3) & 1) + c) for c in range(4)]) for u in range(32)]
    items += [(32, GE), (33, GE), (32, GF), (33, GF)] + [(s, g) for s in range(34, 38) for g in (GE, GF)]
    items += [(38, GE), (39, GE), (38, GF), (39, GF), (40, XG), (41, XG), (40, YG), (41, YG)] + [(s, g) for s in range(42, 48) for g in (XG, YG)]
    prev = {}
    for s in range(48):
        sz = 8192 if s < 32 else 16384
        ov = [q for q in range(s) if UB[q] < UB[s] + sz and UB[s] < UB[q] + (8192 if q < 32 else 16384)]
        prev[s] = ov[-2:]
    g0 = OPT.get("g0", 304)
    minbar = {32 + i: g0 + OPT.get('gs', 32) * i for i in range(6)}
    MERGE = 576
    st = None
    for var in ("K", "V"):
        if var == "K":
            p("s_cmp_lg_u32 s%d, 0" % sU1); p("s_cbranch_scc1 P1_V"); st = (list(p.lq), list(p.vq), {k: list(v) for k, v in toks.items()})
        else:
            p.label("P1_V"); p.lq, p.vq = list(st[0]), list(st[1]); toks.clear(); toks.update({k: list(v) for k, v in st[2].items()})
        def mf(sl, kk, at, th, fr):
            c = sl % 8; t = treg(2 * c + kk, th); t = "a[%d:%d]" % (t, t + 3)
            acc = vr(8 * at + 4 * th); cc = "0" if (c == 0 and kk == 0) else acc
            if var == "V" and sl < 32: return "%s %s, %s, %s, %s" % (MF, acc, t, vr(fr), cc)
            return "%s %s, %s, %s, %s" % (MF, acc, vr(fr), t, cc)
        sc = [1]
        def st_hook(p):
            stamp(p, sc[0]); sc[0] += 1
        ab = {bp: [st_hook] for bp in (16, 48, 112, 240, 304, 400, 496, 528, 624, 752, 816, 912, 1008)} if STAMP else {}
        ab.setdefault(176, []).append(signal(0)); ab.setdefault(880, []).append(signal(128))
        def wbl2(p):
            sk = p.newlabel("WB")
            p("s_cmp_lg_u32 s%d, 0" % sWAVE); p("s_cbranch_scc1 %s" % sk); cond(p, "buffer_wbl2 sc1"); p.label(sk)
        if OPT.get("wb", 0):
            for bp_ in ((720,) if OPT["wb"] == 1 else (400, 720)): ab.setdefault(bp_, []).append(wbl2)
            ab.setdefault(880, []).append(signal(64))
        else: ab.setdefault(OPT.get("c1s", 752), []).append(signal(64))
        ew = {80: ["LS"], 176: ["LN"], OPT.get("c1s", 752): ["ST1"], 880: ["STH"], 1008: ["KV"]}
        if OPT.get("wb", 0) == 2: ew[400] = ["ST1"]
        C0B, C1B = OPT.get("c0b", 368), OPT.get("c1b", 944)
        bb = {C0B: [poll_check(R_DBG, "0", 256, True)], C1B: [poll_check(R_DBG, "64", 256, True)]}
        S, pro, init, last_use = engine(toks, items, UB, mf, wdma, prev, minbar, range(8), 512, {b: 0 for b in range(4)},
                                        extra_wait=ew, after_bar=ab, before_bar=bb, maxnew=3)
        def tread(c):
            def f(p):
                p.wait_tok(toks["T%d" % c])
                for kk in range(2):
                    ad, o = VTA + kk, (c % 3) * 32768
                    if c % 3 == 2: p("v_add_u32 v%d, 0x10000, v%d" % (96 + kk, VTA + kk)); ad, o = 96 + kk, 0
                    for th in range(2):
                        t = treg(2 * c + kk, th); p("ds_read_b128 a[%d:%d], v%d offset:%d" % (t, t + 3, ad, o + th * 2048))
            return f
        if OPT.get("lazy", 0):
            S.group(0, wdma(2) + tdma(2) + wdma(3), per=3); S.group(16, wdma(4) + wdma(5), per=2)
        else: S.group(0, wdma(4)); S.group(0, wdma(5))
        for c in range(1, 8): S.put(16 * (c - 1) + 6, tread(c))
        S.group(10, tdma(3), per=2); S.group(16, wdma(6)); S.group(16, wdma(7))
        for c in range(4, 8): S.group(16 * (c - 3) + 10, tdma(c), per=2)
        X0 = OPT.get("x0", 1)
        S.spread(X0, ["s_lshl_b32 s%d, s%d, 10" % (sT3, sLNROW), "buffer_load_dwordx4 v[100:103], v%d, %s, s%d offen" % (VL16, sr(R_X), sT3)], per=6)
        S.spread(26, ["v_mov_b32 v104, 0", "s_lshl_b32 s%d, s2, 8" % sT3, "s_add_u32 s%d, s%d, 0x%x" % (sT3, sT3, WS_FLAG),
                      "v_lshrrev_b32 v106, 2, v%d" % VL16, "s_cmp_eq_u32 s%d, 0" % sWAVE,
                      "s_cselect_b32 s%d, s%d, 0x%x" % (sT3, sT3, OOB), ("buffer_store_dword v104, v106, %s, s%d offen sc1" % (sr(R_WS), sT3), "LN")], per=8)
        e = S.spread(28, ln_list_a(), per=3); assert e <= 64, e
        S.spread(80, ln_list_b0(), per=2)
        e = S.spread(100, ln_list_b(), per=3); assert e <= 134, e
        def cvt(grp, q):
            st0 = 96 + 4 * q
            if var == "K":
                kap, th = 2 * grp + (q >> 1), q & 1; src = [16 * kap + 4 * th, 16 * kap + 4 * th + 2, 16 * kap + 8 + 4 * th, 16 * kap + 10 + 4 * th]
            else:
                cb = 4 * grp + q; src = [8 * cb + 2 * j for j in range(4)]
            return ["v_cvt_pk_bf16_f32 v%d, v%d, v%d" % (st0 + j, src[j], src[j] + 1) for j in range(4)]
        def sto(grp, q):
            if OPT.get("nost", 0): return ("s_nop 0", None)
            return ("buffer_store_dwordx4 %s, v%d, %s, s%d offen offset:%d%s" % (vr(96 + 4 * q), VL16, sr(R_WS), sO1B if grp else sO1, q * 1024, "" if OPT.get("wb", 0) else " sc1"), "ST1")
        for ps in range(3):
            for q in range(4):
                t0 = 128 * (ps + 1) + 8 + (28 if ps < 2 else OPT.get("s2", 12)) * q
                S.spread(t0, cvt(ps & 1, q)); S.put(t0 + 6, *sto(ps & 1, q))
        S.put(250, "s_add_u32 s%d, s%d, 0x80000" % (sO1, sO1)); S.put(378, "s_add_u32 s%d, s%d, 0x80000" % (sO1B, sO1B))
        S.spread(522, sum([cvt(1, q) for q in range(4)], []))
        for q in range(4): S.put(OPT.get("fb", 660) + OPT.get("fs", 20) * q, *sto(1, q))
        S.put(C0B - 24, poll_issue(R_DBG, "0"))
        def stag(f):
            def g(lo):
                def h(p):
                    sk = p.newlabel("SK")
                    p("s_cmp_%s_u32 s%d, 4" % ("ge" if lo else "lt", sWAVE)); p("s_cbranch_scc1 %s" % sk); f(p); p.label(sk)
                return h
            return g(True), g(False)
        def pf_xn(t):
            def f(p):
                p("s_lshl_b32 s%d, s%d, 16" % (sT1, sIDX)); p("s_lshl_b32 s%d, s%d, 13" % (sT0, sS4)); p("s_add_u32 s%d, s%d, s%d" % (sT0, sT1, sT0))
                cond(p, "buffer_load_dword v%d, v%d, %s, s%d offen offset:0" % (VDUM, VL128, sr(R_WS), sT0)) if t == 0 else (
                    p("s_add_u32 s%d, s%d, 32768" % (sT0, sT0)), cond(p, "buffer_load_dword v%d, v%d, %s, s%d offen" % (VDUM, VL128, sr(R_WS), sT0)))
            return f
        def pf_kv(t):
            def f(p):
                p("v_and_b32 v%d, 0x380, v%d" % (VSP, VL128)); p("v_bfe_u32 v%d, v%d, 7, 2" % (VPOLL, VL16)); p("v_lshl_add_u32 v%d, v%d, 13, v%d" % (VSP, VPOLL, VSP))
                p("v_lshrrev_b32 v%d, 9, v%d" % (VPOLL, VL16)); p("v_lshl_add_u32 v%d, v%d, 24, v%d" % (VSP, VPOLL, VSP))
                p("s_lshl_b32 s%d, s%d, 15" % (sT0, sWAVE)); p("s_add_u32 s%d, s%d, s%d" % (sT0, sT0, sHB)); p("s_and_b32 s%d, s%d, 28" % (sT1, sIDX)); p("s_lshl_b32 s%d, s%d, 8" % (sT1, sT1))
                p("s_add_u32 s%d, s%d, s%d" % (sT0, sT0, sT1)); p("s_add_u32 s%d, s%d, 0x%x" % (sT0, sT0, WS_K + t * 262144))
                cond(p, "buffer_load_dword v%d, v%d, %s, s%d offen" % (VDUM, VSP, sr(R_WS), sT0))
            return f
        if OPT.get("pf", 0):
            S.put(C0B + 9, stag(pf_xn(0))[1]); S.put(C0B + 41, stag(pf_xn(1))[1])
        if OPT.get("pfw", 0): S.put(OPT["pfw"], pf_p2w)
        if OPT.get("gw", 0):
            a_, b_ = stag(global_warm); S.put(OPT["gw"], b_); S.put(OPT["gw"] + OPT.get("gw2", 32), a_)
        if OPT.get("pfx", 0):
            def pf_own(p):
                p("v_lshrrev_b32 v%d, 9, v%d" % (VSP, VL16)); p("v_add_u32 v%d, s%d, v%d" % (VSP, sRO2, VSP)); p("v_and_b32 v%d, 7, v%d" % (VSP, VSP))
                p("v_and_b32 v%d, 0xf80, v%d" % (VPOLL, VL128)); p("v_lshl_add_u32 v%d, v%d, 12, v%d" % (VSP, VSP, VPOLL))
                cond(p, "buffer_load_dword v%d, v%d, %s, s%d offen" % (VDUM, VSP, sr(R_WS), sXN))
            a_, b_ = stag(pf_own); S.put(C0B + OPT.get("pfx1", 12), b_); S.put(C0B + OPT.get("pfx2", 44), a_)
        if OPT.get("pfkv", 0):
            for t in range(2):
                a_, b_ = stag(pf_kv(t)); S.put(C1B + 8 + 40 * t, a_); S.put(C1B + 26 + 40 * t, b_)
        for c in range(8):
            L = rot8(sT3, c, "s_lshl_b32 s%d, s%d, 12" % (sT3, sT3), sXN)
            for kk in range(2):
                for th in range(2):
                    t = treg(2 * c + kk, th)
                    L.append("buffer_load_dwordx4 a[%d:%d], v%d, %s, s%d offen offset:%d sc1" % (t, t + 3, VL16, sr(R_WS), sT3, kk * 2048 + th * 1024))
            need = 512 + (16 * c if c < 2 else 32 * c)
            t0 = max(401 + 16 * c, need - OPT.get("xla", 100))
            if not OPT.get("noxn", 0): S.spread(t0, L[:-4], per=5); S.spread(t0 + 1, L[-4:], per=1, step=2)
        def swiglu(grp):
            r_ = []
            for th in range(2):
                st0 = 96 + 4 * th; E = 104
                g = [8 * (4 * grp + (j >> 2)) + 4 * th + (j & 3) for j in range(8)]; u = [x + 16 for x in g]
                for j in range(8): r_.append("v_mul_f32 v%d, 0xbfb8aa3b, v%d" % (E + j, g[j]))
                for j in range(8): r_.append("v_exp_f32 v%d, v%d" % (E + j, E + j))
                for j in range(8): r_.append("v_mul_f32 v%d, v%d, v%d" % (g[j], g[j], u[j]))
                for j in range(8): r_.append("v_add_f32 v%d, 1.0, v%d" % (E + j, E + j))
                for j in range(8): r_.append("v_rcp_f32 v%d, v%d" % (E + j, E + j))
                r_.append("s_nop 0")
                for j in range(8): r_.append("v_mul_f32 v%d, v%d, v%d" % (g[j], g[j], E + j))
                for j in range(4): r_.append("v_cvt_pk_bf16_f32 v%d, v%d, v%d" % (st0 + j, g[2 * j], g[2 * j + 1]))
                r_.append(("buffer_store_dwordx4 %s, v%d, %s, s%d offen offset:%d sc1" % (vr(st0), VL16, sr(R_WS), sHO2 if grp else sHO, th * 1024), "STH"))
            return r_
        e = S.spread(736 + 5, swiglu(0), per=4); assert e <= 768, e
        e = S.spread(768 + 5, swiglu(1), per=4); assert e <= 800, e
        S.spread(1008 + 5, qepi(0), per=5)
        S.spread(900, ["v_accvgpr_write_b32 a%d, 0" % r for r in range(64)], per=1)
        S.put(C1B - 14, poll_issue(R_DBG, "64"))
        kv = ["s_lshl_b32 s%d, s%d, 13" % (sT0, sWAVE), "s_add_u32 s%d, s%d, s%d" % (sT1, sHB, sT0), "s_add_u32 s%d, s%d, 0x%x" % (sT1, sT1, WS_K),
              "s_add_u32 s%d, s%d, 0x%x" % (sT3, sT1, WS_V - WS_K - 6 * 8192), "s_add_u32 s%d, s%d, %d" % (sSRC, sT0, 65536 - 6 * 8192),
              "s_cmp_ge_u32 s%d, 6" % sWAVE, "s_cselect_b32 s%d, s%d, s%d" % (sT1, sT3, sT1), "s_cselect_b32 s%d, s%d, s%d" % (sT0, sSRC, sT0)]
        S.spread(952, kv, per=8)
        kv = []
        for hf in range(2):
            kv += [("s_add_u32 m0, s%d, %d" % (sT0, hf * 4096), "m0:KV"), ("s_add_u32 s%d, s%d, %d" % (sT3, sT1, hf * 4096), None)]
            kv += [("buffer_load_dwordx4 v%d, %s, s%d offen offset:%d sc1 lds" % (VL16, sr(R_WS), sT3, j * 1024), "KV") for j in range(4)]
        assert max(S.busy) < 882, max(S.busy)
        LS0, LS1 = late_setup()
        e = S.spread(884, LS1, per=2); assert e <= 943, e
        S.spread(980, LS0, per=1)
        for f in range(OPT.get("la", 7)): S.put(1009 + 2 * f, "ds_read_b128 a[%d:%d], v%d offset:%d" % (64 + 4 * f, 67 + 4 * f, VKA, f * 1024), "A%d" % f)
        S.spread(953, kv, step=2)
        assert max(last_use[40], last_use[42]) < 944
        p.wait_tok(sum([toks["W%d" % s] for s in init], [])); p("s_barrier")
        tread(0)(p)
        run(pro)
        S.emit(p, toks, 0, MERGE)
        if var == "K": p("s_branch P2_M")
    p.label("P2_M")
    S.emit(p, toks, MERGE, None)
    stamp(p, 14)
    return toks

def late_setup():
    p = Rec()
    p("s_cmp_ge_u32 s%d, 2" % sS4)
    p("s_mov_b32 s%d, 0x%x" % (sSRC, WS_K + 6 * 8192)); p("s_cselect_b32 s%d, 0x%x, s%d" % (sSRC, WS_V, sSRC))
    p("s_mov_b32 s%d, 0x%x" % (sMAX, WS_K)); p("s_cselect_b32 s%d, 0x%x, s%d" % (sMAX, WS_V, sMAX))
    p("s_mov_b32 s%d, 0" % sRB); p("s_cselect_b32 s%d, 0x10000, s%d" % (sRB, sRB))
    p("s_mov_b32 s%d, %d" % (sDST, 6 * 8192)); p("s_cselect_b32 s%d, 0, s%d" % (sDST, sDST))

    p("s_lshl_b32 s%d, s%d, 13" % (sT0, sS4)); p("s_add_u32 s%d, s%d, s%d" % (sSRC, sSRC, sT0)); p("s_add_u32 s%d, s%d, s%d" % (sSRC, sSRC, sHB))
    p("s_add_u32 s%d, s%d, s%d" % (sDST, sDST, sT0))
    p("s_lshl_b32 s%d, s%d, 13" % (sT0, sLAST)); p("s_add_u32 s%d, s%d, s%d" % (sMAX, sMAX, sT0)); p("s_add_u32 s%d, s%d, s%d" % (sMAX, sMAX, sHB))
    nld = len(p.l)
    p4_setup(p)
    p("v_mov_b32 v%d, v%d" % (VKA, VL16)); p("v_add_u32 v%d, 16384, v%d" % (VKB, VL16)); p("v_mov_b32 v%d, v%d" % (VV, VL16))
    p("v_bfe_u32 v%d, v%d, 4, 4" % (VQM, VL16)); p("v_lshrrev_b32 v%d, 8, v%d" % (TM, VL16)); p("v_lshlrev_b32 v%d, 2, v%d" % (TM, TM))
    p("v_sub_u32 v%d, v%d, v%d" % (VQM, VQM, TM)); p("v_mov_b32 v%d, 0xff800000" % TM)
    for r in range(4): p("v_cmp_gt_i32 s[%d:%d], %d, v%d" % (sTAB + 2 * r, sTAB + 1 + 2 * r, r, VQM))
    p("v_mov_b32 v%d, 0" % LR[1][0]); p("v_mov_b32 v%d, 0" % LR[1][1])
    p("s_mov_b32 s%d, %s" % (sTHR, f32hex(THR))); p("s_max_u32 s%d, s%d, 2" % (sRING, sTB)); p("s_sub_u32 s%d, s%d, 2" % (sRING, sRING)); p("s_lshr_b32 s%d, s%d, 1" % (sRING, sRING))
    if not OPT.get("fast", 1): p("s_mov_b32 s%d, 0" % sRING)
    p("s_lshl_b32 s%d, s%d, 1" % (sUU, sRING)); p("s_add_u32 s%d, s%d, 1" % (sUU, sUU)); p("s_mov_b32 s%d, 0" % sPF)
    return p.l[:nld], p.l[nld:]

def global_warm(p):
    end = p.newlabel("GW")
    p("s_mov_b32 s%d, s%d" % (sT0, sLNROW))
    for rs, n in ((R_WG, 224), (R_WU, 224), (R_WQ, 512), (R_WD, 224), (R_WO, 512)):
        nx = p.newlabel("GW")
        p("s_cmp_ge_u32 s%d, %d" % (sT0, n)); p("s_cbranch_scc1 %s" % nx)
        p("s_lshl_b32 s%d, s%d, 13" % (sT0, sT0))
        cond(p, "buffer_load_dword v%d, v%d, %s, s%d offen" % (VDUM, VL128, sr(rs), sT0))
        p("s_branch %s" % end)
        p.label(nx); p("s_sub_u32 s%d, s%d, %d" % (sT0, sT0, n))
    p.label(end)

def pf_p2w(p):
    l1, l2, l3 = p.newlabel("PF"), p.newlabel("PF"), p.newlabel("PF")
    p("s_cmp_lt_u32 s%d, 4" % sWAVE); p("s_cbranch_scc1 %s" % l3)
    p("s_cmp_ge_u32 s%d, 2" % sS4); p("s_cbranch_scc1 %s" % l1)
    p("v_and_b32 v%d, 0x380, v%d" % (VSP, VL128)); p("v_lshrrev_b32 v%d, 7, v%d" % (VPOLL, VL16)); p("v_lshl_add_u32 v%d, v%d, 13, v%d" % (VSP, VPOLL, VSP))
    p("s_lshl_b32 s%d, s%d, 1" % (sT0, sIDX)); p("s_add_u32 s%d, s%d, s%d" % (sT0, sT0, sS4)); p("s_lshl_b32 s%d, s%d, 16" % (sT0, sT0))
    p("s_lshl_b32 s%d, s%d, 10" % (sT1, sX8)); p("s_add_u32 s%d, s%d, s%d" % (sT0, sT0, sT1))
    cond(p, "buffer_load_dword v%d, v%d, %s, s%d offen" % (VDUM, VSP, sr(R_WQ), sT0))
    p("s_branch %s" % l3)
    p.label(l1)
    p("v_and_b32 v%d, 0x180, v%d" % (VSP, VL128)); p("v_lshrrev_b32 v%d, 6, v%d" % (VPOLL, VL16)); p("v_mul_u32_u24 v%d, 3584, v%d" % (VPOLL, VPOLL))
    p("v_add_u32 v%d, v%d, v%d" % (VSP, VSP, VPOLL))
    p("s_mul_i32 s%d, s%d, %d" % (sT0, sIDX, 16 * 3584)); p("s_lshl_b32 s%d, s%d, 9" % (sT1, sX8)); p("s_lshl_b32 s%d, s%d, 8" % (sT3, sX8)); p("s_add_u32 s%d, s%d, 1536" % (sT3, sT3))
    p("s_cmp_ge_u32 s%d, 6" % sX8); p("s_cselect_b32 s%d, s%d, s%d" % (sT1, sT3, sT1)); p("s_add_u32 s%d, s%d, s%d" % (sT0, sT0, sT1))
    p("s_cmp_eq_u32 s%d, 3" % sS4); p("s_cbranch_scc1 %s" % l2)
    cond(p, "buffer_load_dword v%d, v%d, %s, s%d offen" % (VDUM, VSP, sr(R_WG), sT0))
    p("s_branch %s" % l3)
    p.label(l2)
    cond(p, "buffer_load_dword v%d, v%d, %s, s%d offen" % (VDUM, VSP, sr(R_WU), sT0))
    p.label(l3)

def qepi(grp):
    r = []
    for kap in (2 * grp, 2 * grp + 1):
        for j in range(16): r.append("v_mul_f32 v%d, %s, v%d" % (16 * kap + j, f32hex(QSCALE), 16 * kap + j))
        for th in range(2):
            b = 16 * kap + 4 * th
            for j, s_ in enumerate((b, b + 2, b + 8, b + 10)): r.append("v_cvt_pk_bf16_f32 v%d, v%d, v%d" % (b + j, s_, s_ + 1))
    return r

SREG = [[8 + (e & 7) + 16 * (e >> 3) for e in range(16)], [40 + (e & 7) + 16 * (e >> 3) for e in range(16)]]
CI, PB, E, LR, VKA, VKB, VV, VQM, TM = 64, (80, 88), 96, ((100, 101), (102, 103)), 104, 105, 106, 107, 108
def attention(p, toks0):
    AF = 64; LA = OPT.get("la", 7); KVSC = "sc1 " if OPT.get("kvsc", 1) else ""
    AFN = 8 if OPT.get("acc", 0) and LA > 7 else OPT.get("afn", 16)
    if OPT.get("acc", 0): AFN = 8
    fr = lambda j: "a[%d:%d]" % (AF + 4 * (j % AFN), AF + 4 * (j % AFN) + 3)
    O = lambda cb, qh: "a[%d:%d]" % (8 * cb + 4 * qh, 8 * cb + 4 * qh + 3)
    Q = lambda qh, kap: vr(16 * kap + 4 * qh)
    def dma_block():
        if OPT.get("nodma", 0): return
        p("s_min_u32 s%d, s%d, s%d" % (sT0, sSRC, sMAX)); p("s_and_b32 s%d, s%d, 0xffff" % (sT1, sDST)); p("s_add_u32 m0, s%d, s%d" % (sT1, sRB))
        p("s_add_u32 s%d, s%d, 4096" % (sT2, sT0))
        for j in range(4): cond(p, "buffer_load_dwordx4 v%d, %s, s%d offen offset:%d %slds" % (VL16, sr(R_WS), sT0, j * 1024, KVSC))
        p("s_add_u32 m0, m0, 4096"); p("s_add_u32 s%d, s%d, 16384" % (sSRC, sSRC))
        for j in range(4): cond(p, "buffer_load_dwordx4 v%d, %s, s%d offen offset:%d %slds" % (VL16, sr(R_WS), sT2, j * 1024, KVSC))
        p("s_add_u32 s%d, s%d, 16384" % (sDST, sDST))
    def touch():
        if not OPT.get("touch", 0): return
        p("s_add_u32 s%d, s%d, 32768" % (sT0, sSRC)); p("s_min_u32 s%d, s%d, s%d" % (sT0, sT0, sMAX)); p("s_add_u32 s%d, s%d, 16384" % (sSRC, sSRC))
        cond(p, "buffer_load_dword v%d, v%d, %s, s%d offen" % (VDUM, VL128, sr(R_WS), sT0))
    def dma_list():
        L = ["s_min_u32 s%d, s%d, s%d" % (sT0, sSRC, sMAX), "s_and_b32 s%d, s%d, 0xffff" % (sT1, sDST), "s_add_u32 m0, s%d, s%d" % (sT1, sRB), "s_add_u32 s%d, s%d, 4096" % (sT2, sT0)]
        L += [(lambda p, j=j: cond(p, "buffer_load_dwordx4 v%d, %s, s%d offen offset:%d %slds" % (VL16, sr(R_WS), sT0, j * 1024, KVSC))) for j in range(4)]
        L += ["s_add_u32 m0, m0, 4096", "s_add_u32 s%d, s%d, 16384" % (sSRC, sSRC)]
        L += [(lambda p, j=j: cond(p, "buffer_load_dwordx4 v%d, %s, s%d offen offset:%d %slds" % (VL16, sr(R_WS), sT2, j * 1024, KVSC))) for j in range(4)]
        L += ["s_add_u32 s%d, s%d, 16384" % (sDST, sDST)]
        return L
    def role(tag):
        p("s_cmp_ge_u32 s%d, 4" % sWAVE); p("s_cbranch_scc1 AT_RE%s" % tag)
        if tag == "0":
            p("s_cmp_lt_u32 s%d, 2" % sWAVE); p("s_cbranch_scc1 AT_R00"); dma_block(); p.label("AT_R00")
        dma_block()
        p.label("AT_RE%s" % tag)
    kread = lambda j, ad, off: ("ds_read_b128 %s, v%d offset:%d" % (fr(j), ad, off + j * 1024), "A%d" % j)
    vread = lambda j, off: ("ds_read_b128 %s, v%d offset:%d" % (fr(j), VV, off + (j - 8) * 1024), "A%d" % j)
    def maskprep(R=None):
        R = R or [CI + e for e in range(16)]
        for r in range(4):
            p("v_mov_b32 v%d, v%d" % (R[4 + r], TM))
            for e in (r, 12 + r): p("v_cndmask_b32 v%d, v%d, v%d, s[%d:%d]" % (R[e], R[e], TM, sTAB + 2 * r, sTAB + 1 + 2 * r))
        p("s_nop 1")
    def qk_slots(S, dst, zero=False):
        for j in range(16):
            kap, kh, qh = j >> 2, (j >> 1) & 1, j & 1; e0 = 8 * qh + 4 * kh
            S.add("%s %s, %s, %s, %s" % (MF, vr(dst[e0]), fr(j >> 1), Q(qh, kap), ("0" if zero else vr(CI + e0)) if kap == 0 else vr(dst[e0])))
    toks = {}
    def pairwait(S, nf):
        for f in range(0, nf, 2):
            S.s[2 * f]["pre"].append(lambda p, f=f: p.wait_tok(toks["A%d" % (f + 1)][-1]))
    def period(par, pv=True, fast=None):
        cur, nxt = SREG[par], SREG[1 - par]; koff = 0 if par else 8192
        S = Slots(); qk_slots(S, nxt)
        if pv:
            for j in range(16, 32):
                cb, qh = (j - 16) >> 1, j & 1
                S.add("%s %s, %s, %s, %s" % (MF, O(cb, qh), fr(j >> 1), vr(PB[1 - par] + 4 * qh), O(cb, qh)))
        n = len(S.s); nf = n // 2; k = n // 16
        for f in range(LA, nf): S.put(2 * (f - LA), *(kread(f, VKA, koff) if f < 8 else vread(f, koff)))
        for f in range(LA): S.put(2 * (nf - LA + f), *(kread(f, VKA, 8192) if par else kread(f, VKB, 0)))
        pairwait(S, nf)
        for e in range(16):
            qh = e >> 3; l = LR[par][qh]
            add = "v_add_f32 v%d, v%d, v%d" % (l, LR[1 - par][qh] if e % 8 == 0 else l, E + e % 4)
            pe = max(e - 1, 0) if pv else e
            sl = k * pe + k - 1
            if pv and e == 1: S.put(sl, "s_nop 0"); S.put(sl, add)
            else: S.put(k * pe, add)
            if e & 1: S.put(sl, "v_cvt_pk_bf16_f32 v%d, v%d, v%d" % (PB[par] + e // 2, E + (e - 1) % 4, E + e % 4))
            if e < 15: S.put(sl, "v_exp_f32 v%d, v%d" % (E + (e + 1) % 4, cur[e + 1]))
        if pv:
            S.put(30, "v_max_f32 v%d, v%d, v%d" % (TM + 1, LR[par][0], LR[par][1]))
            S.put(30, "v_cmp_lt_f32 vcc, s%d, v%d" % (sTHR, TM + 1))
        else: S.put(n - 1, "s_nop 7")
        S.put(n - 1, "v_exp_f32 v%d, v%d" % (E, nxt[0]))
        if fast and par:
            bp = OPT.get("abar", 8)
            S.put(1, "v_add_u32 v%d, 16384, v%d" % (VKB, VKA)); S.put(5, "v_and_b32 v%d, 0xffff, v%d" % (VKB, VKB))
            if fast == "A": S.put(bp, "s_waitcnt vmcnt(8)")
            S.put(bp, "s_barrier")
            if fast == "A" and not OPT.get("nodma", 0): S.spread(bp + 1, dma_list(), per=1)
        if fast and not par:
            S.put(17, "v_add_u32 v%d, 0x10000, v%d" % (VV, VKA)); S.put(21, "v_mov_b32 v%d, v%d" % (VKA, VKB))
            S.put(25, "s_sub_u32 s%d, s%d, 1" % (sRING, sRING)); S.put(29, "s_cmp_lg_u32 s%d, 0" % sRING)
        S.emit(p, toks)
    def rowred(op, a, b):
        for sw in ("v_permlane16_swap_b32", "v_permlane32_swap_b32"):
            p("v_mov_b32 v%d, v%d" % (b, a)); p("s_nop 1"); p("%s v%d, v%d" % (sw, b, a)); p("s_nop 1"); p("%s v%d, v%d, v%d" % (op, a, a, b))
    def rowmax(cur, qh, d, t):
        c = cur[8 * qh]
        p("v_max3_f32 v%d, v%d, v%d, v%d" % (d, c, c + 1, c + 2)); p("v_max3_f32 v%d, v%d, v%d, v%d" % (d, d, c + 3, c + 4))
        p("v_max3_f32 v%d, v%d, v%d, v%d" % (d, d, c + 5, c + 6)); p("v_max_f32 v%d, v%d, v%d" % (d, d, c + 7))
        rowred("v_max_f32", d, t)
    def fixup(par, back):
        cur, nxt = SREG[par], SREG[1 - par]
        p.nop(8)
        if STAMP and OPT.get("acc", 0):
            p("v_accvgpr_read_b32 v%d, a127" % VPOLL); p("s_nop 0"); p("v_add_u32 v%d, 1, v%d" % (VPOLL, VPOLL)); p("s_nop 0"); p("v_accvgpr_write_b32 a127, v%d" % VPOLL)
        for qh in range(2):
            D, Fc = TM + 1, TM + 2
            rowmax(cur, qh, D, Fc)
            p("v_ceil_f32 v%d, v%d" % (D, D)); p("v_max_f32 v%d, 0, v%d" % (D, D)); p("v_exp_f32 v%d, -v%d" % (Fc, D))
            for e in range(8 * qh, 8 * qh + 8):
                p("v_sub_f32 v%d, v%d, v%d" % (cur[e], cur[e], D)); p("v_sub_f32 v%d, v%d, v%d" % (nxt[e], nxt[e], D)); p("v_sub_f32 v%d, v%d, v%d" % (CI + e, CI + e, D))
            for cb in range(8):
                for r in range(4):
                    a = 8 * cb + 4 * qh + r
                    p("v_accvgpr_read_b32 v%d, a%d" % (E + r, a)); p("v_mul_f32 v%d, v%d, v%d" % (E + r, E + r, Fc)); p("v_accvgpr_write_b32 a%d, v%d" % (a, E + r))
            l = LR[par][qh]
            p("v_mul_f32 v%d, v%d, v%d" % (l, LR[1 - par][qh], Fc))
            for e in range(8 * qh, 8 * qh + 8, 2):
                p("v_exp_f32 v%d, v%d" % (E, cur[e])); p("v_exp_f32 v%d, v%d" % (E + 1, cur[e + 1])); p("s_nop 0")
                p("v_add_f32 v%d, v%d, v%d" % (l, l, E)); p("v_add_f32 v%d, v%d, v%d" % (l, l, E + 1))
                p("v_cvt_pk_bf16_f32 v%d, v%d, v%d" % (PB[par] + e // 2, E, E + 1))
        p("v_exp_f32 v%d, v%d" % (E, nxt[0]))
        p("s_cmp_eq_u32 s%d, 0" % sPF); p("s_cbranch_scc1 AT_B%d" % par)
        lb = p.newlabel("FXB")
        p("s_cmp_eq_u32 s%d, 2" % sPF); p("s_cbranch_scc1 %s" % lb)
        p("s_cmp_lg_u32 s%d, 0" % sRING); p("s_branch AT_FA_B%d" % par)
        p.label(lb)
        p("s_cmp_lg_u32 s%d, 0" % sRING); p("s_branch AT_FB_B%d" % par)
    for f in range(LA): toks["A%d" % f] = [toks0["A%d" % f][-1]]
    p.vq = []
    if STAMP and OPT.get("acc", 0):
        for i in range(8): p("v_accvgpr_write_b32 a%d, 0" % (120 + i))
        p("s_mov_b32 s98, s100")
    role("0")
    if OPT.get("pfkv2", 0):
        u0 = OPT.get("pfu0", 24)
        p("s_cmp_lt_u32 s%d, 16" % sIDX); p("s_cbranch_scc1 AT_NOPF")
        p("v_and_b32 v%d, 0x780, v%d" % (VSP, VL128)); p("v_bfe_u32 v%d, v%d, 8, 1" % (VPOLL, VL16)); p("v_lshl_add_u32 v%d, v%d, 13, v%d" % (VSP, VPOLL, VSP))
        p("v_lshrrev_b32 v%d, 9, v%d" % (VPOLL, VL16)); p("v_lshl_add_u32 v%d, v%d, 24, v%d" % (VSP, VPOLL, VSP))
        p("s_lshl_b32 s%d, s%d, 14" % (sT0, sWAVE)); p("s_add_u32 s%d, s%d, s%d" % (sT0, sT0, sHB)); p("s_and_b32 s%d, s%d, 12" % (sT1, sIDX)); p("s_lshl_b32 s%d, s%d, 9" % (sT1, sT1))
        p("s_add_u32 s%d, s%d, s%d" % (sT0, sT0, sT1)); p("s_add_u32 s%d, s%d, 0x%x" % (sT0, sT0, WS_K + u0 * 8192))
        for t in range((64 - u0 + 15) // 16):
            if u0 + 16 * (t + 1) > 64:
                p("s_cmp_ge_u32 s%d, %d" % (sWAVE, (64 - u0 - 16 * t) // 2)); p("s_cbranch_scc1 AT_NOPF")
            cond(p, "buffer_load_dword v%d, v%d, %s, s%d offen" % (VDUM, VSP, sr(R_WS), sT0))
            p("s_add_u32 s%d, s%d, 0x20000" % (sT0, sT0))
        p.label("AT_NOPF")
    S = Slots(); qk_slots(S, SREG[0], zero=True)
    for f in range(LA, 8): S.put(2 * (f - LA), *kread(f, VKA, 0))
    for f in range(LA): S.put(2 * (8 - LA + f), *kread(f, VKA, 8192))
    q1 = qepi(1)
    S.spread(0, q1[:24], per=4); S.spread(6, q1[24:], per=4)
    S.spread(12, ["v_xor_b32 v%d, %d, v%d" % (VWR + b_, 32 * b_, VTA) for b_ in range(4)], per=1)
    S.emit(p, toks)
    p.nop(6)
    p("s_cmp_lg_u32 s%d, 0" % sTB); p("s_cbranch_scc1 AT_NM0"); maskprep(SREG[0]); p.label("AT_NM0")
    for qh in range(2):
        rowmax(SREG[0], qh, E + 1, E + 2)
        for e in range(8 * qh, 8 * qh + 8): p("v_sub_f32 v%d, 0, v%d" % (CI + e, E + 1))
        for e in range(8 * qh, 8 * qh + 8): p("v_sub_f32 v%d, v%d, v%d" % (SREG[0][e], SREG[0][e], E + 1))
    p("v_exp_f32 v%d, v%d" % (E, SREG[0][0]))
    p("s_cmp_lg_u32 s%d, 1" % sTB); p("s_cbranch_scc1 AT_NM1"); maskprep(); p.label("AT_NM1")
    period(0, pv=False)
    sig0 = [sorted(e["regs"]) for e in p.lq]
    chk = lambda: [sorted(e["regs"]) for e in p.lq] == sig0
    lq0 = list(p.lq)
    stamp(p, 27); p.lq = list(lq0)
    p("s_cmp_eq_u32 s%d, 0" % sRING); p("s_cbranch_scc1 AT_STEPEND")
    p("v_add_u32 v%d, 0x10000, v%d" % (VV, VKA)); p("v_mov_b32 v%d, v%d" % (VKA, VKB))
    p("s_mov_b32 s%d, 2" % sPF)
    if OPT.get("prio", 0) == 1:
        p("s_cmp_lt_u32 s%d, 4" % sWAVE); p("s_cbranch_scc1 AT_NP"); p("s_setprio 1"); p.label("AT_NP")
    if OPT.get("prio", 0) == 2:
        p("s_sub_u32 s%d, 63, s%d" % (sT0, sLAST)); p("s_lshr_b32 s%d, s%d, 1" % (sT0, sT0)); p("s_add_u32 s%d, s%d, 2" % (sT0, sT0))
        p("s_min_u32 s%d, s%d, s%d" % (sT0, sT0, sRING)); p("s_sub_u32 s%d, s%d, s%d" % (sLNROW, sRING, sT0))
        p("s_cmp_ge_u32 s%d, 4" % sWAVE); p("s_cselect_b32 s%d, s%d, s%d" % (sRING, sT0, sRING))
    p("s_cmp_ge_u32 s%d, 4" % sWAVE); p("s_cbranch_scc1 AT_FB")
    p("s_mov_b32 s%d, 1" % sPF)
    for fa in ("A", "B"):
        p.lq = list(lq0)
        p.raw(".p2align 6") if fa == "B" else None
        p.label("AT_F%s" % fa)
        for par in (1, 0):
            period(par, fast=fa)
            p("s_cbranch_vccnz AT_FIX%d" % par)
            p.label("AT_F%s_B%d" % (fa, par))
            assert chk()
        p("s_cbranch_scc1 AT_F%s" % fa)
        if OPT.get("prio", 0) == 2 and fa == "B":
            p("s_mov_b32 s%d, s%d" % (sRING, sLNROW)); p("s_mov_b32 s%d, 0" % sLNROW); p("s_setprio 1")
            p("s_cmp_lg_u32 s%d, 0" % sRING); p("s_cbranch_scc1 AT_FB")
        p("s_mov_b32 s%d, 0" % sPF)
        stamp(p, 28); p.lq = list(lq0)
        p("s_branch AT_STEPEND2")
    p.lq = list(lq0)
    p.label("AT_STEPEND")
    p("v_add_u32 v%d, 0x10000, v%d" % (VV, VKA)); p("v_mov_b32 v%d, v%d" % (VKA, VKB))
    p.label("AT_STEPEND2")
    p("v_add_u32 v%d, 16384, v%d" % (VKB, VKA)); p("v_and_b32 v%d, 0xffff, v%d" % (VKB, VKB))
    acc_stamp(p, 0)
    p("s_waitcnt vmcnt(8)")
    acc_stamp(p, 1)
    p("s_barrier")
    acc_stamp(p, 2)
    if OPT.get("hm", 0):
        p("s_cmp_lg_u32 s%d, 0" % sHMB); p("s_cbranch_scc1 AT_GPP")
        cond(p, poll_issue(R_DBG, "128")); p("s_branch AT_GPQ")
        p.label("AT_GPP"); cond(p, poll_issue(R_WS, "s%d" % sCF)); p.label("AT_GPQ")
    else: cond(p, poll_issue(R_DBG, "128"))
    role("1")
    acc_stamp(p, 3)
    lqs = {}
    for par in (1, 0):
        p("s_add_u32 s%d, s%d, 1" % (sUU, sUU)); p("s_cmp_ge_u32 s%d, s%d" % (sUU, sTB)); p("s_cbranch_scc1 AT_H%d" % par)
        p.label("AT_P%d" % par)
        lqs[par] = list(p.lq)
        period(par)
        p("s_cbranch_vccnz AT_FIX%d" % par)
        p.label("AT_B%d" % par)
        assert [sorted(e["regs"]) for e in p.lq] == sig0
    p("s_branch AT_STEPEND")
    for par in (1, 0):
        p.lq = list(lqs[par])
        p.label("AT_FIX%d" % par); fixup(par, "AT_B%d" % par)
        p.label("AT_H%d" % par)
        p("s_sub_u32 s%d, s%d, s%d" % (sT0, sUU, sTB)); p("s_cmp_eq_u32 s%d, 1" % sT0); p("s_cbranch_scc1 AT_N%d" % par)
        p("s_cmp_eq_u32 s%d, 2" % sT0); p("s_cbranch_scc1 AT_T%d" % par)
        maskprep(); p("s_branch AT_P%d" % par)
        p.label("AT_N%d" % par)
        p("s_waitcnt lgkmcnt(0)")
        cur = SREG[par]; off = 0 if par else 8192
        for f in range(8, 16): p(vread(f, off)[0])
        p("s_cmp_lt_u32 s%d, 4" % sWAVE); p("s_cbranch_scc1 AT_N%dA" % par)
        p("s_waitcnt vmcnt(0)")
        poll_check(R_DBG, "128", 256)(p)
        p.label("AT_N%dA" % par)
        S = Slots()
        for j in range(16, 32):
            cb, qh = (j - 16) >> 1, j & 1
            S.add("%s %s, %s, %s, %s" % (MF, O(cb, qh), fr(j >> 1), vr(PB[1 - par] + 4 * qh), O(cb, qh)))
        for e in range(16):
            qh = e >> 3; l = LR[par][qh]
            S.put(e, "v_add_f32 v%d, v%d, v%d" % (l, LR[1 - par][qh] if e % 8 == 0 else l, E + e % 4))
            if e & 1: S.put(e, "v_cvt_pk_bf16_f32 v%d, v%d, v%d" % (PB[par] + e // 2, E + (e - 1) % 4, E + e % 4))
            if e < 15: S.put(e, "v_exp_f32 v%d, v%d" % (E + (e + 1) % 4, cur[e + 1]))
        S.put(15, "v_max_f32 v%d, v%d, v%d" % (TM + 1, LR[par][0], LR[par][1])); S.put(15, "v_cmp_lt_f32 vcc, s%d, v%d" % (sTHR, TM + 1))
        def btl(r):
            def f(p):
                sk = p.newlabel("BT")
                p("s_cmp_lt_u32 s%d, 4" % sWAVE); p("s_cbranch_scc1 %s" % sk); p4_tld(p, FULL, r); p.vq = []; p.label(sk)
            return f
        S.put(OPT.get("bt0", 9), btl(0)); S.put(15, btl(1))
        S.emit(p, {})
        p("s_cbranch_vccnz AT_FIX%d" % par); p("s_branch AT_B%d" % par)
        p.label("AT_T%d" % par)
        p("s_waitcnt lgkmcnt(0)")
        off = 0 if par else 8192
        for f in range(8, 16): p(vread(f, off)[0])
        p("v_mov_b32 v%d, v%d" % (TM + 1, LR[1 - par][0])); p("v_mov_b32 v%d, v%d" % (TM + 2, LR[1 - par][1]))
        for j in range(16, 32):
            cb, qh = (j - 16) >> 1, j & 1
            p("%s %s, %s, %s, %s" % (MF, O(cb, qh), fr(j >> 1), vr(PB[1 - par] + 4 * qh), O(cb, qh)))
        p("s_branch AT_EPI")
    p.label("AT_EPI")
    p("s_cmp_lt_u32 s%d, 4" % sWAVE); p("s_cbranch_scc1 AT_EPI2")
    p("s_cmp_gt_u32 s%d, 5" % sWAVE); p("s_cbranch_scc1 AT_EPI1")
    p("s_barrier")
    p.label("AT_EPI1")
    if not OPT.get("hm", 0): p4_tld(p, FULL, 2); p.vq = []
    else:
        p("s_cmp_lg_u32 s%d, 0" % sHM); p("s_cbranch_scc1 AT_EPI1H")
        p4_tld(p, FULL, 2); p("s_branch AT_EPI2")
        p.label("AT_EPI1H")
        p("s_waitcnt vmcnt(0)")
        p("v_readfirstlane_b32 s%d, v%d" % (sT0, VPOLL), note="=val %d" % (8 if OPT.get("early_ok", 1) else 0)); p("s_nop 0")
        p("s_cmp_lt_u32 s%d, 8" % sT0); p("s_cbranch_scc1 AT_EPI2")
        p("s_mov_b32 s%d, 2" % sHMB)
        for r in range(3): p4_tld(p, CRUN, r)
        p.vq = []
    p.label("AT_EPI2")
    stamp(p, 29)
    for qh in range(2):
        rowred("v_add_f32", TM + 1 + qh, E)
    for qh in range(2):
        p("v_rcp_f32 v%d, v%d" % (E + 2 * qh, TM + 1 + qh)); p("v_rcp_f32 v%d, v%d" % (E + 2 * qh + 1, TM + 1 + qh))
    p("v_mov_b32 v%d, 1" % VSP)
    p("s_lshr_b32 s%d, s%d, 1" % (sUU, sUU)); p("s_lshr_b32 s%d, s%d, 1" % (sLAST, sLAST))
    for q in range(8):
        kap, qh = q >> 1, q & 1; st = 8 * q
        if q == 4:
            p("s_add_u32 s%d, s%d, 4096" % (sCTX, sCTX))
            p("s_cmp_ge_u32 s%d, 4" % sWAVE); p("s_cbranch_scc1 AT_EPI3")
            p("s_waitcnt vmcnt(12)"); p("s_barrier")
            p("s_cmp_gt_u32 s%d, s%d" % (sSRC, sMAX)); p("s_cbranch_scc1 AT_EPI3")
            dma_block()
            p.label("AT_EPI3")
        for j in range(8): p("v_accvgpr_read_b32 v%d, a%d" % (st + j, 16 * kap + 8 * (j >> 2) + 4 * qh + (j & 3)))
        for j in range(4): p("v_pk_mul_f32 %s, %s, %s" % (vr(st + 2 * j, 2), vr(st + 2 * j, 2), vr(E + 2 * qh, 2)))
        for j in range(4): p("v_cvt_pk_bf16_f32 v%d, v%d, v%d" % (st + j, st + 2 * j, st + 2 * j + 1))
        p("buffer_store_dwordx4 %s, v%d, %s, s%d offen offset:%d sc1" % (vr(st), VL16, sr(R_WS), sCTX, (q % 4) * 1024))
    stamp(p, 15)
    if OPT.get("hm", 0): p("s_cmp_lg_u32 s%d, 0" % sHMB); p("s_cbranch_scc1 P4_JOINC")
    p("s_cmp_ge_u32 s%d, 4" % sWAVE); p("s_cbranch_scc1 P4_JOINF")
    poll_check(R_DBG, "128", 256)(p)
    p("s_add_u32 s%d, s%d, 1" % (sUU, sUU))
    p("s_cmp_gt_u32 s%d, s%d" % (sSRC, sMAX)); p("s_cbranch_scc1 AT_LDA1")
    p("s_waitcnt vmcnt(12)")
    p("s_sub_u32 s%d, s%d, %d" % (sT0, sIDX, 4 * OPT.get("tp0", 2))); p("s_cmp_lt_u32 s%d, 16" % sT0); p("s_cbranch_scc1 AT_TS")
    p("s_branch AT_LD")
    p.label("AT_LDA1"); p("s_waitcnt vmcnt(4)")
    p.label("AT_LD")
    p("s_cmp_lg_u32 s%d, 0" % sPF); p("s_cbranch_scc1 AT_LD2")
    p("s_add_u32 s%d, s%d, %d" % (sT0, sUU, OPT.get("pfat", 9))); p("s_cmp_lt_u32 s%d, s%d" % (sT0, sLAST)); p("s_cbranch_scc1 AT_LD2")
    p("s_cmp_eq_u32 s%d, s%d" % (sT0, sLAST)); p("s_cbranch_scc1 AT_PS")
    p("s_add_u32 s%d, s%d, %d" % (sT0, sUU, OPT.get("pfl", 4))); p("s_cmp_lt_u32 s%d, s%d" % (sT0, sLAST)); p("s_cbranch_scc1 AT_LD2")
    npf = p4_early(p)
    p("s_mov_b32 s%d, 1" % sPF)
    p.label("AT_LD2")
    if OPT.get("hm", 0):
        p("s_add_u32 s%d, s%d, 9" % (sT0, sUU)); p("s_cmp_eq_u32 s%d, s%d" % (sT0, sLAST)); p("s_cselect_b32 s%d, s%d, 0" % (sT0, sHM))
        p("s_cmp_lg_u32 s%d, 0" % sT0); p("s_cbranch_scc1 AT_HM")
    p("s_cmp_gt_u32 s%d, s%d" % (sUU, sLAST)); p("s_cbranch_scc1 AT_LDX")
    acc_stamp(p, 4)
    p("s_barrier")
    acc_stamp(p, 5)
    p("s_add_u32 s%d, s%d, 1" % (sUU, sUU))
    p("s_cmp_le_u32 s%d, s%d" % (sSRC, sMAX)); p("s_cbranch_scc1 AT_LD4")
    p("s_cmp_eq_u32 s%d, 1" % sPF); p("s_cbranch_scc1 AT_LD5")
    p("s_waitcnt vmcnt(0)"); p("s_branch AT_LDS")
    p.label("AT_LD5")
    p("s_mov_b32 s%d, 2" % sPF); p("s_waitcnt vmcnt(%d)" % npf); p("s_branch AT_LDS")
    p.label("AT_LD4")
    dma_block()
    acc_stamp(p, 6)
    p("s_cmp_eq_u32 s%d, 1" % sPF); p("s_cbranch_scc1 AT_LD3")
    p("s_waitcnt vmcnt(8)")
    p("s_branch AT_LDS")
    p.label("AT_LD3")
    p("s_mov_b32 s%d, 2" % sPF); p("s_waitcnt vmcnt(%d)" % (8 + npf))
    p.label("AT_LDS")
    p("s_cmp_eq_u32 s%d, 0x%x" % (sTE, OOB)); p("s_cbranch_scc1 AT_LD")
    p("v_mov_b32 v%d, 1" % VSP)
    cond(p, "buffer_atomic_add v%d, v%d, %s, s%d offen sc1" % (VSP, VONE, sr(R_WS), sTE))
    p("s_mov_b32 s%d, 0x%x" % (sTE, OOB))
    p("s_branch AT_LD")
    if OPT.get("hm", 0):
        p.label("AT_HM")
        for b_ in range(4): p("v_add_u32 v%d, 0x20000, v%d" % (VWR + b_, VWR + b_))
        for it in range(10):
            p.lq, p.vq = [], []
            p("s_barrier")
            if it == 9: break
            if it < 7:
                a_dma1(p, ("h", it), 8 + (it & 1))
                p("s_add_u32 s%d, s%d, %d" % (sT3, sH, it * 4096))
                for kk in range(2):
                    for th in range(2):
                        t = treg(8 + 2 * (it & 1) + kk, th)
                        cond(p, "buffer_load_dwordx4 a[%d:%d], v%d, %s, s%d offen offset:%d sc1" % (t, t + 3, VL16, sr(R_WS), sT3, kk * 2048 + th * 1024))
            if it == 8: a_dma(p, CRUN[0], 8)
            l1, l2, l3 = p.newlabel("HM"), p.newlabel("HM"), p.newlabel("HM")
            p("s_cmp_gt_u32 s%d, s%d" % (sSRC, sMAX)); p("s_cbranch_scc1 %s" % l1)
            dma_block()
            p.label(l1)
            if 1 <= it <= 7:
                k = it - 1
                def mfh(u, kk, at, th, fr_, k=k):
                    t = treg(8 + 2 * (k & 1) + kk, th); acc = vr(8 * at + 4 * th)
                    return "%s %s, %s, a[%d:%d], %s" % (MF, acc, vr(fr_), t, t + 3, "0" if (k == 0 and kk == 0) else acc)
                tk = {}
                S, pro, init, lu = engine(tk, [(0, XG), (0, YG)], [(k & 1) * 16384], mfh, None, {}, {}, [0], 2048, {b_: 0 for b_ in range(4)}, nobar=True)
                for t_ in pro: emit_tagged(p, tk, *t_)
                S.emit(p, tk)
            p("s_cmp_gt_u32 s%d, s%d" % (sSRC, sMAX)); p("s_cbranch_scc1 %s" % l2)
            p("s_waitcnt vmcnt(8)"); p("s_branch %s" % l3)
            p.label(l2); p("s_waitcnt vmcnt(0)"); p.label(l3)
        for b_ in range(4): p("v_add_u32 v%d, 0xfffe0000, v%d" % (VWR + b_, VWR + b_))
        p(poll_issue(R_WS, "s%d" % sCF))
        a_dma(p, CRUN[1], SL4(1)); a_dma(p, CRUN[2], SL4(2))
        p("s_waitcnt vmcnt(16)")
        poll_check(R_WS, "s%d" % sCF, 8)(p)
        for r in range(3): p4_tld(p, CRUN, r)
        p("s_branch P4_JOINC")
    if OPT.get("pfs", 1):
        p.label("AT_PS")
        prevn = 0
        for f, k in p4_pieces()[3:]:
            p("s_barrier"); dma_block(); f(p)
            p("s_waitcnt vmcnt(%d)" % (8 + k + prevn)); prevn = k
        p("s_add_u32 s%d, s%d, %d" % (sUU, sUU, len(p4_pieces()) - 3)); p("s_mov_b32 s%d, 2" % sPF)
        p("s_branch AT_LDS")
        p.label("AT_TS")
        prevn = 0
        for f, k in p4_pieces()[:3]:
            p("s_barrier"); dma_block(); f(p)
            p("s_waitcnt vmcnt(%d)" % (8 + k + prevn)); prevn = k
        p("s_add_u32 s%d, s%d, 3" % (sUU, sUU))
        p("s_branch AT_LDS")
    p.label("AT_LDX")
    a_dma(p, FULL[1], SL4(1)); a_dma(p, FULL[2], SL4(2))

sJ, sNT, sMT, sG, sTB4, sXO, sWD, sWO = range(12, 20)
sH, sC, sH3, sCF, sPB, sFL, sHM, sHMB = range(24, 32)
FULL = [("h", 0), ("h", 2), ("h", 4), ("h", 6)] + [("c", 2 * r) for r in range(8)]
CRUN = FULL[4:]
SHORT = FULL[:3] + FULL[4:]
SL4 = lambda r: ((r + 4) % 5) * 2
def p4_setup(p):
    A, B, C, L = 96, 97, 98, 99
    p("s_and_b32 s%d, s2, 3" % sJ); p("s_and_b32 s%d, s%d, 3" % (sNT, sIDX))
    p("s_lshr_b32 s%d, s%d, 2" % (sMT, sIDX)); p("s_and_b32 s%d, s2, 4" % sT0); p("s_lshl_b32 s%d, s%d, 1" % (sT0, sT0)); p("s_add_u32 s%d, s%d, s%d" % (sMT, sMT, sT0))
    p("s_lshr_b32 s%d, s%d, 2" % (sG, sWAVE)); p("s_lshl_b32 s%d, s%d, 2" % (sTB4, sMT)); p("s_add_u32 s%d, s%d, s%d" % (sTB4, sTB4, sS4))
    p("v_lshrrev_b32 v%d, 4, v%d" % (L, VL16))
    p("v_lshrrev_b32 v%d, 2, v%d" % (C, L)); p("v_lshlrev_b32 v%d, 7, v%d" % (C, C)); p("v_and_b32 v%d, 3, v%d" % (B, L)); p("v_lshl_add_u32 v%d, v%d, 3, v%d" % (C, B, C))
    p("s_lshl_b32 s%d, s%d, 14" % (sT0, sG)); p("v_add_u32 v%d, s%d, v%d" % (C, sT0, C)); p("v_bfe_u32 v%d, v%d, 3, 2" % (A, L))
    p("v_lshl_add_u32 v%d, v%d, 5, v%d" % (VTA, A, C))
    p("v_bfe_u32 v%d, v%d, 1, 2" % (A, L)); p("v_lshrrev_b32 v%d, 4, v%d" % (B, L)); p("v_xor_b32 v%d, v%d, v%d" % (A, A, B))
    p("v_and_b32 v%d, 1, v%d" % (B, L)); p("v_lshlrev_b32 v%d, 4, v%d" % (B, B)); p("v_lshl_add_u32 v%d, v%d, 5, v%d" % (A, A, B))
    p("v_lshrrev_b32 v%d, 3, v%d" % (B, L)); p("v_lshl_add_u32 v%d, v%d, 10, v%d" % (VD8, B, A))
    p("s_lshl_b32 s%d, s%d, 13" % (sT0, sWAVE)); p("v_add_u32 v%d, s%d, v%d" % (VDG, sT0, VD8))
    p("v_and_b32 v%d, 15, v%d" % (A, L)); p("v_lshrrev_b32 v%d, 4, v%d" % (B, L)); p("v_lshlrev_b32 v%d, 3, v%d" % (B, B)); p("v_lshl_add_u32 v%d, v%d, 10, v%d" % (VDT, A, B))
    p("v_add_u32 v%d, 16384, v%d" % (VDT + 1, VDT))
    p("s_lshl_b32 s%d, s%d, 15" % (sXO, sTB4)); p("s_lshl_b32 s%d, s%d, 8" % (sT0, sNT)); p("s_add_u32 s%d, s%d, s%d" % (sXO, sXO, sT0))
    p("s_lshl_b32 s%d, s%d, 6" % (sT1, sJ)); p("s_add_u32 s%d, s%d, s%d" % (sXO, sXO, sT1))
    p("s_mul_i32 s%d, s%d, 7" % (sH3, sJ)); p("s_and_b32 s%d, s%d, 1" % (sT1, sJ)); p("s_add_u32 s%d, s%d, s%d" % (sH3, sH3, sT1))
    p("s_lshl_b32 s%d, s%d, 16" % (sWD, sH3)); p("s_add_u32 s%d, s%d, s%d" % (sWD, sWD, sT0))
    p("s_lshl_b32 s%d, s%d, 20" % (sWO, sJ)); p("s_add_u32 s%d, s%d, s%d" % (sWO, sWO, sT0))
    p("s_mul_i32 s%d, s%d, %d" % (sT1, sTB4, 368 * 1024)); p("s_add_u32 s%d, s%d, 0x%x" % (sT1, sT1, WS_CH))
    p("s_lshl_b32 s%d, s%d, 12" % (sH, sH3)); p("s_add_u32 s%d, s%d, s%d" % (sH, sH, sT1)); p("s_add_u32 s%d, s%d, %d" % (sH, sH, 256 * 1024))
    p("s_lshl_b32 s%d, s%d, 16" % (sC, sJ)); p("s_add_u32 s%d, s%d, s%d" % (sC, sC, sT1))
    p("s_lshl_b32 s%d, s%d, 12" % (sT0, sG)); p("s_add_u32 s%d, s%d, s%d" % (sH, sH, sT0)); p("s_add_u32 s%d, s%d, s%d" % (sC, sC, sT0))
    p("s_cmp_ge_u32 s%d, %d" % (sLAST, 47 if OPT.get("hm", 0) else 99)); p("s_cselect_b32 s%d, 1, 0" % sHM); p("s_and_b32 s%d, s%d, s%d" % (sHMB, sHM, sG))
    p("s_lshl_b32 s%d, s%d, 10" % (sCF, sTB4)); p("s_lshl_b32 s%d, s%d, 8" % (sT0, sJ)); p("s_add_u32 s%d, s%d, s%d" % (sCF, sCF, sT0)); p("s_add_u32 s%d, s%d, 0x%x" % (sCF, sCF, WS_FLAG))

    p("s_lshl_b32 s%d, s%d, 10" % (sT0, sTB)); p("s_lshr_b32 s%d, s%d, 3" % (sT1, sHEAD)); p("s_lshl_b32 s%d, s%d, 8" % (sT1, sT1))
    p("s_add_u32 s%d, s%d, s%d" % (sTE, sT0, sT1)); p("s_add_u32 s%d, s%d, 0x%x" % (sTE, sTE, WS_FLAG))
    p("s_lshl_b32 s%d, s%d, 2" % (sT0, sMT)); p("s_add_u32 s%d, s%d, s%d" % (sT0, sT0, sNT))
    p("s_lshl_b32 s%d, s%d, 17" % (sPB, sT0)); p("s_add_u32 s%d, s%d, 0x%x" % (sPB, sPB, WS_PART)); p("s_lshl_b32 s%d, s%d, 11" % (sT1, sS4)); p("s_add_u32 s%d, s%d, s%d" % (sPB, sPB, sT1))
    p("s_lshl_b32 s%d, s%d, 10" % (sFL, sT0)); p("s_add_u32 s%d, s%d, 0x%x" % (sFL, sFL, WS_FLAG + 128)); p("s_lshl_b32 s%d, s%d, 2" % (sT1, sS4)); p("s_add_u32 s%d, s%d, s%d" % (sFL, sFL, sT1))

def w4src(spec, g):
    kind, k = spec
    if kind == "h": return R_WD, sWD, (k + g) * 65536
    return R_WO, sWO, (k + g) * 65536
def a_dma1(p, spec, slot, g=0):
    rs, sb, o = w4src(spec, g)
    p("s_lshl_b32 s%d, s%d, 14" % (sT0, sS4)); p("s_add_u32 s%d, s%d, s%d" % (sT0, sT0, sb)); p("s_add_u32 s%d, s%d, %d" % (sT0, sT0, o)); p("s_lshl_b32 s%d, s%d, 11" % (sT1, sS4))
    for pc in range(2):
        if pc: p("s_add_u32 s%d, s%d, 8192" % (sT0, sT0))
        for sub in range(2):
            p("s_add_u32 m0, s%d, %d" % (sT1, slot * 16384 + pc * 1024 + sub * (8192 - 128))); p("s_nop 0")
            cond(p, "buffer_load_dwordx4 v%d, %s, s%d offen offset:%d lds" % (VD8, sr(rs), sT0, sub * 128))
def a_dma(p, spec, slot):
    for g in range(2): a_dma1(p, spec, slot + g, g)
def p4_touch(p, which):
    p("v_lshrrev_b32 v%d, 7, v%d" % (VPOLL, VL16)); p("v_and_b32 v%d, 0x380, v%d" % (VSP, VL128)); p("v_lshl_add_u32 v%d, v%d, 10, v%d" % (VSP, VPOLL, VSP))
    p("s_lshl_b32 s%d, s%d, 2" % (sT0, sIDX)); p("s_add_u32 s%d, s%d, s%d" % (sT0, sT0, sS4)); p("s_sub_u32 s%d, s%d, %d" % (sT0, sT0, 16 * OPT.get("tp0", 2)))
    if which < 2:
        if which: p("s_add_u32 s%d, s%d, 64" % (sT0, sT0))
        p("s_cmp_ge_u32 s%d, 128" % sT0); p("s_cselect_b32 s%d, 0x%x, 0" % (sT2, OOB))
        p("s_lshl_b32 s%d, s%d, 13" % (sT0, sT0)); p("s_lshl_b32 s%d, s%d, 20" % (sT1, sJ)); rs = R_WO
    else:
        p("s_mov_b32 s%d, 0" % sT2)
        p("s_lshl_b32 s%d, s%d, 13" % (sT0, sT0)); p("s_lshl_b32 s%d, s%d, 16" % (sT1, sH3)); rs = R_WD
    p("s_add_u32 s%d, s%d, s%d" % (sT0, sT0, sT1)); p("s_add_u32 s%d, s%d, s%d" % (sT0, sT0, sT2))
    cond(p, "buffer_load_dword v%d, v%d, %s, s%d offen" % (VDUM, VSP, sr(rs), sT0))
def p4_pieces():
    def tl(r):
        def f(p):
            vq = list(p.vq); p4_tld(p, FULL, r); p.vq = vq
        return f
    return [(lambda p: p4_touch(p, 2), 1), (lambda p: p4_touch(p, 0), 1), (lambda p: p4_touch(p, 1), 1), (tl(0), 4), (tl(1), 4), (tl(2), 4),
            (lambda p: a_dma1(p, FULL[0], 8, 0), 4), (lambda p: a_dma1(p, FULL[0], 9, 1), 4)]
def p4_early(p):
    n = 0
    for f, k in p4_pieces()[3:]: f(p); n += k
    return n

def t4reg(r, kk, th): return treg(2 * ((r + 4) % 8) + kk, th)
def p4_tld_list(run, r):
    kind, k = run[r]
    out = ["s_add_u32 s%d, s%d, %d" % (sT3, sH if kind == "h" else sC, k * 4096)]; so = sT3
    for kk in range(2):
        for th in range(2):
            t = t4reg(r, kk, th)
            out.append(("buffer_load_dwordx4 a[%d:%d], v%d, %s, s%d offen offset:%d sc1" % (t, t + 3, VL16, sr(R_WS), so, kk * 2048 + th * 1024), "T4_%d" % r))
    return out
def p4_tld(p, run, r):
    for it in p4_tld_list(run, r): p(it[0] if isinstance(it, tuple) else it)

def phase4_run(p, run, tag):
    NR, TR = len(run), 8
    if tag == "F":
        p.label("P4_JOINF")
        p.lq, p.vq = [], []
        stamp(p, 16)
        p("v_mov_b32 v%d, 1" % VSP)
        p("s_waitcnt vmcnt(0)")
        p("buffer_atomic_add v%d, v%d, %s, s%d offen sc1" % (VSP, VONE, sr(R_WS), sTE))
        p("s_barrier")
        stamp(p, 17)
        p("s_bitcmp1_b32 s%d, 0" % sJ); p("s_cbranch_scc1 P4_SHORT")
        p.st4 = (list(p.lq), list(p.vq))
    else:
        p.label("P4_SHORT"); p.lq, p.vq = list(p.st4[0]), list(p.st4[1])
    def wdma(r):
        out = []
        for g in range(2):
            rs, sb, o = w4src(run[r], g); t = "W%d" % r; b = (SL4(r) + g) * 16384
            out += [("s_add_u32 m0, s%d, %d" % (sLW, b), "m0:" + t), ("s_add_u32 s%d, s%d, %d" % (sT2, sb, o), None),
                    ("buffer_load_dwordx4 v%d, %s, s%d offen lds" % (VDG, sr(rs), sT2), t),
                    ("s_add_u32 m0, s%d, %d" % (sLW, b + 8192 - 128), "m0:" + t), ("s_nop 0", None),
                    ("buffer_load_dwordx4 v%d, %s, s%d offen offset:128 lds" % (VDG, sr(rs), sT2), t)]
        return out
    items = [(r, g) for r in range(NR) for g in (XG, YG)]
    prev = {r: ([r - 5] if r >= 5 else []) for r in range(NR)}
    toks = {}
    def mf(r, kk, cb, th, fr):
        t = t4reg(r, kk, th); acc = vr(8 * cb + 4 * th); cc = "0" if (r == 0 and kk == 0) else acc
        return "%s %s, %s, a[%d:%d], %s" % (MF, acc, vr(fr), t, t + 3, cc)
    ab = {112: [lambda p: stamp(p, 19)]} if STAMP else {}
    S, pro, init, last_use = engine(toks, items, [SL4(r) * 16384 for r in range(NR)], mf, wdma, prev, {}, [0, 1, 2, 3, 4], 2048, {b: 0 for b in range(4)},
                                    after_bar=ab, maxnew=1)
    S.group(0, wdma(3)); S.group(0, wdma(4))
    e = 1
    for r in range(3, NR):
        if r == NR - 8:
            cp = OPT.get("cpoll", 40) - (0 if tag == "F" else 16)
            S.put(cp - 16, poll_issue(R_WS, "s%d" % sCF)); S.put(cp, poll_check(R_WS, "s%d" % sCF, 8)); e = max(e, cp + 1)
        e = S.spread(max(e, 32 * (r - TR + 1) + 1, 32 * (r - OPT.get("tla", 4))), p4_tld_list(run, r))
    x0, x1 = SL4(NR - 5) * 16384, SL4(NR - 4) * 16384
    S.spread(32 * NR - 40, ["buffer_load_dwordx2 v[%d:%d], v%d, %s, s%d offen offset:%d" % (100 + 2 * q, 101 + 2 * q, VDT + (q & 1), sr(R_X), sXO, (q >> 1) * 32) for q in range(4)] +
             [lambda p: (p("s_lshl_b32 s%d, s%d, 13" % (sT0, sS4)), p("s_cmp_eq_u32 s%d, 0" % sG), p("s_mov_b32 s%d, %d" % (sT1, x1)), p("s_cselect_b32 s%d, %d, s%d" % (sT1, x0, sT1)),
                         p("s_add_u32 s%d, s%d, s%d" % (sT1, sT1, sT0)), p("v_add_u32 v96, s%d, v%d" % (sT1, VL16)),
                         p("s_xor_b32 s%d, s%d, %d" % (sT1, sT1, x0 ^ x1)), p("v_add_u32 v97, s%d, v%d" % (sT1, VL16)))], step=2)
    for t_ in pro: emit_tagged(p, toks, *t_)
    S.emit(p, toks)

def phase4(p):
    phase4_run(p, FULL, "F")
    p("s_branch OUT_RED")
    phase4_run(p, SHORT, "S")
    p.label("OUT_RED")
    p("s_waitcnt lgkmcnt(0)")
    stamp(p, 23)
    p.nop(6)
    p("s_cmp_eq_u32 s%d, 1" % sG); p("s_cbranch_scc1 OUT_G1")
    st = (list(p.lq), list(p.vq))
    for g in range(2):
        if g == 1:
            p.label("OUT_G1"); p.lq, p.vq = list(st[0]), list(st[1])
        give = 32 * (1 - g); keep = 32 * g
        for q in range(8): p("ds_write_b128 v96, %s offset:%d" % (vr(give + 4 * q), q * 1024))
        p("s_waitcnt lgkmcnt(0)"); p("s_barrier")
        for q in range(8): p("ds_read_b128 %s, v97 offset:%d" % (vr(give + 4 * q), q * 1024))
        for r in range(32): p("v_add_f32 v%d, v%d, v%d" % (r, keep + r, give + r))
        if g == 0: p("s_branch OUT_X")
    p.label("OUT_X")
    p("s_lshl_b32 s%d, s%d, 13" % (sT0, sJ)); p("s_add_u32 s%d, s%d, s%d" % (sT0, sT0, sPB)); p("s_lshl_b32 s%d, s%d, 16" % (sT1, sG)); p("s_add_u32 s%d, s%d, s%d" % (sT0, sT0, sT1))
    p("s_lshl_b32 s%d, s%d, 9" % (sT1, sG)); p("s_add_u32 s%d, s%d, s%d" % (sH, sT1, sFL)); p("s_lshl_b32 s%d, s%d, 1" % (sT1, sG))
    for bb in range(2):
        p("s_add_u32 s%d, s%d, %d" % (sT2, sT0, bb * 32768)); p("s_add_u32 s%d, s%d, %d" % (sC + bb, sH, bb * 256))
        p("s_add_u32 s%d, s%d, %d" % (sT3, sT1, bb)); p("s_cmp_eq_u32 s%d, s%d" % (sT3, sJ))
        p("s_cselect_b32 s%d, 0x%x, s%d" % (sT2, OOB, sT2)); p("s_cselect_b32 s%d, 0x%x, s%d" % (sC + bb, OOB, sC + bb))
        for j in range(8): p("v_cvt_pk_bf16_f32 v%d, v%d, v%d" % (32 + 8 * bb + j, 16 * bb + 2 * j, 16 * bb + 2 * j + 1))
        for q in range(2): p("buffer_store_dwordx4 %s, v%d, %s, s%d offen offset:%d sc1" % (vr(32 + 8 * bb + 4 * q), VL16, sr(R_WS), sT2, q * 1024))
    p("v_mov_b32 v%d, 1" % VSP)
    p("s_lshl_b32 s%d, s%d, 8" % (sT0, sJ)); p("s_add_u32 s%d, s%d, s%d" % (sFL, sFL, sT0))
    p("s_waitcnt vmcnt(0)")
    for bb in range(2): p("buffer_atomic_add v%d, v%d, %s, s%d offen sc1" % (VSP, VONE, sr(R_WS), sC + bb))
    stamp(p, 24)
    p("s_lshr_b32 s%d, s%d, 1" % (sT0, sJ)); p("s_cmp_lg_u32 s%d, s%d" % (sT0, sG)); p("s_cbranch_scc1 K_END")
    p(poll_issue(R_WS, "s%d" % sFL))
    p("s_and_b32 s%d, s%d, 1" % (sT0, sJ)); p("s_cmp_eq_u32 s%d, 0" % sT0); p("s_cbranch_scc1 OUT_OWN")
    for r in range(16): p("v_mov_b32 v%d, v%d" % (r, 16 + r))
    p.label("OUT_OWN")
    for q in range(4):
        d = 64 + 8 * (q >> 1) + 4 * (q & 1)
        for e in range(2):
            p("v_lshlrev_b32 v%d, 16, v%d" % (d + 2 * e, 100 + 2 * q + e)); p("v_and_b32 v%d, 0xffff0000, v%d" % (d + 2 * e + 1, 100 + 2 * q + e))
    for r in range(16): p("v_add_f32 v%d, v%d, v%d" % (r, r, 64 + r))
    poll_check(R_WS, "s%d" % sFL, 3, sleep=1)(p)
    stamp(p, 25)
    p("s_lshl_b32 s%d, s%d, 15" % (sT3, sJ)); p("s_add_u32 s%d, s%d, s%d" % (sT3, sT3, sPB))
    for k in range(1, 4):
        p("s_add_u32 s%d, s%d, %d" % (sT0, sJ, k)); p("s_and_b32 s%d, s%d, 3" % (sT0, sT0)); p("s_lshl_b32 s%d, s%d, 13" % (sT0, sT0)); p("s_add_u32 s%d, s%d, s%d" % (sT0, sT0, sT3))
        for q in range(2): p("buffer_load_dwordx4 %s, v%d, %s, s%d offen offset:%d sc1" % (vr(16 + 8 * k + 4 * q), VL16, sr(R_WS), sT0, q * 1024))
    for k in range(1, 4):
        for j in range(8):
            p("v_lshlrev_b32 v64, 16, v%d" % (16 + 8 * k + j)); p("v_and_b32 v65, 0xffff0000, v%d" % (16 + 8 * k + j))
            p("v_add_f32 v%d, v%d, v64" % (2 * j, 2 * j)); p("v_add_f32 v%d, v%d, v65" % (2 * j + 1, 2 * j + 1))
    for q in range(4):
        a = 8 * (q >> 1) + 4 * (q & 1)
        p("v_cvt_pk_bf16_f32 v%d, v%d, v%d" % (64 + 2 * q, a, a + 1)); p("v_cvt_pk_bf16_f32 v%d, v%d, v%d" % (65 + 2 * q, a + 2, a + 3))
        p("buffer_store_dwordx2 v[%d:%d], v%d, %s, s%d offen offset:%d" % (64 + 2 * q, 65 + 2 * q, VDT + (q & 1), sr(R_OUT), sXO, (q >> 1) * 32))
    stamp(p, 26)

def build():
    p = Prog()
    hdr = open("cdna_kernels/%s.s.ref" % NAME).read().split("; Override launch")[0]
    p.raw(hdr.rstrip())
    p.raw("; @launch grid=(256,1,1) block=(512,1,1) lds=163840")
    p.raw('.amdgcn_target "amdgcn-amd-amdhsa--gfx950"'); p.raw(".text")
    kernel_begin(p, KN)
    t0 = p12(p); attention(p, t0); phase4(p)
    p.label("K_END"); p("s_endpgm")
    p.raw('.section .rodata,"a"'); p.raw(kernel_desc(KN, 256, 128, 102))
    return p

def selfcheck(p):
    bad = []
    for wg, wave in [(0, 0), (0, 3), (0, 4), (0, 7), (5, 2), (100, 1), (100, 6), (255, 2), (255, 5), (255, 0), (30, 4), (3, 7)]:
        for fx in (False, True):
            tr = trace(p, KN, wg, wave, vcc_taken=(lambda i, n: n % 3 == 1) if fx else (lambda i, n: False))
            pr = check_trace(tr, "wg%d w%d" % (wg, wave))
            nb = sum(1 for i in tr if i.mn == "s_barrier"); nm = sum(1 for i in tr if i.kind == "mfma")
            if not fx: print("wg%d w%d: %d instrs, %d mfma, %d barriers, %d problems" % (wg, wave, len(tr), nm, nb, len(pr)))
            bad += pr
    for b in sorted(set(bad))[:40]: print(b)
    return not bad

if __name__ == "__main__":
    for o in sys.argv[2:]:
        if o == "stamp": STAMP = True
        else:
            k, v = o.split("="); OPT[k] = int(v) if v.isdigit() else v
    import subprocess
    if OPT.get("cpf", 0):
        open("pass1.s", "w").write(build().text())
        subprocess.run(["clang", "-x", "assembler", "-target", "amdgcn-amd-amdhsa", "-mcpu=gfx950", "-c", "pass1.s", "-o", "pass1.o"], check=True)
        sym = subprocess.run(["llvm-objdump", "-t", "pass1.o"], capture_output=True, text=True).stdout
        ad = {l.split()[-1]: int(l.split()[0], 16) for l in sym.splitlines() if ".text" in l and len(l.split()) >= 5}
        OPT["reach"] = ad["K_END"] - ad["K_CPFREF"]
    p = build()
    ok = selfcheck(p)
    open(sys.argv[1], "w").write(p.text())
    import subprocess
    r = subprocess.run(["clang", "-x", "assembler", "-target", "amdgcn-amd-amdhsa", "-mcpu=gfx950", "-c", sys.argv[1], "-o", "chk.o"], capture_output=True, text=True)
    print("written", sys.argv[1], "OK" if ok else "PROBLEMS", "ASM-OK" if r.returncode == 0 else "ASM-FAIL\n" + r.stderr[:2000])
```

```python
import sys, struct
from fw import *

NAME = "parallel_sum__compressed_kv_cla__swiglu_ffn__prompt"
KN = NAME + "_kernel"
WS_XN = 0x0000000
WS_K = 0x0200000
WS_V = 0x1200000
WS_CH = 0x2200000
WS_PART = 0x4000000
WS_FLAG = 0x5000000
WS_BYTES = 0x10000000
OOB = 0x20000000
MF = "v_mfma_f32_16x16x32_bf16"
STAMP = False
OPT = {}
def f32hex(x): return "0x%08x" % struct.unpack("<I", struct.pack("<f", x))[0]
QSCALE = 1.4426950408889634 / (128 ** 0.5)
THR = float(2 ** 20)

R_WS, R_W1, R_CKV, R_X, R_WQ, R_WG, R_WU, R_WO, R_WD, R_OUT, R_DBG = 8, 12, 16, 20, 24, 28, 32, 36, 40, 44, 48
def sr(r): return "s[%d:%d]" % (r, r + 3)
sWAVE, sIDX, sX8, sT0, sT1, sT2, sT3 = 3, 4, 5, 6, 7, 52, 53
sU1, sO1, sO1B, sLW, sLT, sLNROW = 54, 55, 56, 57, 58, 59
sHEAD, sTB, sLAST, sS4, sF0, sQC, sXN, sHO, sHO2, sCTX, sHB = 60, 61, 62, 63, 64, 65, 66, 67, 68, 69, 70
sSRC, sDST, sMAX, sRB, sRING, sTHR, sUU, sTE, sPF = 71, 72, 73, 74, 75, 76, 77, 78, 79
sTAB = 80
sRO2, sROH = 96, 97
VL16, VWR, VD8, VDG, VDT, VTA, VONE, VDUM, VPOLL, VL128, VSP = 112, 113, 117, 118, 119, 121, 123, 124, 125, 126, 127
FRB, FR = 64, 8
EG = [(0, 0), (0, 1), (1, 0), (1, 1)]
FG = [(0, 2), (0, 3), (1, 2), (1, 3)]

def emit_tagged(p, toks, text, tag):
    if tag is not None and tag.startswith("m0:"):
        p.m0own = tag[3:]; p(text); return
    if text.endswith(" lds"):
        assert getattr(p, "m0own", None) == tag, ("m0 owner mismatch", text, tag, p.m0own)
    t = p(text)
    if tag is not None: toks.setdefault(tag, []).append(t)

class Slots:
    def __init__(self): self.s = []
    def add(self, mfma): self.s.append(dict(m=mfma, pre=[], f=[])); return len(self.s) - 1
    def put(self, slot, text, tag=None):
        assert 0 <= slot < len(self.s), slot
        self.s[slot]["f"].append((text, tag))
    def spread(self, start, items, per=1, step=1):
        k = 0
        for it in items:
            sl = start + (k // per) * step
            if isinstance(it, tuple): self.put(sl, it[0], it[1])
            else: self.put(sl, it)
            k += 1
        return start + ((k + per - 1) // per) * step
    def group(self, t0, lst, per=1):
        if not hasattr(self, "busy"): self.busy = set()
        n = (len(lst) + per - 1) // per
        while any((t0 + i) in self.busy for i in range(n)): t0 += 1
        self.busy |= set(range(t0, t0 + n))
        return self.spread(t0, lst, per=per)
    def emit(self, p, toks, lo=0, hi=None):
        for sl in self.s[lo:hi]:
            for it in sl["pre"]: it(p)
            p(sl["m"])
            for text, tag in sl["f"]:
                if callable(text): text(p)
                else: emit_tagged(p, toks, text, tag)

def stamp(p, i):
    if not STAMP: return
    lq, vq = list(p.lq), list(p.vq)
    p.auto = False
    if OPT.get("few", 0) and i not in (0, 1, 3, 4, 7, 10, 13, 14, 15, 16, 17, 19, 23, 24, 25, 26, 27, 28, 29):
        p.auto = True; return
    p("%s s[100:101]" % ("s_memrealtime" if OPT.get("rt", 0) else "s_memtime")); p("s_waitcnt lgkmcnt(0)")
    p("v_mov_b32 v%d, s100" % VDUM, note="diag")
    p("buffer_store_dword v%d, v%d, %s, s99 offen offset:%d" % (VDUM, VONE, sr(R_WS), 4 * i), note="diag")
    if OPT.get("rt", 0):
        p("s_memtime s[100:101]"); p("s_waitcnt lgkmcnt(0)"); p("v_mov_b32 v%d, s100" % VSP, note="diag") if False else p("v_mov_b32 v%d, s100" % VDUM, note="diag")
        p("buffer_store_dword v%d, v%d, %s, s99 offen offset:%d" % (VDUM, VONE, sr(R_WS), 4 * (128 + i)), note="diag")
    p.auto = True
    p.lq, p.vq = [], vq

def acc_stamp(p, i):
    if not (STAMP and OPT.get("acc", 0)): return
    lq = list(p.lq); p.auto = False
    p("s_memtime s[100:101]"); p("s_waitcnt lgkmcnt(0)"); p("s_sub_u32 s101, s100, s98"); p("s_mov_b32 s98, s100")
    p("v_accvgpr_read_b32 v%d, a%d" % (VPOLL, 120 + i)); p("s_nop 0"); p("v_add_u32 v%d, s101, v%d" % (VPOLL, VPOLL)); p("s_nop 0"); p("v_accvgpr_write_b32 a%d, v%d" % (120 + i, VPOLL))
    p.auto = True; p.lq = lq
def acc_flush(p):
    if not (STAMP and OPT.get("acc", 0)): return
    vq = list(p.vq)
    for i in range(8):
        p("v_accvgpr_read_b32 v%d, a%d" % (96 + i, 120 + i))
        p("s_nop 0")
        p("buffer_store_dword v%d, v%d, %s, s99 offen offset:%d" % (96 + i, VONE, sr(R_WS), 4 * (32 + i)))
    p.vq = vq

def cond(p, text):
    p(text); p.vq.pop()

def wave_sum(q, v):
    for sh in (1, 2, 4, 8):
        q("s_nop 1"); q("v_add_f32_dpp v%d, v%d, v%d row_shr:%d row_mask:0xf bank_mask:0xf bound_ctrl:0" % (v, v, v, sh))
    q("s_nop 1"); q("v_add_f32_dpp v%d, v%d, v%d row_bcast:15 row_mask:0xa bank_mask:0xf" % (v, v, v))
    q("s_nop 1"); q("v_add_f32_dpp v%d, v%d, v%d row_bcast:31 row_mask:0xc bank_mask:0xf" % (v, v, v))

class Rec:
    def __init__(self): self.l = []
    def __call__(self, t, note=None): self.l.append(t)

def poll_issue(srd, soff):
    if soff.isdigit(): soff = "0 offset:" + soff
    return "buffer_load_dword v%d, off, %s, %s sc1" % (VPOLL, sr(srd), soff)
def poll_check(srd, soff, expect, w0=False, sleep=4):
    def f(p):
        ok, lp = p.newlabel("PK"), p.newlabel("PL")
        if w0: p("v_mov_b32 v%d, v%d" % (VPOLL, VPOLL)); p("s_cmp_lg_u32 s%d, 0" % sWAVE); p("s_cbranch_scc1 %s" % ok)
        p("v_readfirstlane_b32 s%d, v%d" % (sT0, VPOLL), note="=val %d" % expect); p("s_mov_b32 s%d, 0" % sT1)
        p("s_cmp_ge_u32 s%d, %d" % (sT0, expect)); p("s_cbranch_scc1 %s" % ok)
        lq, vq = list(p.lq), list(p.vq)
        p.label(lp)
        p("s_sleep %d" % sleep); p(poll_issue(srd, soff)); p("s_add_u32 s%d, s%d, 1" % (sT1, sT1)); p("s_waitcnt vmcnt(0)")
        p("v_readfirstlane_b32 s%d, v%d" % (sT0, VPOLL), note="=val %d" % expect)
        p("s_cmp_ge_u32 s%d, 0x40000" % sT1); p("s_cbranch_scc1 %s" % ok)
        p("s_cmp_lt_u32 s%d, %d" % (sT0, expect)); p("s_cbranch_scc1 %s" % lp)
        p.lq, p.vq = lq, vq
        p.label(ok)
    return f
def signal(off):
    def f(p):
        sk = p.newlabel("SG")
        p("s_cmp_lg_u32 s%d, 0" % sWAVE); p("s_cbranch_scc1 %s" % sk)
        p("v_mov_b32 v%d, 1" % VSP)
        cond(p, "buffer_atomic_add v%d, v%d, %s, 0 offen offset:%d sc1" % (VSP, VONE, sr(R_DBG), off))
        p.label(sk)
    return f

def engine(toks, items, base_of, mfma_fn, wdma_fn, prev, minbar, issued, rd2, cur_base, LA=6, extra_wait=None, after_bar=None, before_bar=None, maxnew=2, nobar=False, bpos=None):
    S = Slots(); frags = []
    for (sl, cols) in items:
        for kk in range(2):
            for col in cols: frags.append((sl, kk) + tuple(col))
    for n, (sl, kk, so, cbp, at) in enumerate(frags):
        for th in range(2): S.add(mfma_fn(sl, kk, at, th, FRB + 4 * (n % FR)))
    n2 = len(S.s)
    first_read, last_use, pro = {}, {}, []
    for n, (sl, kk, so, cbp, at) in enumerate(frags):
        fr = FRB + 4 * (n % FR); rs = 2 * (n - LA); win = base_of[sl] & ~0xffff
        if OPT.get("win48", 0) or rd2 == 2048: win = base_of[sl] & ~0x7fff
        L = []
        if cur_base[cbp] != win:
            L.append(("v_add_u32 v%d, 0x%x, v%d" % (VWR + cbp, (win - cur_base[cbp]) & 0xffffffff, VWR + cbp), None)); cur_base[cbp] = win
        o = base_of[sl] - win + so + kk * 4096
        L.append(("ds_read_b64_tr_b16 %s, v%d offset:%d" % (vr(fr, 2), VWR + cbp, o), "F%d" % n))
        L2 = ("ds_read_b64_tr_b16 %s, v%d offset:%d" % (vr(fr + 2, 2), VWR + cbp, o + rd2), "F%d" % n)
        if rs < 0: pro += L + [L2]
        else:
            for it in L: S.put(rs, it[0], it[1])
            S.put(rs + 1, L2[0], L2[1])
        first_read.setdefault(sl, rs); last_use[sl] = 2 * n + 1
        if n % 2 == 0 and n + 1 < len(frags):
            S.s[2 * n]["pre"].append(lambda p, n=n: p.wait_tok(toks["F%d" % (n + 1)]))
    if nobar: return S, pro, [], last_use
    bpos = bpos or list(range(16, n2, 32))
    waited = set(s for s in first_read if first_read[s] < bpos[0]); init_need = sorted(waited)
    issued = set(issued); extra_wait = extra_wait or {}; after_bar = after_bar or {}
    order = sorted(first_read, key=lambda s: first_read[s])
    S.dma_end = {}
    for bi, bp in enumerate(bpos):
        nxt = bpos[bi + 1] if bi + 1 < len(bpos) else n2 + 100
        need = [s for s in order if s not in waited and first_read[s] < nxt]
        for s in need: assert s in issued, ("unit %d needed at barrier %d but not issued" % (s, bp))
        waited |= set(need)
        new = [s for s in order if s not in issued and all(last_use[q] < bp for q in prev.get(s, [])) and minbar.get(s, 0) <= bp][:maxnew]
        tags = ["W%d" % s for s in need] + extra_wait.get(bp, [])
        def f(p, tags=tags, bp=bp):
            fine = OPT.get("fine", 0) and n2 > 512
            if fine: stamp(p, 64 + 3 * (bp // 32))
            for g in (before_bar or {}).get(bp, []): g(p)
            p.wait_tok(sum([toks.get(t, []) for t in tags], []))
            if fine: stamp(p, 65 + 3 * (bp // 32))
            p("s_barrier")
            if fine: stamp(p, 66 + 3 * (bp // 32))
            for g in after_bar.get(bp, []): g(p)
        if tags or new or bp in after_bar or bp in (before_bar or {}): S.s[bp]["pre"].insert(0, f)
        for s in new:
            issued.add(s); S.group(bp, wdma_fn(s))
    assert issued >= set(first_read), sorted(set(first_read) - issued)
    return S, pro, init_need, last_use

XG = [(0, c, c) for c in range(4)]
YG = [(8192, c, 4 + c) for c in range(4)]
GE = [(0, 0, 0), (0, 1, 1), (8192, 0, 2), (8192, 1, 3)]
GF = [(0, 2, 4), (0, 3, 5), (8192, 2, 6), (8192, 3, 7)]

def rot8(t, c, scale, base, ro=None):
    if OPT.get("half", 0):
        return [("s_add_u32 s%d, s%d, %d" % (t, sROH, c), None), ("s_and_b32 s%d, s%d, 3" % (t, t), None), ("s_add_u32 s%d, s%d, %d" % (t, t, c & 4), None), (scale, None),
                ("s_add_u32 s%d, s%d, s%d" % (t, t, base), None)]
    return [("s_add_u32 s%d, s%d, %d" % (t, sRO2 if ro is None else ro, c), None), ("s_and_b32 s%d, s%d, 7" % (t, t), None), (scale, None),
            ("s_add_u32 s%d, s%d, s%d" % (t, t, base), None)]

def treg(kap, th): return 16 * (kap >> 1) + 8 * (kap & 1) + 4 * th

def setup(p):
    p("s_cmp_ge_u32 s2, 256"); p("s_cbranch_scc1 K_END")
    if STAMP: p("s_memrealtime s[62:63]")
    p("s_lshr_b32 s%d, s2, 2" % sT0); p("s_and_b32 s%d, s%d, 1" % (sU1, sT0))
    if OPT.get("flipv", 0): p("s_xor_b32 s%d, s%d, 1" % (sU1, sU1))
    p("s_lshl_b32 s%d, s%d, 3" % (sT0, sU1)); p("s_add_u32 s%d, s%d, 24" % (sT0, sT0))
    p("s_load_dwordx2 s[%d:%d], s[0:1], s%d" % (R_W1, R_W1 + 1, sT0))
    for r, off in ((R_CKV, 8), (R_WS, 96), (R_X, 0), (R_WQ, 16), (R_WO, 40), (R_WG, 56), (R_WU, 64), (R_WD, 72), (R_OUT, 80), (R_DBG, 88)):
        p("s_load_dwordx2 s[%d:%d], s[0:1], %d" % (r, r + 1, off))
    for r, n in ((R_W1, 4194304), (R_CKV, 2097152), (R_WS, WS_BYTES), (R_X, 2097152), (R_WQ, 4194304), (R_WO, 4194304), (R_WG, 512 * 3584),
                 (R_WU, 512 * 3584), (R_WD, 1792 * 1024), (R_OUT, 2097152), (R_DBG, 256)):
        p("s_mov_b32 s%d, 0x%x" % (r + 2, n)); p("s_mov_b32 s%d, 0x00020000" % (r + 3))
    L, A, B, C = 96, 97, 98, 99
    p("v_lshrrev_b32 v1, 6, v0"); p("v_and_b32 v%d, 63, v0" % L)
    p("v_readfirstlane_b32 s%d, v1" % sWAVE, note="=wave")
    p("s_lshr_b32 s%d, s2, 3" % sIDX); p("s_and_b32 s%d, s2, 7" % sX8)
    p("v_lshlrev_b32 v%d, 4, v%d" % (VL16, L)); p("v_lshlrev_b32 v%d, 7, v%d" % (VL128, L))
    p("v_cmp_ne_u32 vcc, 0, v%d" % L); p("v_mov_b32 v%d, 0" % VONE); p("v_mov_b32 v%d, 0x40000000" % A)
    p("v_cndmask_b32 v%d, v%d, v%d, vcc" % (VONE, VONE, A))
    p("v_bfe_u32 v%d, v%d, 1, 2" % (A, L)); p("v_bfe_u32 v%d, v%d, 4, 1" % (B, L)); p("v_xor_b32 v%d, v%d, v%d" % (A, A, B))
    p("s_and_b32 s%d, s%d, 1" % (sT0, sWAVE)); p("s_lshl_b32 s%d, s%d, 1" % (sT0, sT0)); p("v_xor_b32 v%d, s%d, v%d" % (A, sT0, A))
    p("v_and_b32 v%d, 1, v%d" % (B, L)); p("v_lshlrev_b32 v%d, 4, v%d" % (B, B)); p("v_lshl_add_u32 v%d, v%d, 5, v%d" % (A, A, B))
    p("v_lshrrev_b32 v%d, 3, v%d" % (B, L)); p("s_lshl_b32 s%d, s%d, 3" % (sT0, sWAVE)); p("v_add_u32 v%d, s%d, v%d" % (B, sT0, B))
    p("v_lshl_add_u32 v%d, v%d, 13, v%d" % (VD8, B, A))
    p("v_mul_u32_u24 v%d, 3584, v%d" % (B, B)); p("v_add_u32 v%d, v%d, v%d" % (VDG, B, A))
    p("s_and_b32 s%d, s2, 1" % sT0); p("s_lshl_b32 s%d, s%d, 2" % (sT0, sT0)); p("s_and_b32 s%d, s%d, 3" % (sT1, sIDX))
    p("s_add_u32 s%d, s%d, s%d" % (sT0, sT0, sT1)); p("s_lshl_b32 s%d, s%d, 3" % (sT0, sT0)); p("s_add_u32 s%d, s%d, s%d" % (sO1B, sT0, sWAVE))
    p("v_lshrrev_b32 v%d, 3, v%d" % (A, L)); p("v_lshlrev_b32 v%d, 10, v%d" % (A, A)); p("s_lshl_b32 s%d, s%d, 15" % (sT0, sO1B)); p("v_add_u32 v%d, s%d, v%d" % (A, sT0, A))
    p("v_lshrrev_b32 v%d, 4, v%d" % (B, L)); p("v_and_b32 v%d, 7, v%d" % (C, L)); p("v_xor_b32 v%d, v%d, v%d" % (B, B, C))
    p("v_lshl_add_u32 v%d, v%d, 4, v%d" % (VDT, B, A)); p("v_xor_b32 v%d, 4, v%d" % (B, B)); p("v_lshl_add_u32 v%d, v%d, 4, v%d" % (VDT + 1, B, A))
    p("s_lshl_b32 s%d, s%d, 12" % (sLT, sWAVE)); p("s_add_u32 s%d, s%d, 65536" % (sLT, sLT)); p("s_lshl_b32 s%d, s%d, 10" % (sLW, sWAVE))
    p("s_lshr_b32 s%d, s%d, 2" % (sT0, sIDX)); p("s_lshl_b32 s%d, s%d, 1" % (sT1, sT1)); p("s_add_u32 s%d, s%d, s%d" % (sT1, sT1, sT0))
    if not OPT.get("rot", 1): p("s_mov_b32 s%d, 0" % sT1)
    if OPT.get("rot", 1) == 2: p("s_mov_b32 s%d, s%d" % (sT1, sT0))
    if OPT.get("rot", 1) == 3: p("s_sub_u32 s%d, s%d, s%d" % (sT1, sT1, sT0))
    p("s_and_b32 s%d, s2, 2" % sT2); p("s_lshl_b32 s%d, s%d, 2" % (sT2, sT2)); p("s_add_u32 s%d, s%d, s%d" % (sT2, sT2, sT0))
    p("s_lshl_b32 s%d, s%d, 20" % (sO1, sT2)); p("s_lshl_b32 s%d, s%d, 9" % (sT2, sT2))
    for c in range(8):
        hy = OPT.get("hy", 0)
        if hy and c < hy: p("s_mov_b32 s%d, %d" % (sT0, c))
        elif hy:
            if c == hy:
                p("s_and_b32 s%d, s%d, 7" % (sT1, sT1)); p("s_sub_u32 s%d, s%d, %d" % (sT0, sT1, 8 - hy)); p("s_min_u32 s%d, s%d, s%d" % (sT1, sT1, sT0))
            p("s_add_u32 s%d, s%d, %d" % (sT0, sT1, c - hy)); p("s_sub_u32 s%d, s%d, %d" % (sT3, sT0, 8 - hy)); p("s_min_u32 s%d, s%d, s%d" % (sT0, sT0, sT3))
            p("s_add_u32 s%d, s%d, %d" % (sT0, sT0, hy))
        else:
            p("s_add_u32 s%d, s%d, %d" % (sT0, sT1, c)); p("s_and_b32 s%d, s%d, 7" % (sT0, sT0))
        p("s_lshl_b32 s%d, s%d, 7" % (sTAB + c, sT0)); p("s_lshl_b32 s%d, s%d, 19" % (sT0, sT0)); p("s_add_u32 s%d, s%d, s%d" % (sTAB + 8 + c, sT0, sT2))
    p("s_waitcnt lgkmcnt(0)")

def setup2(p):
    L, A, B, C = 96, 97, 98, 99
    p("v_bfe_u32 v%d, v%d, 2, 2" % (A, L)); p("v_lshrrev_b32 v%d, 4, v%d" % (B, L))
    p("v_lshl_add_u32 v%d, v%d, 3, v%d" % (C, B, A)); p("v_lshlrev_b32 v%d, 7, v%d" % (C, C))
    p("v_and_b32 v100, 3, v%d" % L); p("v_lshl_add_u32 v%d, v100, 3, v%d" % (C, C))
    p("v_bfe_u32 v%d, v%d, 3, 2" % (A, L))
    for b in range(4):
        p("v_xor_b32 v100, %d, v%d" % (b, A)); p("v_lshl_add_u32 v%d, v100, 5, v%d" % (VWR + b, C))
    p("v_and_b32 v%d, 15, v%d" % (A, L)); p("v_bfe_u32 v%d, v%d, 1, 3" % (B, L)); p("v_lshrrev_b32 v%d, 4, v%d" % (C, L))
    p("v_xor_b32 v%d, v%d, v%d" % (B, B, C)); p("v_lshlrev_b32 v%d, 4, v%d" % (B, B)); p("v_lshl_add_u32 v%d, v%d, 7, v%d" % (A, A, B))
    p("v_add_u32 v%d, s%d, v%d" % (VTA, sLT, A)); p("v_xor_b32 v%d, 64, v%d" % (VTA + 1, VTA))
    p("s_lshl_b32 s%d, s%d, 24" % (sT0, sU1)); p("s_add_u32 s%d, s%d, s%d" % (sO1, sO1, sT0)); p("s_add_u32 s%d, s%d, 0x%x" % (sO1, sO1, WS_K))
    p("s_lshl_b32 s%d, s%d, 13" % (sT0, sO1B)); p("s_add_u32 s%d, s%d, s%d" % (sO1, sO1, sT0)); p("s_add_u32 s%d, s%d, 4096" % (sO1B, sO1))
    p("s_lshl_b32 s%d, s2, 3" % sLNROW); p("s_add_u32 s%d, s%d, s%d" % (sLNROW, sLNROW, sWAVE))
    p("s_lshl_b32 s%d, s%d, 2" % (sHEAD, sX8)); p("s_and_b32 s%d, s%d, 3" % (sT0, sIDX)); p("s_add_u32 s%d, s%d, s%d" % (sHEAD, sHEAD, sT0))
    p("s_and_b32 s%d, s%d, 3" % (sS4, sWAVE))
    p("s_and_b32 s%d, s%d, 28" % (sT0, sIDX))
    p("s_add_u32 s%d, s%d, 3" % (sTB, sT0)); p("s_sub_u32 s%d, s%d, s%d" % (sTB, sTB, sS4))
    p("s_sub_u32 s%d, 60, s%d" % (sT0, sT0)); p("s_add_u32 s%d, s%d, s%d" % (sT1, sT0, sS4))
    p("s_cmp_ge_u32 s%d, 4" % sWAVE); p("s_cselect_b32 s%d, s%d, s%d" % (sTB, sT1, sTB))
    p("s_add_u32 s%d, s%d, 3" % (sLAST, sT0))
    p("s_lshl_b32 s%d, s%d, 7" % (sF0, sHEAD)); p("s_lshl_b32 s%d, s%d, 6" % (sT0, sHEAD)); p("s_add_u32 s%d, s%d, 1536" % (sT0, sT0))
    p("s_cmp_ge_u32 s%d, 24" % sHEAD); p("s_cselect_b32 s%d, s%d, s%d" % (sF0, sT0, sF0))
    p("s_lshl_b32 s%d, s%d, 8" % (sQC, sHEAD))
    p("s_lshl_b32 s%d, s%d, 15" % (sXN, sTB)); p("s_add_u32 s%d, s%d, 0x%x" % (sXN, sXN, WS_XN))
    p("s_mul_i32 s%d, s%d, %d" % (sCTX, sTB, 368 * 1024)); p("s_add_u32 s%d, s%d, 0x%x" % (sCTX, sCTX, WS_CH))
    p("s_lshl_b32 s%d, s%d, 5" % (sHO, sF0)); p("s_add_u32 s%d, s%d, s%d" % (sHO, sHO, sCTX)); p("s_add_u32 s%d, s%d, %d" % (sHO, sHO, 256 * 1024))
    p("s_add_u32 s%d, s%d, 2048" % (sHO2, sHO)); p("s_cmp_ge_u32 s%d, 24" % sHEAD); p("s_cselect_b32 s%d, 0x%x, s%d" % (sHO2, OOB, sHO2))
    p("s_lshl_b32 s%d, s%d, 13" % (sT0, sHEAD)); p("s_add_u32 s%d, s%d, s%d" % (sCTX, sCTX, sT0))
    p("s_lshl_b32 s%d, s%d, 19" % (sHB, sHEAD))
    p("s_and_b32 s%d, s%d, 3" % (sRO2, sIDX)); p("s_lshl_b32 s%d, s%d, 1" % (sRO2, sRO2)); p("s_lshr_b32 s%d, s%d, 2" % (sT0, sIDX))
    p("s_add_u32 s%d, s%d, s%d" % (sRO2, sRO2, sT0)); p("s_and_b32 s%d, s%d, 7" % (sRO2, sRO2))
    if not OPT.get("rot2", 1): p("s_mov_b32 s%d, 0" % sRO2)
    if OPT.get("rot2", 1) == 2: p("s_lshr_b32 s%d, s%d, 2" % (sRO2, sIDX))
    if OPT.get("rot2", 1) == 3: p("s_and_b32 s%d, s%d, 3" % (sRO2, sIDX)); p("s_lshl_b32 s%d, s%d, 1" % (sRO2, sRO2))
    p("s_lshr_b32 s%d, s%d, 2" % (sROH, sIDX)); p("s_add_u32 s%d, s%d, s%d" % (sROH, sROH, sIDX))
    if STAMP:
        p("s_lshl_b32 s99, s2, 3"); p("s_add_u32 s99, s99, s%d" % sWAVE); p("s_lshl_b32 s99, s99, 10"); p("s_add_u32 s99, s99, 0x6000000")

WS_STAT = 0x5100000
def ln_list_a():
    q = Rec(); T0, T1, T2, XR, F = VPOLL, 98, 99, 100, 104
    for j in range(4):
        q("v_lshlrev_b32 v%d, 16, v%d" % (F + 2 * j, XR + j)); q("v_and_b32 v%d, 0xffff0000, v%d" % (F + 2 * j + 1, XR + j))
    q("v_and_b32 v%d, 0x70, v%d" % (T1, VL16)); q("v_lshlrev_b32 v%d, 6, v%d" % (T1, T1)); q("v_lshrrev_b32 v%d, 7, v%d" % (T2, VL16))
    q("v_lshl_add_u32 v%d, v%d, 4, v%d" % (T1, T2, T1))
    q("s_lshl_b32 s%d, s2, 13" % sSRC); q("s_lshl_b32 s%d, s%d, 7" % (sDST, sWAVE)); q("s_add_u32 s%d, s%d, s%d" % (sSRC, sSRC, sDST))
    q("buffer_load_dwordx4 %s, v%d, %s, s%d offen" % (vr(XR), T1, sr(R_X), sSRC))
    q("v_add_f32 v%d, v%d, v%d" % (T0, F, F + 1))
    for j in range(2, 8): q("v_add_f32 v%d, v%d, v%d" % (T0, T0, F + j))
    wave_sum(q, T0)
    q("s_nop 0"); q("v_readlane_b32 s%d, v%d, 63" % (sSRC, T0))
    q("v_mov_b32 v%d, 0x3b000000" % T1); q("s_nop 0"); q("v_mul_f32 v%d, s%d, v%d" % (T1, sSRC, T1))
    q("v_sub_f32 v%d, v%d, v%d" % (T2, F, T1)); q("v_mul_f32 v%d, v%d, v%d" % (T0, T2, T2))
    for j in range(1, 8):
        q("v_sub_f32 v%d, v%d, v%d" % (T2, F + j, T1)); q("v_fmac_f32 v%d, v%d, v%d" % (T0, T2, T2))
    wave_sum(q, T0)
    q("s_nop 0"); q("v_readlane_b32 s%d, v%d, 63" % (sSRC, T0))
    q("v_mov_b32 v%d, 0x3b000000" % T2); q("s_nop 0"); q("v_mul_f32 v%d, s%d, v%d" % (T2, sSRC, T2))
    q("v_cvt_pk_bf16_f32 v%d, v%d, v%d" % (T0, T1, T2))
    q("v_lshlrev_b32 v%d, 16, v%d" % (T1, T0)); q("v_and_b32 v%d, 0xffff0000, v%d" % (T2, T0))
    q("v_add_f32 v%d, 0x3727c5ac, v%d" % (T2, T2))
    q("v_cvt_pk_bf16_f32 v%d, v%d, v%d" % (T2, T2, T2)); q("v_lshlrev_b32 v%d, 16, v%d" % (T2, T2))
    q("v_sqrt_f32 v%d, v%d" % (T2, T2)); q("s_lshl_b32 s%d, s%d, 3" % (sSRC, sLNROW))
    q("v_cvt_pk_bf16_f32 v%d, v%d, v%d" % (T2, T2, T2)); q("v_lshlrev_b32 v%d, 16, v%d" % (T2, T2))
    q("s_add_u32 s%d, s%d, 0x%x" % (sSRC, sSRC, WS_STAT))
    L = list(q.l)
    L.append(("buffer_store_dwordx2 v[%d:%d], v%d, %s, s%d offen sc1" % (T1, T2, VONE, sr(R_WS), sSRC), "LS"))
    return L
def ln_list_b0():
    return ["v_and_b32 v104, 0x70, v%d" % VL16, "v_lshrrev_b32 v104, 1, v104", "s_lshl_b32 s%d, s2, 6" % sSRC, "s_add_u32 s%d, s%d, 0x%x" % (sSRC, sSRC, WS_STAT),
            "buffer_load_dwordx2 v[98:99], v104, %s, s%d offen sc1" % (sr(R_WS), sSRC)]
def ln_list_b():
    q = Rec(); M, SD, XR, F, R, T = 98, 99, 100, 104, VSP, VPOLL
    q("v_rcp_f32 v%d, v%d" % (R, SD))
    for j in range(4):
        q("v_lshlrev_b32 v%d, 16, v%d" % (F + 2 * j, XR + j)); q("v_and_b32 v%d, 0xffff0000, v%d" % (F + 2 * j + 1, XR + j))
    for j in range(8): q("v_sub_f32 v%d, v%d, v%d" % (F + j, F + j, M))
    for j in range(4): q("v_cvt_pk_bf16_f32 v%d, v%d, v%d" % (XR + j, F + 2 * j, F + 2 * j + 1))
    for j in range(4):
        q("v_lshlrev_b32 v%d, 16, v%d" % (F + 2 * j, XR + j)); q("v_and_b32 v%d, 0xffff0000, v%d" % (F + 2 * j + 1, XR + j))
    for j in range(8):
        q("v_mul_f32 v%d, v%d, v%d" % (T, F + j, R)); q("v_fma_f32 v%d, -v%d, v%d, v%d" % (F + j, T, SD, F + j))
        q("v_fma_f32 v%d, v%d, v%d, v%d" % (F + j, F + j, R, T))
    for j in range(4): q("v_cvt_pk_bf16_f32 v%d, v%d, v%d" % (XR + j, F + 2 * j, F + 2 * j + 1))
    q("v_and_b32 v%d, 0x200, v%d" % (T, VL16)); q("v_lshlrev_b32 v%d, 2, v%d" % (T, T))
    q("v_and_b32 v%d, 0x180, v%d" % (R, VL16)); q("v_lshl_add_u32 v%d, v%d, 1, v%d" % (T, R, T))
    q("v_and_b32 v%d, 0x70, v%d" % (R, VL16)); q("v_add_u32 v%d, v%d, v%d" % (T, T, R))
    q("s_lshr_b32 s%d, s2, 2" % sSRC); q("s_lshl_b32 s%d, s%d, 15" % (sSRC, sSRC))
    q("s_and_b32 s%d, s2, 1" % sDST); q("s_lshl_b32 s%d, s%d, 7" % (sDST, sDST)); q("s_add_u32 s%d, s%d, s%d" % (sSRC, sSRC, sDST))
    q("s_and_b32 s%d, s2, 2" % sDST); q("s_lshl_b32 s%d, s%d, 9" % (sDST, sDST)); q("s_add_u32 s%d, s%d, s%d" % (sSRC, sSRC, sDST))
    q("s_lshl_b32 s%d, s%d, 12" % (sDST, sWAVE)); q("s_add_u32 s%d, s%d, s%d" % (sSRC, sSRC, sDST))
    L = list(q.l)
    L.append(("buffer_store_dwordx4 %s, v%d, %s, s%d offen sc1" % (vr(XR), T, sr(R_WS), sSRC), "LN"))
    return L

UB = [(u % 8) * 8192 for u in range(32)] + [16384 * x for x in (4, 5, 6, 7, 8, 9, 0, 1, 2, 3, 4, 5, 6, 7, 8, 9)]
def p12(p):
    setup(p)
    toks = {}
    def run(lst):
        for it in lst:
            if isinstance(it, tuple): emit_tagged(p, toks, it[0], it[1])
            else: p(it)
    def wdma(s):
        t = "W%d" % s; b = UB[s]
        if s < 32:
            ps, c = divmod(s, 8); so = "s%d" % (sTAB + 8 + c); L = [("s_nop 0", None)]
            if ps: L = [("s_add_u32 s%d, %s, %d" % (sT2, so, ps * 128), None)]; so = "s%d" % sT2
            return [("s_add_u32 m0, s%d, %d" % (sLW, b), "m0:" + t)] + L + [("buffer_load_dwordx4 v%d, %s, %s offen lds" % (VD8, sr(R_W1), so), t)]
        elif s < 40:
            L = rot8(sT2, s - 32, "s_mul_i32 s%d, s%d, %d" % (sT2, sT2, 64 * 3584), sF0); so = "s%d" % sT2
            rs, v1, rs2, off2, m2 = R_WG, VDG, R_WU, 0, 8192
        else:
            L = rot8(sT2, s - 40, "s_lshl_b32 s%d, s%d, 19" % (sT2, sT2), sQC); so = "s%d" % sT2
            rs, v1, rs2, off2, m2 = R_WQ, VD8, R_WQ, 128, 8192 - 128
        return [("s_add_u32 m0, s%d, %d" % (sLW, b), "m0:" + t)] + L + [
            ("buffer_load_dwordx4 v%d, %s, %s offen lds" % (v1, sr(rs), so), t),
            ("s_add_u32 m0, s%d, %d" % (sLW, b + m2), "m0:" + t), ("s_nop 0", None),
            ("buffer_load_dwordx4 v%d, %s, %s offen offset:%d lds" % (v1, sr(rs2), so, off2), t)]
    def tdma(c):
        t = "T%d" % c
        L = [("s_add_u32 m0, s%d, %d" % (sLT, (c % 3) * 32768), "m0:" + t), ("s_nop 0", None)]
        for q in range(4):
            so = "s%d" % (sTAB + c)
            if q: L.append(("s_add_u32 s%d, %s, %d" % (sT2, so, q * 7168), None)); so = "s%d" % sT2
            L.append(("buffer_load_dwordx4 v%d, %s, %s offen offset:%d lds" % (VDT + (q & 1), sr(R_CKV), so, q * 1024), t))
        return L
    if STAMP: p("s_memrealtime s[64:65]"); p("s_waitcnt lgkmcnt(0)"); p("v_mov_b32 v110, s62"); p("v_mov_b32 v111, s64")
    run(wdma(0)); run(tdma(0)); run(wdma(1)); p("s_barrier"); run(tdma(1))
    if not OPT.get("lazy", 0): run(wdma(2)); run(tdma(2)); run(wdma(3))
    if OPT.get("cpf", 0):
        p("s_cmp_lg_u32 s%d, 7" % sWAVE); p("s_cbranch_scc1 K_NOCPF")
        p("s_getpc_b64 s[100:101]")
        p("s_and_b32 s%d, s%d, 7" % (sT0, sIDX)); p("s_lshl_b32 s%d, s%d, 13" % (sT0, sT0)); p("v_add_u32 v%d, s%d, v%d" % (VSP, sT0, VL128))
        p("v_min_u32 v%d, 0x%x, v%d" % (VSP, OPT.get("reach", 0x1000), VSP))
        cond(p, "global_load_dword v%d, v%d, s[100:101]" % (VDUM, VSP))
        p.label("K_CPFREF")
        p.label("K_NOCPF")
    setup2(p)
    if OPT.get("dbgt", 0):
        p("s_memrealtime s[100:101]"); p("s_waitcnt lgkmcnt(0)"); p("v_mov_b32 v%d, s100" % VSP)
        p("s_lshl_b32 s100, s%d, 2" % sX8); p("s_add_u32 s100, s100, 4"); p("s_add_u32 s101, s%d, s%d" % (sIDX, sWAVE)); p("s_cmp_eq_u32 s101, 0"); p("s_cselect_b32 s100, s100, 0x1000")
        cond(p, "buffer_store_dword v%d, v%d, %s, s100 offen" % (VSP, VONE, sr(R_DBG)))
    if STAMP:
        p("buffer_store_dwordx2 v[110:111], v%d, %s, s99 offen offset:120" % (VONE, sr(R_WS)), note="diag"); p.vq.pop()
    stamp(p, 0)
    items = [(u, [(0, c, 4 * ((u >> 3) & 1) + c) for c in range(4)]) for u in range(32)]
    items += [(32, GE), (33, GE), (32, GF), (33, GF)] + [(s, g) for s in range(34, 38) for g in (GE, GF)]
    items += [(38, GE), (39, GE), (38, GF), (39, GF), (40, XG), (41, XG), (40, YG), (41, YG)] + [(s, g) for s in range(42, 48) for g in (XG, YG)]
    prev = {}
    for s in range(48):
        sz = 8192 if s < 32 else 16384
        ov = [q for q in range(s) if UB[q] < UB[s] + sz and UB[s] < UB[q] + (8192 if q < 32 else 16384)]
        prev[s] = ov[-2:]
    g0 = OPT.get("g0", 304)
    minbar = {32 + i: g0 + OPT.get('gs', 32) * i for i in range(6)}
    MERGE = 576
    st = None
    for var in ("K", "V"):
        if var == "K":
            p("s_cmp_lg_u32 s%d, 0" % sU1); p("s_cbranch_scc1 P1_V"); st = (list(p.lq), list(p.vq), {k: list(v) for k, v in toks.items()})
        else:
            p.label("P1_V"); p.lq, p.vq = list(st[0]), list(st[1]); toks.clear(); toks.update({k: list(v) for k, v in st[2].items()})
        def mf(sl, kk, at, th, fr):
            c = sl % 8; t = treg(2 * c + kk, th); t = "a[%d:%d]" % (t, t + 3)
            acc = vr(8 * at + 4 * th); cc = "0" if (c == 0 and kk == 0) else acc
            if var == "V" and sl < 32: return "%s %s, %s, %s, %s" % (MF, acc, t, vr(fr), cc)
            return "%s %s, %s, %s, %s" % (MF, acc, vr(fr), t, cc)
        sc = [1]
        def st_hook(p):
            stamp(p, sc[0]); sc[0] += 1
        ab = {bp: [st_hook] for bp in (16, 48, 112, 240, 304, 400, 496, 528, 624, 752, 816, 912, 1008)} if STAMP else {}
        B64 = OPT.get("b64", 0)
        if B64:
            OPT.setdefault("c0b", 400); OPT.setdefault("c1b", 912); OPT.setdefault("c1s", 784)
            ab = {}
        BH = 848 if B64 else 880
        ab.setdefault(176, []).append(signal(0)); ab.setdefault(BH, []).append(signal(128))
        def wbl2(p):
            sk = p.newlabel("WB")
            p("s_cmp_lg_u32 s%d, 0" % sWAVE); p("s_cbranch_scc1 %s" % sk); cond(p, "buffer_wbl2 sc1"); p.label(sk)
        if OPT.get("wb", 0):
            for bp_ in ((720,) if OPT["wb"] == 1 else (400, 720)): ab.setdefault(bp_, []).append(wbl2)
            ab.setdefault(880, []).append(signal(64))
        else: ab.setdefault(OPT.get("c1s", 752), []).append(signal(64))
        ew = {80: ["LS"], 176: ["LN"], OPT.get("c1s", 752): ["ST1"], BH: ["STH"], 1008: ["KV"]}
        if OPT.get("wb", 0) == 2: ew[400] = ["ST1"]
        C0B, C1B = OPT.get("c0b", 368), OPT.get("c1b", 944)
        bb = {C0B: [poll_check(R_DBG, "0", 256, True)], C1B: [poll_check(R_DBG, "64", 256, True)]}
        S, pro, init, last_use = engine(toks, items, UB, mf, wdma, prev, minbar, range(8), 512, {b: 0 for b in range(4)},
                                        extra_wait=ew, after_bar=ab, before_bar=bb, maxnew=6 if B64 else 3,
                                        bpos=(list(range(16, B64, 32)) + list(range(B64, 1000, 64)) + [1008]) if B64 else None)
        def tread(c):
            def f(p):
                p.wait_tok(toks["T%d" % c])
                for kk in range(2):
                    ad, o = VTA + kk, (c % 3) * 32768
                    if c % 3 == 2: p("v_add_u32 v%d, 0x10000, v%d" % (96 + kk, VTA + kk)); ad, o = 96 + kk, 0
                    for th in range(2):
                        t = treg(2 * c + kk, th); p("ds_read_b128 a[%d:%d], v%d offset:%d" % (t, t + 3, ad, o + th * 2048))
            return f
        if OPT.get("lazy", 0):
            S.group(0, wdma(2) + tdma(2) + wdma(3), per=3); S.group(16, wdma(4) + wdma(5), per=2)
        else: S.group(0, wdma(4)); S.group(0, wdma(5))
        for c in range(1, 8): S.put(16 * (c - 1) + 6, tread(c))
        S.group(10, tdma(3), per=2); S.group(16, wdma(6)); S.group(16, wdma(7))
        for c in range(4, 8): S.group(16 * (c - 3) + 10, tdma(c), per=2)
        X0 = OPT.get("x0", 1)
        S.spread(X0, ["s_lshl_b32 s%d, s%d, 10" % (sT3, sLNROW), "buffer_load_dwordx4 v[100:103], v%d, %s, s%d offen" % (VL16, sr(R_X), sT3)], per=6)
        S.spread(26, ["v_mov_b32 v104, 0", "s_lshl_b32 s%d, s2, 8" % sT3, "s_add_u32 s%d, s%d, 0x%x" % (sT3, sT3, WS_FLAG),
                      "v_lshrrev_b32 v106, 2, v%d" % VL16, "s_cmp_eq_u32 s%d, 0" % sWAVE,
                      "s_cselect_b32 s%d, s%d, 0x%x" % (sT3, sT3, OOB), ("buffer_store_dword v104, v106, %s, s%d offen sc1" % (sr(R_WS), sT3), "LN")], per=8)
        e = S.spread(28, ln_list_a(), per=3); assert e <= 64, e
        S.spread(80, ln_list_b0(), per=2)
        e = S.spread(100, ln_list_b(), per=3); assert e <= 134, e
        def cvt(grp, q):
            st0 = 96 + 4 * q
            if var == "K":
                kap, th = 2 * grp + (q >> 1), q & 1; src = [16 * kap + 4 * th, 16 * kap + 4 * th + 2, 16 * kap + 8 + 4 * th, 16 * kap + 10 + 4 * th]
            else:
                cb = 4 * grp + q; src = [8 * cb + 2 * j for j in range(4)]
            return ["v_cvt_pk_bf16_f32 v%d, v%d, v%d" % (st0 + j, src[j], src[j] + 1) for j in range(4)]
        def sto(grp, q):
            if OPT.get("nost", 0): return ("s_nop 0", None)
            return ("buffer_store_dwordx4 %s, v%d, %s, s%d offen offset:%d%s" % (vr(96 + 4 * q), VL16, sr(R_WS), sO1B if grp else sO1, q * 1024, "" if OPT.get("wb", 0) else " sc1"), "ST1")
        for ps in range(3):
            for q in range(4):
                t0 = 128 * (ps + 1) + 8 + (28 if ps < 2 else OPT.get("s2", 12)) * q
                S.spread(t0, cvt(ps & 1, q)); S.put(t0 + 6, *sto(ps & 1, q))
        S.put(250, "s_add_u32 s%d, s%d, 0x80000" % (sO1, sO1)); S.put(378, "s_add_u32 s%d, s%d, 0x80000" % (sO1B, sO1B))
        S.spread(522, sum([cvt(1, q) for q in range(4)], []))
        for q in range(4): S.put(OPT.get("fb", 660) + OPT.get("fs", 20) * q, *sto(1, q))
        S.put(C0B - 24, poll_issue(R_DBG, "0"))
        def stag(f):
            def g(lo):
                def h(p):
                    sk = p.newlabel("SK")
                    p("s_cmp_%s_u32 s%d, 4" % ("ge" if lo else "lt", sWAVE)); p("s_cbranch_scc1 %s" % sk); f(p); p.label(sk)
                return h
            return g(True), g(False)
        def pf_xn(t):
            def f(p):
                p("s_lshl_b32 s%d, s%d, 16" % (sT1, sIDX)); p("s_lshl_b32 s%d, s%d, 13" % (sT0, sS4)); p("s_add_u32 s%d, s%d, s%d" % (sT0, sT1, sT0))
                cond(p, "buffer_load_dword v%d, v%d, %s, s%d offen offset:0" % (VDUM, VL128, sr(R_WS), sT0)) if t == 0 else (
                    p("s_add_u32 s%d, s%d, 32768" % (sT0, sT0)), cond(p, "buffer_load_dword v%d, v%d, %s, s%d offen" % (VDUM, VL128, sr(R_WS), sT0)))
            return f
        def pf_kv(t):
            def f(p):
                p("v_and_b32 v%d, 0x380, v%d" % (VSP, VL128)); p("v_bfe_u32 v%d, v%d, 7, 2" % (VPOLL, VL16)); p("v_lshl_add_u32 v%d, v%d, 13, v%d" % (VSP, VPOLL, VSP))
                p("v_lshrrev_b32 v%d, 9, v%d" % (VPOLL, VL16)); p("v_lshl_add_u32 v%d, v%d, 24, v%d" % (VSP, VPOLL, VSP))
                p("s_lshl_b32 s%d, s%d, 15" % (sT0, sWAVE)); p("s_add_u32 s%d, s%d, s%d" % (sT0, sT0, sHB)); p("s_and_b32 s%d, s%d, 28" % (sT1, sIDX)); p("s_lshl_b32 s%d, s%d, 8" % (sT1, sT1))
                p("s_add_u32 s%d, s%d, s%d" % (sT0, sT0, sT1)); p("s_add_u32 s%d, s%d, 0x%x" % (sT0, sT0, WS_K + t * 262144))
                cond(p, "buffer_load_dword v%d, v%d, %s, s%d offen" % (VDUM, VSP, sr(R_WS), sT0))
            return f
        if OPT.get("pf", 0):
            S.put(C0B + 9, stag(pf_xn(0))[1]); S.put(C0B + 41, stag(pf_xn(1))[1])
        if OPT.get("pfw", 0): S.put(OPT["pfw"], pf_p2w)
        if OPT.get("gw", 0):
            a_, b_ = stag(global_warm); S.put(OPT["gw"], b_); S.put(OPT["gw"] + OPT.get("gw2", 32), a_)
        if OPT.get("pfx", 0):
            def pf_own(p):
                p("v_lshrrev_b32 v%d, 9, v%d" % (VSP, VL16)); p("v_add_u32 v%d, s%d, v%d" % (VSP, sRO2, VSP)); p("v_and_b32 v%d, 7, v%d" % (VSP, VSP))
                p("v_and_b32 v%d, 0xf80, v%d" % (VPOLL, VL128)); p("v_lshl_add_u32 v%d, v%d, 12, v%d" % (VSP, VSP, VPOLL))
                cond(p, "buffer_load_dword v%d, v%d, %s, s%d offen" % (VDUM, VSP, sr(R_WS), sXN))
            a_, b_ = stag(pf_own); S.put(C0B + OPT.get("pfx1", 12), b_); S.put(C0B + OPT.get("pfx2", 44), a_)
        if OPT.get("pfkv", 0):
            for t in range(2):
                a_, b_ = stag(pf_kv(t)); S.put(C1B + 8 + 40 * t, a_); S.put(C1B + 26 + 40 * t, b_)
        for c in range(8):
            L = rot8(sT3, c, "s_lshl_b32 s%d, s%d, 12" % (sT3, sT3), sXN)
            for kk in range(2):
                for th in range(2):
                    t = treg(2 * c + kk, th)
                    L.append("buffer_load_dwordx4 a[%d:%d], v%d, %s, s%d offen offset:%d sc1" % (t, t + 3, VL16, sr(R_WS), sT3, kk * 2048 + th * 1024))
            need = 512 + (16 * c if c < 2 else 32 * c)
            t0 = max(401 + 16 * c, need - OPT.get("xla", 100))
            if not OPT.get("noxn", 0): S.spread(t0, L[:-4], per=5); S.spread(t0 + 1, L[-4:], per=1, step=2)
        def swiglu(grp):
            r_ = []
            for th in range(2):
                st0 = 96 + 4 * th; E = 104
                g = [8 * (4 * grp + (j >> 2)) + 4 * th + (j & 3) for j in range(8)]; u = [x + 16 for x in g]
                for j in range(8): r_.append("v_mul_f32 v%d, 0xbfb8aa3b, v%d" % (E + j, g[j]))
                for j in range(8): r_.append("v_exp_f32 v%d, v%d" % (E + j, E + j))
                for j in range(8): r_.append("v_mul_f32 v%d, v%d, v%d" % (g[j], g[j], u[j]))
                for j in range(8): r_.append("v_add_f32 v%d, 1.0, v%d" % (E + j, E + j))
                for j in range(8): r_.append("v_rcp_f32 v%d, v%d" % (E + j, E + j))
                r_.append("s_nop 0")
                for j in range(8): r_.append("v_mul_f32 v%d, v%d, v%d" % (g[j], g[j], E + j))
                for j in range(4): r_.append("v_cvt_pk_bf16_f32 v%d, v%d, v%d" % (st0 + j, g[2 * j], g[2 * j + 1]))
                r_.append(("buffer_store_dwordx4 %s, v%d, %s, s%d offen offset:%d sc1" % (vr(st0), VL16, sr(R_WS), sHO2 if grp else sHO, th * 1024), "STH"))
            return r_
        e = S.spread(736 + 5, swiglu(0), per=4); assert e <= 768, e
        e = S.spread(768 + 5, swiglu(1), per=4); assert e <= 800, e
        S.spread(1008 + 5, qepi(0), per=5)
        S.spread(900, ["v_accvgpr_write_b32 a%d, 0" % r for r in range(64)], per=1)
        S.put(C1B - 14, poll_issue(R_DBG, "64"))
        kv = ["s_lshl_b32 s%d, s%d, 13" % (sT0, sWAVE), "s_add_u32 s%d, s%d, s%d" % (sT1, sHB, sT0), "s_add_u32 s%d, s%d, 0x%x" % (sT1, sT1, WS_K),
              "s_add_u32 s%d, s%d, 0x%x" % (sT3, sT1, WS_V - WS_K - 6 * 8192), "s_add_u32 s%d, s%d, %d" % (sSRC, sT0, 65536 - 6 * 8192),
              "s_cmp_ge_u32 s%d, 6" % sWAVE, "s_cselect_b32 s%d, s%d, s%d" % (sT1, sT3, sT1), "s_cselect_b32 s%d, s%d, s%d" % (sT0, sSRC, sT0)]
        S.spread(952, kv, per=8)
        kv = []
        for hf in range(2):
            kv += [("s_add_u32 m0, s%d, %d" % (sT0, hf * 4096), "m0:KV"), ("s_add_u32 s%d, s%d, %d" % (sT3, sT1, hf * 4096), None)]
            kv += [("buffer_load_dwordx4 v%d, %s, s%d offen offset:%d sc1 lds" % (VL16, sr(R_WS), sT3, j * 1024), "KV") for j in range(4)]
        assert max(S.busy) < 882, max(S.busy)
        assert max(last_use[40], last_use[42]) < C1B
        LS0, LS1 = late_setup()
        e = S.spread(884 if not B64 else 914, LS1, per=2 if not B64 else 3); assert e <= 951, e
        S.spread(980, LS0, per=1)
        for f in range(OPT.get("la", 7)): S.put(1009 + 2 * f, "ds_read_b128 a[%d:%d], v%d offset:%d" % (64 + 4 * f, 67 + 4 * f, VKA, f * 1024), "A%d" % f)
        S.spread(953, kv, step=2)
        assert max(last_use[40], last_use[42]) < 944
        p.wait_tok(sum([toks["W%d" % s] for s in init], [])); p("s_barrier")
        tread(0)(p)
        run(pro)
        S.emit(p, toks, 0, MERGE)
        if var == "K": p("s_branch P2_M")
    p.label("P2_M")
    S.emit(p, toks, MERGE, None)
    stamp(p, 14)
    return toks

def late_setup():
    p = Rec()
    p("s_cmp_ge_u32 s%d, 2" % sS4)
    p("s_mov_b32 s%d, 0x%x" % (sSRC, WS_K + 6 * 8192)); p("s_cselect_b32 s%d, 0x%x, s%d" % (sSRC, WS_V, sSRC))
    p("s_mov_b32 s%d, 0x%x" % (sMAX, WS_K)); p("s_cselect_b32 s%d, 0x%x, s%d" % (sMAX, WS_V, sMAX))
    p("s_mov_b32 s%d, 0" % sRB); p("s_cselect_b32 s%d, 0x10000, s%d" % (sRB, sRB))
    p("s_mov_b32 s%d, %d" % (sDST, 6 * 8192)); p("s_cselect_b32 s%d, 0, s%d" % (sDST, sDST))

    p("s_lshl_b32 s%d, s%d, 13" % (sT0, sS4)); p("s_add_u32 s%d, s%d, s%d" % (sSRC, sSRC, sT0)); p("s_add_u32 s%d, s%d, s%d" % (sSRC, sSRC, sHB))
    p("s_add_u32 s%d, s%d, s%d" % (sDST, sDST, sT0))
    p("s_lshl_b32 s%d, s%d, 13" % (sT0, sLAST)); p("s_add_u32 s%d, s%d, s%d" % (sMAX, sMAX, sT0)); p("s_add_u32 s%d, s%d, s%d" % (sMAX, sMAX, sHB))
    nld = len(p.l)
    p4_setup(p)
    p("v_mov_b32 v%d, v%d" % (VKA, VL16)); p("v_add_u32 v%d, 16384, v%d" % (VKB, VL16)); p("v_mov_b32 v%d, v%d" % (VV, VL16))
    p("v_bfe_u32 v%d, v%d, 4, 4" % (VQM, VL16)); p("v_lshrrev_b32 v%d, 8, v%d" % (TM, VL16)); p("v_lshlrev_b32 v%d, 2, v%d" % (TM, TM))
    p("v_sub_u32 v%d, v%d, v%d" % (VQM, VQM, TM)); p("v_mov_b32 v%d, 0xff800000" % TM)
    for r in range(4): p("v_cmp_gt_i32 s[%d:%d], %d, v%d" % (sTAB + 2 * r, sTAB + 1 + 2 * r, r, VQM))
    p("v_mov_b32 v%d, 0" % LR[1][0]); p("v_mov_b32 v%d, 0" % LR[1][1])
    p("s_mov_b32 s%d, %s" % (sTHR, f32hex(THR))); p("s_max_u32 s%d, s%d, 2" % (sRING, sTB)); p("s_sub_u32 s%d, s%d, 2" % (sRING, sRING)); p("s_lshr_b32 s%d, s%d, 1" % (sRING, sRING))
    if not OPT.get("fast", 1): p("s_mov_b32 s%d, 0" % sRING)
    p("s_lshl_b32 s%d, s%d, 1" % (sUU, sRING)); p("s_add_u32 s%d, s%d, 1" % (sUU, sUU)); p("s_mov_b32 s%d, 0" % sPF)
    return p.l[:nld], p.l[nld:]

def global_warm(p):
    end = p.newlabel("GW")
    p("s_mov_b32 s%d, s%d" % (sT0, sLNROW))
    for rs, n in ((R_WG, 224), (R_WU, 224), (R_WQ, 512), (R_WD, 224), (R_WO, 512)):
        nx = p.newlabel("GW")
        p("s_cmp_ge_u32 s%d, %d" % (sT0, n)); p("s_cbranch_scc1 %s" % nx)
        p("s_lshl_b32 s%d, s%d, 13" % (sT0, sT0))
        cond(p, "buffer_load_dword v%d, v%d, %s, s%d offen" % (VDUM, VL128, sr(rs), sT0))
        p("s_branch %s" % end)
        p.label(nx); p("s_sub_u32 s%d, s%d, %d" % (sT0, sT0, n))
    p.label(end)

def pf_p2w(p):
    l1, l2, l3 = p.newlabel("PF"), p.newlabel("PF"), p.newlabel("PF")
    p("s_cmp_lt_u32 s%d, 4" % sWAVE); p("s_cbranch_scc1 %s" % l3)
    p("s_cmp_ge_u32 s%d, 2" % sS4); p("s_cbranch_scc1 %s" % l1)
    p("v_and_b32 v%d, 0x380, v%d" % (VSP, VL128)); p("v_lshrrev_b32 v%d, 7, v%d" % (VPOLL, VL16)); p("v_lshl_add_u32 v%d, v%d, 13, v%d" % (VSP, VPOLL, VSP))
    p("s_lshl_b32 s%d, s%d, 1" % (sT0, sIDX)); p("s_add_u32 s%d, s%d, s%d" % (sT0, sT0, sS4)); p("s_lshl_b32 s%d, s%d, 16" % (sT0, sT0))
    p("s_lshl_b32 s%d, s%d, 10" % (sT1, sX8)); p("s_add_u32 s%d, s%d, s%d" % (sT0, sT0, sT1))
    cond(p, "buffer_load_dword v%d, v%d, %s, s%d offen" % (VDUM, VSP, sr(R_WQ), sT0))
    p("s_branch %s" % l3)
    p.label(l1)
    p("v_and_b32 v%d, 0x180, v%d" % (VSP, VL128)); p("v_lshrrev_b32 v%d, 6, v%d" % (VPOLL, VL16)); p("v_mul_u32_u24 v%d, 3584, v%d" % (VPOLL, VPOLL))
    p("v_add_u32 v%d, v%d, v%d" % (VSP, VSP, VPOLL))
    p("s_mul_i32 s%d, s%d, %d" % (sT0, sIDX, 16 * 3584)); p("s_lshl_b32 s%d, s%d, 9" % (sT1, sX8)); p("s_lshl_b32 s%d, s%d, 8" % (sT3, sX8)); p("s_add_u32 s%d, s%d, 1536" % (sT3, sT3))
    p("s_cmp_ge_u32 s%d, 6" % sX8); p("s_cselect_b32 s%d, s%d, s%d" % (sT1, sT3, sT1)); p("s_add_u32 s%d, s%d, s%d" % (sT0, sT0, sT1))
    p("s_cmp_eq_u32 s%d, 3" % sS4); p("s_cbranch_scc1 %s" % l2)
    cond(p, "buffer_load_dword v%d, v%d, %s, s%d offen" % (VDUM, VSP, sr(R_WG), sT0))
    p("s_branch %s" % l3)
    p.label(l2)
    cond(p, "buffer_load_dword v%d, v%d, %s, s%d offen" % (VDUM, VSP, sr(R_WU), sT0))
    p.label(l3)

def qepi(grp):
    r = []
    for kap in (2 * grp, 2 * grp + 1):
        for j in range(16): r.append("v_mul_f32 v%d, %s, v%d" % (16 * kap + j, f32hex(QSCALE), 16 * kap + j))
        for th in range(2):
            b = 16 * kap + 4 * th
            for j, s_ in enumerate((b, b + 2, b + 8, b + 10)): r.append("v_cvt_pk_bf16_f32 v%d, v%d, v%d" % (b + j, s_, s_ + 1))
    return r

SREG = [[8 + (e & 7) + 16 * (e >> 3) for e in range(16)], [40 + (e & 7) + 16 * (e >> 3) for e in range(16)]]
CI, PB, E, LR, VKA, VKB, VV, VQM, TM = 64, (80, 88), 96, ((100, 101), (102, 103)), 104, 105, 106, 107, 108
def attention(p, toks0):
    AF = 64; LA = OPT.get("la", 7); KVSC = "sc1 " if OPT.get("kvsc", 1) else ""
    AFN = 8 if OPT.get("acc", 0) and LA > 7 else OPT.get("afn", 16)
    if OPT.get("acc", 0): AFN = 8
    fr = lambda j: "a[%d:%d]" % (AF + 4 * (j % AFN), AF + 4 * (j % AFN) + 3)
    O = lambda cb, qh: "a[%d:%d]" % (8 * cb + 4 * qh, 8 * cb + 4 * qh + 3)
    Q = lambda qh, kap: vr(16 * kap + 4 * qh)
    def dma_block():
        if OPT.get("nodma", 0): return
        p("s_min_u32 s%d, s%d, s%d" % (sT0, sSRC, sMAX)); p("s_and_b32 s%d, s%d, 0xffff" % (sT1, sDST)); p("s_add_u32 m0, s%d, s%d" % (sT1, sRB))
        p("s_add_u32 s%d, s%d, 4096" % (sT2, sT0))
        for j in range(4): cond(p, "buffer_load_dwordx4 v%d, %s, s%d offen offset:%d %slds" % (VL16, sr(R_WS), sT0, j * 1024, KVSC))
        p("s_add_u32 m0, m0, 4096"); p("s_add_u32 s%d, s%d, 16384" % (sSRC, sSRC))
        for j in range(4): cond(p, "buffer_load_dwordx4 v%d, %s, s%d offen offset:%d %slds" % (VL16, sr(R_WS), sT2, j * 1024, KVSC))
        p("s_add_u32 s%d, s%d, 16384" % (sDST, sDST))
    def touch():
        if not OPT.get("touch", 0): return
        p("s_add_u32 s%d, s%d, 32768" % (sT0, sSRC)); p("s_min_u32 s%d, s%d, s%d" % (sT0, sT0, sMAX)); p("s_add_u32 s%d, s%d, 16384" % (sSRC, sSRC))
        cond(p, "buffer_load_dword v%d, v%d, %s, s%d offen" % (VDUM, VL128, sr(R_WS), sT0))
    def dma_list():
        L = ["s_min_u32 s%d, s%d, s%d" % (sT0, sSRC, sMAX), "s_and_b32 s%d, s%d, 0xffff" % (sT1, sDST), "s_add_u32 m0, s%d, s%d" % (sT1, sRB), "s_add_u32 s%d, s%d, 4096" % (sT2, sT0)]
        L += [(lambda p, j=j: cond(p, "buffer_load_dwordx4 v%d, %s, s%d offen offset:%d %slds" % (VL16, sr(R_WS), sT0, j * 1024, KVSC))) for j in range(4)]
        L += ["s_add_u32 m0, m0, 4096", "s_add_u32 s%d, s%d, 16384" % (sSRC, sSRC)]
        L += [(lambda p, j=j: cond(p, "buffer_load_dwordx4 v%d, %s, s%d offen offset:%d %slds" % (VL16, sr(R_WS), sT2, j * 1024, KVSC))) for j in range(4)]
        L += ["s_add_u32 s%d, s%d, 16384" % (sDST, sDST)]
        return L
    def role(tag):
        p("s_cmp_ge_u32 s%d, 4" % sWAVE); p("s_cbranch_scc1 AT_RE%s" % tag)
        if tag == "0":
            p("s_cmp_lt_u32 s%d, 2" % sWAVE); p("s_cbranch_scc1 AT_R00"); dma_block(); p.label("AT_R00")
        dma_block()
        p.label("AT_RE%s" % tag)
    kread = lambda j, ad, off: ("ds_read_b128 %s, v%d offset:%d" % (fr(j), ad, off + j * 1024), "A%d" % j)
    vread = lambda j, off: ("ds_read_b128 %s, v%d offset:%d" % (fr(j), VV, off + (j - 8) * 1024), "A%d" % j)
    def maskprep(R=None):
        R = R or [CI + e for e in range(16)]
        for r in range(4):
            p("v_mov_b32 v%d, v%d" % (R[4 + r], TM))
            for e in (r, 12 + r): p("v_cndmask_b32 v%d, v%d, v%d, s[%d:%d]" % (R[e], R[e], TM, sTAB + 2 * r, sTAB + 1 + 2 * r))
        p("s_nop 1")
    def qk_slots(S, dst, zero=False):
        for j in range(16):
            kap, kh, qh = j >> 2, (j >> 1) & 1, j & 1; e0 = 8 * qh + 4 * kh
            S.add("%s %s, %s, %s, %s" % (MF, vr(dst[e0]), fr(j >> 1), Q(qh, kap), ("0" if zero else vr(CI + e0)) if kap == 0 else vr(dst[e0])))
    toks = {}
    def pairwait(S, nf):
        for f in range(0, nf, 2):
            S.s[2 * f]["pre"].append(lambda p, f=f: p.wait_tok(toks["A%d" % (f + 1)][-1]))
    def period(par, pv=True, fast=None):
        cur, nxt = SREG[par], SREG[1 - par]; koff = 0 if par else 8192
        S = Slots(); qk_slots(S, nxt)
        if pv:
            for j in range(16, 32):
                cb, qh = (j - 16) >> 1, j & 1
                S.add("%s %s, %s, %s, %s" % (MF, O(cb, qh), fr(j >> 1), vr(PB[1 - par] + 4 * qh), O(cb, qh)))
        n = len(S.s); nf = n // 2; k = n // 16
        for f in range(LA, nf): S.put(2 * (f - LA), *(kread(f, VKA, koff) if f < 8 else vread(f, koff)))
        for f in range(LA): S.put(2 * (nf - LA + f), *(kread(f, VKA, 8192) if par else kread(f, VKB, 0)))
        pairwait(S, nf)
        for e in range(16):
            qh = e >> 3; l = LR[par][qh]
            add = "v_add_f32 v%d, v%d, v%d" % (l, LR[1 - par][qh] if e % 8 == 0 else l, E + e % 4)
            pe = max(e - 1, 0) if pv else e
            sl = k * pe + k - 1
            if pv and e == 1: S.put(sl, "s_nop 0"); S.put(sl, add)
            else: S.put(k * pe, add)
            if e & 1: S.put(sl, "v_cvt_pk_bf16_f32 v%d, v%d, v%d" % (PB[par] + e // 2, E + (e - 1) % 4, E + e % 4))
            if e < 15: S.put(sl, "v_exp_f32 v%d, v%d" % (E + (e + 1) % 4, cur[e + 1]))
        if pv:
            S.put(30, "v_max_f32 v%d, v%d, v%d" % (TM + 1, LR[par][0], LR[par][1]))
            S.put(30, "v_cmp_lt_f32 vcc, s%d, v%d" % (sTHR, TM + 1))
        else: S.put(n - 1, "s_nop 7")
        S.put(n - 1, "v_exp_f32 v%d, v%d" % (E, nxt[0]))
        if fast and par:
            bp = OPT.get("abar", 8)
            S.put(1, "v_add_u32 v%d, 16384, v%d" % (VKB, VKA)); S.put(5, "v_and_b32 v%d, 0xffff, v%d" % (VKB, VKB))
            if fast == "A": S.put(bp, "s_waitcnt vmcnt(8)")
            S.put(bp, "s_barrier")
            if fast == "A" and not OPT.get("nodma", 0): S.spread(bp + 1, dma_list(), per=1)
        if fast and not par:
            S.put(17, "v_add_u32 v%d, 0x10000, v%d" % (VV, VKA)); S.put(21, "v_mov_b32 v%d, v%d" % (VKA, VKB))
            S.put(25, "s_sub_u32 s%d, s%d, 1" % (sRING, sRING)); S.put(29, "s_cmp_lg_u32 s%d, 0" % sRING)
        S.emit(p, toks)
    def rowred(op, a, b):
        for sw in ("v_permlane16_swap_b32", "v_permlane32_swap_b32"):
            p("v_mov_b32 v%d, v%d" % (b, a)); p("s_nop 1"); p("%s v%d, v%d" % (sw, b, a)); p("s_nop 1"); p("%s v%d, v%d, v%d" % (op, a, a, b))
    def rowmax(cur, qh, d, t, lold=None):
        c = cur[8 * qh]
        if lold is not None: p("v_log_f32 v%d, v%d" % (t, lold))
        p("v_max3_f32 v%d, v%d, v%d, v%d" % (d, c, c + 1, c + 2)); p("v_max3_f32 v%d, v%d, v%d, v%d" % (d, d, c + 3, c + 4))
        p("v_max3_f32 v%d, v%d, v%d, v%d" % (d, d, c + 5, c + 6)); p("v_max_f32 v%d, v%d, v%d" % (d, d, c + 7))
        if lold is not None:
            p("v_add_f32 v%d, 0xc1400000, v%d" % (t, t)); p("v_max_f32 v%d, v%d, v%d" % (d, d, t))
        rowred("v_max_f32", d, t)
    def fixup(par, back):
        cur, nxt = SREG[par], SREG[1 - par]
        p.nop(8)
        if STAMP and OPT.get("acc", 0):
            p("v_accvgpr_read_b32 v%d, a127" % VPOLL); p("s_nop 0"); p("v_add_u32 v%d, 1, v%d" % (VPOLL, VPOLL)); p("s_nop 0"); p("v_accvgpr_write_b32 a127, v%d" % VPOLL)
        for qh in range(2):
            D, Fc = TM + 1, TM + 2
            rowmax(cur, qh, D, Fc, LR[1 - par][qh])
            p("v_ceil_f32 v%d, v%d" % (D, D)); p("v_max_f32 v%d, 0, v%d" % (D, D)); p("v_exp_f32 v%d, -v%d" % (Fc, D))
            for e in range(8 * qh, 8 * qh + 8):
                p("v_sub_f32 v%d, v%d, v%d" % (cur[e], cur[e], D)); p("v_sub_f32 v%d, v%d, v%d" % (nxt[e], nxt[e], D)); p("v_sub_f32 v%d, v%d, v%d" % (CI + e, CI + e, D))
            for cb in range(8):
                for r in range(4):
                    a = 8 * cb + 4 * qh + r
                    p("v_accvgpr_read_b32 v%d, a%d" % (E + r, a)); p("v_mul_f32 v%d, v%d, v%d" % (E + r, E + r, Fc)); p("v_accvgpr_write_b32 a%d, v%d" % (a, E + r))
            l = LR[par][qh]
            p("v_mul_f32 v%d, v%d, v%d" % (l, LR[1 - par][qh], Fc))
            for e in range(8 * qh, 8 * qh + 8, 2):
                p("v_exp_f32 v%d, v%d" % (E, cur[e])); p("v_exp_f32 v%d, v%d" % (E + 1, cur[e + 1])); p("s_nop 0")
                p("v_add_f32 v%d, v%d, v%d" % (l, l, E)); p("v_add_f32 v%d, v%d, v%d" % (l, l, E + 1))
                p("v_cvt_pk_bf16_f32 v%d, v%d, v%d" % (PB[par] + e // 2, E, E + 1))
        p("v_exp_f32 v%d, v%d" % (E, nxt[0]))
        p("s_cmp_eq_u32 s%d, 0" % sPF); p("s_cbranch_scc1 AT_B%d" % par)
        lb = p.newlabel("FXB")
        p("s_cmp_eq_u32 s%d, 2" % sPF); p("s_cbranch_scc1 %s" % lb)
        p("s_cmp_lg_u32 s%d, 0" % sRING); p("s_branch AT_FA_B%d" % par)
        p.label(lb)
        p("s_cmp_lg_u32 s%d, 0" % sRING); p("s_branch AT_FB_B%d" % par)
    for f in range(LA): toks["A%d" % f] = [toks0["A%d" % f][-1]]
    p.vq = []
    if STAMP and OPT.get("acc", 0):
        for i in range(8): p("v_accvgpr_write_b32 a%d, 0" % (120 + i))
        p("s_mov_b32 s98, s100")
    role("0")
    if OPT.get("pfkv2", 0):
        u0 = OPT.get("pfu0", 24)
        p("s_cmp_lt_u32 s%d, 16" % sIDX); p("s_cbranch_scc1 AT_NOPF")
        p("v_and_b32 v%d, 0x780, v%d" % (VSP, VL128)); p("v_bfe_u32 v%d, v%d, 8, 1" % (VPOLL, VL16)); p("v_lshl_add_u32 v%d, v%d, 13, v%d" % (VSP, VPOLL, VSP))
        p("v_lshrrev_b32 v%d, 9, v%d" % (VPOLL, VL16)); p("v_lshl_add_u32 v%d, v%d, 24, v%d" % (VSP, VPOLL, VSP))
        p("s_lshl_b32 s%d, s%d, 14" % (sT0, sWAVE)); p("s_add_u32 s%d, s%d, s%d" % (sT0, sT0, sHB)); p("s_and_b32 s%d, s%d, 12" % (sT1, sIDX)); p("s_lshl_b32 s%d, s%d, 9" % (sT1, sT1))
        p("s_add_u32 s%d, s%d, s%d" % (sT0, sT0, sT1)); p("s_add_u32 s%d, s%d, 0x%x" % (sT0, sT0, WS_K + u0 * 8192))
        for t in range((64 - u0 + 15) // 16):
            if u0 + 16 * (t + 1) > 64:
                p("s_cmp_ge_u32 s%d, %d" % (sWAVE, (64 - u0 - 16 * t) // 2)); p("s_cbranch_scc1 AT_NOPF")
            cond(p, "buffer_load_dword v%d, v%d, %s, s%d offen" % (VDUM, VSP, sr(R_WS), sT0))
            p("s_add_u32 s%d, s%d, 0x20000" % (sT0, sT0))
        p.label("AT_NOPF")
    S = Slots(); qk_slots(S, SREG[0], zero=True)
    for f in range(LA, 8): S.put(2 * (f - LA), *kread(f, VKA, 0))
    for f in range(LA): S.put(2 * (8 - LA + f), *kread(f, VKA, 8192))
    q1 = qepi(1)
    S.spread(0, q1[:24], per=4); S.spread(6, q1[24:], per=4)
    S.spread(12, ["v_xor_b32 v%d, %d, v%d" % (VWR + b_, 32 * b_, VTA) for b_ in range(4)], per=1)
    S.emit(p, toks)
    p.nop(6)
    p("s_cmp_lg_u32 s%d, 0" % sTB); p("s_cbranch_scc1 AT_NM0"); maskprep(SREG[0]); p.label("AT_NM0")
    for qh in range(2):
        rowmax(SREG[0], qh, E + 1, E + 2)
        for e in range(8 * qh, 8 * qh + 8): p("v_sub_f32 v%d, 0, v%d" % (CI + e, E + 1))
        for e in range(8 * qh, 8 * qh + 8): p("v_sub_f32 v%d, v%d, v%d" % (SREG[0][e], SREG[0][e], E + 1))
    p("v_exp_f32 v%d, v%d" % (E, SREG[0][0]))
    p("s_cmp_lg_u32 s%d, 1" % sTB); p("s_cbranch_scc1 AT_NM1"); maskprep(); p.label("AT_NM1")
    period(0, pv=False)
    sig0 = [sorted(e["regs"]) for e in p.lq]
    chk = lambda: [sorted(e["regs"]) for e in p.lq] == sig0
    lq0 = list(p.lq)
    stamp(p, 27); p.lq = list(lq0)
    p("s_cmp_eq_u32 s%d, 0" % sRING); p("s_cbranch_scc1 AT_STEPEND")
    p("v_add_u32 v%d, 0x10000, v%d" % (VV, VKA)); p("v_mov_b32 v%d, v%d" % (VKA, VKB))
    p("s_mov_b32 s%d, 2" % sPF)
    if OPT.get("prio", 0) == 1:
        p("s_cmp_lt_u32 s%d, 4" % sWAVE); p("s_cbranch_scc1 AT_NP"); p("s_setprio 1"); p.label("AT_NP")
    if OPT.get("prio", 0) == 2:
        p("s_sub_u32 s%d, 63, s%d" % (sT0, sLAST)); p("s_lshr_b32 s%d, s%d, 1" % (sT0, sT0)); p("s_add_u32 s%d, s%d, 2" % (sT0, sT0))
        p("s_min_u32 s%d, s%d, s%d" % (sT0, sT0, sRING)); p("s_sub_u32 s%d, s%d, s%d" % (sLNROW, sRING, sT0))
        p("s_cmp_ge_u32 s%d, 4" % sWAVE); p("s_cselect_b32 s%d, s%d, s%d" % (sRING, sT0, sRING))
    p("s_cmp_ge_u32 s%d, 4" % sWAVE); p("s_cbranch_scc1 AT_FB")
    p("s_mov_b32 s%d, 1" % sPF)
    for fa in ("A", "B"):
        p.lq = list(lq0)
        p.raw(".p2align 6") if fa == "B" else None
        p.label("AT_F%s" % fa)
        for par in (1, 0):
            period(par, fast=fa)
            p("s_cbranch_vccnz AT_FIX%d" % par)
            p.label("AT_F%s_B%d" % (fa, par))
            assert chk()
        p("s_cbranch_scc1 AT_F%s" % fa)
        if OPT.get("prio", 0) == 2 and fa == "B":
            p("s_mov_b32 s%d, s%d" % (sRING, sLNROW)); p("s_mov_b32 s%d, 0" % sLNROW); p("s_setprio 1")
            p("s_cmp_lg_u32 s%d, 0" % sRING); p("s_cbranch_scc1 AT_FB")
        p("s_mov_b32 s%d, 0" % sPF)
        stamp(p, 28); p.lq = list(lq0)
        p("s_branch AT_STEPEND2")
    p.lq = list(lq0)
    p.label("AT_STEPEND")
    p("v_add_u32 v%d, 0x10000, v%d" % (VV, VKA)); p("v_mov_b32 v%d, v%d" % (VKA, VKB))
    p.label("AT_STEPEND2")
    p("v_add_u32 v%d, 16384, v%d" % (VKB, VKA)); p("v_and_b32 v%d, 0xffff, v%d" % (VKB, VKB))
    acc_stamp(p, 0)
    p("s_waitcnt vmcnt(8)")
    acc_stamp(p, 1)
    p("s_barrier")
    acc_stamp(p, 2)
    if OPT.get("hm", 0):
        p("s_cmp_lg_u32 s%d, 0" % sHMB); p("s_cbranch_scc1 AT_GPP")
        cond(p, poll_issue(R_DBG, "128")); p("s_branch AT_GPQ")
        p.label("AT_GPP"); cond(p, poll_issue(R_WS, "s%d" % sCF)); p.label("AT_GPQ")
    else: cond(p, poll_issue(R_DBG, "128"))
    role("1")
    acc_stamp(p, 3)
    lqs = {}
    for par in (1, 0):
        p("s_add_u32 s%d, s%d, 1" % (sUU, sUU)); p("s_cmp_ge_u32 s%d, s%d" % (sUU, sTB)); p("s_cbranch_scc1 AT_H%d" % par)
        p.label("AT_P%d" % par)
        lqs[par] = list(p.lq)
        period(par)
        p("s_cbranch_vccnz AT_FIX%d" % par)
        p.label("AT_B%d" % par)
        assert [sorted(e["regs"]) for e in p.lq] == sig0
    p("s_branch AT_STEPEND")
    for par in (1, 0):
        p.lq = list(lqs[par])
        p.label("AT_FIX%d" % par); fixup(par, "AT_B%d" % par)
        p.label("AT_H%d" % par)
        p("s_sub_u32 s%d, s%d, s%d" % (sT0, sUU, sTB)); p("s_cmp_eq_u32 s%d, 1" % sT0); p("s_cbranch_scc1 AT_N%d" % par)
        p("s_cmp_eq_u32 s%d, 2" % sT0); p("s_cbranch_scc1 AT_T%d" % par)
        maskprep(); p("s_branch AT_P%d" % par)
        p.label("AT_N%d" % par)
        p("s_waitcnt lgkmcnt(0)")
        cur = SREG[par]; off = 0 if par else 8192
        for f in range(8, 16): p(vread(f, off)[0])
        p("s_cmp_lt_u32 s%d, 4" % sWAVE); p("s_cbranch_scc1 AT_N%dA" % par)
        p("s_waitcnt vmcnt(0)")
        poll_check(R_DBG, "128", 256)(p)
        p.label("AT_N%dA" % par)
        S = Slots()
        for j in range(16, 32):
            cb, qh = (j - 16) >> 1, j & 1
            S.add("%s %s, %s, %s, %s" % (MF, O(cb, qh), fr(j >> 1), vr(PB[1 - par] + 4 * qh), O(cb, qh)))
        for e in range(16):
            qh = e >> 3; l = LR[par][qh]
            S.put(e, "v_add_f32 v%d, v%d, v%d" % (l, LR[1 - par][qh] if e % 8 == 0 else l, E + e % 4))
            if e & 1: S.put(e, "v_cvt_pk_bf16_f32 v%d, v%d, v%d" % (PB[par] + e // 2, E + (e - 1) % 4, E + e % 4))
            if e < 15: S.put(e, "v_exp_f32 v%d, v%d" % (E + (e + 1) % 4, cur[e + 1]))
        S.put(15, "v_max_f32 v%d, v%d, v%d" % (TM + 1, LR[par][0], LR[par][1])); S.put(15, "v_cmp_lt_f32 vcc, s%d, v%d" % (sTHR, TM + 1))
        def btl(r):
            def f(p):
                sk = p.newlabel("BT")
                p("s_cmp_lt_u32 s%d, 4" % sWAVE); p("s_cbranch_scc1 %s" % sk); p4_tld(p, FULL, r); p.vq = []; p.label(sk)
            return f
        S.put(OPT.get("bt0", 9), btl(0)); S.put(15, btl(1))
        S.emit(p, {})
        p("s_cbranch_vccnz AT_FIX%d" % par); p("s_branch AT_B%d" % par)
        p.label("AT_T%d" % par)
        p("s_waitcnt lgkmcnt(0)")
        off = 0 if par else 8192
        for f in range(8, 16): p(vread(f, off)[0])
        p("v_mov_b32 v%d, v%d" % (TM + 1, LR[1 - par][0])); p("v_mov_b32 v%d, v%d" % (TM + 2, LR[1 - par][1]))
        for j in range(16, 32):
            cb, qh = (j - 16) >> 1, j & 1
            p("%s %s, %s, %s, %s" % (MF, O(cb, qh), fr(j >> 1), vr(PB[1 - par] + 4 * qh), O(cb, qh)))
        p("s_branch AT_EPI")
    p.label("AT_EPI")
    p("s_cmp_lt_u32 s%d, 4" % sWAVE); p("s_cbranch_scc1 AT_EPI2")
    p("s_cmp_gt_u32 s%d, 5" % sWAVE); p("s_cbranch_scc1 AT_EPI1")
    p("s_barrier")
    p.label("AT_EPI1")
    if not OPT.get("hm", 0): p4_tld(p, FULL, 2); p.vq = []
    else:
        p("s_cmp_lg_u32 s%d, 0" % sHM); p("s_cbranch_scc1 AT_EPI1H")
        p4_tld(p, FULL, 2); p("s_branch AT_EPI2")
        p.label("AT_EPI1H")
        p("s_waitcnt vmcnt(0)")
        p("v_readfirstlane_b32 s%d, v%d" % (sT0, VPOLL), note="=val %d" % (8 if OPT.get("early_ok", 1) else 0)); p("s_nop 0")
        p("s_cmp_lt_u32 s%d, 8" % sT0); p("s_cbranch_scc1 AT_EPI2")
        p("s_mov_b32 s%d, 2" % sHMB)
        for r in range(3): p4_tld(p, CRUN, r)
        p.vq = []
    p.label("AT_EPI2")
    stamp(p, 29)
    for qh in range(2):
        rowred("v_add_f32", TM + 1 + qh, E)
    for qh in range(2):
        p("v_rcp_f32 v%d, v%d" % (E + 2 * qh, TM + 1 + qh)); p("v_rcp_f32 v%d, v%d" % (E + 2 * qh + 1, TM + 1 + qh))
    p("v_mov_b32 v%d, 1" % VSP)
    p("s_lshr_b32 s%d, s%d, 1" % (sUU, sUU)); p("s_lshr_b32 s%d, s%d, 1" % (sLAST, sLAST))
    for q in range(8):
        kap, qh = q >> 1, q & 1; st = 8 * q
        if q == 4:
            p("s_add_u32 s%d, s%d, 4096" % (sCTX, sCTX))
            p("s_cmp_ge_u32 s%d, 4" % sWAVE); p("s_cbranch_scc1 AT_EPI3")
            p("s_waitcnt vmcnt(12)"); p("s_barrier")
            p("s_cmp_gt_u32 s%d, s%d" % (sSRC, sMAX)); p("s_cbranch_scc1 AT_EPI3")
            dma_block()
            p.label("AT_EPI3")
        for j in range(8): p("v_accvgpr_read_b32 v%d, a%d" % (st + j, 16 * kap + 8 * (j >> 2) + 4 * qh + (j & 3)))
        for j in range(4): p("v_pk_mul_f32 %s, %s, %s" % (vr(st + 2 * j, 2), vr(st + 2 * j, 2), vr(E + 2 * qh, 2)))
        for j in range(4): p("v_cvt_pk_bf16_f32 v%d, v%d, v%d" % (st + j, st + 2 * j, st + 2 * j + 1))
        p("buffer_store_dwordx4 %s, v%d, %s, s%d offen offset:%d sc1" % (vr(st), VL16, sr(R_WS), sCTX, (q % 4) * 1024))
    stamp(p, 15)
    if OPT.get("hm", 0): p("s_cmp_lg_u32 s%d, 0" % sHMB); p("s_cbranch_scc1 P4_JOINC")
    p("s_cmp_ge_u32 s%d, 4" % sWAVE); p("s_cbranch_scc1 P4_JOINF")
    poll_check(R_DBG, "128", 256)(p)
    p("s_add_u32 s%d, s%d, 1" % (sUU, sUU))
    p("s_cmp_gt_u32 s%d, s%d" % (sSRC, sMAX)); p("s_cbranch_scc1 AT_LDA1")
    p("s_waitcnt vmcnt(12)")
    p("s_sub_u32 s%d, s%d, %d" % (sT0, sIDX, 4 * OPT.get("tp0", 2))); p("s_cmp_lt_u32 s%d, 16" % sT0); p("s_cbranch_scc1 AT_TS")
    p("s_branch AT_LD")
    p.label("AT_LDA1"); p("s_waitcnt vmcnt(4)")
    p.label("AT_LD")
    p("s_cmp_lg_u32 s%d, 0" % sPF); p("s_cbranch_scc1 AT_LD2")
    p("s_add_u32 s%d, s%d, %d" % (sT0, sUU, OPT.get("pfat", 9))); p("s_cmp_lt_u32 s%d, s%d" % (sT0, sLAST)); p("s_cbranch_scc1 AT_LD2")
    p("s_cmp_eq_u32 s%d, s%d" % (sT0, sLAST)); p("s_cbranch_scc1 AT_PS")
    p("s_add_u32 s%d, s%d, %d" % (sT0, sUU, OPT.get("pfl", 4))); p("s_cmp_lt_u32 s%d, s%d" % (sT0, sLAST)); p("s_cbranch_scc1 AT_LD2")
    npf = p4_early(p)
    p("s_mov_b32 s%d, 1" % sPF)
    p.label("AT_LD2")
    if OPT.get("hm", 0):
        p("s_add_u32 s%d, s%d, 9" % (sT0, sUU)); p("s_cmp_eq_u32 s%d, s%d" % (sT0, sLAST)); p("s_cselect_b32 s%d, s%d, 0" % (sT0, sHM))
        p("s_cmp_lg_u32 s%d, 0" % sT0); p("s_cbranch_scc1 AT_HM")
    p("s_cmp_gt_u32 s%d, s%d" % (sUU, sLAST)); p("s_cbranch_scc1 AT_LDX")
    acc_stamp(p, 4)
    p("s_barrier")
    acc_stamp(p, 5)
    p("s_add_u32 s%d, s%d, 1" % (sUU, sUU))
    p("s_cmp_le_u32 s%d, s%d" % (sSRC, sMAX)); p("s_cbranch_scc1 AT_LD4")
    p("s_cmp_eq_u32 s%d, 1" % sPF); p("s_cbranch_scc1 AT_LD5")
    p("s_waitcnt vmcnt(0)"); p("s_branch AT_LDS")
    p.label("AT_LD5")
    p("s_mov_b32 s%d, 2" % sPF); p("s_waitcnt vmcnt(%d)" % npf); p("s_branch AT_LDS")
    p.label("AT_LD4")
    dma_block()
    acc_stamp(p, 6)
    p("s_cmp_eq_u32 s%d, 1" % sPF); p("s_cbranch_scc1 AT_LD3")
    p("s_waitcnt vmcnt(8)")
    p("s_branch AT_LDS")
    p.label("AT_LD3")
    p("s_mov_b32 s%d, 2" % sPF); p("s_waitcnt vmcnt(%d)" % (8 + npf))
    p.label("AT_LDS")
    p("s_cmp_eq_u32 s%d, 0x%x" % (sTE, OOB)); p("s_cbranch_scc1 AT_LD")
    p("v_mov_b32 v%d, 1" % VSP)
    cond(p, "buffer_atomic_add v%d, v%d, %s, s%d offen sc1" % (VSP, VONE, sr(R_WS), sTE))
    p("s_mov_b32 s%d, 0x%x" % (sTE, OOB))
    p("s_branch AT_LD")
    if OPT.get("hm", 0):
        p.label("AT_HM")
        for b_ in range(4): p("v_add_u32 v%d, 0x20000, v%d" % (VWR + b_, VWR + b_))
        for it in range(10):
            p.lq, p.vq = [], []
            p("s_barrier")
            if it == 9: break
            if it < 7:
                a_dma1(p, ("h", it), 8 + (it & 1))
                p("s_add_u32 s%d, s%d, %d" % (sT3, sH, it * 4096))
                for kk in range(2):
                    for th in range(2):
                        t = treg(8 + 2 * (it & 1) + kk, th)
                        cond(p, "buffer_load_dwordx4 a[%d:%d], v%d, %s, s%d offen offset:%d sc1" % (t, t + 3, VL16, sr(R_WS), sT3, kk * 2048 + th * 1024))
            if it == 8: a_dma(p, CRUN[0], 8)
            l1, l2, l3 = p.newlabel("HM"), p.newlabel("HM"), p.newlabel("HM")
            p("s_cmp_gt_u32 s%d, s%d" % (sSRC, sMAX)); p("s_cbranch_scc1 %s" % l1)
            dma_block()
            p.label(l1)
            if 1 <= it <= 7:
                k = it - 1
                def mfh(u, kk, at, th, fr_, k=k):
                    t = treg(8 + 2 * (k & 1) + kk, th); acc = vr(8 * at + 4 * th)
                    return "%s %s, %s, a[%d:%d], %s" % (MF, acc, vr(fr_), t, t + 3, "0" if (k == 0 and kk == 0) else acc)
                tk = {}
                S, pro, init, lu = engine(tk, [(0, XG), (0, YG)], [(k & 1) * 16384], mfh, None, {}, {}, [0], 2048, {b_: 0 for b_ in range(4)}, nobar=True)
                for t_ in pro: emit_tagged(p, tk, *t_)
                S.emit(p, tk)
            p("s_cmp_gt_u32 s%d, s%d" % (sSRC, sMAX)); p("s_cbranch_scc1 %s" % l2)
            p("s_waitcnt vmcnt(8)"); p("s_branch %s" % l3)
            p.label(l2); p("s_waitcnt vmcnt(0)"); p.label(l3)
        for b_ in range(4): p("v_add_u32 v%d, 0xfffe0000, v%d" % (VWR + b_, VWR + b_))
        p(poll_issue(R_WS, "s%d" % sCF))
        a_dma(p, CRUN[1], SL4(1)); a_dma(p, CRUN[2], SL4(2))
        p("s_waitcnt vmcnt(16)")
        poll_check(R_WS, "s%d" % sCF, 8)(p)
        for r in range(3): p4_tld(p, CRUN, r)
        p("s_branch P4_JOINC")
    if OPT.get("pfs", 1):
        p.label("AT_PS")
        prevn = 0
        for f, k in p4_pieces()[3:]:
            p("s_barrier"); dma_block(); f(p)
            p("s_waitcnt vmcnt(%d)" % (8 + k + prevn)); prevn = k
        p("s_add_u32 s%d, s%d, %d" % (sUU, sUU, len(p4_pieces()) - 3)); p("s_mov_b32 s%d, 2" % sPF)
        p("s_branch AT_LDS")
        p.label("AT_TS")
        prevn = 0
        for f, k in p4_pieces()[:3]:
            p("s_barrier"); dma_block(); f(p)
            p("s_waitcnt vmcnt(%d)" % (8 + k + prevn)); prevn = k
        p("s_add_u32 s%d, s%d, 3" % (sUU, sUU))
        p("s_branch AT_LDS")
    p.label("AT_LDX")
    a_dma(p, FULL[1], SL4(1)); a_dma(p, FULL[2], SL4(2))

sJ, sNT, sMT, sG, sTB4, sXO, sWD, sWO = range(12, 20)
sH, sC, sH3, sCF, sPB, sFL, sHM, sHMB = range(24, 32)
FULL = [("h", 0), ("h", 2), ("h", 4), ("h", 6)] + [("c", 2 * r) for r in range(8)]
CRUN = FULL[4:]
SHORT = FULL[:3] + FULL[4:]
SL4 = lambda r: ((r + 4) % 5) * 2
def p4_setup(p):
    A, B, C, L = 96, 97, 98, 99
    p("s_and_b32 s%d, s2, 3" % sJ); p("s_and_b32 s%d, s%d, 3" % (sNT, sIDX))
    p("s_lshr_b32 s%d, s%d, 2" % (sMT, sIDX)); p("s_and_b32 s%d, s2, 4" % sT0); p("s_lshl_b32 s%d, s%d, 1" % (sT0, sT0)); p("s_add_u32 s%d, s%d, s%d" % (sMT, sMT, sT0))
    p("s_lshr_b32 s%d, s%d, 2" % (sG, sWAVE)); p("s_lshl_b32 s%d, s%d, 2" % (sTB4, sMT)); p("s_add_u32 s%d, s%d, s%d" % (sTB4, sTB4, sS4))
    p("v_lshrrev_b32 v%d, 4, v%d" % (L, VL16))
    p("v_lshrrev_b32 v%d, 2, v%d" % (C, L)); p("v_lshlrev_b32 v%d, 7, v%d" % (C, C)); p("v_and_b32 v%d, 3, v%d" % (B, L)); p("v_lshl_add_u32 v%d, v%d, 3, v%d" % (C, B, C))
    p("s_lshl_b32 s%d, s%d, 14" % (sT0, sG)); p("v_add_u32 v%d, s%d, v%d" % (C, sT0, C)); p("v_bfe_u32 v%d, v%d, 3, 2" % (A, L))
    p("v_lshl_add_u32 v%d, v%d, 5, v%d" % (VTA, A, C))
    p("v_bfe_u32 v%d, v%d, 1, 2" % (A, L)); p("v_lshrrev_b32 v%d, 4, v%d" % (B, L)); p("v_xor_b32 v%d, v%d, v%d" % (A, A, B))
    p("v_and_b32 v%d, 1, v%d" % (B, L)); p("v_lshlrev_b32 v%d, 4, v%d" % (B, B)); p("v_lshl_add_u32 v%d, v%d, 5, v%d" % (A, A, B))
    p("v_lshrrev_b32 v%d, 3, v%d" % (B, L)); p("v_lshl_add_u32 v%d, v%d, 10, v%d" % (VD8, B, A))
    p("s_lshl_b32 s%d, s%d, 13" % (sT0, sWAVE)); p("v_add_u32 v%d, s%d, v%d" % (VDG, sT0, VD8))
    p("v_and_b32 v%d, 15, v%d" % (A, L)); p("v_lshrrev_b32 v%d, 4, v%d" % (B, L)); p("v_lshlrev_b32 v%d, 3, v%d" % (B, B)); p("v_lshl_add_u32 v%d, v%d, 10, v%d" % (VDT, A, B))
    p("v_add_u32 v%d, 16384, v%d" % (VDT + 1, VDT))
    p("s_lshl_b32 s%d, s%d, 15" % (sXO, sTB4)); p("s_lshl_b32 s%d, s%d, 8" % (sT0, sNT)); p("s_add_u32 s%d, s%d, s%d" % (sXO, sXO, sT0))
    p("s_lshl_b32 s%d, s%d, 6" % (sT1, sJ)); p("s_add_u32 s%d, s%d, s%d" % (sXO, sXO, sT1))
    p("s_mul_i32 s%d, s%d, 7" % (sH3, sJ)); p("s_and_b32 s%d, s%d, 1" % (sT1, sJ)); p("s_add_u32 s%d, s%d, s%d" % (sH3, sH3, sT1))
    p("s_lshl_b32 s%d, s%d, 16" % (sWD, sH3)); p("s_add_u32 s%d, s%d, s%d" % (sWD, sWD, sT0))
    p("s_lshl_b32 s%d, s%d, 20" % (sWO, sJ)); p("s_add_u32 s%d, s%d, s%d" % (sWO, sWO, sT0))
    p("s_mul_i32 s%d, s%d, %d" % (sT1, sTB4, 368 * 1024)); p("s_add_u32 s%d, s%d, 0x%x" % (sT1, sT1, WS_CH))
    p("s_lshl_b32 s%d, s%d, 12" % (sH, sH3)); p("s_add_u32 s%d, s%d, s%d" % (sH, sH, sT1)); p("s_add_u32 s%d, s%d, %d" % (sH, sH, 256 * 1024))
    p("s_lshl_b32 s%d, s%d, 16" % (sC, sJ)); p("s_add_u32 s%d, s%d, s%d" % (sC, sC, sT1))
    p("s_lshl_b32 s%d, s%d, 12" % (sT0, sG)); p("s_add_u32 s%d, s%d, s%d" % (sH, sH, sT0)); p("s_add_u32 s%d, s%d, s%d" % (sC, sC, sT0))
    p("s_cmp_ge_u32 s%d, %d" % (sLAST, 47 if OPT.get("hm", 0) else 99)); p("s_cselect_b32 s%d, 1, 0" % sHM); p("s_and_b32 s%d, s%d, s%d" % (sHMB, sHM, sG))
    p("s_lshl_b32 s%d, s%d, 10" % (sCF, sTB4)); p("s_lshl_b32 s%d, s%d, 8" % (sT0, sJ)); p("s_add_u32 s%d, s%d, s%d" % (sCF, sCF, sT0)); p("s_add_u32 s%d, s%d, 0x%x" % (sCF, sCF, WS_FLAG))

    p("s_lshl_b32 s%d, s%d, 10" % (sT0, sTB)); p("s_lshr_b32 s%d, s%d, 3" % (sT1, sHEAD)); p("s_lshl_b32 s%d, s%d, 8" % (sT1, sT1))
    p("s_add_u32 s%d, s%d, s%d" % (sTE, sT0, sT1)); p("s_add_u32 s%d, s%d, 0x%x" % (sTE, sTE, WS_FLAG))
    p("s_lshl_b32 s%d, s%d, 2" % (sT0, sMT)); p("s_add_u32 s%d, s%d, s%d" % (sT0, sT0, sNT))
    p("s_lshl_b32 s%d, s%d, 17" % (sPB, sT0)); p("s_add_u32 s%d, s%d, 0x%x" % (sPB, sPB, WS_PART)); p("s_lshl_b32 s%d, s%d, 11" % (sT1, sS4)); p("s_add_u32 s%d, s%d, s%d" % (sPB, sPB, sT1))
    p("s_lshl_b32 s%d, s%d, 10" % (sFL, sT0)); p("s_add_u32 s%d, s%d, 0x%x" % (sFL, sFL, WS_FLAG + 128)); p("s_lshl_b32 s%d, s%d, 2" % (sT1, sS4)); p("s_add_u32 s%d, s%d, s%d" % (sFL, sFL, sT1))

def w4src(spec, g):
    kind, k = spec
    if kind == "h": return R_WD, sWD, (k + g) * 65536
    return R_WO, sWO, (k + g) * 65536
def a_dma1(p, spec, slot, g=0):
    rs, sb, o = w4src(spec, g)
    p("s_lshl_b32 s%d, s%d, 14" % (sT0, sS4)); p("s_add_u32 s%d, s%d, s%d" % (sT0, sT0, sb)); p("s_add_u32 s%d, s%d, %d" % (sT0, sT0, o)); p("s_lshl_b32 s%d, s%d, 11" % (sT1, sS4))
    for pc in range(2):
        if pc: p("s_add_u32 s%d, s%d, 8192" % (sT0, sT0))
        for sub in range(2):
            p("s_add_u32 m0, s%d, %d" % (sT1, slot * 16384 + pc * 1024 + sub * (8192 - 128))); p("s_nop 0")
            cond(p, "buffer_load_dwordx4 v%d, %s, s%d offen offset:%d lds" % (VD8, sr(rs), sT0, sub * 128))
def a_dma(p, spec, slot):
    for g in range(2): a_dma1(p, spec, slot + g, g)
def p4_touch(p, which):
    p("v_lshrrev_b32 v%d, 7, v%d" % (VPOLL, VL16)); p("v_and_b32 v%d, 0x380, v%d" % (VSP, VL128)); p("v_lshl_add_u32 v%d, v%d, 10, v%d" % (VSP, VPOLL, VSP))
    p("s_lshl_b32 s%d, s%d, 2" % (sT0, sIDX)); p("s_add_u32 s%d, s%d, s%d" % (sT0, sT0, sS4)); p("s_sub_u32 s%d, s%d, %d" % (sT0, sT0, 16 * OPT.get("tp0", 2)))
    if which < 2:
        if which: p("s_add_u32 s%d, s%d, 64" % (sT0, sT0))
        p("s_cmp_ge_u32 s%d, 128" % sT0); p("s_cselect_b32 s%d, 0x%x, 0" % (sT2, OOB))
        p("s_lshl_b32 s%d, s%d, 13" % (sT0, sT0)); p("s_lshl_b32 s%d, s%d, 20" % (sT1, sJ)); rs = R_WO
    else:
        p("s_mov_b32 s%d, 0" % sT2)
        p("s_lshl_b32 s%d, s%d, 13" % (sT0, sT0)); p("s_lshl_b32 s%d, s%d, 16" % (sT1, sH3)); rs = R_WD
    p("s_add_u32 s%d, s%d, s%d" % (sT0, sT0, sT1)); p("s_add_u32 s%d, s%d, s%d" % (sT0, sT0, sT2))
    cond(p, "buffer_load_dword v%d, v%d, %s, s%d offen" % (VDUM, VSP, sr(rs), sT0))
def p4_pieces():
    def tl(r):
        def f(p):
            vq = list(p.vq); p4_tld(p, FULL, r); p.vq = vq
        return f
    return [(lambda p: p4_touch(p, 2), 1), (lambda p: p4_touch(p, 0), 1), (lambda p: p4_touch(p, 1), 1), (tl(0), 4), (tl(1), 4), (tl(2), 4),
            (lambda p: a_dma1(p, FULL[0], 8, 0), 4), (lambda p: a_dma1(p, FULL[0], 9, 1), 4)]
def p4_early(p):
    n = 0
    for f, k in p4_pieces()[3:]: f(p); n += k
    return n

def t4reg(r, kk, th): return treg(2 * ((r + 4) % 8) + kk, th)
def p4_tld_list(run, r):
    kind, k = run[r]
    out = ["s_add_u32 s%d, s%d, %d" % (sT3, sH if kind == "h" else sC, k * 4096)]; so = sT3
    for kk in range(2):
        for th in range(2):
            t = t4reg(r, kk, th)
            out.append(("buffer_load_dwordx4 a[%d:%d], v%d, %s, s%d offen offset:%d sc1" % (t, t + 3, VL16, sr(R_WS), so, kk * 2048 + th * 1024), "T4_%d" % r))
    return out
def p4_tld(p, run, r):
    for it in p4_tld_list(run, r): p(it[0] if isinstance(it, tuple) else it)

def phase4_run(p, run, tag):
    NR, TR = len(run), 8
    if tag == "F":
        p.label("P4_JOINF")
        p.lq, p.vq = [], []
        stamp(p, 16)
        p("v_mov_b32 v%d, 1" % VSP)
        p("s_waitcnt vmcnt(0)")
        p("buffer_atomic_add v%d, v%d, %s, s%d offen sc1" % (VSP, VONE, sr(R_WS), sTE))
        p("s_barrier")
        stamp(p, 17)
        p("s_bitcmp1_b32 s%d, 0" % sJ); p("s_cbranch_scc1 P4_SHORT")
        p.st4 = (list(p.lq), list(p.vq))
    else:
        p.label("P4_SHORT"); p.lq, p.vq = list(p.st4[0]), list(p.st4[1])
    def wdma(r):
        out = []
        for g in range(2):
            rs, sb, o = w4src(run[r], g); t = "W%d" % r; b = (SL4(r) + g) * 16384
            out += [("s_add_u32 m0, s%d, %d" % (sLW, b), "m0:" + t), ("s_add_u32 s%d, s%d, %d" % (sT2, sb, o), None),
                    ("buffer_load_dwordx4 v%d, %s, s%d offen lds" % (VDG, sr(rs), sT2), t),
                    ("s_add_u32 m0, s%d, %d" % (sLW, b + 8192 - 128), "m0:" + t), ("s_nop 0", None),
                    ("buffer_load_dwordx4 v%d, %s, s%d offen offset:128 lds" % (VDG, sr(rs), sT2), t)]
        return out
    items = [(r, g) for r in range(NR) for g in (XG, YG)]
    prev = {r: ([r - 5] if r >= 5 else []) for r in range(NR)}
    toks = {}
    def mf(r, kk, cb, th, fr):
        t = t4reg(r, kk, th); acc = vr(8 * cb + 4 * th); cc = "0" if (r == 0 and kk == 0) else acc
        return "%s %s, %s, a[%d:%d], %s" % (MF, acc, vr(fr), t, t + 3, cc)
    ab = {112: [lambda p: stamp(p, 19)]} if STAMP else {}
    S, pro, init, last_use = engine(toks, items, [SL4(r) * 16384 for r in range(NR)], mf, wdma, prev, {}, [0, 1, 2, 3, 4], 2048, {b: 0 for b in range(4)},
                                    after_bar=ab, maxnew=1)
    S.group(0, wdma(3)); S.group(0, wdma(4))
    e = 1
    for r in range(3, NR):
        if r == NR - 8:
            cp = OPT.get("cpoll", 40) - (0 if tag == "F" else 16)
            S.put(cp - 16, poll_issue(R_WS, "s%d" % sCF)); S.put(cp, poll_check(R_WS, "s%d" % sCF, 8)); e = max(e, cp + 1)
        e = S.spread(max(e, 32 * (r - TR + 1) + 1, 32 * (r - OPT.get("tla", 4))), p4_tld_list(run, r))
    x0, x1 = SL4(NR - 5) * 16384, SL4(NR - 4) * 16384
    S.spread(32 * NR - 40, ["buffer_load_dwordx2 v[%d:%d], v%d, %s, s%d offen offset:%d" % (100 + 2 * q, 101 + 2 * q, VDT + (q & 1), sr(R_X), sXO, (q >> 1) * 32) for q in range(4)] +
             [lambda p: (p("s_lshl_b32 s%d, s%d, 13" % (sT0, sS4)), p("s_cmp_eq_u32 s%d, 0" % sG), p("s_mov_b32 s%d, %d" % (sT1, x1)), p("s_cselect_b32 s%d, %d, s%d" % (sT1, x0, sT1)),
                         p("s_add_u32 s%d, s%d, s%d" % (sT1, sT1, sT0)), p("v_add_u32 v96, s%d, v%d" % (sT1, VL16)),
                         p("s_xor_b32 s%d, s%d, %d" % (sT1, sT1, x0 ^ x1)), p("v_add_u32 v97, s%d, v%d" % (sT1, VL16)))], step=2)
    for t_ in pro: emit_tagged(p, toks, *t_)
    S.emit(p, toks)

def phase4(p):
    phase4_run(p, FULL, "F")
    p("s_branch OUT_RED")
    phase4_run(p, SHORT, "S")
    p.label("OUT_RED")
    p("s_waitcnt lgkmcnt(0)")
    stamp(p, 23)
    p.nop(6)
    p("s_cmp_eq_u32 s%d, 1" % sG); p("s_cbranch_scc1 OUT_G1")
    st = (list(p.lq), list(p.vq))
    for g in range(2):
        if g == 1:
            p.label("OUT_G1"); p.lq, p.vq = list(st[0]), list(st[1])
        give = 32 * (1 - g); keep = 32 * g
        for q in range(8): p("ds_write_b128 v96, %s offset:%d" % (vr(give + 4 * q), q * 1024))
        p("s_waitcnt lgkmcnt(0)"); p("s_barrier")
        for q in range(8): p("ds_read_b128 %s, v97 offset:%d" % (vr(give + 4 * q), q * 1024))
        for r in range(32): p("v_add_f32 v%d, v%d, v%d" % (r, keep + r, give + r))
        if g == 0: p("s_branch OUT_X")
    p.label("OUT_X")
    p("s_lshl_b32 s%d, s%d, 13" % (sT0, sJ)); p("s_add_u32 s%d, s%d, s%d" % (sT0, sT0, sPB)); p("s_lshl_b32 s%d, s%d, 16" % (sT1, sG)); p("s_add_u32 s%d, s%d, s%d" % (sT0, sT0, sT1))
    p("s_lshl_b32 s%d, s%d, 9" % (sT1, sG)); p("s_add_u32 s%d, s%d, s%d" % (sH, sT1, sFL)); p("s_lshl_b32 s%d, s%d, 1" % (sT1, sG))
    for bb in range(2):
        p("s_add_u32 s%d, s%d, %d" % (sT2, sT0, bb * 32768)); p("s_add_u32 s%d, s%d, %d" % (sC + bb, sH, bb * 256))
        p("s_add_u32 s%d, s%d, %d" % (sT3, sT1, bb)); p("s_cmp_eq_u32 s%d, s%d" % (sT3, sJ))
        p("s_cselect_b32 s%d, 0x%x, s%d" % (sT2, OOB, sT2)); p("s_cselect_b32 s%d, 0x%x, s%d" % (sC + bb, OOB, sC + bb))
        for j in range(8): p("v_cvt_pk_bf16_f32 v%d, v%d, v%d" % (32 + 8 * bb + j, 16 * bb + 2 * j, 16 * bb + 2 * j + 1))
        for q in range(2): p("buffer_store_dwordx4 %s, v%d, %s, s%d offen offset:%d sc1" % (vr(32 + 8 * bb + 4 * q), VL16, sr(R_WS), sT2, q * 1024))
    p("v_mov_b32 v%d, 1" % VSP)
    p("s_lshl_b32 s%d, s%d, 8" % (sT0, sJ)); p("s_add_u32 s%d, s%d, s%d" % (sFL, sFL, sT0))
    p("s_waitcnt vmcnt(0)")
    for bb in range(2): p("buffer_atomic_add v%d, v%d, %s, s%d offen sc1" % (VSP, VONE, sr(R_WS), sC + bb))
    stamp(p, 24)
    p("s_lshr_b32 s%d, s%d, 1" % (sT0, sJ)); p("s_cmp_lg_u32 s%d, s%d" % (sT0, sG)); p("s_cbranch_scc1 K_END")
    p(poll_issue(R_WS, "s%d" % sFL))
    p("s_and_b32 s%d, s%d, 1" % (sT0, sJ)); p("s_cmp_eq_u32 s%d, 0" % sT0); p("s_cbranch_scc1 OUT_OWN")
    for r in range(16): p("v_mov_b32 v%d, v%d" % (r, 16 + r))
    p.label("OUT_OWN")
    for q in range(4):
        d = 64 + 8 * (q >> 1) + 4 * (q & 1)
        for e in range(2):
            p("v_lshlrev_b32 v%d, 16, v%d" % (d + 2 * e, 100 + 2 * q + e)); p("v_and_b32 v%d, 0xffff0000, v%d" % (d + 2 * e + 1, 100 + 2 * q + e))
    for r in range(16): p("v_add_f32 v%d, v%d, v%d" % (r, r, 64 + r))
    poll_check(R_WS, "s%d" % sFL, 3, sleep=1)(p)
    stamp(p, 25)
    p("s_lshl_b32 s%d, s%d, 15" % (sT3, sJ)); p("s_add_u32 s%d, s%d, s%d" % (sT3, sT3, sPB))
    for k in range(1, 4):
        p("s_add_u32 s%d, s%d, %d" % (sT0, sJ, k)); p("s_and_b32 s%d, s%d, 3" % (sT0, sT0)); p("s_lshl_b32 s%d, s%d, 13" % (sT0, sT0)); p("s_add_u32 s%d, s%d, s%d" % (sT0, sT0, sT3))
        for q in range(2): p("buffer_load_dwordx4 %s, v%d, %s, s%d offen offset:%d sc1" % (vr(16 + 8 * k + 4 * q), VL16, sr(R_WS), sT0, q * 1024))
    for k in range(1, 4):
        for j in range(8):
            p("v_lshlrev_b32 v64, 16, v%d" % (16 + 8 * k + j)); p("v_and_b32 v65, 0xffff0000, v%d" % (16 + 8 * k + j))
            p("v_add_f32 v%d, v%d, v64" % (2 * j, 2 * j)); p("v_add_f32 v%d, v%d, v65" % (2 * j + 1, 2 * j + 1))
    for q in range(4):
        a = 8 * (q >> 1) + 4 * (q & 1)
        p("v_cvt_pk_bf16_f32 v%d, v%d, v%d" % (64 + 2 * q, a, a + 1)); p("v_cvt_pk_bf16_f32 v%d, v%d, v%d" % (65 + 2 * q, a + 2, a + 3))
        p("buffer_store_dwordx2 v[%d:%d], v%d, %s, s%d offen offset:%d" % (64 + 2 * q, 65 + 2 * q, VDT + (q & 1), sr(R_OUT), sXO, (q >> 1) * 32))
    stamp(p, 26)
    if OPT.get("dbgt", 0):
        p("s_memrealtime s[100:101]"); p("s_waitcnt lgkmcnt(0)"); p("v_mov_b32 v%d, s100" % VSP)
        p("s_and_b32 s100, s%d, 3" % sX8); p("s_lshl_b32 s100, s100, 2"); p("s_add_u32 s100, s100, 36"); p("s_add_u32 s101, s%d, s%d" % (sIDX, sS4)); p("s_cmp_eq_u32 s101, 0"); p("s_cselect_b32 s100, s100, 0x1000")
        p("buffer_store_dword v%d, v%d, %s, s100 offen" % (VSP, VONE, sr(R_DBG)))

def build():
    p = Prog()
    hdr = open("cdna_kernels/%s.s.ref" % NAME).read().split("; Override launch")[0]
    p.raw(hdr.rstrip())
    p.raw("; @launch grid=(256,1,1) block=(512,1,1) lds=163840")
    p.raw('.amdgcn_target "amdgcn-amd-amdhsa--gfx950"'); p.raw(".text")
    kernel_begin(p, KN)
    t0 = p12(p); attention(p, t0); phase4(p)
    p.label("K_END"); p("s_endpgm")
    p.raw('.section .rodata,"a"'); p.raw(kernel_desc(KN, 256, 128, 102))
    return p

def selfcheck(p):
    bad = []
    for wg, wave in [(0, 0), (0, 3), (0, 4), (0, 7), (5, 2), (100, 1), (100, 6), (255, 2), (255, 5), (255, 0), (30, 4), (3, 7)]:
        for fx in (False, True):
            tr = trace(p, KN, wg, wave, vcc_taken=(lambda i, n: n % 3 == 1) if fx else (lambda i, n: False))
            pr = check_trace(tr, "wg%d w%d" % (wg, wave))
            nb = sum(1 for i in tr if i.mn == "s_barrier"); nm = sum(1 for i in tr if i.kind == "mfma")
            if not fx: print("wg%d w%d: %d instrs, %d mfma, %d barriers, %d problems" % (wg, wave, len(tr), nm, nb, len(pr)))
            bad += pr
    for b in sorted(set(bad))[:40]: print(b)
    return not bad

if __name__ == "__main__":
    for o in sys.argv[2:]:
        if o == "stamp": STAMP = True
        else:
            k, v = o.split("="); OPT[k] = int(v) if v.isdigit() else v
    import subprocess
    if OPT.get("cpf", 0):
        open("pass1.s", "w").write(build().text())
        subprocess.run(["clang", "-x", "assembler", "-target", "amdgcn-amd-amdhsa", "-mcpu=gfx950", "-c", "pass1.s", "-o", "pass1.o"], check=True)
        sym = subprocess.run(["llvm-objdump", "-t", "pass1.o"], capture_output=True, text=True).stdout
        ad = {l.split()[-1]: int(l.split()[0], 16) for l in sym.splitlines() if ".text" in l and len(l.split()) >= 5}
        OPT["reach"] = ad["K_END"] - ad["K_CPFREF"]
    p = build()
    ok = selfcheck(p)
    open(sys.argv[1], "w").write(p.text())
    import subprocess
    r = subprocess.run(["clang", "-x", "assembler", "-target", "amdgcn-amd-amdhsa", "-mcpu=gfx950", "-c", sys.argv[1], "-o", "chk.o"], capture_output=True, text=True)
    print("written", sys.argv[1], "OK" if ok else "PROBLEMS", "ASM-OK" if r.returncode == 0 else "ASM-FAIL\n" + r.stderr[:2000])
```

```python
import sys, struct
from fw import *

NAME = "parallel_sum__compressed_kv_cla__swiglu_ffn__prompt"
KN = NAME + "_kernel"
WS_XN = 0x0000000
WS_K = 0x0200000
WS_V = 0x1200000
WS_CH = 0x2200000
WS_PART = 0x4000000
WS_FLAG = 0x5000000
WS_BYTES = 0x10000000
OOB = 0x20000000
MF = "v_mfma_f32_16x16x32_bf16"
STAMP = False
OPT = {}
def f32hex(x): return "0x%08x" % struct.unpack("<I", struct.pack("<f", x))[0]
QSCALE = 1.4426950408889634 / (128 ** 0.5)
THR = float(2 ** 20)

R_WS, R_W1, R_CKV, R_X, R_WQ, R_WG, R_WU, R_WO, R_WD, R_OUT, R_DBG = 8, 12, 16, 20, 24, 28, 32, 36, 40, 44, 48
def sr(r): return "s[%d:%d]" % (r, r + 3)
sWAVE, sIDX, sX8, sT0, sT1, sT2, sT3 = 3, 4, 5, 6, 7, 52, 53
sU1, sO1, sO1B, sLW, sLT, sLNROW = 54, 55, 56, 57, 58, 59
sHEAD, sTB, sLAST, sS4, sF0, sQC, sXN, sHO, sHO2, sCTX, sHB = 60, 61, 62, 63, 64, 65, 66, 67, 68, 69, 70
sSRC, sDST, sMAX, sRB, sRING, sTHR, sUU, sTE, sPF = 71, 72, 73, 74, 75, 76, 77, 78, 79
sTAB = 80
sRO2, sROH = 96, 97
VL16, VWR, VD8, VDG, VDT, VTA, VONE, VDUM, VPOLL, VL128, VSP = 112, 113, 117, 118, 119, 121, 123, 124, 125, 126, 127
FRB, FR = 64, 8
EG = [(0, 0), (0, 1), (1, 0), (1, 1)]
FG = [(0, 2), (0, 3), (1, 2), (1, 3)]

def emit_tagged(p, toks, text, tag):
    if tag is not None and tag.startswith("m0:"):
        p.m0own = tag[3:]; p(text); return
    if text.endswith(" lds"):
        assert getattr(p, "m0own", None) == tag, ("m0 owner mismatch", text, tag, p.m0own)
    t = p(text)
    if tag is not None: toks.setdefault(tag, []).append(t)

class Slots:
    def __init__(self): self.s = []
    def add(self, mfma): self.s.append(dict(m=mfma, pre=[], f=[])); return len(self.s) - 1
    def put(self, slot, text, tag=None):
        assert 0 <= slot < len(self.s), slot
        self.s[slot]["f"].append((text, tag))
    def spread(self, start, items, per=1, step=1):
        k = 0
        for it in items:
            sl = start + (k // per) * step
            if isinstance(it, tuple): self.put(sl, it[0], it[1])
            else: self.put(sl, it)
            k += 1
        return start + ((k + per - 1) // per) * step
    def group(self, t0, lst, per=1):
        if not hasattr(self, "busy"): self.busy = set()
        n = (len(lst) + per - 1) // per
        while any((t0 + i) in self.busy for i in range(n)): t0 += 1
        self.busy |= set(range(t0, t0 + n))
        return self.spread(t0, lst, per=per)
    def emit(self, p, toks, lo=0, hi=None):
        for sl in self.s[lo:hi]:
            for it in sl["pre"]: it(p)
            p(sl["m"])
            for text, tag in sl["f"]:
                if callable(text): text(p)
                else: emit_tagged(p, toks, text, tag)

def stamp(p, i):
    if not STAMP: return
    lq, vq = list(p.lq), list(p.vq)
    p.auto = False
    if OPT.get("few", 0) and i not in (0, 1, 3, 4, 7, 10, 13, 14, 15, 16, 17, 19, 23, 24, 25, 26, 27, 28, 29):
        p.auto = True; return
    p("%s s[100:101]" % ("s_memrealtime" if OPT.get("rt", 0) else "s_memtime")); p("s_waitcnt lgkmcnt(0)")
    p("v_mov_b32 v%d, s100" % VDUM, note="diag")
    p("buffer_store_dword v%d, v%d, %s, s99 offen offset:%d" % (VDUM, VONE, sr(R_WS), 4 * i), note="diag")
    if OPT.get("rt", 0):
        p("s_memtime s[100:101]"); p("s_waitcnt lgkmcnt(0)"); p("v_mov_b32 v%d, s100" % VSP, note="diag") if False else p("v_mov_b32 v%d, s100" % VDUM, note="diag")
        p("buffer_store_dword v%d, v%d, %s, s99 offen offset:%d" % (VDUM, VONE, sr(R_WS), 4 * (128 + i)), note="diag")
    p.auto = True
    p.lq, p.vq = [], vq

def acc_stamp(p, i):
    if not (STAMP and OPT.get("acc", 0)): return
    lq = list(p.lq); p.auto = False
    p("s_memtime s[100:101]"); p("s_waitcnt lgkmcnt(0)"); p("s_sub_u32 s101, s100, s98"); p("s_mov_b32 s98, s100")
    p("v_accvgpr_read_b32 v%d, a%d" % (VPOLL, 120 + i)); p("s_nop 0"); p("v_add_u32 v%d, s101, v%d" % (VPOLL, VPOLL)); p("s_nop 0"); p("v_accvgpr_write_b32 a%d, v%d" % (120 + i, VPOLL))
    p.auto = True; p.lq = lq
def acc_flush(p):
    if not (STAMP and OPT.get("acc", 0)): return
    vq = list(p.vq)
    for i in range(8):
        p("v_accvgpr_read_b32 v%d, a%d" % (96 + i, 120 + i))
        p("s_nop 0")
        p("buffer_store_dword v%d, v%d, %s, s99 offen offset:%d" % (96 + i, VONE, sr(R_WS), 4 * (32 + i)))
    p.vq = vq

def cond(p, text):
    p(text); p.vq.pop()

def wave_sum(q, v):
    for sh in (1, 2, 4, 8):
        q("s_nop 1"); q("v_add_f32_dpp v%d, v%d, v%d row_shr:%d row_mask:0xf bank_mask:0xf bound_ctrl:0" % (v, v, v, sh))
    q("s_nop 1"); q("v_add_f32_dpp v%d, v%d, v%d row_bcast:15 row_mask:0xa bank_mask:0xf" % (v, v, v))
    q("s_nop 1"); q("v_add_f32_dpp v%d, v%d, v%d row_bcast:31 row_mask:0xc bank_mask:0xf" % (v, v, v))

class Rec:
    def __init__(self): self.l = []
    def __call__(self, t, note=None): self.l.append(t)

def poll_issue(srd, soff):
    if soff.isdigit(): soff = "0 offset:" + soff
    return "buffer_load_dword v%d, off, %s, %s sc1" % (VPOLL, sr(srd), soff)
def poll_check(srd, soff, expect, w0=False, sleep=4):
    def f(p):
        ok, lp = p.newlabel("PK"), p.newlabel("PL")
        if w0: p("v_mov_b32 v%d, v%d" % (VPOLL, VPOLL)); p("s_cmp_lg_u32 s%d, 0" % sWAVE); p("s_cbranch_scc1 %s" % ok)
        p("v_readfirstlane_b32 s%d, v%d" % (sT0, VPOLL), note="=val %d" % expect); p("s_mov_b32 s%d, 0" % sT1)
        p("s_cmp_ge_u32 s%d, %d" % (sT0, expect)); p("s_cbranch_scc1 %s" % ok)
        lq, vq = list(p.lq), list(p.vq)
        p.label(lp)
        p("s_sleep %d" % sleep); p(poll_issue(srd, soff)); p("s_add_u32 s%d, s%d, 1" % (sT1, sT1)); p("s_waitcnt vmcnt(0)")
        p("v_readfirstlane_b32 s%d, v%d" % (sT0, VPOLL), note="=val %d" % expect)
        p("s_cmp_ge_u32 s%d, 0x40000" % sT1); p("s_cbranch_scc1 %s" % ok)
        p("s_cmp_lt_u32 s%d, %d" % (sT0, expect)); p("s_cbranch_scc1 %s" % lp)
        p.lq, p.vq = lq, vq
        p.label(ok)
    return f
def signal(off):
    def f(p):
        sk = p.newlabel("SG")
        p("s_cmp_lg_u32 s%d, 0" % sWAVE); p("s_cbranch_scc1 %s" % sk)
        p("v_mov_b32 v%d, 1" % VSP)
        cond(p, "buffer_atomic_add v%d, v%d, %s, 0 offen offset:%d sc1" % (VSP, VONE, sr(R_DBG), off))
        p.label(sk)
    return f

def engine(toks, items, base_of, mfma_fn, wdma_fn, prev, minbar, issued, rd2, cur_base, LA=6, extra_wait=None, after_bar=None, before_bar=None, maxnew=2, nobar=False, bpos=None):
    S = Slots(); frags = []
    for (sl, cols) in items:
        for kk in range(2):
            for col in cols: frags.append((sl, kk) + tuple(col))
    for n, (sl, kk, so, cbp, at) in enumerate(frags):
        for th in range(2): S.add(mfma_fn(sl, kk, at, th, FRB + 4 * (n % FR)))
    n2 = len(S.s)
    first_read, last_use, pro = {}, {}, []
    for n, (sl, kk, so, cbp, at) in enumerate(frags):
        fr = FRB + 4 * (n % FR); rs = 2 * (n - LA); win = base_of[sl] & ~0xffff
        if OPT.get("win48", 0) or rd2 == 2048: win = base_of[sl] & ~0x7fff
        L = []
        if cur_base[cbp] != win:
            L.append(("v_add_u32 v%d, 0x%x, v%d" % (VWR + cbp, (win - cur_base[cbp]) & 0xffffffff, VWR + cbp), None)); cur_base[cbp] = win
        o = base_of[sl] - win + so + kk * 4096
        L.append(("ds_read_b64_tr_b16 %s, v%d offset:%d" % (vr(fr, 2), VWR + cbp, o), "F%d" % n))
        L2 = ("ds_read_b64_tr_b16 %s, v%d offset:%d" % (vr(fr + 2, 2), VWR + cbp, o + rd2), "F%d" % n)
        if rs < 0: pro += L + [L2]
        else:
            for it in L: S.put(rs, it[0], it[1])
            S.put(rs + 1, L2[0], L2[1])
        first_read.setdefault(sl, rs); last_use[sl] = 2 * n + 1
        if n % 2 == 0 and n + 1 < len(frags):
            S.s[2 * n]["pre"].append(lambda p, n=n: p.wait_tok(toks["F%d" % (n + 1)]))
    if nobar: return S, pro, [], last_use
    bpos = bpos or list(range(16, n2, 32))
    waited = set(s for s in first_read if first_read[s] < bpos[0]); init_need = sorted(waited)
    issued = set(issued); extra_wait = extra_wait or {}; after_bar = after_bar or {}
    order = sorted(first_read, key=lambda s: first_read[s])
    S.dma_end = {}
    for bi, bp in enumerate(bpos):
        nxt = bpos[bi + 1] if bi + 1 < len(bpos) else n2 + 100
        need = [s for s in order if s not in waited and first_read[s] < nxt]
        for s in need: assert s in issued, ("unit %d needed at barrier %d but not issued" % (s, bp))
        waited |= set(need)
        new = [s for s in order if s not in issued and all(last_use[q] < bp for q in prev.get(s, [])) and minbar.get(s, 0) <= bp][:maxnew]
        tags = ["W%d" % s for s in need] + extra_wait.get(bp, [])
        def f(p, tags=tags, bp=bp):
            fine = OPT.get("fine", 0) and n2 > 512
            if fine: stamp(p, 64 + 3 * (bp // 32))
            for g in (before_bar or {}).get(bp, []): g(p)
            p.wait_tok(sum([toks.get(t, []) for t in tags], []))
            if fine: stamp(p, 65 + 3 * (bp // 32))
            p("s_barrier")
            if fine: stamp(p, 66 + 3 * (bp // 32))
            for g in after_bar.get(bp, []): g(p)
        if tags or new or bp in after_bar or bp in (before_bar or {}): S.s[bp]["pre"].insert(0, f)
        for s in new:
            issued.add(s); S.group(bp, wdma_fn(s))
    assert issued >= set(first_read), sorted(set(first_read) - issued)
    return S, pro, init_need, last_use

XG = [(0, c, c) for c in range(4)]
YG = [(8192, c, 4 + c) for c in range(4)]
GE = [(0, 0, 0), (0, 1, 1), (8192, 0, 2), (8192, 1, 3)]
GF = [(0, 2, 4), (0, 3, 5), (8192, 2, 6), (8192, 3, 7)]

def rot8(t, c, scale, base, ro=None):
    if OPT.get("half", 0):
        return [("s_add_u32 s%d, s%d, %d" % (t, sROH, c), None), ("s_and_b32 s%d, s%d, 3" % (t, t), None), ("s_add_u32 s%d, s%d, %d" % (t, t, c & 4), None), (scale, None),
                ("s_add_u32 s%d, s%d, s%d" % (t, t, base), None)]
    return [("s_add_u32 s%d, s%d, %d" % (t, sRO2 if ro is None else ro, c), None), ("s_and_b32 s%d, s%d, 7" % (t, t), None), (scale, None),
            ("s_add_u32 s%d, s%d, s%d" % (t, t, base), None)]

def treg(kap, th): return 16 * (kap >> 1) + 8 * (kap & 1) + 4 * th

def setup(p):
    p("s_cmp_ge_u32 s2, 256"); p("s_cbranch_scc1 K_END")
    if STAMP: p("s_memrealtime s[62:63]")
    p("s_lshr_b32 s%d, s2, 2" % sT0); p("s_and_b32 s%d, s%d, 1" % (sU1, sT0))
    if OPT.get("flipv", 0): p("s_xor_b32 s%d, s%d, 1" % (sU1, sU1))
    p("s_lshl_b32 s%d, s%d, 3" % (sT0, sU1)); p("s_add_u32 s%d, s%d, 24" % (sT0, sT0))
    p("s_load_dwordx2 s[%d:%d], s[0:1], s%d" % (R_W1, R_W1 + 1, sT0))
    for r, off in ((R_CKV, 8), (R_WS, 96), (R_X, 0), (R_WQ, 16), (R_WO, 40), (R_WG, 56), (R_WU, 64), (R_WD, 72), (R_OUT, 80), (R_DBG, 88)):
        p("s_load_dwordx2 s[%d:%d], s[0:1], %d" % (r, r + 1, off))
    for r, n in ((R_W1, 4194304), (R_CKV, 2097152), (R_WS, WS_BYTES), (R_X, 2097152), (R_WQ, 4194304), (R_WO, 4194304), (R_WG, 512 * 3584),
                 (R_WU, 512 * 3584), (R_WD, 1792 * 1024), (R_OUT, 2097152), (R_DBG, 256)):
        p("s_mov_b32 s%d, 0x%x" % (r + 2, n)); p("s_mov_b32 s%d, 0x00020000" % (r + 3))
    L, A, B, C = 96, 97, 98, 99
    p("v_lshrrev_b32 v1, 6, v0"); p("v_and_b32 v%d, 63, v0" % L)
    p("v_readfirstlane_b32 s%d, v1" % sWAVE, note="=wave")
    p("s_lshr_b32 s%d, s2, 3" % sIDX); p("s_and_b32 s%d, s2, 7" % sX8)
    p("v_lshlrev_b32 v%d, 4, v%d" % (VL16, L)); p("v_lshlrev_b32 v%d, 7, v%d" % (VL128, L))
    p("v_cmp_ne_u32 vcc, 0, v%d" % L); p("v_mov_b32 v%d, 0" % VONE); p("v_mov_b32 v%d, 0x40000000" % A)
    p("v_cndmask_b32 v%d, v%d, v%d, vcc" % (VONE, VONE, A))
    p("v_bfe_u32 v%d, v%d, 1, 2" % (A, L)); p("v_bfe_u32 v%d, v%d, 4, 1" % (B, L)); p("v_xor_b32 v%d, v%d, v%d" % (A, A, B))
    p("s_and_b32 s%d, s%d, 1" % (sT0, sWAVE)); p("s_lshl_b32 s%d, s%d, 1" % (sT0, sT0)); p("v_xor_b32 v%d, s%d, v%d" % (A, sT0, A))
    p("v_and_b32 v%d, 1, v%d" % (B, L)); p("v_lshlrev_b32 v%d, 4, v%d" % (B, B)); p("v_lshl_add_u32 v%d, v%d, 5, v%d" % (A, A, B))
    p("v_lshrrev_b32 v%d, 3, v%d" % (B, L)); p("s_lshl_b32 s%d, s%d, 3" % (sT0, sWAVE)); p("v_add_u32 v%d, s%d, v%d" % (B, sT0, B))
    p("v_lshl_add_u32 v%d, v%d, 13, v%d" % (VD8, B, A))
    p("v_mul_u32_u24 v%d, 3584, v%d" % (B, B)); p("v_add_u32 v%d, v%d, v%d" % (VDG, B, A))
    p("s_and_b32 s%d, s2, 1" % sT0); p("s_lshl_b32 s%d, s%d, 2" % (sT0, sT0)); p("s_and_b32 s%d, s%d, 3" % (sT1, sIDX))
    p("s_add_u32 s%d, s%d, s%d" % (sT0, sT0, sT1)); p("s_lshl_b32 s%d, s%d, 3" % (sT0, sT0)); p("s_add_u32 s%d, s%d, s%d" % (sO1B, sT0, sWAVE))
    p("v_lshrrev_b32 v%d, 3, v%d" % (A, L)); p("v_lshlrev_b32 v%d, 10, v%d" % (A, A)); p("s_lshl_b32 s%d, s%d, 15" % (sT0, sO1B)); p("v_add_u32 v%d, s%d, v%d" % (A, sT0, A))
    p("v_lshrrev_b32 v%d, 4, v%d" % (B, L)); p("v_and_b32 v%d, 7, v%d" % (C, L)); p("v_xor_b32 v%d, v%d, v%d" % (B, B, C))
    p("v_lshl_add_u32 v%d, v%d, 4, v%d" % (VDT, B, A)); p("v_xor_b32 v%d, 4, v%d" % (B, B)); p("v_lshl_add_u32 v%d, v%d, 4, v%d" % (VDT + 1, B, A))
    p("s_lshl_b32 s%d, s%d, 12" % (sLT, sWAVE)); p("s_add_u32 s%d, s%d, 65536" % (sLT, sLT)); p("s_lshl_b32 s%d, s%d, 10" % (sLW, sWAVE))
    p("s_lshr_b32 s%d, s%d, 2" % (sT0, sIDX)); p("s_lshl_b32 s%d, s%d, 1" % (sT1, sT1)); p("s_add_u32 s%d, s%d, s%d" % (sT1, sT1, sT0))
    if not OPT.get("rot", 1): p("s_mov_b32 s%d, 0" % sT1)
    if OPT.get("rot", 1) == 2: p("s_mov_b32 s%d, s%d" % (sT1, sT0))
    if OPT.get("rot", 1) == 3: p("s_sub_u32 s%d, s%d, s%d" % (sT1, sT1, sT0))
    p("s_and_b32 s%d, s2, 2" % sT2); p("s_lshl_b32 s%d, s%d, 2" % (sT2, sT2)); p("s_add_u32 s%d, s%d, s%d" % (sT2, sT2, sT0))
    p("s_lshl_b32 s%d, s%d, 20" % (sO1, sT2)); p("s_lshl_b32 s%d, s%d, 9" % (sT2, sT2))
    for c in range(8):
        hy = OPT.get("hy", 0)
        if hy and c < hy: p("s_mov_b32 s%d, %d" % (sT0, c))
        elif hy:
            if c == hy:
                p("s_and_b32 s%d, s%d, 7" % (sT1, sT1)); p("s_sub_u32 s%d, s%d, %d" % (sT0, sT1, 8 - hy)); p("s_min_u32 s%d, s%d, s%d" % (sT1, sT1, sT0))
            p("s_add_u32 s%d, s%d, %d" % (sT0, sT1, c - hy)); p("s_sub_u32 s%d, s%d, %d" % (sT3, sT0, 8 - hy)); p("s_min_u32 s%d, s%d, s%d" % (sT0, sT0, sT3))
            p("s_add_u32 s%d, s%d, %d" % (sT0, sT0, hy))
        else:
            p("s_add_u32 s%d, s%d, %d" % (sT0, sT1, c)); p("s_and_b32 s%d, s%d, 7" % (sT0, sT0))
        p("s_lshl_b32 s%d, s%d, 7" % (sTAB + c, sT0)); p("s_lshl_b32 s%d, s%d, 19" % (sT0, sT0)); p("s_add_u32 s%d, s%d, s%d" % (sTAB + 8 + c, sT0, sT2))
    p("s_waitcnt lgkmcnt(0)")

def setup2(p):
    L, A, B, C = 96, 97, 98, 99
    p("v_bfe_u32 v%d, v%d, 2, 2" % (A, L)); p("v_lshrrev_b32 v%d, 4, v%d" % (B, L))
    p("v_lshl_add_u32 v%d, v%d, 3, v%d" % (C, B, A)); p("v_lshlrev_b32 v%d, 7, v%d" % (C, C))
    p("v_and_b32 v100, 3, v%d" % L); p("v_lshl_add_u32 v%d, v100, 3, v%d" % (C, C))
    p("v_bfe_u32 v%d, v%d, 3, 2" % (A, L))
    for b in range(4):
        p("v_xor_b32 v100, %d, v%d" % (b, A)); p("v_lshl_add_u32 v%d, v100, 5, v%d" % (VWR + b, C))
    p("v_and_b32 v%d, 15, v%d" % (A, L)); p("v_bfe_u32 v%d, v%d, 1, 3" % (B, L)); p("v_lshrrev_b32 v%d, 4, v%d" % (C, L))
    p("v_xor_b32 v%d, v%d, v%d" % (B, B, C)); p("v_lshlrev_b32 v%d, 4, v%d" % (B, B)); p("v_lshl_add_u32 v%d, v%d, 7, v%d" % (A, A, B))
    p("v_add_u32 v%d, s%d, v%d" % (VTA, sLT, A)); p("v_xor_b32 v%d, 64, v%d" % (VTA + 1, VTA))
    p("s_lshl_b32 s%d, s%d, 24" % (sT0, sU1)); p("s_add_u32 s%d, s%d, s%d" % (sO1, sO1, sT0)); p("s_add_u32 s%d, s%d, 0x%x" % (sO1, sO1, WS_K))
    p("s_lshl_b32 s%d, s%d, 13" % (sT0, sO1B)); p("s_add_u32 s%d, s%d, s%d" % (sO1, sO1, sT0)); p("s_add_u32 s%d, s%d, 4096" % (sO1B, sO1))
    p("s_lshl_b32 s%d, s2, 3" % sLNROW); p("s_add_u32 s%d, s%d, s%d" % (sLNROW, sLNROW, sWAVE))
    p("s_lshl_b32 s%d, s%d, 2" % (sHEAD, sX8)); p("s_and_b32 s%d, s%d, 3" % (sT0, sIDX)); p("s_add_u32 s%d, s%d, s%d" % (sHEAD, sHEAD, sT0))
    p("s_and_b32 s%d, s%d, 3" % (sS4, sWAVE))
    p("s_and_b32 s%d, s%d, 28" % (sT0, sIDX))
    p("s_add_u32 s%d, s%d, 3" % (sTB, sT0)); p("s_sub_u32 s%d, s%d, s%d" % (sTB, sTB, sS4))
    p("s_sub_u32 s%d, 60, s%d" % (sT0, sT0)); p("s_add_u32 s%d, s%d, s%d" % (sT1, sT0, sS4))
    p("s_cmp_ge_u32 s%d, 4" % sWAVE); p("s_cselect_b32 s%d, s%d, s%d" % (sTB, sT1, sTB))
    p("s_add_u32 s%d, s%d, 3" % (sLAST, sT0))
    p("s_lshl_b32 s%d, s%d, 7" % (sF0, sHEAD)); p("s_lshl_b32 s%d, s%d, 6" % (sT0, sHEAD)); p("s_add_u32 s%d, s%d, 1536" % (sT0, sT0))
    p("s_cmp_ge_u32 s%d, 24" % sHEAD); p("s_cselect_b32 s%d, s%d, s%d" % (sF0, sT0, sF0))
    p("s_lshl_b32 s%d, s%d, 8" % (sQC, sHEAD))
    p("s_lshl_b32 s%d, s%d, 15" % (sXN, sTB)); p("s_add_u32 s%d, s%d, 0x%x" % (sXN, sXN, WS_XN))
    p("s_mul_i32 s%d, s%d, %d" % (sCTX, sTB, 368 * 1024)); p("s_add_u32 s%d, s%d, 0x%x" % (sCTX, sCTX, WS_CH))
    p("s_lshl_b32 s%d, s%d, 5" % (sHO, sF0)); p("s_add_u32 s%d, s%d, s%d" % (sHO, sHO, sCTX)); p("s_add_u32 s%d, s%d, %d" % (sHO, sHO, 256 * 1024))
    p("s_add_u32 s%d, s%d, 2048" % (sHO2, sHO)); p("s_cmp_ge_u32 s%d, 24" % sHEAD); p("s_cselect_b32 s%d, 0x%x, s%d" % (sHO2, OOB, sHO2))
    p("s_lshl_b32 s%d, s%d, 13" % (sT0, sHEAD)); p("s_add_u32 s%d, s%d, s%d" % (sCTX, sCTX, sT0))
    p("s_lshl_b32 s%d, s%d, 19" % (sHB, sHEAD))
    p("s_and_b32 s%d, s%d, 3" % (sRO2, sIDX)); p("s_lshl_b32 s%d, s%d, 1" % (sRO2, sRO2)); p("s_lshr_b32 s%d, s%d, 2" % (sT0, sIDX))
    p("s_add_u32 s%d, s%d, s%d" % (sRO2, sRO2, sT0)); p("s_and_b32 s%d, s%d, 7" % (sRO2, sRO2))
    if not OPT.get("rot2", 1): p("s_mov_b32 s%d, 0" % sRO2)
    if OPT.get("rot2", 1) == 2: p("s_lshr_b32 s%d, s%d, 2" % (sRO2, sIDX))
    if OPT.get("rot2", 1) == 3: p("s_and_b32 s%d, s%d, 3" % (sRO2, sIDX)); p("s_lshl_b32 s%d, s%d, 1" % (sRO2, sRO2))
    p("s_lshr_b32 s%d, s%d, 2" % (sROH, sIDX)); p("s_add_u32 s%d, s%d, s%d" % (sROH, sROH, sIDX))
    if STAMP:
        p("s_lshl_b32 s99, s2, 3"); p("s_add_u32 s99, s99, s%d" % sWAVE); p("s_lshl_b32 s99, s99, 10"); p("s_add_u32 s99, s99, 0x6000000")

WS_STAT = 0x5100000
def ln_list_a():
    q = Rec(); T0, T1, T2, XR, F = VPOLL, 98, 99, 100, 104
    X0R = 60 if OPT.get("xe", 2) else XR
    for j in range(4):
        q("v_lshlrev_b32 v%d, 16, v%d" % (F + 2 * j, X0R + j)); q("v_and_b32 v%d, 0xffff0000, v%d" % (F + 2 * j + 1, X0R + j))
    q("v_and_b32 v%d, 0x70, v%d" % (T1, VL16)); q("v_lshlrev_b32 v%d, 6, v%d" % (T1, T1)); q("v_lshrrev_b32 v%d, 7, v%d" % (T2, VL16))
    q("v_lshl_add_u32 v%d, v%d, 4, v%d" % (T1, T2, T1))
    q("s_lshl_b32 s%d, s2, 13" % sSRC); q("s_lshl_b32 s%d, s%d, 7" % (sDST, sWAVE)); q("s_add_u32 s%d, s%d, s%d" % (sSRC, sSRC, sDST))
    q("buffer_load_dwordx4 %s, v%d, %s, s%d offen" % (vr(XR), T1, sr(R_X), sSRC))
    q("v_add_f32 v%d, v%d, v%d" % (T0, F, F + 1))
    for j in range(2, 8): q("v_add_f32 v%d, v%d, v%d" % (T0, T0, F + j))
    wave_sum(q, T0)
    q("s_nop 0"); q("v_readlane_b32 s%d, v%d, 63" % (sSRC, T0))
    q("v_mov_b32 v%d, 0x3b000000" % T1); q("s_nop 0"); q("v_mul_f32 v%d, s%d, v%d" % (T1, sSRC, T1))
    q("v_sub_f32 v%d, v%d, v%d" % (T2, F, T1)); q("v_mul_f32 v%d, v%d, v%d" % (T0, T2, T2))
    for j in range(1, 8):
        q("v_sub_f32 v%d, v%d, v%d" % (T2, F + j, T1)); q("v_fmac_f32 v%d, v%d, v%d" % (T0, T2, T2))
    wave_sum(q, T0)
    q("s_nop 0"); q("v_readlane_b32 s%d, v%d, 63" % (sSRC, T0))
    q("v_mov_b32 v%d, 0x3b000000" % T2); q("s_nop 0"); q("v_mul_f32 v%d, s%d, v%d" % (T2, sSRC, T2))
    q("v_cvt_pk_bf16_f32 v%d, v%d, v%d" % (T0, T1, T2))
    q("v_lshlrev_b32 v%d, 16, v%d" % (T1, T0)); q("v_and_b32 v%d, 0xffff0000, v%d" % (T2, T0))
    q("v_add_f32 v%d, 0x3727c5ac, v%d" % (T2, T2))
    q("v_cvt_pk_bf16_f32 v%d, v%d, v%d" % (T2, T2, T2)); q("v_lshlrev_b32 v%d, 16, v%d" % (T2, T2))
    q("v_sqrt_f32 v%d, v%d" % (T2, T2)); q("s_lshl_b32 s%d, s%d, 3" % (sSRC, sLNROW))
    q("v_cvt_pk_bf16_f32 v%d, v%d, v%d" % (T2, T2, T2)); q("v_lshlrev_b32 v%d, 16, v%d" % (T2, T2))
    q("s_add_u32 s%d, s%d, 0x%x" % (sSRC, sSRC, WS_STAT))
    L = list(q.l)
    L.append(("buffer_store_dwordx2 v[%d:%d], v%d, %s, s%d offen sc1" % (T1, T2, VONE, sr(R_WS), sSRC), "LS"))
    return L
def ln_list_b0():
    return ["v_and_b32 v104, 0x70, v%d" % VL16, "v_lshrrev_b32 v104, 1, v104", "s_lshl_b32 s%d, s2, 6" % sSRC, "s_add_u32 s%d, s%d, 0x%x" % (sSRC, sSRC, WS_STAT),
            "buffer_load_dwordx2 v[98:99], v104, %s, s%d offen sc1" % (sr(R_WS), sSRC)]
def ln_list_b():
    q = Rec(); M, SD, XR, F, R, T = 98, 99, 100, 104, VSP, VPOLL
    q("v_rcp_f32 v%d, v%d" % (R, SD))
    for j in range(4):
        q("v_lshlrev_b32 v%d, 16, v%d" % (F + 2 * j, XR + j)); q("v_and_b32 v%d, 0xffff0000, v%d" % (F + 2 * j + 1, XR + j))
    for j in range(8): q("v_sub_f32 v%d, v%d, v%d" % (F + j, F + j, M))
    for j in range(4): q("v_cvt_pk_bf16_f32 v%d, v%d, v%d" % (XR + j, F + 2 * j, F + 2 * j + 1))
    for j in range(4):
        q("v_lshlrev_b32 v%d, 16, v%d" % (F + 2 * j, XR + j)); q("v_and_b32 v%d, 0xffff0000, v%d" % (F + 2 * j + 1, XR + j))
    for j in range(8):
        q("v_mul_f32 v%d, v%d, v%d" % (T, F + j, R)); q("v_fma_f32 v%d, -v%d, v%d, v%d" % (F + j, T, SD, F + j))
        q("v_fma_f32 v%d, v%d, v%d, v%d" % (F + j, F + j, R, T))
    for j in range(4): q("v_cvt_pk_bf16_f32 v%d, v%d, v%d" % (XR + j, F + 2 * j, F + 2 * j + 1))
    q("v_and_b32 v%d, 0x200, v%d" % (T, VL16)); q("v_lshlrev_b32 v%d, 2, v%d" % (T, T))
    q("v_and_b32 v%d, 0x180, v%d" % (R, VL16)); q("v_lshl_add_u32 v%d, v%d, 1, v%d" % (T, R, T))
    q("v_and_b32 v%d, 0x70, v%d" % (R, VL16)); q("v_add_u32 v%d, v%d, v%d" % (T, T, R))
    q("s_lshr_b32 s%d, s2, 2" % sSRC); q("s_lshl_b32 s%d, s%d, 15" % (sSRC, sSRC))
    q("s_and_b32 s%d, s2, 1" % sDST); q("s_lshl_b32 s%d, s%d, 7" % (sDST, sDST)); q("s_add_u32 s%d, s%d, s%d" % (sSRC, sSRC, sDST))
    q("s_and_b32 s%d, s2, 2" % sDST); q("s_lshl_b32 s%d, s%d, 9" % (sDST, sDST)); q("s_add_u32 s%d, s%d, s%d" % (sSRC, sSRC, sDST))
    q("s_lshl_b32 s%d, s%d, 12" % (sDST, sWAVE)); q("s_add_u32 s%d, s%d, s%d" % (sSRC, sSRC, sDST))
    L = list(q.l)
    L.append(("buffer_store_dwordx4 %s, v%d, %s, s%d offen sc1" % (vr(XR), T, sr(R_WS), sSRC), "LN"))
    return L

UB = [(u % 8) * 8192 for u in range(32)] + [16384 * x for x in (4, 5, 6, 7, 8, 9, 0, 1, 2, 3, 4, 5, 6, 7, 8, 9)]
def p12(p):
    setup(p)
    toks = {}
    def run(lst):
        for it in lst:
            if isinstance(it, tuple): emit_tagged(p, toks, it[0], it[1])
            else: p(it)
    def wdma(s):
        t = "W%d" % s; b = UB[s]
        if s < 32:
            ps, c = divmod(s, 8); so = "s%d" % (sTAB + 8 + c); L = [("s_nop 0", None)]
            if ps: L = [("s_add_u32 s%d, %s, %d" % (sT2, so, ps * 128), None)]; so = "s%d" % sT2
            return [("s_add_u32 m0, s%d, %d" % (sLW, b), "m0:" + t)] + L + [("buffer_load_dwordx4 v%d, %s, %s offen lds" % (VD8, sr(R_W1), so), t)]
        elif s < 40:
            L = rot8(sT2, s - 32, "s_mul_i32 s%d, s%d, %d" % (sT2, sT2, 64 * 3584), sF0); so = "s%d" % sT2
            rs, v1, rs2, off2, m2 = R_WG, VDG, R_WU, 0, 8192
        else:
            L = rot8(sT2, s - 40, "s_lshl_b32 s%d, s%d, 19" % (sT2, sT2), sQC); so = "s%d" % sT2
            rs, v1, rs2, off2, m2 = R_WQ, VD8, R_WQ, 128, 8192 - 128
        return [("s_add_u32 m0, s%d, %d" % (sLW, b), "m0:" + t)] + L + [
            ("buffer_load_dwordx4 v%d, %s, %s offen lds" % (v1, sr(rs), so), t),
            ("s_add_u32 m0, s%d, %d" % (sLW, b + m2), "m0:" + t), ("s_nop 0", None),
            ("buffer_load_dwordx4 v%d, %s, %s offen offset:%d lds" % (v1, sr(rs2), so, off2), t)]
    def tdma(c):
        t = "T%d" % c
        L = [("s_add_u32 m0, s%d, %d" % (sLT, (c % 3) * 32768), "m0:" + t), ("s_nop 0", None)]
        for q in range(4):
            so = "s%d" % (sTAB + c)
            if q: L.append(("s_add_u32 s%d, %s, %d" % (sT2, so, q * 7168), None)); so = "s%d" % sT2
            L.append(("buffer_load_dwordx4 v%d, %s, %s offen offset:%d lds" % (VDT + (q & 1), sr(R_CKV), so, q * 1024), t))
        return L
    if STAMP: p("s_memrealtime s[64:65]"); p("s_waitcnt lgkmcnt(0)"); p("v_mov_b32 v110, s62"); p("v_mov_b32 v111, s64")
    run(wdma(0)); run(tdma(0)); run(wdma(1))
    def xrow():
        p("s_lshl_b32 s%d, s2, 13" % sT3); p("s_lshl_b32 s%d, s%d, 10" % (sT0, sWAVE)); p("s_add_u32 s%d, s%d, s%d" % (sT3, sT3, sT0))
        p("buffer_load_dwordx4 v[60:63], v%d, %s, s%d offen" % (VL16, sr(R_X), sT3))
    if OPT.get("xe", 2) == 1: xrow()
    p("s_barrier"); run(tdma(1))
    if OPT.get("xe", 2) == 2: xrow()
    if not OPT.get("lazy", 0): run(wdma(2)); run(tdma(2)); run(wdma(3))
    if OPT.get("wt", 0):
        n = OPT["wt"]
        p("s_cmp_lt_u32 s%d, %d" % (sWAVE, 8 - 2 * n)); p("s_cbranch_scc1 K_NOWT")
        p("s_sub_u32 s%d, 7, s%d" % (sT0, sWAVE)); p("s_lshr_b32 s%d, s%d, 1" % (sT1, sT0)); p("s_add_u32 s%d, s%d, 1" % (sT1, sT1)); p("s_lshl_b32 s%d, s%d, 7" % (sT1, sT1))
        p("s_bitcmp1_b32 s%d, 0" % sT0); p("s_cselect_b32 s%d, s%d, s%d" % (sT0, sTAB + 9, sTAB + 8)); p("s_add_u32 s%d, s%d, s%d" % (sT0, sT0, sT1))
        p("v_lshlrev_b32 v%d, 6, v%d" % (VSP, VL128))
        cond(p, "buffer_load_dword v%d, v%d, %s, s%d offen" % (VDUM, VSP, sr(R_W1), sT0))
        p.label("K_NOWT")
    if OPT.get("cpf", 0):
        p("s_cmp_lg_u32 s%d, 7" % sWAVE); p("s_cbranch_scc1 K_NOCPF")
        p("s_getpc_b64 s[100:101]")
        p("s_and_b32 s%d, s%d, 7" % (sT0, sIDX)); p("s_lshl_b32 s%d, s%d, 13" % (sT0, sT0)); p("v_add_u32 v%d, s%d, v%d" % (VSP, sT0, VL128))
        p("v_min_u32 v%d, 0x%x, v%d" % (VSP, OPT.get("reach", 0x1000), VSP))
        cond(p, "global_load_dword v%d, v%d, s[100:101]" % (VDUM, VSP))
        p.label("K_CPFREF")
        p.label("K_NOCPF")
    setup2(p)
    if OPT.get("dbgt", 0):
        p("s_memrealtime s[100:101]"); p("s_waitcnt lgkmcnt(0)"); p("v_mov_b32 v%d, s100" % VSP)
        p("s_lshl_b32 s100, s%d, 2" % sX8); p("s_add_u32 s100, s100, 4"); p("s_add_u32 s101, s%d, s%d" % (sIDX, sWAVE)); p("s_cmp_eq_u32 s101, 0"); p("s_cselect_b32 s100, s100, 0x1000")
        cond(p, "buffer_store_dword v%d, v%d, %s, s100 offen" % (VSP, VONE, sr(R_DBG)))
    if STAMP:
        p("buffer_store_dwordx2 v[110:111], v%d, %s, s99 offen offset:120" % (VONE, sr(R_WS)), note="diag"); p.vq.pop()
    stamp(p, 0)
    items = [(u, [(0, c, 4 * ((u >> 3) & 1) + c) for c in range(4)]) for u in range(32)]
    items += [(32, GE), (33, GE), (32, GF), (33, GF)] + [(s, g) for s in range(34, 38) for g in (GE, GF)]
    items += [(38, GE), (39, GE), (38, GF), (39, GF), (40, XG), (41, XG), (40, YG), (41, YG)] + [(s, g) for s in range(42, 48) for g in (XG, YG)]
    prev = {}
    for s in range(48):
        sz = 8192 if s < 32 else 16384
        ov = [q for q in range(s) if UB[q] < UB[s] + sz and UB[s] < UB[q] + (8192 if q < 32 else 16384)]
        prev[s] = ov[-2:]
    g0 = OPT.get("g0", 304)
    minbar = {32 + i: g0 + OPT.get('gs', 32) * i for i in range(6)}
    MERGE = 576
    st = None
    for var in ("K", "V"):
        if var == "K":
            p("s_cmp_lg_u32 s%d, 0" % sU1); p("s_cbranch_scc1 P1_V"); st = (list(p.lq), list(p.vq), {k: list(v) for k, v in toks.items()})
        else:
            p.label("P1_V"); p.lq, p.vq = list(st[0]), list(st[1]); toks.clear(); toks.update({k: list(v) for k, v in st[2].items()})
        def mf(sl, kk, at, th, fr):
            c = sl % 8; t = treg(2 * c + kk, th); t = "a[%d:%d]" % (t, t + 3)
            acc = vr(8 * at + 4 * th); cc = "0" if (c == 0 and kk == 0) else acc
            if var == "V" and sl < 32: return "%s %s, %s, %s, %s" % (MF, acc, t, vr(fr), cc)
            return "%s %s, %s, %s, %s" % (MF, acc, vr(fr), t, cc)
        sc = [1]
        def st_hook(p):
            stamp(p, sc[0]); sc[0] += 1
        ab = {bp: [st_hook] for bp in (16, 48, 112, 240, 304, 400, 496, 528, 624, 752, 816, 912, 1008)} if STAMP else {}
        B64 = OPT.get("b64", 0)
        if B64:
            OPT.setdefault("c0b", 400); OPT.setdefault("c1b", 912); OPT.setdefault("c1s", 784)
            ab = {}
        BH = 848 if B64 else 880
        ab.setdefault(176, []).append(signal(0)); ab.setdefault(BH, []).append(signal(128))
        def wbl2(p):
            sk = p.newlabel("WB")
            p("s_cmp_lg_u32 s%d, 0" % sWAVE); p("s_cbranch_scc1 %s" % sk); cond(p, "buffer_wbl2 sc1"); p.label(sk)
        if OPT.get("wb", 0):
            for bp_ in ((720,) if OPT["wb"] == 1 else (400, 720)): ab.setdefault(bp_, []).append(wbl2)
            ab.setdefault(880, []).append(signal(64))
        else: ab.setdefault(OPT.get("c1s", 752), []).append(signal(64))
        ew = {80: ["LS"], 176: ["LN"], OPT.get("c1s", 752): ["ST1"], BH: ["STH"], 1008: ["KV"]}
        if OPT.get("wb", 0) == 2: ew[400] = ["ST1"]
        C0B, C1B = OPT.get("c0b", 368), OPT.get("c1b", 944)
        bb = {C0B: [poll_check(R_DBG, "0", 256, True)], C1B: [poll_check(R_DBG, "64", 256, True)]}
        S, pro, init, last_use = engine(toks, items, UB, mf, wdma, prev, minbar, range(8), 512, {b: 0 for b in range(4)},
                                        extra_wait=ew, after_bar=ab, before_bar=bb, maxnew=6 if B64 else 3,
                                        bpos=(list(range(16, B64, 32)) + list(range(B64, 1000, 64)) + [1008]) if B64 else None)
        def tread(c):
            def f(p):
                p.wait_tok(toks["T%d" % c])
                for kk in range(2):
                    ad, o = VTA + kk, (c % 3) * 32768
                    if c % 3 == 2: p("v_add_u32 v%d, 0x10000, v%d" % (96 + kk, VTA + kk)); ad, o = 96 + kk, 0
                    for th in range(2):
                        t = treg(2 * c + kk, th); p("ds_read_b128 a[%d:%d], v%d offset:%d" % (t, t + 3, ad, o + th * 2048))
            return f
        if OPT.get("lazy", 0):
            S.group(0, wdma(2) + tdma(2) + wdma(3), per=3); S.group(16, wdma(4) + wdma(5), per=2)
        else: S.group(0, wdma(4)); S.group(0, wdma(5))
        for c in range(1, 8): S.put(16 * (c - 1) + 6, tread(c))
        S.group(10, tdma(3), per=2); S.group(16, wdma(6)); S.group(16, wdma(7))
        for c in range(4, 8): S.group(16 * (c - 3) + 10, tdma(c), per=2)
        X0 = OPT.get("x0", 1)
        if not OPT.get("xe", 2): S.spread(X0, ["s_lshl_b32 s%d, s%d, 10" % (sT3, sLNROW), "buffer_load_dwordx4 v[100:103], v%d, %s, s%d offen" % (VL16, sr(R_X), sT3)], per=6)
        S.spread(26, ["v_mov_b32 v104, 0", "s_lshl_b32 s%d, s2, 8" % sT3, "s_add_u32 s%d, s%d, 0x%x" % (sT3, sT3, WS_FLAG),
                      "v_lshrrev_b32 v106, 2, v%d" % VL16, "s_cmp_eq_u32 s%d, 0" % sWAVE,
                      "s_cselect_b32 s%d, s%d, 0x%x" % (sT3, sT3, OOB), ("buffer_store_dword v104, v106, %s, s%d offen sc1" % (sr(R_WS), sT3), "LN")], per=8)
        e = S.spread(OPT.get('lna', 28), ln_list_a(), per=3); assert e <= 64, e
        S.spread(80, ln_list_b0(), per=2)
        e = S.spread(100, ln_list_b(), per=3); assert e <= 134, e
        def cvt(grp, q):
            st0 = 96 + 4 * q
            if var == "K":
                kap, th = 2 * grp + (q >> 1), q & 1; src = [16 * kap + 4 * th, 16 * kap + 4 * th + 2, 16 * kap + 8 + 4 * th, 16 * kap + 10 + 4 * th]
            else:
                cb = 4 * grp + q; src = [8 * cb + 2 * j for j in range(4)]
            return ["v_cvt_pk_bf16_f32 v%d, v%d, v%d" % (st0 + j, src[j], src[j] + 1) for j in range(4)]
        def sto(grp, q):
            if OPT.get("nost", 0): return ("s_nop 0", None)
            return ("buffer_store_dwordx4 %s, v%d, %s, s%d offen offset:%d%s" % (vr(96 + 4 * q), VL16, sr(R_WS), sO1B if grp else sO1, q * 1024, "" if OPT.get("wb", 0) else " sc1"), "ST1")
        def stg(t, st):
            d = OPT.get("stg", 0)
            if not d: S.put(t, *st); return
            def mk(lo):
                def f(p):
                    sk = p.newlabel("SS")
                    p("s_cmp_%s_u32 s%d, 4" % ("ge" if lo else "lt", sWAVE)); p("s_cbranch_scc1 %s" % sk); cond(p, st[0]); p.label(sk)
                return f
            S.put(t, mk(True)); S.put(t + d, mk(False))
        for ps in range(3):
            for q in range(4):
                t0 = 128 * (ps + 1) + 8 + (28 if ps < 2 else OPT.get("s2", 12)) * q
                S.spread(t0, cvt(ps & 1, q))
                if ps < 2: stg(t0 + 6, sto(ps & 1, q))
                else: S.put(t0 + 6, *sto(ps & 1, q))
        S.put(250, "s_add_u32 s%d, s%d, 0x80000" % (sO1, sO1)); S.put(378, "s_add_u32 s%d, s%d, 0x80000" % (sO1B, sO1B))
        S.spread(522, sum([cvt(1, q) for q in range(4)], []))
        for q in range(4): S.put(OPT.get("fb", 660) + OPT.get("fs", 20) * q, *sto(1, q))
        S.put(C0B - 24, poll_issue(R_DBG, "0"))
        def stag(f):
            def g(lo):
                def h(p):
                    sk = p.newlabel("SK")
                    p("s_cmp_%s_u32 s%d, 4" % ("ge" if lo else "lt", sWAVE)); p("s_cbranch_scc1 %s" % sk); f(p); p.label(sk)
                return h
            return g(True), g(False)
        def pf_xn(t):
            def f(p):
                p("s_lshl_b32 s%d, s%d, 16" % (sT1, sIDX)); p("s_lshl_b32 s%d, s%d, 13" % (sT0, sS4)); p("s_add_u32 s%d, s%d, s%d" % (sT0, sT1, sT0))
                cond(p, "buffer_load_dword v%d, v%d, %s, s%d offen offset:0" % (VDUM, VL128, sr(R_WS), sT0)) if t == 0 else (
                    p("s_add_u32 s%d, s%d, 32768" % (sT0, sT0)), cond(p, "buffer_load_dword v%d, v%d, %s, s%d offen" % (VDUM, VL128, sr(R_WS), sT0)))
            return f
        def pf_kv(t):
            def f(p):
                p("v_and_b32 v%d, 0x380, v%d" % (VSP, VL128)); p("v_bfe_u32 v%d, v%d, 7, 2" % (VPOLL, VL16)); p("v_lshl_add_u32 v%d, v%d, 13, v%d" % (VSP, VPOLL, VSP))
                p("v_lshrrev_b32 v%d, 9, v%d" % (VPOLL, VL16)); p("v_lshl_add_u32 v%d, v%d, 24, v%d" % (VSP, VPOLL, VSP))
                p("s_lshl_b32 s%d, s%d, 15" % (sT0, sWAVE)); p("s_add_u32 s%d, s%d, s%d" % (sT0, sT0, sHB)); p("s_and_b32 s%d, s%d, 28" % (sT1, sIDX)); p("s_lshl_b32 s%d, s%d, 8" % (sT1, sT1))
                p("s_add_u32 s%d, s%d, s%d" % (sT0, sT0, sT1)); p("s_add_u32 s%d, s%d, 0x%x" % (sT0, sT0, WS_K + t * 262144))
                cond(p, "buffer_load_dword v%d, v%d, %s, s%d offen" % (VDUM, VSP, sr(R_WS), sT0))
            return f
        if OPT.get("pf", 0):
            S.put(C0B + 9, stag(pf_xn(0))[1]); S.put(C0B + 41, stag(pf_xn(1))[1])
        if OPT.get("pfw", 0): S.put(OPT["pfw"], pf_p2w)
        if OPT.get("gw", 0):
            a_, b_ = stag(global_warm); S.put(OPT["gw"], b_); S.put(OPT["gw"] + OPT.get("gw2", 32), a_)
        if OPT.get("pfx", 0):
            def pf_own(p):
                p("v_lshrrev_b32 v%d, 9, v%d" % (VSP, VL16)); p("v_add_u32 v%d, s%d, v%d" % (VSP, sRO2, VSP)); p("v_and_b32 v%d, 7, v%d" % (VSP, VSP))
                p("v_and_b32 v%d, 0xf80, v%d" % (VPOLL, VL128)); p("v_lshl_add_u32 v%d, v%d, 12, v%d" % (VSP, VSP, VPOLL))
                cond(p, "buffer_load_dword v%d, v%d, %s, s%d offen" % (VDUM, VSP, sr(R_WS), sXN))
            a_, b_ = stag(pf_own); S.put(C0B + OPT.get("pfx1", 12), b_); S.put(C0B + OPT.get("pfx2", 44), a_)
        if OPT.get("pfkv", 0):
            for t in range(2):
                a_, b_ = stag(pf_kv(t)); S.put(C1B + 8 + 40 * t, a_); S.put(C1B + 26 + 40 * t, b_)
        for c in range(8):
            L = rot8(sT3, c, "s_lshl_b32 s%d, s%d, 12" % (sT3, sT3), sXN)
            for kk in range(2):
                for th in range(2):
                    t = treg(2 * c + kk, th)
                    L.append("buffer_load_dwordx4 a[%d:%d], v%d, %s, s%d offen offset:%d sc1" % (t, t + 3, VL16, sr(R_WS), sT3, kk * 2048 + th * 1024))
            need = 512 + (16 * c if c < 2 else 32 * c)
            t0 = max(401 + 16 * c, need - OPT.get("xla", 100))
            if not OPT.get("noxn", 0): S.spread(t0, L[:-4], per=5); S.spread(t0 + 1, L[-4:], per=1, step=2)
        def swiglu(grp):
            r_ = []
            for th in range(2):
                st0 = 96 + 4 * th; E = 104
                g = [8 * (4 * grp + (j >> 2)) + 4 * th + (j & 3) for j in range(8)]; u = [x + 16 for x in g]
                for j in range(8): r_.append("v_mul_f32 v%d, 0xbfb8aa3b, v%d" % (E + j, g[j]))
                for j in range(8): r_.append("v_exp_f32 v%d, v%d" % (E + j, E + j))
                for j in range(8): r_.append("v_mul_f32 v%d, v%d, v%d" % (g[j], g[j], u[j]))
                for j in range(8): r_.append("v_add_f32 v%d, 1.0, v%d" % (E + j, E + j))
                for j in range(8): r_.append("v_rcp_f32 v%d, v%d" % (E + j, E + j))
                r_.append("s_nop 0")
                for j in range(8): r_.append("v_mul_f32 v%d, v%d, v%d" % (g[j], g[j], E + j))
                for j in range(4): r_.append("v_cvt_pk_bf16_f32 v%d, v%d, v%d" % (st0 + j, g[2 * j], g[2 * j + 1]))
                r_.append(("buffer_store_dwordx4 %s, v%d, %s, s%d offen offset:%d sc1" % (vr(st0), VL16, sr(R_WS), sHO2 if grp else sHO, th * 1024), "STH"))
            return r_
        e = S.spread(736 + 5, swiglu(0), per=4); assert e <= 768, e
        e = S.spread(768 + 5, swiglu(1), per=4); assert e <= 800, e
        S.spread(1008 + 5, qepi(0), per=5)
        S.spread(900, ["v_accvgpr_write_b32 a%d, 0" % r for r in range(64)], per=1)
        S.put(C1B - 14, poll_issue(R_DBG, "64"))
        kv = ["s_lshl_b32 s%d, s%d, 13" % (sT0, sWAVE), "s_add_u32 s%d, s%d, s%d" % (sT1, sHB, sT0), "s_add_u32 s%d, s%d, 0x%x" % (sT1, sT1, WS_K),
              "s_add_u32 s%d, s%d, 0x%x" % (sT3, sT1, WS_V - WS_K - 6 * 8192), "s_add_u32 s%d, s%d, %d" % (sSRC, sT0, 65536 - 6 * 8192),
              "s_cmp_ge_u32 s%d, 6" % sWAVE, "s_cselect_b32 s%d, s%d, s%d" % (sT1, sT3, sT1), "s_cselect_b32 s%d, s%d, s%d" % (sT0, sSRC, sT0)]
        S.spread(952, kv, per=8)
        kv = []
        for hf in range(2):
            kv += [("s_add_u32 m0, s%d, %d" % (sT0, hf * 4096), "m0:KV"), ("s_add_u32 s%d, s%d, %d" % (sT3, sT1, hf * 4096), None)]
            kv += [("buffer_load_dwordx4 v%d, %s, s%d offen offset:%d sc1 lds" % (VL16, sr(R_WS), sT3, j * 1024), "KV") for j in range(4)]
        assert max(S.busy) < 882, max(S.busy)
        assert max(last_use[40], last_use[42]) < C1B
        LS0, LS1 = late_setup()
        e = S.spread(884 if not B64 else 914, LS1, per=2 if not B64 else 3); assert e <= 951, e
        S.spread(980, LS0, per=1)
        for f in range(OPT.get("la", 7)): S.put(1009 + 2 * f, "ds_read_b128 a[%d:%d], v%d offset:%d" % (64 + 4 * f, 67 + 4 * f, VKA, f * 1024), "A%d" % f)
        S.spread(953, kv, step=2)
        assert max(last_use[40], last_use[42]) < 944
        p.wait_tok(sum([toks["W%d" % s] for s in init], [])); p("s_barrier")
        tread(0)(p)
        run(pro)
        S.emit(p, toks, 0, MERGE)
        if var == "K": p("s_branch P2_M")
    p.label("P2_M")
    S.emit(p, toks, MERGE, None)
    stamp(p, 14)
    return toks

def late_setup():
    p = Rec()
    p("s_cmp_ge_u32 s%d, 2" % sS4)
    p("s_mov_b32 s%d, 0x%x" % (sSRC, WS_K + 6 * 8192)); p("s_cselect_b32 s%d, 0x%x, s%d" % (sSRC, WS_V, sSRC))
    p("s_mov_b32 s%d, 0x%x" % (sMAX, WS_K)); p("s_cselect_b32 s%d, 0x%x, s%d" % (sMAX, WS_V, sMAX))
    p("s_mov_b32 s%d, 0" % sRB); p("s_cselect_b32 s%d, 0x10000, s%d" % (sRB, sRB))
    p("s_mov_b32 s%d, %d" % (sDST, 6 * 8192)); p("s_cselect_b32 s%d, 0, s%d" % (sDST, sDST))

    p("s_lshl_b32 s%d, s%d, 13" % (sT0, sS4)); p("s_add_u32 s%d, s%d, s%d" % (sSRC, sSRC, sT0)); p("s_add_u32 s%d, s%d, s%d" % (sSRC, sSRC, sHB))
    p("s_add_u32 s%d, s%d, s%d" % (sDST, sDST, sT0))
    p("s_lshl_b32 s%d, s%d, 13" % (sT0, sLAST)); p("s_add_u32 s%d, s%d, s%d" % (sMAX, sMAX, sT0)); p("s_add_u32 s%d, s%d, s%d" % (sMAX, sMAX, sHB))
    nld = len(p.l)
    p4_setup(p)
    p("v_mov_b32 v%d, v%d" % (VKA, VL16)); p("v_add_u32 v%d, 16384, v%d" % (VKB, VL16)); p("v_mov_b32 v%d, v%d" % (VV, VL16))
    p("v_bfe_u32 v%d, v%d, 4, 4" % (VQM, VL16)); p("v_lshrrev_b32 v%d, 8, v%d" % (TM, VL16)); p("v_lshlrev_b32 v%d, 2, v%d" % (TM, TM))
    p("v_sub_u32 v%d, v%d, v%d" % (VQM, VQM, TM)); p("v_mov_b32 v%d, 0xff800000" % TM)
    for r in range(4): p("v_cmp_gt_i32 s[%d:%d], %d, v%d" % (sTAB + 2 * r, sTAB + 1 + 2 * r, r, VQM))
    p("v_mov_b32 v%d, 0" % LR[1][0]); p("v_mov_b32 v%d, 0" % LR[1][1])
    p("s_mov_b32 s%d, %s" % (sTHR, f32hex(THR))); p("s_max_u32 s%d, s%d, 2" % (sRING, sTB)); p("s_sub_u32 s%d, s%d, 2" % (sRING, sRING)); p("s_lshr_b32 s%d, s%d, 1" % (sRING, sRING))
    if not OPT.get("fast", 1): p("s_mov_b32 s%d, 0" % sRING)
    p("s_lshl_b32 s%d, s%d, 1" % (sUU, sRING)); p("s_add_u32 s%d, s%d, 1" % (sUU, sUU)); p("s_mov_b32 s%d, 0" % sPF)
    return p.l[:nld], p.l[nld:]

def global_warm(p):
    end = p.newlabel("GW")
    p("s_mov_b32 s%d, s%d" % (sT0, sLNROW))
    for rs, n in ((R_WG, 224), (R_WU, 224), (R_WQ, 512), (R_WD, 224), (R_WO, 512)):
        nx = p.newlabel("GW")
        p("s_cmp_ge_u32 s%d, %d" % (sT0, n)); p("s_cbranch_scc1 %s" % nx)
        p("s_lshl_b32 s%d, s%d, 13" % (sT0, sT0))
        cond(p, "buffer_load_dword v%d, v%d, %s, s%d offen" % (VDUM, VL128, sr(rs), sT0))
        p("s_branch %s" % end)
        p.label(nx); p("s_sub_u32 s%d, s%d, %d" % (sT0, sT0, n))
    p.label(end)

def pf_p2w(p):
    l1, l2, l3 = p.newlabel("PF"), p.newlabel("PF"), p.newlabel("PF")
    p("s_cmp_lt_u32 s%d, 4" % sWAVE); p("s_cbranch_scc1 %s" % l3)
    p("s_cmp_ge_u32 s%d, 2" % sS4); p("s_cbranch_scc1 %s" % l1)
    p("v_and_b32 v%d, 0x380, v%d" % (VSP, VL128)); p("v_lshrrev_b32 v%d, 7, v%d" % (VPOLL, VL16)); p("v_lshl_add_u32 v%d, v%d, 13, v%d" % (VSP, VPOLL, VSP))
    p("s_lshl_b32 s%d, s%d, 1" % (sT0, sIDX)); p("s_add_u32 s%d, s%d, s%d" % (sT0, sT0, sS4)); p("s_lshl_b32 s%d, s%d, 16" % (sT0, sT0))
    p("s_lshl_b32 s%d, s%d, 10" % (sT1, sX8)); p("s_add_u32 s%d, s%d, s%d" % (sT0, sT0, sT1))
    cond(p, "buffer_load_dword v%d, v%d, %s, s%d offen" % (VDUM, VSP, sr(R_WQ), sT0))
    p("s_branch %s" % l3)
    p.label(l1)
    p("v_and_b32 v%d, 0x180, v%d" % (VSP, VL128)); p("v_lshrrev_b32 v%d, 6, v%d" % (VPOLL, VL16)); p("v_mul_u32_u24 v%d, 3584, v%d" % (VPOLL, VPOLL))
    p("v_add_u32 v%d, v%d, v%d" % (VSP, VSP, VPOLL))
    p("s_mul_i32 s%d, s%d, %d" % (sT0, sIDX, 16 * 3584)); p("s_lshl_b32 s%d, s%d, 9" % (sT1, sX8)); p("s_lshl_b32 s%d, s%d, 8" % (sT3, sX8)); p("s_add_u32 s%d, s%d, 1536" % (sT3, sT3))
    p("s_cmp_ge_u32 s%d, 6" % sX8); p("s_cselect_b32 s%d, s%d, s%d" % (sT1, sT3, sT1)); p("s_add_u32 s%d, s%d, s%d" % (sT0, sT0, sT1))
    p("s_cmp_eq_u32 s%d, 3" % sS4); p("s_cbranch_scc1 %s" % l2)
    cond(p, "buffer_load_dword v%d, v%d, %s, s%d offen" % (VDUM, VSP, sr(R_WG), sT0))
    p("s_branch %s" % l3)
    p.label(l2)
    cond(p, "buffer_load_dword v%d, v%d, %s, s%d offen" % (VDUM, VSP, sr(R_WU), sT0))
    p.label(l3)

def qepi(grp):
    r = []
    for kap in (2 * grp, 2 * grp + 1):
        for j in range(16): r.append("v_mul_f32 v%d, %s, v%d" % (16 * kap + j, f32hex(QSCALE), 16 * kap + j))
        for th in range(2):
            b = 16 * kap + 4 * th
            for j, s_ in enumerate((b, b + 2, b + 8, b + 10)): r.append("v_cvt_pk_bf16_f32 v%d, v%d, v%d" % (b + j, s_, s_ + 1))
    return r

SREG = [[8 + (e & 7) + 16 * (e >> 3) for e in range(16)], [40 + (e & 7) + 16 * (e >> 3) for e in range(16)]]
CI, PB, E, LR, VKA, VKB, VV, VQM, TM = 64, (80, 88), 96, ((100, 101), (102, 103)), 104, 105, 106, 107, 108
def attention(p, toks0):
    AF = 64; LA = OPT.get("la", 7); KVSC = "sc1 " if OPT.get("kvsc", 1) else ""
    AFN = 8 if OPT.get("acc", 0) and LA > 7 else OPT.get("afn", 16)
    if OPT.get("acc", 0): AFN = 8
    fr = lambda j: "a[%d:%d]" % (AF + 4 * (j % AFN), AF + 4 * (j % AFN) + 3)
    O = lambda cb, qh: "a[%d:%d]" % (8 * cb + 4 * qh, 8 * cb + 4 * qh + 3)
    Q = lambda qh, kap: vr(16 * kap + 4 * qh)
    def dma_block():
        if OPT.get("nodma", 0): return
        p("s_min_u32 s%d, s%d, s%d" % (sT0, sSRC, sMAX)); p("s_and_b32 s%d, s%d, 0xffff" % (sT1, sDST)); p("s_add_u32 m0, s%d, s%d" % (sT1, sRB))
        p("s_add_u32 s%d, s%d, 4096" % (sT2, sT0))
        for j in range(4): cond(p, "buffer_load_dwordx4 v%d, %s, s%d offen offset:%d %slds" % (VL16, sr(R_WS), sT0, j * 1024, KVSC))
        p("s_add_u32 m0, m0, 4096"); p("s_add_u32 s%d, s%d, 16384" % (sSRC, sSRC))
        for j in range(4): cond(p, "buffer_load_dwordx4 v%d, %s, s%d offen offset:%d %slds" % (VL16, sr(R_WS), sT2, j * 1024, KVSC))
        p("s_add_u32 s%d, s%d, 16384" % (sDST, sDST))
    def touch():
        if not OPT.get("touch", 0): return
        p("s_add_u32 s%d, s%d, 32768" % (sT0, sSRC)); p("s_min_u32 s%d, s%d, s%d" % (sT0, sT0, sMAX)); p("s_add_u32 s%d, s%d, 16384" % (sSRC, sSRC))
        cond(p, "buffer_load_dword v%d, v%d, %s, s%d offen" % (VDUM, VL128, sr(R_WS), sT0))
    def dma_list():
        L = ["s_min_u32 s%d, s%d, s%d" % (sT0, sSRC, sMAX), "s_and_b32 s%d, s%d, 0xffff" % (sT1, sDST), "s_add_u32 m0, s%d, s%d" % (sT1, sRB), "s_add_u32 s%d, s%d, 4096" % (sT2, sT0)]
        L += [(lambda p, j=j: cond(p, "buffer_load_dwordx4 v%d, %s, s%d offen offset:%d %slds" % (VL16, sr(R_WS), sT0, j * 1024, KVSC))) for j in range(4)]
        L += ["s_add_u32 m0, m0, 4096", "s_add_u32 s%d, s%d, 16384" % (sSRC, sSRC)]
        L += [(lambda p, j=j: cond(p, "buffer_load_dwordx4 v%d, %s, s%d offen offset:%d %slds" % (VL16, sr(R_WS), sT2, j * 1024, KVSC))) for j in range(4)]
        L += ["s_add_u32 s%d, s%d, 16384" % (sDST, sDST)]
        return L
    def role(tag):
        p("s_cmp_ge_u32 s%d, 4" % sWAVE); p("s_cbranch_scc1 AT_RE%s" % tag)
        if tag == "0":
            p("s_cmp_lt_u32 s%d, 2" % sWAVE); p("s_cbranch_scc1 AT_R00"); dma_block(); p.label("AT_R00")
        dma_block()
        p.label("AT_RE%s" % tag)
    kread = lambda j, ad, off: ("ds_read_b128 %s, v%d offset:%d" % (fr(j), ad, off + j * 1024), "A%d" % j)
    vread = lambda j, off: ("ds_read_b128 %s, v%d offset:%d" % (fr(j), VV, off + (j - 8) * 1024), "A%d" % j)
    def maskprep(R=None):
        R = R or [CI + e for e in range(16)]
        for r in range(4):
            p("v_mov_b32 v%d, v%d" % (R[4 + r], TM))
            for e in (r, 12 + r): p("v_cndmask_b32 v%d, v%d, v%d, s[%d:%d]" % (R[e], R[e], TM, sTAB + 2 * r, sTAB + 1 + 2 * r))
        p("s_nop 1")
    def qk_slots(S, dst, zero=False):
        for j in range(16):
            kap, kh, qh = j >> 2, (j >> 1) & 1, j & 1; e0 = 8 * qh + 4 * kh
            S.add("%s %s, %s, %s, %s" % (MF, vr(dst[e0]), fr(j >> 1), Q(qh, kap), ("0" if zero else vr(CI + e0)) if kap == 0 else vr(dst[e0])))
    toks = {}
    def pairwait(S, nf):
        for f in range(0, nf, 2):
            S.s[2 * f]["pre"].append(lambda p, f=f: p.wait_tok(toks["A%d" % (f + 1)][-1]))
    def period(par, pv=True, fast=None):
        cur, nxt = SREG[par], SREG[1 - par]; koff = 0 if par else 8192
        S = Slots(); qk_slots(S, nxt)
        if pv:
            for j in range(16, 32):
                cb, qh = (j - 16) >> 1, j & 1
                S.add("%s %s, %s, %s, %s" % (MF, O(cb, qh), fr(j >> 1), vr(PB[1 - par] + 4 * qh), O(cb, qh)))
        n = len(S.s); nf = n // 2; k = n // 16
        for f in range(LA, nf): S.put(2 * (f - LA), *(kread(f, VKA, koff) if f < 8 else vread(f, koff)))
        for f in range(LA): S.put(2 * (nf - LA + f), *(kread(f, VKA, 8192) if par else kread(f, VKB, 0)))
        pairwait(S, nf)
        for e in range(16):
            qh = e >> 3; l = LR[par][qh]
            add = "v_add_f32 v%d, v%d, v%d" % (l, LR[1 - par][qh] if e % 8 == 0 else l, E + e % 4)
            pe = max(e - 1, 0) if pv else e
            sl = k * pe + k - 1
            if pv and e == 1: S.put(sl, "s_nop 0"); S.put(sl, add)
            else: S.put(k * pe, add)
            if e & 1: S.put(sl, "v_cvt_pk_bf16_f32 v%d, v%d, v%d" % (PB[par] + e // 2, E + (e - 1) % 4, E + e % 4))
            if e < 15: S.put(sl, "v_exp_f32 v%d, v%d" % (E + (e + 1) % 4, cur[e + 1]))
        if pv:
            S.put(30, "v_max_f32 v%d, v%d, v%d" % (TM + 1, LR[par][0], LR[par][1]))
            S.put(30, "v_cmp_lt_f32 vcc, s%d, v%d" % (sTHR, TM + 1))
        else: S.put(n - 1, "s_nop 7")
        S.put(n - 1, "v_exp_f32 v%d, v%d" % (E, nxt[0]))
        if fast and par:
            bp = OPT.get("abar", 8)
            S.put(1, "v_add_u32 v%d, 16384, v%d" % (VKB, VKA)); S.put(5, "v_and_b32 v%d, 0xffff, v%d" % (VKB, VKB))
            if fast == "A": S.put(bp, "s_waitcnt vmcnt(8)")
            S.put(bp, "s_barrier")
            if fast == "A" and not OPT.get("nodma", 0): S.spread(bp + 1, dma_list(), per=1)
        if fast and not par:
            S.put(17, "v_add_u32 v%d, 0x10000, v%d" % (VV, VKA)); S.put(21, "v_mov_b32 v%d, v%d" % (VKA, VKB))
            S.put(25, "s_sub_u32 s%d, s%d, 1" % (sRING, sRING)); S.put(29, "s_cmp_lg_u32 s%d, 0" % sRING)
        S.emit(p, toks)
    def rowred(op, a, b):
        for sw in ("v_permlane16_swap_b32", "v_permlane32_swap_b32"):
            p("v_mov_b32 v%d, v%d" % (b, a)); p("s_nop 1"); p("%s v%d, v%d" % (sw, b, a)); p("s_nop 1"); p("%s v%d, v%d, v%d" % (op, a, a, b))
    def rowmax(cur, qh, d, t, lold=None):
        c = cur[8 * qh]
        if lold is not None: p("v_log_f32 v%d, v%d" % (t, lold))
        p("v_max3_f32 v%d, v%d, v%d, v%d" % (d, c, c + 1, c + 2)); p("v_max3_f32 v%d, v%d, v%d, v%d" % (d, d, c + 3, c + 4))
        p("v_max3_f32 v%d, v%d, v%d, v%d" % (d, d, c + 5, c + 6)); p("v_max_f32 v%d, v%d, v%d" % (d, d, c + 7))
        if lold is not None:
            p("v_add_f32 v%d, 0xc1400000, v%d" % (t, t)); p("v_max_f32 v%d, v%d, v%d" % (d, d, t))
        rowred("v_max_f32", d, t)
    def fixup(par, back):
        cur, nxt = SREG[par], SREG[1 - par]
        p.nop(8)
        if STAMP and OPT.get("acc", 0):
            p("v_accvgpr_read_b32 v%d, a127" % VPOLL); p("s_nop 0"); p("v_add_u32 v%d, 1, v%d" % (VPOLL, VPOLL)); p("s_nop 0"); p("v_accvgpr_write_b32 a127, v%d" % VPOLL)
        for qh in range(2):
            D, Fc = TM + 1, TM + 2
            rowmax(cur, qh, D, Fc, LR[1 - par][qh])
            p("v_ceil_f32 v%d, v%d" % (D, D)); p("v_max_f32 v%d, 0, v%d" % (D, D)); p("v_exp_f32 v%d, -v%d" % (Fc, D))
            for e in range(8 * qh, 8 * qh + 8):
                p("v_sub_f32 v%d, v%d, v%d" % (cur[e], cur[e], D)); p("v_sub_f32 v%d, v%d, v%d" % (nxt[e], nxt[e], D)); p("v_sub_f32 v%d, v%d, v%d" % (CI + e, CI + e, D))
            for cb in range(8):
                for r in range(4):
                    a = 8 * cb + 4 * qh + r
                    p("v_accvgpr_read_b32 v%d, a%d" % (E + r, a)); p("v_mul_f32 v%d, v%d, v%d" % (E + r, E + r, Fc)); p("v_accvgpr_write_b32 a%d, v%d" % (a, E + r))
            l = LR[par][qh]
            p("v_mul_f32 v%d, v%d, v%d" % (l, LR[1 - par][qh], Fc))
            for e in range(8 * qh, 8 * qh + 8, 2):
                p("v_exp_f32 v%d, v%d" % (E, cur[e])); p("v_exp_f32 v%d, v%d" % (E + 1, cur[e + 1])); p("s_nop 0")
                p("v_add_f32 v%d, v%d, v%d" % (l, l, E)); p("v_add_f32 v%d, v%d, v%d" % (l, l, E + 1))
                p("v_cvt_pk_bf16_f32 v%d, v%d, v%d" % (PB[par] + e // 2, E, E + 1))
        p("v_exp_f32 v%d, v%d" % (E, nxt[0]))
        p("s_cmp_eq_u32 s%d, 0" % sPF); p("s_cbranch_scc1 AT_B%d" % par)
        lb = p.newlabel("FXB")
        p("s_cmp_eq_u32 s%d, 2" % sPF); p("s_cbranch_scc1 %s" % lb)
        p("s_cmp_lg_u32 s%d, 0" % sRING); p("s_branch AT_FA_B%d" % par)
        p.label(lb)
        p("s_cmp_lg_u32 s%d, 0" % sRING); p("s_branch AT_FB_B%d" % par)
    for f in range(LA): toks["A%d" % f] = [toks0["A%d" % f][-1]]
    p.vq = []
    if STAMP and OPT.get("acc", 0):
        for i in range(8): p("v_accvgpr_write_b32 a%d, 0" % (120 + i))
        p("s_mov_b32 s98, s100")
    role("0")
    if OPT.get("pfkv2", 0):
        u0 = OPT.get("pfu0", 24)
        p("s_cmp_lt_u32 s%d, 16" % sIDX); p("s_cbranch_scc1 AT_NOPF")
        p("v_and_b32 v%d, 0x780, v%d" % (VSP, VL128)); p("v_bfe_u32 v%d, v%d, 8, 1" % (VPOLL, VL16)); p("v_lshl_add_u32 v%d, v%d, 13, v%d" % (VSP, VPOLL, VSP))
        p("v_lshrrev_b32 v%d, 9, v%d" % (VPOLL, VL16)); p("v_lshl_add_u32 v%d, v%d, 24, v%d" % (VSP, VPOLL, VSP))
        p("s_lshl_b32 s%d, s%d, 14" % (sT0, sWAVE)); p("s_add_u32 s%d, s%d, s%d" % (sT0, sT0, sHB)); p("s_and_b32 s%d, s%d, 12" % (sT1, sIDX)); p("s_lshl_b32 s%d, s%d, 9" % (sT1, sT1))
        p("s_add_u32 s%d, s%d, s%d" % (sT0, sT0, sT1)); p("s_add_u32 s%d, s%d, 0x%x" % (sT0, sT0, WS_K + u0 * 8192))
        for t in range((64 - u0 + 15) // 16):
            if u0 + 16 * (t + 1) > 64:
                p("s_cmp_ge_u32 s%d, %d" % (sWAVE, (64 - u0 - 16 * t) // 2)); p("s_cbranch_scc1 AT_NOPF")
            cond(p, "buffer_load_dword v%d, v%d, %s, s%d offen" % (VDUM, VSP, sr(R_WS), sT0))
            p("s_add_u32 s%d, s%d, 0x20000" % (sT0, sT0))
        p.label("AT_NOPF")
    S = Slots(); qk_slots(S, SREG[0], zero=True)
    for f in range(LA, 8): S.put(2 * (f - LA), *kread(f, VKA, 0))
    for f in range(LA): S.put(2 * (8 - LA + f), *kread(f, VKA, 8192))
    q1 = qepi(1)
    S.spread(0, q1[:24], per=4); S.spread(6, q1[24:], per=4)
    S.spread(12, ["v_xor_b32 v%d, %d, v%d" % (VWR + b_, 32 * b_, VTA) for b_ in range(4)], per=1)
    S.emit(p, toks)
    p.nop(6)
    p("s_cmp_lg_u32 s%d, 0" % sTB); p("s_cbranch_scc1 AT_NM0"); maskprep(SREG[0]); p.label("AT_NM0")
    for qh in range(2):
        rowmax(SREG[0], qh, E + 1, E + 2)
        for e in range(8 * qh, 8 * qh + 8): p("v_sub_f32 v%d, 0, v%d" % (CI + e, E + 1))
        for e in range(8 * qh, 8 * qh + 8): p("v_sub_f32 v%d, v%d, v%d" % (SREG[0][e], SREG[0][e], E + 1))
    p("v_exp_f32 v%d, v%d" % (E, SREG[0][0]))
    p("s_cmp_lg_u32 s%d, 1" % sTB); p("s_cbranch_scc1 AT_NM1"); maskprep(); p.label("AT_NM1")
    period(0, pv=False)
    sig0 = [sorted(e["regs"]) for e in p.lq]
    chk = lambda: [sorted(e["regs"]) for e in p.lq] == sig0
    lq0 = list(p.lq)
    stamp(p, 27); p.lq = list(lq0)
    p("s_cmp_eq_u32 s%d, 0" % sRING); p("s_cbranch_scc1 AT_STEPEND")
    p("v_add_u32 v%d, 0x10000, v%d" % (VV, VKA)); p("v_mov_b32 v%d, v%d" % (VKA, VKB))
    p("s_mov_b32 s%d, 2" % sPF)
    if OPT.get("prio", 0) == 1:
        p("s_cmp_lt_u32 s%d, 4" % sWAVE); p("s_cbranch_scc1 AT_NP"); p("s_setprio 1"); p.label("AT_NP")
    if OPT.get("prio", 0) == 2:
        p("s_sub_u32 s%d, 63, s%d" % (sT0, sLAST)); p("s_lshr_b32 s%d, s%d, 1" % (sT0, sT0)); p("s_add_u32 s%d, s%d, 2" % (sT0, sT0))
        p("s_min_u32 s%d, s%d, s%d" % (sT0, sT0, sRING)); p("s_sub_u32 s%d, s%d, s%d" % (sLNROW, sRING, sT0))
        p("s_cmp_ge_u32 s%d, 4" % sWAVE); p("s_cselect_b32 s%d, s%d, s%d" % (sRING, sT0, sRING))
    p("s_cmp_ge_u32 s%d, 4" % sWAVE); p("s_cbranch_scc1 AT_FB")
    p("s_mov_b32 s%d, 1" % sPF)
    for fa in ("A", "B"):
        p.lq = list(lq0)
        p.raw(".p2align 6") if fa == "B" else None
        p.label("AT_F%s" % fa)
        for par in (1, 0):
            period(par, fast=fa)
            p("s_cbranch_vccnz AT_FIX%d" % par)
            p.label("AT_F%s_B%d" % (fa, par))
            assert chk()
        p("s_cbranch_scc1 AT_F%s" % fa)
        if OPT.get("prio", 0) == 2 and fa == "B":
            p("s_mov_b32 s%d, s%d" % (sRING, sLNROW)); p("s_mov_b32 s%d, 0" % sLNROW); p("s_setprio 1")
            p("s_cmp_lg_u32 s%d, 0" % sRING); p("s_cbranch_scc1 AT_FB")
        p("s_mov_b32 s%d, 0" % sPF)
        stamp(p, 28); p.lq = list(lq0)
        p("s_branch AT_STEPEND2")
    p.lq = list(lq0)
    p.label("AT_STEPEND")
    p("v_add_u32 v%d, 0x10000, v%d" % (VV, VKA)); p("v_mov_b32 v%d, v%d" % (VKA, VKB))
    p.label("AT_STEPEND2")
    p("v_add_u32 v%d, 16384, v%d" % (VKB, VKA)); p("v_and_b32 v%d, 0xffff, v%d" % (VKB, VKB))
    acc_stamp(p, 0)
    p("s_waitcnt vmcnt(8)")
    acc_stamp(p, 1)
    p("s_barrier")
    acc_stamp(p, 2)
    if OPT.get("hm", 0):
        p("s_cmp_lg_u32 s%d, 0" % sHMB); p("s_cbranch_scc1 AT_GPP")
        cond(p, poll_issue(R_DBG, "128")); p("s_branch AT_GPQ")
        p.label("AT_GPP"); cond(p, poll_issue(R_WS, "s%d" % sCF)); p.label("AT_GPQ")
    else: cond(p, poll_issue(R_DBG, "128"))
    role("1")
    acc_stamp(p, 3)
    lqs = {}
    for par in (1, 0):
        p("s_add_u32 s%d, s%d, 1" % (sUU, sUU)); p("s_cmp_ge_u32 s%d, s%d" % (sUU, sTB)); p("s_cbranch_scc1 AT_H%d" % par)
        p.label("AT_P%d" % par)
        lqs[par] = list(p.lq)
        period(par)
        p("s_cbranch_vccnz AT_FIX%d" % par)
        p.label("AT_B%d" % par)
        assert [sorted(e["regs"]) for e in p.lq] == sig0
    p("s_branch AT_STEPEND")
    for par in (1, 0):
        p.lq = list(lqs[par])
        p.label("AT_FIX%d" % par); fixup(par, "AT_B%d" % par)
        p.label("AT_H%d" % par)
        p("s_sub_u32 s%d, s%d, s%d" % (sT0, sUU, sTB)); p("s_cmp_eq_u32 s%d, 1" % sT0); p("s_cbranch_scc1 AT_N%d" % par)
        p("s_cmp_eq_u32 s%d, 2" % sT0); p("s_cbranch_scc1 AT_T%d" % par)
        maskprep(); p("s_branch AT_P%d" % par)
        p.label("AT_N%d" % par)
        p("s_waitcnt lgkmcnt(0)")
        cur = SREG[par]; off = 0 if par else 8192
        for f in range(8, 16): p(vread(f, off)[0])
        p("s_cmp_lt_u32 s%d, 4" % sWAVE); p("s_cbranch_scc1 AT_N%dA" % par)
        p("s_waitcnt vmcnt(0)")
        poll_check(R_DBG, "128", 256)(p)
        p.label("AT_N%dA" % par)
        S = Slots()
        for j in range(16, 32):
            cb, qh = (j - 16) >> 1, j & 1
            S.add("%s %s, %s, %s, %s" % (MF, O(cb, qh), fr(j >> 1), vr(PB[1 - par] + 4 * qh), O(cb, qh)))
        for e in range(16):
            qh = e >> 3; l = LR[par][qh]
            S.put(e, "v_add_f32 v%d, v%d, v%d" % (l, LR[1 - par][qh] if e % 8 == 0 else l, E + e % 4))
            if e & 1: S.put(e, "v_cvt_pk_bf16_f32 v%d, v%d, v%d" % (PB[par] + e // 2, E + (e - 1) % 4, E + e % 4))
            if e < 15: S.put(e, "v_exp_f32 v%d, v%d" % (E + (e + 1) % 4, cur[e + 1]))
        S.put(15, "v_max_f32 v%d, v%d, v%d" % (TM + 1, LR[par][0], LR[par][1])); S.put(15, "v_cmp_lt_f32 vcc, s%d, v%d" % (sTHR, TM + 1))
        def btl(r):
            def f(p):
                sk = p.newlabel("BT")
                p("s_cmp_lt_u32 s%d, 4" % sWAVE); p("s_cbranch_scc1 %s" % sk); p4_tld(p, FULL, r); p.vq = []; p.label(sk)
            return f
        S.put(OPT.get("bt0", 9), btl(0)); S.put(15, btl(1))
        S.emit(p, {})
        p("s_cbranch_vccnz AT_FIX%d" % par); p("s_branch AT_B%d" % par)
        p.label("AT_T%d" % par)
        p("s_waitcnt lgkmcnt(0)")
        off = 0 if par else 8192
        for f in range(8, 16): p(vread(f, off)[0])
        p("v_mov_b32 v%d, v%d" % (TM + 1, LR[1 - par][0])); p("v_mov_b32 v%d, v%d" % (TM + 2, LR[1 - par][1]))
        for j in range(16, 32):
            cb, qh = (j - 16) >> 1, j & 1
            p("%s %s, %s, %s, %s" % (MF, O(cb, qh), fr(j >> 1), vr(PB[1 - par] + 4 * qh), O(cb, qh)))
        p("s_branch AT_EPI")
    p.label("AT_EPI")
    p("s_cmp_lt_u32 s%d, 4" % sWAVE); p("s_cbranch_scc1 AT_EPI2")
    p("s_cmp_gt_u32 s%d, 5" % sWAVE); p("s_cbranch_scc1 AT_EPI1")
    p("s_barrier")
    p.label("AT_EPI1")
    if not OPT.get("hm", 0): p4_tld(p, FULL, 2); p.vq = []
    else:
        p("s_cmp_lg_u32 s%d, 0" % sHM); p("s_cbranch_scc1 AT_EPI1H")
        p4_tld(p, FULL, 2); p("s_branch AT_EPI2")
        p.label("AT_EPI1H")
        p("s_waitcnt vmcnt(0)")
        p("v_readfirstlane_b32 s%d, v%d" % (sT0, VPOLL), note="=val %d" % (8 if OPT.get("early_ok", 1) else 0)); p("s_nop 0")
        p("s_cmp_lt_u32 s%d, 8" % sT0); p("s_cbranch_scc1 AT_EPI2")
        p("s_mov_b32 s%d, 2" % sHMB)
        for r in range(3): p4_tld(p, CRUN, r)
        p.vq = []
    p.label("AT_EPI2")
    stamp(p, 29)
    for qh in range(2):
        rowred("v_add_f32", TM + 1 + qh, E)
    for qh in range(2):
        p("v_rcp_f32 v%d, v%d" % (E + 2 * qh, TM + 1 + qh)); p("v_rcp_f32 v%d, v%d" % (E + 2 * qh + 1, TM + 1 + qh))
    p("v_mov_b32 v%d, 1" % VSP)
    p("s_lshr_b32 s%d, s%d, 1" % (sUU, sUU)); p("s_lshr_b32 s%d, s%d, 1" % (sLAST, sLAST))
    for q in range(8):
        kap, qh = q >> 1, q & 1; st = 8 * q
        if q == 4:
            p("s_add_u32 s%d, s%d, 4096" % (sCTX, sCTX))
            p("s_cmp_ge_u32 s%d, 4" % sWAVE); p("s_cbranch_scc1 AT_EPI3")
            p("s_waitcnt vmcnt(12)"); p("s_barrier")
            p("s_cmp_gt_u32 s%d, s%d" % (sSRC, sMAX)); p("s_cbranch_scc1 AT_EPI3")
            dma_block()
            p.label("AT_EPI3")
        for j in range(8): p("v_accvgpr_read_b32 v%d, a%d" % (st + j, 16 * kap + 8 * (j >> 2) + 4 * qh + (j & 3)))
        for j in range(4): p("v_pk_mul_f32 %s, %s, %s" % (vr(st + 2 * j, 2), vr(st + 2 * j, 2), vr(E + 2 * qh, 2)))
        for j in range(4): p("v_cvt_pk_bf16_f32 v%d, v%d, v%d" % (st + j, st + 2 * j, st + 2 * j + 1))
        p("buffer_store_dwordx4 %s, v%d, %s, s%d offen offset:%d sc1" % (vr(st), VL16, sr(R_WS), sCTX, (q % 4) * 1024))
    stamp(p, 15)
    if OPT.get("hm", 0): p("s_cmp_lg_u32 s%d, 0" % sHMB); p("s_cbranch_scc1 P4_JOINC")
    p("s_cmp_ge_u32 s%d, 4" % sWAVE); p("s_cbranch_scc1 P4_JOINF")
    poll_check(R_DBG, "128", 256)(p)
    p("s_add_u32 s%d, s%d, 1" % (sUU, sUU))
    p("s_cmp_gt_u32 s%d, s%d" % (sSRC, sMAX)); p("s_cbranch_scc1 AT_LDA1")
    p("s_waitcnt vmcnt(12)")
    p("s_sub_u32 s%d, s%d, %d" % (sT0, sIDX, 4 * OPT.get("tp0", 2))); p("s_cmp_lt_u32 s%d, 16" % sT0); p("s_cbranch_scc1 AT_TS")
    p("s_branch AT_LD")
    p.label("AT_LDA1"); p("s_waitcnt vmcnt(4)")
    p.label("AT_LD")
    p("s_cmp_lg_u32 s%d, 0" % sPF); p("s_cbranch_scc1 AT_LD2")
    p("s_add_u32 s%d, s%d, %d" % (sT0, sUU, OPT.get("pfat", 9))); p("s_cmp_lt_u32 s%d, s%d" % (sT0, sLAST)); p("s_cbranch_scc1 AT_LD2")
    p("s_cmp_eq_u32 s%d, s%d" % (sT0, sLAST)); p("s_cbranch_scc1 AT_PS")
    p("s_add_u32 s%d, s%d, %d" % (sT0, sUU, OPT.get("pfl", 4))); p("s_cmp_lt_u32 s%d, s%d" % (sT0, sLAST)); p("s_cbranch_scc1 AT_LD2")
    npf = p4_early(p)
    p("s_mov_b32 s%d, 1" % sPF)
    p.label("AT_LD2")
    if OPT.get("hm", 0):
        p("s_add_u32 s%d, s%d, 9" % (sT0, sUU)); p("s_cmp_eq_u32 s%d, s%d" % (sT0, sLAST)); p("s_cselect_b32 s%d, s%d, 0" % (sT0, sHM))
        p("s_cmp_lg_u32 s%d, 0" % sT0); p("s_cbranch_scc1 AT_HM")
    p("s_cmp_gt_u32 s%d, s%d" % (sUU, sLAST)); p("s_cbranch_scc1 AT_LDX")
    acc_stamp(p, 4)
    p("s_barrier")
    acc_stamp(p, 5)
    p("s_add_u32 s%d, s%d, 1" % (sUU, sUU))
    p("s_cmp_le_u32 s%d, s%d" % (sSRC, sMAX)); p("s_cbranch_scc1 AT_LD4")
    p("s_cmp_eq_u32 s%d, 1" % sPF); p("s_cbranch_scc1 AT_LD5")
    p("s_waitcnt vmcnt(0)"); p("s_branch AT_LDS")
    p.label("AT_LD5")
    p("s_mov_b32 s%d, 2" % sPF); p("s_waitcnt vmcnt(%d)" % npf); p("s_branch AT_LDS")
    p.label("AT_LD4")
    dma_block()
    acc_stamp(p, 6)
    p("s_cmp_eq_u32 s%d, 1" % sPF); p("s_cbranch_scc1 AT_LD3")
    p("s_waitcnt vmcnt(8)")
    p("s_branch AT_LDS")
    p.label("AT_LD3")
    p("s_mov_b32 s%d, 2" % sPF); p("s_waitcnt vmcnt(%d)" % (8 + npf))
    p.label("AT_LDS")
    p("s_cmp_eq_u32 s%d, 0x%x" % (sTE, OOB)); p("s_cbranch_scc1 AT_LD")
    p("v_mov_b32 v%d, 1" % VSP)
    cond(p, "buffer_atomic_add v%d, v%d, %s, s%d offen sc1" % (VSP, VONE, sr(R_WS), sTE))
    p("s_mov_b32 s%d, 0x%x" % (sTE, OOB))
    p("s_branch AT_LD")
    if OPT.get("hm", 0):
        p.label("AT_HM")
        for b_ in range(4): p("v_add_u32 v%d, 0x20000, v%d" % (VWR + b_, VWR + b_))
        for it in range(10):
            p.lq, p.vq = [], []
            p("s_barrier")
            if it == 9: break
            if it < 7:
                a_dma1(p, ("h", it), 8 + (it & 1))
                p("s_add_u32 s%d, s%d, %d" % (sT3, sH, it * 4096))
                for kk in range(2):
                    for th in range(2):
                        t = treg(8 + 2 * (it & 1) + kk, th)
                        cond(p, "buffer_load_dwordx4 a[%d:%d], v%d, %s, s%d offen offset:%d sc1" % (t, t + 3, VL16, sr(R_WS), sT3, kk * 2048 + th * 1024))
            if it == 8: a_dma(p, CRUN[0], 8)
            l1, l2, l3 = p.newlabel("HM"), p.newlabel("HM"), p.newlabel("HM")
            p("s_cmp_gt_u32 s%d, s%d" % (sSRC, sMAX)); p("s_cbranch_scc1 %s" % l1)
            dma_block()
            p.label(l1)
            if 1 <= it <= 7:
                k = it - 1
                def mfh(u, kk, at, th, fr_, k=k):
                    t = treg(8 + 2 * (k & 1) + kk, th); acc = vr(8 * at + 4 * th)
                    return "%s %s, %s, a[%d:%d], %s" % (MF, acc, vr(fr_), t, t + 3, "0" if (k == 0 and kk == 0) else acc)
                tk = {}
                S, pro, init, lu = engine(tk, [(0, XG), (0, YG)], [(k & 1) * 16384], mfh, None, {}, {}, [0], 2048, {b_: 0 for b_ in range(4)}, nobar=True)
                for t_ in pro: emit_tagged(p, tk, *t_)
                S.emit(p, tk)
            p("s_cmp_gt_u32 s%d, s%d" % (sSRC, sMAX)); p("s_cbranch_scc1 %s" % l2)
            p("s_waitcnt vmcnt(8)"); p("s_branch %s" % l3)
            p.label(l2); p("s_waitcnt vmcnt(0)"); p.label(l3)
        for b_ in range(4): p("v_add_u32 v%d, 0xfffe0000, v%d" % (VWR + b_, VWR + b_))
        p(poll_issue(R_WS, "s%d" % sCF))
        a_dma(p, CRUN[1], SL4(1)); a_dma(p, CRUN[2], SL4(2))
        p("s_waitcnt vmcnt(16)")
        poll_check(R_WS, "s%d" % sCF, 8)(p)
        for r in range(3): p4_tld(p, CRUN, r)
        p("s_branch P4_JOINC")
    if OPT.get("pfs", 1):
        p.label("AT_PS")
        prevn = 0
        for f, k in p4_pieces()[3:]:
            p("s_barrier"); dma_block(); f(p)
            p("s_waitcnt vmcnt(%d)" % (8 + k + prevn)); prevn = k
        p("s_add_u32 s%d, s%d, %d" % (sUU, sUU, len(p4_pieces()) - 3)); p("s_mov_b32 s%d, 2" % sPF)
        p("s_branch AT_LDS")
        p.label("AT_TS")
        prevn = 0
        for f, k in p4_pieces()[:3]:
            p("s_barrier"); dma_block(); f(p)
            p("s_waitcnt vmcnt(%d)" % (8 + k + prevn)); prevn = k
        p("s_add_u32 s%d, s%d, 3" % (sUU, sUU))
        p("s_branch AT_LDS")
    p.label("AT_LDX")
    a_dma(p, FULL[1], SL4(1)); a_dma(p, FULL[2], SL4(2))

sJ, sNT, sMT, sG, sTB4, sXO, sWD, sWO = range(12, 20)
sH, sC, sH3, sCF, sPB, sFL, sHM, sHMB = range(24, 32)
FULL = [("h", 0), ("h", 2), ("h", 4), ("h", 6)] + [("c", 2 * r) for r in range(8)]
CRUN = FULL[4:]
SHORT = FULL[:3] + FULL[4:]
SL4 = lambda r: ((r + 4) % 5) * 2
def p4_setup(p):
    A, B, C, L = 96, 97, 98, 99
    p("s_and_b32 s%d, s2, 3" % sJ); p("s_and_b32 s%d, s%d, 3" % (sNT, sIDX))
    p("s_lshr_b32 s%d, s%d, 2" % (sMT, sIDX)); p("s_and_b32 s%d, s2, 4" % sT0); p("s_lshl_b32 s%d, s%d, 1" % (sT0, sT0)); p("s_add_u32 s%d, s%d, s%d" % (sMT, sMT, sT0))
    p("s_lshr_b32 s%d, s%d, 2" % (sG, sWAVE)); p("s_lshl_b32 s%d, s%d, 2" % (sTB4, sMT)); p("s_add_u32 s%d, s%d, s%d" % (sTB4, sTB4, sS4))
    p("v_lshrrev_b32 v%d, 4, v%d" % (L, VL16))
    p("v_lshrrev_b32 v%d, 2, v%d" % (C, L)); p("v_lshlrev_b32 v%d, 7, v%d" % (C, C)); p("v_and_b32 v%d, 3, v%d" % (B, L)); p("v_lshl_add_u32 v%d, v%d, 3, v%d" % (C, B, C))
    p("s_lshl_b32 s%d, s%d, 14" % (sT0, sG)); p("v_add_u32 v%d, s%d, v%d" % (C, sT0, C)); p("v_bfe_u32 v%d, v%d, 3, 2" % (A, L))
    p("v_lshl_add_u32 v%d, v%d, 5, v%d" % (VTA, A, C))
    p("v_bfe_u32 v%d, v%d, 1, 2" % (A, L)); p("v_lshrrev_b32 v%d, 4, v%d" % (B, L)); p("v_xor_b32 v%d, v%d, v%d" % (A, A, B))
    p("v_and_b32 v%d, 1, v%d" % (B, L)); p("v_lshlrev_b32 v%d, 4, v%d" % (B, B)); p("v_lshl_add_u32 v%d, v%d, 5, v%d" % (A, A, B))
    p("v_lshrrev_b32 v%d, 3, v%d" % (B, L)); p("v_lshl_add_u32 v%d, v%d, 10, v%d" % (VD8, B, A))
    p("s_lshl_b32 s%d, s%d, 13" % (sT0, sWAVE)); p("v_add_u32 v%d, s%d, v%d" % (VDG, sT0, VD8))
    p("v_and_b32 v%d, 15, v%d" % (A, L)); p("v_lshrrev_b32 v%d, 4, v%d" % (B, L)); p("v_lshlrev_b32 v%d, 3, v%d" % (B, B)); p("v_lshl_add_u32 v%d, v%d, 10, v%d" % (VDT, A, B))
    p("v_add_u32 v%d, 16384, v%d" % (VDT + 1, VDT))
    p("s_lshl_b32 s%d, s%d, 15" % (sXO, sTB4)); p("s_lshl_b32 s%d, s%d, 8" % (sT0, sNT)); p("s_add_u32 s%d, s%d, s%d" % (sXO, sXO, sT0))
    p("s_lshl_b32 s%d, s%d, 6" % (sT1, sJ)); p("s_add_u32 s%d, s%d, s%d" % (sXO, sXO, sT1))
    p("s_mul_i32 s%d, s%d, 7" % (sH3, sJ)); p("s_and_b32 s%d, s%d, 1" % (sT1, sJ)); p("s_add_u32 s%d, s%d, s%d" % (sH3, sH3, sT1))
    p("s_lshl_b32 s%d, s%d, 16" % (sWD, sH3)); p("s_add_u32 s%d, s%d, s%d" % (sWD, sWD, sT0))
    p("s_lshl_b32 s%d, s%d, 20" % (sWO, sJ)); p("s_add_u32 s%d, s%d, s%d" % (sWO, sWO, sT0))
    p("s_mul_i32 s%d, s%d, %d" % (sT1, sTB4, 368 * 1024)); p("s_add_u32 s%d, s%d, 0x%x" % (sT1, sT1, WS_CH))
    p("s_lshl_b32 s%d, s%d, 12" % (sH, sH3)); p("s_add_u32 s%d, s%d, s%d" % (sH, sH, sT1)); p("s_add_u32 s%d, s%d, %d" % (sH, sH, 256 * 1024))
    p("s_lshl_b32 s%d, s%d, 16" % (sC, sJ)); p("s_add_u32 s%d, s%d, s%d" % (sC, sC, sT1))
    p("s_lshl_b32 s%d, s%d, 12" % (sT0, sG)); p("s_add_u32 s%d, s%d, s%d" % (sH, sH, sT0)); p("s_add_u32 s%d, s%d, s%d" % (sC, sC, sT0))
    p("s_cmp_ge_u32 s%d, %d" % (sLAST, 47 if OPT.get("hm", 0) else 99)); p("s_cselect_b32 s%d, 1, 0" % sHM); p("s_and_b32 s%d, s%d, s%d" % (sHMB, sHM, sG))
    p("s_lshl_b32 s%d, s%d, 10" % (sCF, sTB4)); p("s_lshl_b32 s%d, s%d, 8" % (sT0, sJ)); p("s_add_u32 s%d, s%d, s%d" % (sCF, sCF, sT0)); p("s_add_u32 s%d, s%d, 0x%x" % (sCF, sCF, WS_FLAG))

    p("s_lshl_b32 s%d, s%d, 10" % (sT0, sTB)); p("s_lshr_b32 s%d, s%d, 3" % (sT1, sHEAD)); p("s_lshl_b32 s%d, s%d, 8" % (sT1, sT1))
    p("s_add_u32 s%d, s%d, s%d" % (sTE, sT0, sT1)); p("s_add_u32 s%d, s%d, 0x%x" % (sTE, sTE, WS_FLAG))
    p("s_lshl_b32 s%d, s%d, 2" % (sT0, sMT)); p("s_add_u32 s%d, s%d, s%d" % (sT0, sT0, sNT))
    p("s_lshl_b32 s%d, s%d, 17" % (sPB, sT0)); p("s_add_u32 s%d, s%d, 0x%x" % (sPB, sPB, WS_PART)); p("s_lshl_b32 s%d, s%d, 11" % (sT1, sS4)); p("s_add_u32 s%d, s%d, s%d" % (sPB, sPB, sT1))
    p("s_lshl_b32 s%d, s%d, 10" % (sFL, sT0)); p("s_add_u32 s%d, s%d, 0x%x" % (sFL, sFL, WS_FLAG + 128)); p("s_lshl_b32 s%d, s%d, 2" % (sT1, sS4)); p("s_add_u32 s%d, s%d, s%d" % (sFL, sFL, sT1))

def w4src(spec, g):
    kind, k = spec
    if kind == "h": return R_WD, sWD, (k + g) * 65536
    return R_WO, sWO, (k + g) * 65536
def a_dma1(p, spec, slot, g=0):
    rs, sb, o = w4src(spec, g)
    p("s_lshl_b32 s%d, s%d, 14" % (sT0, sS4)); p("s_add_u32 s%d, s%d, s%d" % (sT0, sT0, sb)); p("s_add_u32 s%d, s%d, %d" % (sT0, sT0, o)); p("s_lshl_b32 s%d, s%d, 11" % (sT1, sS4))
    for pc in range(2):
        if pc: p("s_add_u32 s%d, s%d, 8192" % (sT0, sT0))
        for sub in range(2):
            p("s_add_u32 m0, s%d, %d" % (sT1, slot * 16384 + pc * 1024 + sub * (8192 - 128))); p("s_nop 0")
            cond(p, "buffer_load_dwordx4 v%d, %s, s%d offen offset:%d lds" % (VD8, sr(rs), sT0, sub * 128))
def a_dma(p, spec, slot):
    for g in range(2): a_dma1(p, spec, slot + g, g)
def p4_touch(p, which):
    p("v_lshrrev_b32 v%d, 7, v%d" % (VPOLL, VL16)); p("v_and_b32 v%d, 0x380, v%d" % (VSP, VL128)); p("v_lshl_add_u32 v%d, v%d, 10, v%d" % (VSP, VPOLL, VSP))
    p("s_lshl_b32 s%d, s%d, 2" % (sT0, sIDX)); p("s_add_u32 s%d, s%d, s%d" % (sT0, sT0, sS4)); p("s_sub_u32 s%d, s%d, %d" % (sT0, sT0, 16 * OPT.get("tp0", 2)))
    if which < 2:
        if which: p("s_add_u32 s%d, s%d, 64" % (sT0, sT0))
        p("s_cmp_ge_u32 s%d, 128" % sT0); p("s_cselect_b32 s%d, 0x%x, 0" % (sT2, OOB))
        p("s_lshl_b32 s%d, s%d, 13" % (sT0, sT0)); p("s_lshl_b32 s%d, s%d, 20" % (sT1, sJ)); rs = R_WO
    else:
        p("s_mov_b32 s%d, 0" % sT2)
        p("s_lshl_b32 s%d, s%d, 13" % (sT0, sT0)); p("s_lshl_b32 s%d, s%d, 16" % (sT1, sH3)); rs = R_WD
    p("s_add_u32 s%d, s%d, s%d" % (sT0, sT0, sT1)); p("s_add_u32 s%d, s%d, s%d" % (sT0, sT0, sT2))
    cond(p, "buffer_load_dword v%d, v%d, %s, s%d offen" % (VDUM, VSP, sr(rs), sT0))
def p4_pieces():
    def tl(r):
        def f(p):
            vq = list(p.vq); p4_tld(p, FULL, r); p.vq = vq
        return f
    return [(lambda p: p4_touch(p, 2), 1), (lambda p: p4_touch(p, 0), 1), (lambda p: p4_touch(p, 1), 1), (tl(0), 4), (tl(1), 4), (tl(2), 4),
            (lambda p: a_dma1(p, FULL[0], 8, 0), 4), (lambda p: a_dma1(p, FULL[0], 9, 1), 4)]
def p4_early(p):
    n = 0
    for f, k in p4_pieces()[3:]: f(p); n += k
    return n

def t4reg(r, kk, th): return treg(2 * ((r + 4) % 8) + kk, th)
def p4_tld_list(run, r):
    kind, k = run[r]
    out = ["s_add_u32 s%d, s%d, %d" % (sT3, sH if kind == "h" else sC, k * 4096)]; so = sT3
    for kk in range(2):
        for th in range(2):
            t = t4reg(r, kk, th)
            out.append(("buffer_load_dwordx4 a[%d:%d], v%d, %s, s%d offen offset:%d sc1" % (t, t + 3, VL16, sr(R_WS), so, kk * 2048 + th * 1024), "T4_%d" % r))
    return out
def p4_tld(p, run, r):
    for it in p4_tld_list(run, r): p(it[0] if isinstance(it, tuple) else it)

def phase4_run(p, run, tag):
    NR, TR = len(run), 8
    if tag == "F":
        p.label("P4_JOINF")
        p.lq, p.vq = [], []
        stamp(p, 16)
        p("v_mov_b32 v%d, 1" % VSP)
        p("s_waitcnt vmcnt(0)")
        p("buffer_atomic_add v%d, v%d, %s, s%d offen sc1" % (VSP, VONE, sr(R_WS), sTE))
        p("s_barrier")
        stamp(p, 17)
        p("s_bitcmp1_b32 s%d, 0" % sJ); p("s_cbranch_scc1 P4_SHORT")
        p.st4 = (list(p.lq), list(p.vq))
    else:
        p.label("P4_SHORT"); p.lq, p.vq = list(p.st4[0]), list(p.st4[1])
    def wdma(r):
        out = []
        for g in range(2):
            rs, sb, o = w4src(run[r], g); t = "W%d" % r; b = (SL4(r) + g) * 16384
            out += [("s_add_u32 m0, s%d, %d" % (sLW, b), "m0:" + t), ("s_add_u32 s%d, s%d, %d" % (sT2, sb, o), None),
                    ("buffer_load_dwordx4 v%d, %s, s%d offen lds" % (VDG, sr(rs), sT2), t),
                    ("s_add_u32 m0, s%d, %d" % (sLW, b + 8192 - 128), "m0:" + t), ("s_nop 0", None),
                    ("buffer_load_dwordx4 v%d, %s, s%d offen offset:128 lds" % (VDG, sr(rs), sT2), t)]
        return out
    items = [(r, g) for r in range(NR) for g in (XG, YG)]
    prev = {r: ([r - 5] if r >= 5 else []) for r in range(NR)}
    toks = {}
    def mf(r, kk, cb, th, fr):
        t = t4reg(r, kk, th); acc = vr(8 * cb + 4 * th); cc = "0" if (r == 0 and kk == 0) else acc
        return "%s %s, %s, a[%d:%d], %s" % (MF, acc, vr(fr), t, t + 3, cc)
    ab = {112: [lambda p: stamp(p, 19)]} if STAMP else {}
    S, pro, init, last_use = engine(toks, items, [SL4(r) * 16384 for r in range(NR)], mf, wdma, prev, {}, [0, 1, 2, 3, 4], 2048, {b: 0 for b in range(4)},
                                    after_bar=ab, maxnew=1)
    S.group(0, wdma(3)); S.group(0, wdma(4))
    e = 1
    for r in range(3, NR):
        if r == NR - 8:
            cp = OPT.get("cpoll", 40) - (0 if tag == "F" else 16)
            S.put(cp - 16, poll_issue(R_WS, "s%d" % sCF)); S.put(cp, poll_check(R_WS, "s%d" % sCF, 8)); e = max(e, cp + 1)
        e = S.spread(max(e, 32 * (r - TR + 1) + 1, 32 * (r - OPT.get("tla", 4))), p4_tld_list(run, r))
    x0, x1 = SL4(NR - 5) * 16384, SL4(NR - 4) * 16384
    S.spread(32 * NR - 40, ["buffer_load_dwordx2 v[%d:%d], v%d, %s, s%d offen offset:%d" % (100 + 2 * q, 101 + 2 * q, VDT + (q & 1), sr(R_X), sXO, (q >> 1) * 32) for q in range(4)] +
             [lambda p: (p("s_lshl_b32 s%d, s%d, 13" % (sT0, sS4)), p("s_cmp_eq_u32 s%d, 0" % sG), p("s_mov_b32 s%d, %d" % (sT1, x1)), p("s_cselect_b32 s%d, %d, s%d" % (sT1, x0, sT1)),
                         p("s_add_u32 s%d, s%d, s%d" % (sT1, sT1, sT0)), p("v_add_u32 v96, s%d, v%d" % (sT1, VL16)),
                         p("s_xor_b32 s%d, s%d, %d" % (sT1, sT1, x0 ^ x1)), p("v_add_u32 v97, s%d, v%d" % (sT1, VL16)))], step=2)
    for t_ in pro: emit_tagged(p, toks, *t_)
    S.emit(p, toks)

def phase4(p):
    phase4_run(p, FULL, "F")
    p("s_branch OUT_RED")
    phase4_run(p, SHORT, "S")
    p.label("OUT_RED")
    p("s_waitcnt lgkmcnt(0)")
    stamp(p, 23)
    p.nop(6)
    p("s_cmp_eq_u32 s%d, 1" % sG); p("s_cbranch_scc1 OUT_G1")
    st = (list(p.lq), list(p.vq))
    for g in range(2):
        if g == 1:
            p.label("OUT_G1"); p.lq, p.vq = list(st[0]), list(st[1])
        give = 32 * (1 - g); keep = 32 * g
        for q in range(8): p("ds_write_b128 v96, %s offset:%d" % (vr(give + 4 * q), q * 1024))
        p("s_waitcnt lgkmcnt(0)"); p("s_barrier")
        for q in range(8): p("ds_read_b128 %s, v97 offset:%d" % (vr(give + 4 * q), q * 1024))
        for r in range(32): p("v_add_f32 v%d, v%d, v%d" % (r, keep + r, give + r))
        if g == 0: p("s_branch OUT_X")
    p.label("OUT_X")
    p("s_lshl_b32 s%d, s%d, 13" % (sT0, sJ)); p("s_add_u32 s%d, s%d, s%d" % (sT0, sT0, sPB)); p("s_lshl_b32 s%d, s%d, 16" % (sT1, sG)); p("s_add_u32 s%d, s%d, s%d" % (sT0, sT0, sT1))
    p("s_lshl_b32 s%d, s%d, 9" % (sT1, sG)); p("s_add_u32 s%d, s%d, s%d" % (sH, sT1, sFL)); p("s_lshl_b32 s%d, s%d, 1" % (sT1, sG))
    for bb in range(2):
        p("s_add_u32 s%d, s%d, %d" % (sT2, sT0, bb * 32768)); p("s_add_u32 s%d, s%d, %d" % (sC + bb, sH, bb * 256))
        p("s_add_u32 s%d, s%d, %d" % (sT3, sT1, bb)); p("s_cmp_eq_u32 s%d, s%d" % (sT3, sJ))
        p("s_cselect_b32 s%d, 0x%x, s%d" % (sT2, OOB, sT2)); p("s_cselect_b32 s%d, 0x%x, s%d" % (sC + bb, OOB, sC + bb))
        for j in range(8): p("v_cvt_pk_bf16_f32 v%d, v%d, v%d" % (32 + 8 * bb + j, 16 * bb + 2 * j, 16 * bb + 2 * j + 1))
        for q in range(2): p("buffer_store_dwordx4 %s, v%d, %s, s%d offen offset:%d sc1" % (vr(32 + 8 * bb + 4 * q), VL16, sr(R_WS), sT2, q * 1024))
    p("v_mov_b32 v%d, 1" % VSP)
    p("s_lshl_b32 s%d, s%d, 8" % (sT0, sJ)); p("s_add_u32 s%d, s%d, s%d" % (sFL, sFL, sT0))
    p("s_waitcnt vmcnt(0)")
    for bb in range(2): p("buffer_atomic_add v%d, v%d, %s, s%d offen sc1" % (VSP, VONE, sr(R_WS), sC + bb))
    stamp(p, 24)
    p("s_lshr_b32 s%d, s%d, 1" % (sT0, sJ)); p("s_cmp_lg_u32 s%d, s%d" % (sT0, sG)); p("s_cbranch_scc1 K_END")
    p(poll_issue(R_WS, "s%d" % sFL))
    p("s_and_b32 s%d, s%d, 1" % (sT0, sJ)); p("s_cmp_eq_u32 s%d, 0" % sT0); p("s_cbranch_scc1 OUT_OWN")
    for r in range(16): p("v_mov_b32 v%d, v%d" % (r, 16 + r))
    p.label("OUT_OWN")
    for q in range(4):
        d = 64 + 8 * (q >> 1) + 4 * (q & 1)
        for e in range(2):
            p("v_lshlrev_b32 v%d, 16, v%d" % (d + 2 * e, 100 + 2 * q + e)); p("v_and_b32 v%d, 0xffff0000, v%d" % (d + 2 * e + 1, 100 + 2 * q + e))
    for r in range(16): p("v_add_f32 v%d, v%d, v%d" % (r, r, 64 + r))
    poll_check(R_WS, "s%d" % sFL, 3, sleep=1)(p)
    stamp(p, 25)
    p("s_lshl_b32 s%d, s%d, 15" % (sT3, sJ)); p("s_add_u32 s%d, s%d, s%d" % (sT3, sT3, sPB))
    for k in range(1, 4):
        p("s_add_u32 s%d, s%d, %d" % (sT0, sJ, k)); p("s_and_b32 s%d, s%d, 3" % (sT0, sT0)); p("s_lshl_b32 s%d, s%d, 13" % (sT0, sT0)); p("s_add_u32 s%d, s%d, s%d" % (sT0, sT0, sT3))
        for q in range(2): p("buffer_load_dwordx4 %s, v%d, %s, s%d offen offset:%d sc1" % (vr(16 + 8 * k + 4 * q), VL16, sr(R_WS), sT0, q * 1024))
    for k in range(1, 4):
        for j in range(8):
            p("v_lshlrev_b32 v64, 16, v%d" % (16 + 8 * k + j)); p("v_and_b32 v65, 0xffff0000, v%d" % (16 + 8 * k + j))
            p("v_add_f32 v%d, v%d, v64" % (2 * j, 2 * j)); p("v_add_f32 v%d, v%d, v65" % (2 * j + 1, 2 * j + 1))
    for q in range(4):
        a = 8 * (q >> 1) + 4 * (q & 1)
        p("v_cvt_pk_bf16_f32 v%d, v%d, v%d" % (64 + 2 * q, a, a + 1)); p("v_cvt_pk_bf16_f32 v%d, v%d, v%d" % (65 + 2 * q, a + 2, a + 3))
        p("buffer_store_dwordx2 v[%d:%d], v%d, %s, s%d offen offset:%d" % (64 + 2 * q, 65 + 2 * q, VDT + (q & 1), sr(R_OUT), sXO, (q >> 1) * 32))
    stamp(p, 26)
    if OPT.get("dbgt", 0):
        p("s_memrealtime s[100:101]"); p("s_waitcnt lgkmcnt(0)"); p("v_mov_b32 v%d, s100" % VSP)
        p("s_and_b32 s100, s%d, 3" % sX8); p("s_lshl_b32 s100, s100, 2"); p("s_add_u32 s100, s100, 36"); p("s_add_u32 s101, s%d, s%d" % (sIDX, sS4)); p("s_cmp_eq_u32 s101, 0"); p("s_cselect_b32 s100, s100, 0x1000")
        p("buffer_store_dword v%d, v%d, %s, s100 offen" % (VSP, VONE, sr(R_DBG)))

def build():
    p = Prog()
    hdr = open("cdna_kernels/%s.s.ref" % NAME).read().split("; Override launch")[0]
    p.raw(hdr.rstrip())
    p.raw("; @launch grid=(256,1,1) block=(512,1,1) lds=163840")
    p.raw('.amdgcn_target "amdgcn-amd-amdhsa--gfx950"'); p.raw(".text")
    kernel_begin(p, KN)
    t0 = p12(p); attention(p, t0); phase4(p)
    p.label("K_END"); p("s_endpgm")
    p.raw('.section .rodata,"a"'); p.raw(kernel_desc(KN, 256, 128, 102))
    return p

def selfcheck(p):
    bad = []
    for wg, wave in [(0, 0), (0, 3), (0, 4), (0, 7), (5, 2), (100, 1), (100, 6), (255, 2), (255, 5), (255, 0), (30, 4), (3, 7)]:
        for fx in (False, True):
            tr = trace(p, KN, wg, wave, vcc_taken=(lambda i, n: n % 3 == 1) if fx else (lambda i, n: False))
            pr = check_trace(tr, "wg%d w%d" % (wg, wave))
            nb = sum(1 for i in tr if i.mn == "s_barrier"); nm = sum(1 for i in tr if i.kind == "mfma")
            if not fx: print("wg%d w%d: %d instrs, %d mfma, %d barriers, %d problems" % (wg, wave, len(tr), nm, nb, len(pr)))
            bad += pr
    for b in sorted(set(bad))[:40]: print(b)
    return not bad

if __name__ == "__main__":
    for o in sys.argv[2:]:
        if o == "stamp": STAMP = True
        else:
            k, v = o.split("="); OPT[k] = int(v) if v.isdigit() else v
    import subprocess
    if OPT.get("cpf", 0):
        open("pass1.s", "w").write(build().text())
        subprocess.run(["clang", "-x", "assembler", "-target", "amdgcn-amd-amdhsa", "-mcpu=gfx950", "-c", "pass1.s", "-o", "pass1.o"], check=True)
        sym = subprocess.run(["llvm-objdump", "-t", "pass1.o"], capture_output=True, text=True).stdout
        ad = {l.split()[-1]: int(l.split()[0], 16) for l in sym.splitlines() if ".text" in l and len(l.split()) >= 5}
        OPT["reach"] = ad["K_END"] - ad["K_CPFREF"]
    p = build()
    ok = selfcheck(p)
    open(sys.argv[1], "w").write(p.text())
    import subprocess
    r = subprocess.run(["clang", "-x", "assembler", "-target", "amdgcn-amd-amdhsa", "-mcpu=gfx950", "-c", sys.argv[1], "-o", "chk.o"], capture_output=True, text=True)
    print("written", sys.argv[1], "OK" if ok else "PROBLEMS", "ASM-OK" if r.returncode == 0 else "ASM-FAIL\n" + r.stderr[:2000])
```

```python
import sys, struct
from fw import *

NAME = "parallel_sum__compressed_kv_cla__swiglu_ffn__prompt"
KN = NAME + "_kernel"
WS_XN = 0x0000000
WS_K = 0x0200000
WS_V = 0x1200000
WS_CH = 0x2200000
WS_PART = 0x4000000
WS_FLAG = 0x5000000
WS_BYTES = 0x10000000
OOB = 0x20000000
MF = "v_mfma_f32_16x16x32_bf16"
STAMP = False
OPT = {}
def f32hex(x): return "0x%08x" % struct.unpack("<I", struct.pack("<f", x))[0]
QSCALE = 1.4426950408889634 / (128 ** 0.5)
THR = float(2 ** 20)

R_WS, R_W1, R_CKV, R_X, R_WQ, R_WG, R_WU, R_WO, R_WD, R_OUT, R_DBG = 8, 12, 16, 20, 24, 28, 32, 36, 40, 44, 48
def sr(r): return "s[%d:%d]" % (r, r + 3)
sWAVE, sIDX, sX8, sT0, sT1, sT2, sT3 = 3, 4, 5, 6, 7, 52, 53
sU1, sO1, sO1B, sLW, sLT, sLNROW = 54, 55, 56, 57, 58, 59
sHEAD, sTB, sLAST, sS4, sF0, sQC, sXN, sHO, sHO2, sCTX, sHB = 60, 61, 62, 63, 64, 65, 66, 67, 68, 69, 70
sSRC, sDST, sMAX, sRB, sRING, sTHR, sUU, sTE, sPF = 71, 72, 73, 74, 75, 76, 77, 78, 79
sTAB = 80
sRO2, sROH = 96, 97
VL16, VWR, VD8, VDG, VDT, VTA, VONE, VDUM, VPOLL, VL128, VSP = 112, 113, 117, 118, 119, 121, 123, 124, 125, 126, 127
FRB, FR = 64, 8
EG = [(0, 0), (0, 1), (1, 0), (1, 1)]
FG = [(0, 2), (0, 3), (1, 2), (1, 3)]

def emit_tagged(p, toks, text, tag):
    if tag is not None and tag.startswith("m0:"):
        p.m0own = tag[3:]; p(text); return
    if text.endswith(" lds"):
        assert getattr(p, "m0own", None) == tag, ("m0 owner mismatch", text, tag, p.m0own)
    t = p(text)
    if tag is not None: toks.setdefault(tag, []).append(t)

class Slots:
    def __init__(self): self.s = []
    def add(self, mfma): self.s.append(dict(m=mfma, pre=[], f=[])); return len(self.s) - 1
    def put(self, slot, text, tag=None):
        assert 0 <= slot < len(self.s), slot
        self.s[slot]["f"].append((text, tag))
    def spread(self, start, items, per=1, step=1):
        k = 0
        for it in items:
            sl = start + (k // per) * step
            if isinstance(it, tuple): self.put(sl, it[0], it[1])
            else: self.put(sl, it)
            k += 1
        return start + ((k + per - 1) // per) * step
    def group(self, t0, lst, per=1):
        if not hasattr(self, "busy"): self.busy = set()
        n = (len(lst) + per - 1) // per
        while any((t0 + i) in self.busy for i in range(n)): t0 += 1
        self.busy |= set(range(t0, t0 + n))
        return self.spread(t0, lst, per=per)
    def emit(self, p, toks, lo=0, hi=None):
        for sl in self.s[lo:hi]:
            for it in sl["pre"]: it(p)
            p(sl["m"])
            for text, tag in sl["f"]:
                if callable(text): text(p)
                else: emit_tagged(p, toks, text, tag)

def stamp(p, i):
    if not STAMP: return
    lq, vq = list(p.lq), list(p.vq)
    p.auto = False
    if OPT.get("few", 0) and i not in (0, 1, 3, 4, 7, 10, 13, 14, 15, 16, 17, 19, 23, 24, 25, 26, 27, 28, 29):
        p.auto = True; return
    p("%s s[100:101]" % ("s_memrealtime" if OPT.get("rt", 0) else "s_memtime")); p("s_waitcnt lgkmcnt(0)")
    p("v_mov_b32 v%d, s100" % VDUM, note="diag")
    p("buffer_store_dword v%d, v%d, %s, s99 offen offset:%d" % (VDUM, VONE, sr(R_WS), 4 * i), note="diag")
    if OPT.get("rt", 0):
        p("s_memtime s[100:101]"); p("s_waitcnt lgkmcnt(0)"); p("v_mov_b32 v%d, s100" % VSP, note="diag") if False else p("v_mov_b32 v%d, s100" % VDUM, note="diag")
        p("buffer_store_dword v%d, v%d, %s, s99 offen offset:%d" % (VDUM, VONE, sr(R_WS), 4 * (128 + i)), note="diag")
    p.auto = True
    p.lq, p.vq = [], vq

def acc_stamp(p, i):
    if not (STAMP and OPT.get("acc", 0)): return
    lq = list(p.lq); p.auto = False
    p("s_memtime s[100:101]"); p("s_waitcnt lgkmcnt(0)"); p("s_sub_u32 s101, s100, s98"); p("s_mov_b32 s98, s100")
    p("v_accvgpr_read_b32 v%d, a%d" % (VPOLL, 120 + i)); p("s_nop 0"); p("v_add_u32 v%d, s101, v%d" % (VPOLL, VPOLL)); p("s_nop 0"); p("v_accvgpr_write_b32 a%d, v%d" % (120 + i, VPOLL))
    p.auto = True; p.lq = lq
def acc_flush(p):
    if not (STAMP and OPT.get("acc", 0)): return
    vq = list(p.vq)
    for i in range(8):
        p("v_accvgpr_read_b32 v%d, a%d" % (96 + i, 120 + i))
        p("s_nop 0")
        p("buffer_store_dword v%d, v%d, %s, s99 offen offset:%d" % (96 + i, VONE, sr(R_WS), 4 * (32 + i)))
    p.vq = vq

def cond(p, text):
    p(text); p.vq.pop(); p.nvm -= 1

def wave_sum(q, v):
    for sh in (1, 2, 4, 8):
        q("s_nop 1"); q("v_add_f32_dpp v%d, v%d, v%d row_shr:%d row_mask:0xf bank_mask:0xf bound_ctrl:0" % (v, v, v, sh))
    q("s_nop 1"); q("v_add_f32_dpp v%d, v%d, v%d row_bcast:15 row_mask:0xa bank_mask:0xf" % (v, v, v))
    q("s_nop 1"); q("v_add_f32_dpp v%d, v%d, v%d row_bcast:31 row_mask:0xc bank_mask:0xf" % (v, v, v))

class Rec:
    def __init__(self): self.l = []
    def __call__(self, t, note=None): self.l.append(t)

def poll_issue(srd, soff):
    if soff.isdigit(): soff = "0 offset:" + soff
    return "buffer_load_dword v%d, off, %s, %s sc1" % (VPOLL, sr(srd), soff)
def poll_issue_w0(srd, soff):
    def f(p):
        sk = p.newlabel("PI")
        p("s_cmp_lg_u32 s%d, 0" % sWAVE); p("s_cbranch_scc1 %s" % sk); cond(p, poll_issue(srd, soff)); p.label(sk)
    return f
def poll_check(srd, soff, expect, w0=False, sleep=4, nwait=None):
    def f(p):
        ok, lp = p.newlabel("PK"), p.newlabel("PL")
        if w0:
            p("s_cmp_lg_u32 s%d, 0" % sWAVE); p("s_cbranch_scc1 %s" % ok)
            n = nwait(p) if nwait else 0
            p.auto = False; p.items.append(Inst("s_waitcnt vmcnt(%d)" % n)); p.auto = True
        p("v_readfirstlane_b32 s%d, v%d" % (sT0, VPOLL), note="=val %d" % expect); p("s_mov_b32 s%d, 0" % sT1)
        p("s_cmp_ge_u32 s%d, %d" % (sT0, expect)); p("s_cbranch_scc1 %s" % ok)
        lq, vq = list(p.lq), list(p.vq)
        p.label(lp)
        p("s_sleep %d" % sleep); p(poll_issue(srd, soff)); p("s_add_u32 s%d, s%d, 1" % (sT1, sT1)); p("s_waitcnt vmcnt(0)")
        p("v_readfirstlane_b32 s%d, v%d" % (sT0, VPOLL), note="=val %d" % expect)
        p("s_cmp_ge_u32 s%d, 0x40000" % sT1); p("s_cbranch_scc1 %s" % ok)
        p("s_cmp_lt_u32 s%d, %d" % (sT0, expect)); p("s_cbranch_scc1 %s" % lp)
        p.lq, p.vq = lq, vq
        p.label(ok)
    return f
def signal(off):
    def f(p):
        sk = p.newlabel("SG")
        p("s_cmp_lg_u32 s%d, 0" % sWAVE); p("s_cbranch_scc1 %s" % sk)
        p("v_mov_b32 v%d, 1" % VSP)
        cond(p, "buffer_atomic_add v%d, v%d, %s, 0 offen offset:%d sc1" % (VSP, VONE, sr(R_DBG), off))
        p.label(sk)
    return f

def engine(toks, items, base_of, mfma_fn, wdma_fn, prev, minbar, issued, rd2, cur_base, LA=6, extra_wait=None, after_bar=None, before_bar=None, maxnew=2, nobar=False, bpos=None):
    S = Slots(); frags = []
    for (sl, cols) in items:
        for kk in range(2):
            for col in cols: frags.append((sl, kk) + tuple(col))
    for n, (sl, kk, so, cbp, at) in enumerate(frags):
        for th in range(2): S.add(mfma_fn(sl, kk, at, th, FRB + 4 * (n % FR)))
    n2 = len(S.s)
    first_read, last_use, pro = {}, {}, []
    for n, (sl, kk, so, cbp, at) in enumerate(frags):
        fr = FRB + 4 * (n % FR); rs = 2 * (n - LA); win = base_of[sl] & ~0xffff
        if OPT.get("win48", 0) or rd2 == 2048: win = base_of[sl] & ~0x7fff
        L = []
        if cur_base[cbp] != win:
            L.append(("v_add_u32 v%d, 0x%x, v%d" % (VWR + cbp, (win - cur_base[cbp]) & 0xffffffff, VWR + cbp), None)); cur_base[cbp] = win
        o = base_of[sl] - win + so + kk * 4096
        L.append(("ds_read_b64_tr_b16 %s, v%d offset:%d" % (vr(fr, 2), VWR + cbp, o), "F%d" % n))
        L2 = ("ds_read_b64_tr_b16 %s, v%d offset:%d" % (vr(fr + 2, 2), VWR + cbp, o + rd2), "F%d" % n)
        if rs < 0: pro += L + [L2]
        else:
            for it in L: S.put(rs, it[0], it[1])
            S.put(rs + 1, L2[0], L2[1])
        first_read.setdefault(sl, rs); last_use[sl] = 2 * n + 1
        if n % 2 == 0 and n + 1 < len(frags):
            S.s[2 * n]["pre"].append(lambda p, n=n: p.wait_tok(toks["F%d" % (n + 1)]))
    if nobar: return S, pro, [], last_use
    bpos = bpos or list(range(16, n2, 32))
    waited = set(s for s in first_read if first_read[s] < bpos[0]); init_need = sorted(waited)
    issued = set(issued); extra_wait = extra_wait or {}; after_bar = after_bar or {}
    order = sorted(first_read, key=lambda s: first_read[s])
    S.dma_end = {}
    for bi, bp in enumerate(bpos):
        nxt = bpos[bi + 1] if bi + 1 < len(bpos) else n2 + 100
        need = [s for s in order if s not in waited and first_read[s] < nxt]
        for s in need: assert s in issued, ("unit %d needed at barrier %d but not issued" % (s, bp))
        waited |= set(need)
        new = [s for s in order if s not in issued and all(last_use[q] < bp for q in prev.get(s, [])) and minbar.get(s, 0) <= bp][:maxnew]
        tags = ["W%d" % s for s in need] + extra_wait.get(bp, [])
        def f(p, tags=tags, bp=bp):
            fine = OPT.get("fine", 0) and n2 > 512
            if fine: stamp(p, 64 + 3 * (bp // 32))
            for g in (before_bar or {}).get(bp, []): g(p)
            p.wait_tok(sum([toks.get(t, []) for t in tags], []))
            if fine: stamp(p, 65 + 3 * (bp // 32))
            p("s_barrier")
            if fine: stamp(p, 66 + 3 * (bp // 32))
            for g in after_bar.get(bp, []): g(p)
        if tags or new or bp in after_bar or bp in (before_bar or {}): S.s[bp]["pre"].insert(0, f)
        for s in new:
            issued.add(s); S.group(bp, wdma_fn(s))
    assert issued >= set(first_read), sorted(set(first_read) - issued)
    return S, pro, init_need, last_use

XG = [(0, c, c) for c in range(4)]
YG = [(8192, c, 4 + c) for c in range(4)]
GE = [(0, 0, 0), (0, 1, 1), (8192, 0, 2), (8192, 1, 3)]
GF = [(0, 2, 4), (0, 3, 5), (8192, 2, 6), (8192, 3, 7)]

def rot8(t, c, scale, base, ro=None):
    if OPT.get("half", 0):
        return [("s_add_u32 s%d, s%d, %d" % (t, sROH, c), None), ("s_and_b32 s%d, s%d, 3" % (t, t), None), ("s_add_u32 s%d, s%d, %d" % (t, t, c & 4), None), (scale, None),
                ("s_add_u32 s%d, s%d, s%d" % (t, t, base), None)]
    return [("s_add_u32 s%d, s%d, %d" % (t, sRO2 if ro is None else ro, c), None), ("s_and_b32 s%d, s%d, 7" % (t, t), None), (scale, None),
            ("s_add_u32 s%d, s%d, s%d" % (t, t, base), None)]

def treg(kap, th): return 16 * (kap >> 1) + 8 * (kap & 1) + 4 * th

def setup(p):
    p("s_cmp_ge_u32 s2, 256"); p("s_cbranch_scc1 K_END")
    if STAMP: p("s_memrealtime s[62:63]")
    p("s_lshr_b32 s%d, s2, 2" % sT0); p("s_and_b32 s%d, s%d, 1" % (sU1, sT0))
    if OPT.get("flipv", 0): p("s_xor_b32 s%d, s%d, 1" % (sU1, sU1))
    p("s_lshl_b32 s%d, s%d, 3" % (sT0, sU1)); p("s_add_u32 s%d, s%d, 24" % (sT0, sT0))
    p("s_load_dwordx2 s[%d:%d], s[0:1], s%d" % (R_W1, R_W1 + 1, sT0))
    for r, off in ((R_CKV, 8), (R_WS, 96), (R_X, 0), (R_WQ, 16), (R_WO, 40), (R_WG, 56), (R_WU, 64), (R_WD, 72), (R_OUT, 80), (R_DBG, 88)):
        p("s_load_dwordx2 s[%d:%d], s[0:1], %d" % (r, r + 1, off))
    for r, n in ((R_W1, 4194304), (R_CKV, 2097152), (R_WS, WS_BYTES), (R_X, 2097152), (R_WQ, 4194304), (R_WO, 4194304), (R_WG, 512 * 3584),
                 (R_WU, 512 * 3584), (R_WD, 1792 * 1024), (R_OUT, 2097152), (R_DBG, 256)):
        p("s_mov_b32 s%d, 0x%x" % (r + 2, n)); p("s_mov_b32 s%d, 0x00020000" % (r + 3))
    L, A, B, C = 96, 97, 98, 99
    p("v_lshrrev_b32 v1, 6, v0"); p("v_and_b32 v%d, 63, v0" % L)
    p("v_readfirstlane_b32 s%d, v1" % sWAVE, note="=wave")
    p("s_lshr_b32 s%d, s2, 3" % sIDX); p("s_and_b32 s%d, s2, 7" % sX8)
    p("v_lshlrev_b32 v%d, 4, v%d" % (VL16, L)); p("v_lshlrev_b32 v%d, 7, v%d" % (VL128, L))
    p("v_cmp_ne_u32 vcc, 0, v%d" % L); p("v_mov_b32 v%d, 0" % VONE); p("v_mov_b32 v%d, 0x40000000" % A)
    p("v_cndmask_b32 v%d, v%d, v%d, vcc" % (VONE, VONE, A))
    p("v_bfe_u32 v%d, v%d, 1, 2" % (A, L)); p("v_bfe_u32 v%d, v%d, 4, 1" % (B, L)); p("v_xor_b32 v%d, v%d, v%d" % (A, A, B))
    p("s_and_b32 s%d, s%d, 1" % (sT0, sWAVE)); p("s_lshl_b32 s%d, s%d, 1" % (sT0, sT0)); p("v_xor_b32 v%d, s%d, v%d" % (A, sT0, A))
    p("v_and_b32 v%d, 1, v%d" % (B, L)); p("v_lshlrev_b32 v%d, 4, v%d" % (B, B)); p("v_lshl_add_u32 v%d, v%d, 5, v%d" % (A, A, B))
    p("v_lshrrev_b32 v%d, 3, v%d" % (B, L)); p("s_lshl_b32 s%d, s%d, 3" % (sT0, sWAVE)); p("v_add_u32 v%d, s%d, v%d" % (B, sT0, B))
    p("v_lshl_add_u32 v%d, v%d, 13, v%d" % (VD8, B, A))
    p("v_mul_u32_u24 v%d, 3584, v%d" % (B, B)); p("v_add_u32 v%d, v%d, v%d" % (VDG, B, A))
    p("s_and_b32 s%d, s2, 1" % sT0); p("s_lshl_b32 s%d, s%d, 2" % (sT0, sT0)); p("s_and_b32 s%d, s%d, 3" % (sT1, sIDX))
    p("s_add_u32 s%d, s%d, s%d" % (sT0, sT0, sT1)); p("s_lshl_b32 s%d, s%d, 3" % (sT0, sT0)); p("s_add_u32 s%d, s%d, s%d" % (sO1B, sT0, sWAVE))
    p("v_lshrrev_b32 v%d, 3, v%d" % (A, L)); p("v_lshlrev_b32 v%d, 10, v%d" % (A, A)); p("s_lshl_b32 s%d, s%d, 15" % (sT0, sO1B)); p("v_add_u32 v%d, s%d, v%d" % (A, sT0, A))
    p("v_lshrrev_b32 v%d, 4, v%d" % (B, L)); p("v_and_b32 v%d, 7, v%d" % (C, L)); p("v_xor_b32 v%d, v%d, v%d" % (B, B, C))
    p("v_lshl_add_u32 v%d, v%d, 4, v%d" % (VDT, B, A)); p("v_xor_b32 v%d, 4, v%d" % (B, B)); p("v_lshl_add_u32 v%d, v%d, 4, v%d" % (VDT + 1, B, A))
    p("s_lshl_b32 s%d, s%d, 12" % (sLT, sWAVE)); p("s_add_u32 s%d, s%d, 65536" % (sLT, sLT)); p("s_lshl_b32 s%d, s%d, 10" % (sLW, sWAVE))
    p("s_lshr_b32 s%d, s%d, 2" % (sT0, sIDX)); p("s_lshl_b32 s%d, s%d, 1" % (sT1, sT1)); p("s_add_u32 s%d, s%d, s%d" % (sT1, sT1, sT0))
    if not OPT.get("rot", 1): p("s_mov_b32 s%d, 0" % sT1)
    if OPT.get("rot", 1) == 2: p("s_mov_b32 s%d, s%d" % (sT1, sT0))
    if OPT.get("rot", 1) == 3: p("s_sub_u32 s%d, s%d, s%d" % (sT1, sT1, sT0))
    p("s_and_b32 s%d, s2, 2" % sT2); p("s_lshl_b32 s%d, s%d, 2" % (sT2, sT2)); p("s_add_u32 s%d, s%d, s%d" % (sT2, sT2, sT0))
    p("s_lshl_b32 s%d, s%d, 20" % (sO1, sT2)); p("s_lshl_b32 s%d, s%d, 9" % (sT2, sT2))
    for c in range(8):
        hy = OPT.get("hy", 0)
        if hy and c < hy: p("s_mov_b32 s%d, %d" % (sT0, c))
        elif hy:
            if c == hy:
                p("s_and_b32 s%d, s%d, 7" % (sT1, sT1)); p("s_sub_u32 s%d, s%d, %d" % (sT0, sT1, 8 - hy)); p("s_min_u32 s%d, s%d, s%d" % (sT1, sT1, sT0))
            p("s_add_u32 s%d, s%d, %d" % (sT0, sT1, c - hy)); p("s_sub_u32 s%d, s%d, %d" % (sT3, sT0, 8 - hy)); p("s_min_u32 s%d, s%d, s%d" % (sT0, sT0, sT3))
            p("s_add_u32 s%d, s%d, %d" % (sT0, sT0, hy))
        else:
            p("s_add_u32 s%d, s%d, %d" % (sT0, sT1, c)); p("s_and_b32 s%d, s%d, 7" % (sT0, sT0))
        p("s_lshl_b32 s%d, s%d, 7" % (sTAB + c, sT0)); p("s_lshl_b32 s%d, s%d, 19" % (sT0, sT0)); p("s_add_u32 s%d, s%d, s%d" % (sTAB + 8 + c, sT0, sT2))
    p("s_waitcnt lgkmcnt(0)")

def setup2(p):
    L, A, B, C = 96, 97, 98, 99
    p("v_bfe_u32 v%d, v%d, 2, 2" % (A, L)); p("v_lshrrev_b32 v%d, 4, v%d" % (B, L))
    p("v_lshl_add_u32 v%d, v%d, 3, v%d" % (C, B, A)); p("v_lshlrev_b32 v%d, 7, v%d" % (C, C))
    p("v_and_b32 v100, 3, v%d" % L); p("v_lshl_add_u32 v%d, v100, 3, v%d" % (C, C))
    p("v_bfe_u32 v%d, v%d, 3, 2" % (A, L))
    for b in range(4):
        p("v_xor_b32 v100, %d, v%d" % (b, A)); p("v_lshl_add_u32 v%d, v100, 5, v%d" % (VWR + b, C))
    p("v_and_b32 v%d, 15, v%d" % (A, L)); p("v_bfe_u32 v%d, v%d, 1, 3" % (B, L)); p("v_lshrrev_b32 v%d, 4, v%d" % (C, L))
    p("v_xor_b32 v%d, v%d, v%d" % (B, B, C)); p("v_lshlrev_b32 v%d, 4, v%d" % (B, B)); p("v_lshl_add_u32 v%d, v%d, 7, v%d" % (A, A, B))
    p("v_add_u32 v%d, s%d, v%d" % (VTA, sLT, A)); p("v_xor_b32 v%d, 64, v%d" % (VTA + 1, VTA))
    p("s_lshl_b32 s%d, s%d, 24" % (sT0, sU1)); p("s_add_u32 s%d, s%d, s%d" % (sO1, sO1, sT0)); p("s_add_u32 s%d, s%d, 0x%x" % (sO1, sO1, WS_K))
    p("s_lshl_b32 s%d, s%d, 13" % (sT0, sO1B)); p("s_add_u32 s%d, s%d, s%d" % (sO1, sO1, sT0)); p("s_add_u32 s%d, s%d, 4096" % (sO1B, sO1))
    p("s_lshl_b32 s%d, s2, 3" % sLNROW); p("s_add_u32 s%d, s%d, s%d" % (sLNROW, sLNROW, sWAVE))
    p("s_lshl_b32 s%d, s%d, 2" % (sHEAD, sX8)); p("s_and_b32 s%d, s%d, 3" % (sT0, sIDX)); p("s_add_u32 s%d, s%d, s%d" % (sHEAD, sHEAD, sT0))
    p("s_and_b32 s%d, s%d, 3" % (sS4, sWAVE))
    p("s_and_b32 s%d, s%d, 28" % (sT0, sIDX))
    p("s_add_u32 s%d, s%d, 3" % (sTB, sT0)); p("s_sub_u32 s%d, s%d, s%d" % (sTB, sTB, sS4))
    p("s_sub_u32 s%d, 60, s%d" % (sT0, sT0)); p("s_add_u32 s%d, s%d, s%d" % (sT1, sT0, sS4))
    p("s_cmp_ge_u32 s%d, 4" % sWAVE); p("s_cselect_b32 s%d, s%d, s%d" % (sTB, sT1, sTB))
    p("s_add_u32 s%d, s%d, 3" % (sLAST, sT0))
    p("s_lshl_b32 s%d, s%d, 7" % (sF0, sHEAD)); p("s_lshl_b32 s%d, s%d, 6" % (sT0, sHEAD)); p("s_add_u32 s%d, s%d, 1536" % (sT0, sT0))
    p("s_cmp_ge_u32 s%d, 24" % sHEAD); p("s_cselect_b32 s%d, s%d, s%d" % (sF0, sT0, sF0))
    p("s_lshl_b32 s%d, s%d, 8" % (sQC, sHEAD))
    p("s_lshl_b32 s%d, s%d, 15" % (sXN, sTB)); p("s_add_u32 s%d, s%d, 0x%x" % (sXN, sXN, WS_XN))
    p("s_mul_i32 s%d, s%d, %d" % (sCTX, sTB, 368 * 1024)); p("s_add_u32 s%d, s%d, 0x%x" % (sCTX, sCTX, WS_CH))
    p("s_lshl_b32 s%d, s%d, 5" % (sHO, sF0)); p("s_add_u32 s%d, s%d, s%d" % (sHO, sHO, sCTX)); p("s_add_u32 s%d, s%d, %d" % (sHO, sHO, 256 * 1024))
    p("s_add_u32 s%d, s%d, 2048" % (sHO2, sHO)); p("s_cmp_ge_u32 s%d, 24" % sHEAD); p("s_cselect_b32 s%d, 0x%x, s%d" % (sHO2, OOB, sHO2))
    p("s_lshl_b32 s%d, s%d, 13" % (sT0, sHEAD)); p("s_add_u32 s%d, s%d, s%d" % (sCTX, sCTX, sT0))
    p("s_lshl_b32 s%d, s%d, 19" % (sHB, sHEAD))
    p("s_and_b32 s%d, s%d, 3" % (sRO2, sIDX)); p("s_lshl_b32 s%d, s%d, 1" % (sRO2, sRO2)); p("s_lshr_b32 s%d, s%d, 2" % (sT0, sIDX))
    p("s_add_u32 s%d, s%d, s%d" % (sRO2, sRO2, sT0)); p("s_and_b32 s%d, s%d, 7" % (sRO2, sRO2))
    if not OPT.get("rot2", 1): p("s_mov_b32 s%d, 0" % sRO2)
    if OPT.get("rot2", 1) == 2: p("s_lshr_b32 s%d, s%d, 2" % (sRO2, sIDX))
    if OPT.get("rot2", 1) == 3: p("s_and_b32 s%d, s%d, 3" % (sRO2, sIDX)); p("s_lshl_b32 s%d, s%d, 1" % (sRO2, sRO2))
    p("s_lshr_b32 s%d, s%d, 2" % (sROH, sIDX)); p("s_add_u32 s%d, s%d, s%d" % (sROH, sROH, sIDX))
    if STAMP:
        p("s_lshl_b32 s99, s2, 3"); p("s_add_u32 s99, s99, s%d" % sWAVE); p("s_lshl_b32 s99, s99, 10"); p("s_add_u32 s99, s99, 0x6000000")

WS_STAT = 0x5100000
def ln_list_a():
    q = Rec(); T0, T1, T2, XR, F = VPOLL, 98, 99, 100, 104
    X0R = 60 if OPT.get("xe", 2) else XR
    for j in range(4):
        q("v_lshlrev_b32 v%d, 16, v%d" % (F + 2 * j, X0R + j)); q("v_and_b32 v%d, 0xffff0000, v%d" % (F + 2 * j + 1, X0R + j))
    q("v_and_b32 v%d, 0x70, v%d" % (T1, VL16)); q("v_lshlrev_b32 v%d, 6, v%d" % (T1, T1)); q("v_lshrrev_b32 v%d, 7, v%d" % (T2, VL16))
    q("v_lshl_add_u32 v%d, v%d, 4, v%d" % (T1, T2, T1))
    q("s_lshl_b32 s%d, s2, 13" % sSRC); q("s_lshl_b32 s%d, s%d, 7" % (sDST, sWAVE)); q("s_add_u32 s%d, s%d, s%d" % (sSRC, sSRC, sDST))
    q("buffer_load_dwordx4 %s, v%d, %s, s%d offen" % (vr(XR), T1, sr(R_X), sSRC))
    q("v_add_f32 v%d, v%d, v%d" % (T0, F, F + 1))
    for j in range(2, 8): q("v_add_f32 v%d, v%d, v%d" % (T0, T0, F + j))
    wave_sum(q, T0)
    q("s_nop 0"); q("v_readlane_b32 s%d, v%d, 63" % (sSRC, T0))
    q("v_mov_b32 v%d, 0x3b000000" % T1); q("s_nop 0"); q("v_mul_f32 v%d, s%d, v%d" % (T1, sSRC, T1))
    q("v_sub_f32 v%d, v%d, v%d" % (T2, F, T1)); q("v_mul_f32 v%d, v%d, v%d" % (T0, T2, T2))
    for j in range(1, 8):
        q("v_sub_f32 v%d, v%d, v%d" % (T2, F + j, T1)); q("v_fmac_f32 v%d, v%d, v%d" % (T0, T2, T2))
    wave_sum(q, T0)
    q("s_nop 0"); q("v_readlane_b32 s%d, v%d, 63" % (sSRC, T0))
    q("v_mov_b32 v%d, 0x3b000000" % T2); q("s_nop 0"); q("v_mul_f32 v%d, s%d, v%d" % (T2, sSRC, T2))
    q("v_cvt_pk_bf16_f32 v%d, v%d, v%d" % (T0, T1, T2))
    q("v_lshlrev_b32 v%d, 16, v%d" % (T1, T0)); q("v_and_b32 v%d, 0xffff0000, v%d" % (T2, T0))
    q("v_add_f32 v%d, 0x3727c5ac, v%d" % (T2, T2))
    q("v_cvt_pk_bf16_f32 v%d, v%d, v%d" % (T2, T2, T2)); q("v_lshlrev_b32 v%d, 16, v%d" % (T2, T2))
    q("v_sqrt_f32 v%d, v%d" % (T2, T2)); q("s_lshl_b32 s%d, s%d, 3" % (sSRC, sLNROW))
    q("v_cvt_pk_bf16_f32 v%d, v%d, v%d" % (T2, T2, T2)); q("v_lshlrev_b32 v%d, 16, v%d" % (T2, T2))
    q("s_add_u32 s%d, s%d, 0x%x" % (sSRC, sSRC, WS_STAT))
    L = list(q.l)
    L.append(("buffer_store_dwordx2 v[%d:%d], v%d, %s, s%d offen sc1" % (T1, T2, VONE, sr(R_WS), sSRC), "LS"))
    return L
def ln_list_b0():
    return ["v_and_b32 v104, 0x70, v%d" % VL16, "v_lshrrev_b32 v104, 1, v104", "s_lshl_b32 s%d, s2, 6" % sSRC, "s_add_u32 s%d, s%d, 0x%x" % (sSRC, sSRC, WS_STAT),
            "buffer_load_dwordx2 v[98:99], v104, %s, s%d offen sc1" % (sr(R_WS), sSRC)]
def ln_list_b():
    q = Rec(); M, SD, XR, F, R, T = 98, 99, 100, 104, VSP, VPOLL
    q("v_rcp_f32 v%d, v%d" % (R, SD))
    for j in range(4):
        q("v_lshlrev_b32 v%d, 16, v%d" % (F + 2 * j, XR + j)); q("v_and_b32 v%d, 0xffff0000, v%d" % (F + 2 * j + 1, XR + j))
    for j in range(8): q("v_sub_f32 v%d, v%d, v%d" % (F + j, F + j, M))
    for j in range(4): q("v_cvt_pk_bf16_f32 v%d, v%d, v%d" % (XR + j, F + 2 * j, F + 2 * j + 1))
    for j in range(4):
        q("v_lshlrev_b32 v%d, 16, v%d" % (F + 2 * j, XR + j)); q("v_and_b32 v%d, 0xffff0000, v%d" % (F + 2 * j + 1, XR + j))
    for j in range(8):
        q("v_mul_f32 v%d, v%d, v%d" % (T, F + j, R)); q("v_fma_f32 v%d, -v%d, v%d, v%d" % (F + j, T, SD, F + j))
        q("v_fma_f32 v%d, v%d, v%d, v%d" % (F + j, F + j, R, T))
    for j in range(4): q("v_cvt_pk_bf16_f32 v%d, v%d, v%d" % (XR + j, F + 2 * j, F + 2 * j + 1))
    q("v_and_b32 v%d, 0x200, v%d" % (T, VL16)); q("v_lshlrev_b32 v%d, 2, v%d" % (T, T))
    q("v_and_b32 v%d, 0x180, v%d" % (R, VL16)); q("v_lshl_add_u32 v%d, v%d, 1, v%d" % (T, R, T))
    q("v_and_b32 v%d, 0x70, v%d" % (R, VL16)); q("v_add_u32 v%d, v%d, v%d" % (T, T, R))
    q("s_lshr_b32 s%d, s2, 2" % sSRC); q("s_lshl_b32 s%d, s%d, 15" % (sSRC, sSRC))
    q("s_and_b32 s%d, s2, 1" % sDST); q("s_lshl_b32 s%d, s%d, 7" % (sDST, sDST)); q("s_add_u32 s%d, s%d, s%d" % (sSRC, sSRC, sDST))
    q("s_and_b32 s%d, s2, 2" % sDST); q("s_lshl_b32 s%d, s%d, 9" % (sDST, sDST)); q("s_add_u32 s%d, s%d, s%d" % (sSRC, sSRC, sDST))
    q("s_lshl_b32 s%d, s%d, 12" % (sDST, sWAVE)); q("s_add_u32 s%d, s%d, s%d" % (sSRC, sSRC, sDST))
    L = list(q.l)
    L.append(("buffer_store_dwordx4 %s, v%d, %s, s%d offen sc1" % (vr(XR), T, sr(R_WS), sSRC), "LN"))
    return L

UB = [(u % 8) * 8192 for u in range(32)] + [16384 * x for x in (4, 5, 6, 7, 8, 9, 0, 1, 2, 3, 4, 5, 6, 7, 8, 9)]
def p12(p):
    setup(p)
    toks = {}
    def run(lst):
        for it in lst:
            if isinstance(it, tuple): emit_tagged(p, toks, it[0], it[1])
            else: p(it)
    def wdma(s):
        t = "W%d" % s; b = UB[s]
        if s < 32:
            ps, c = divmod(s, 8); so = "s%d" % (sTAB + 8 + c); L = [("s_nop 0", None)]
            if ps: L = [("s_add_u32 s%d, %s, %d" % (sT2, so, ps * 128), None)]; so = "s%d" % sT2
            return [("s_add_u32 m0, s%d, %d" % (sLW, b), "m0:" + t)] + L + [("buffer_load_dwordx4 v%d, %s, %s offen lds" % (VD8, sr(R_W1), so), t)]
        elif s < 40:
            L = rot8(sT2, s - 32, "s_mul_i32 s%d, s%d, %d" % (sT2, sT2, 64 * 3584), sF0); so = "s%d" % sT2
            rs, v1, rs2, off2, m2 = R_WG, VDG, R_WU, 0, 8192
        else:
            L = rot8(sT2, s - 40, "s_lshl_b32 s%d, s%d, 19" % (sT2, sT2), sQC); so = "s%d" % sT2
            rs, v1, rs2, off2, m2 = R_WQ, VD8, R_WQ, 128, 8192 - 128
        return [("s_add_u32 m0, s%d, %d" % (sLW, b), "m0:" + t)] + L + [
            ("buffer_load_dwordx4 v%d, %s, %s offen lds" % (v1, sr(rs), so), t),
            ("s_add_u32 m0, s%d, %d" % (sLW, b + m2), "m0:" + t), ("s_nop 0", None),
            ("buffer_load_dwordx4 v%d, %s, %s offen offset:%d lds" % (v1, sr(rs2), so, off2), t)]
    def tdma(c):
        t = "T%d" % c
        L = [("s_add_u32 m0, s%d, %d" % (sLT, (c % 3) * 32768), "m0:" + t), ("s_nop 0", None)]
        for q in range(4):
            so = "s%d" % (sTAB + c)
            if q: L.append(("s_add_u32 s%d, %s, %d" % (sT2, so, q * 7168), None)); so = "s%d" % sT2
            L.append(("buffer_load_dwordx4 v%d, %s, %s offen offset:%d lds" % (VDT + (q & 1), sr(R_CKV), so, q * 1024), t))
        return L
    if STAMP: p("s_memrealtime s[64:65]"); p("s_waitcnt lgkmcnt(0)"); p("v_mov_b32 v110, s62"); p("v_mov_b32 v111, s64")
    run(wdma(0)); run(tdma(0)); run(wdma(1))
    def xrow():
        p("s_lshl_b32 s%d, s2, 13" % sT3); p("s_lshl_b32 s%d, s%d, 10" % (sT0, sWAVE)); p("s_add_u32 s%d, s%d, s%d" % (sT3, sT3, sT0))
        p("buffer_load_dwordx4 v[60:63], v%d, %s, s%d offen" % (VL16, sr(R_X), sT3))
    if OPT.get("xe", 2) == 1: xrow()
    p("s_barrier"); run(tdma(1))
    if OPT.get("xe", 2) == 2: xrow()
    if not OPT.get("lazy", 0): run(wdma(2)); run(tdma(2)); run(wdma(3))
    if OPT.get("wt", 0):
        n = OPT["wt"]
        p("s_cmp_lt_u32 s%d, %d" % (sWAVE, 8 - 2 * n)); p("s_cbranch_scc1 K_NOWT")
        p("s_sub_u32 s%d, 7, s%d" % (sT0, sWAVE)); p("s_lshr_b32 s%d, s%d, 1" % (sT1, sT0)); p("s_add_u32 s%d, s%d, 1" % (sT1, sT1)); p("s_lshl_b32 s%d, s%d, 7" % (sT1, sT1))
        p("s_bitcmp1_b32 s%d, 0" % sT0); p("s_cselect_b32 s%d, s%d, s%d" % (sT0, sTAB + 9, sTAB + 8)); p("s_add_u32 s%d, s%d, s%d" % (sT0, sT0, sT1))
        p("v_lshlrev_b32 v%d, 6, v%d" % (VSP, VL128))
        cond(p, "buffer_load_dword v%d, v%d, %s, s%d offen" % (VDUM, VSP, sr(R_W1), sT0))
        p.label("K_NOWT")
    if OPT.get("cpf", 0):
        p("s_cmp_lg_u32 s%d, 7" % sWAVE); p("s_cbranch_scc1 K_NOCPF")
        p("s_getpc_b64 s[100:101]")
        p("s_and_b32 s%d, s%d, 7" % (sT0, sIDX)); p("s_lshl_b32 s%d, s%d, 13" % (sT0, sT0)); p("v_add_u32 v%d, s%d, v%d" % (VSP, sT0, VL128))
        p("v_min_u32 v%d, 0x%x, v%d" % (VSP, OPT.get("reach", 0x1000), VSP))
        cond(p, "global_load_dword v%d, v%d, s[100:101]" % (VDUM, VSP))
        p.label("K_CPFREF")
        p.label("K_NOCPF")
    setup2(p)
    if OPT.get("dbgt", 0):
        p("s_memrealtime s[100:101]"); p("s_waitcnt lgkmcnt(0)"); p("v_mov_b32 v%d, s100" % VSP)
        p("s_lshl_b32 s100, s%d, 2" % sX8); p("s_add_u32 s100, s100, 4"); p("s_add_u32 s101, s%d, s%d" % (sIDX, sWAVE)); p("s_cmp_eq_u32 s101, 0"); p("s_cselect_b32 s100, s100, 0x1000")
        cond(p, "buffer_store_dword v%d, v%d, %s, s100 offen" % (VSP, VONE, sr(R_DBG)))
    if STAMP:
        p("buffer_store_dwordx2 v[110:111], v%d, %s, s99 offen offset:120" % (VONE, sr(R_WS)), note="diag"); p.vq.pop()
    stamp(p, 0)
    items = [(u, [(0, c, 4 * ((u >> 3) & 1) + c) for c in range(4)]) for u in range(32)]
    items += [(32, GE), (33, GE), (32, GF), (33, GF)] + [(s, g) for s in range(34, 38) for g in (GE, GF)]
    items += [(38, GE), (39, GE), (38, GF), (39, GF), (40, XG), (41, XG), (40, YG), (41, YG)] + [(s, g) for s in range(42, 48) for g in (XG, YG)]
    prev = {}
    for s in range(48):
        sz = 8192 if s < 32 else 16384
        ov = [q for q in range(s) if UB[q] < UB[s] + sz and UB[s] < UB[q] + (8192 if q < 32 else 16384)]
        prev[s] = ov[-2:]
    g0 = OPT.get("g0", 304)
    minbar = {32 + i: g0 + OPT.get('gs', 32) * i for i in range(6)}
    MERGE = 576
    st = None
    for var in ("K", "V"):
        if var == "K":
            p("s_cmp_lg_u32 s%d, 0" % sU1); p("s_cbranch_scc1 P1_V"); st = (list(p.lq), list(p.vq), {k: list(v) for k, v in toks.items()})
        else:
            p.label("P1_V"); p.lq, p.vq = list(st[0]), list(st[1]); toks.clear(); toks.update({k: list(v) for k, v in st[2].items()})
        def mf(sl, kk, at, th, fr):
            c = sl % 8; t = treg(2 * c + kk, th); t = "a[%d:%d]" % (t, t + 3)
            acc = vr(8 * at + 4 * th); cc = "0" if (c == 0 and kk == 0) else acc
            if var == "V" and sl < 32: return "%s %s, %s, %s, %s" % (MF, acc, t, vr(fr), cc)
            return "%s %s, %s, %s, %s" % (MF, acc, vr(fr), t, cc)
        sc = [1]
        def st_hook(p):
            stamp(p, sc[0]); sc[0] += 1
        ab = {bp: [st_hook] for bp in (16, 48, 112, 240, 304, 400, 496, 528, 624, 752, 816, 912, 1008)} if STAMP else {}
        B64 = OPT.get("b64", 0)
        if B64:
            OPT.setdefault("c0b", 400); OPT.setdefault("c1b", 912); OPT.setdefault("c1s", 784)
            ab = {}
        BH = 848 if B64 else 880
        ab.setdefault(176, []).append(signal(0)); ab.setdefault(BH, []).append(signal(128))
        def wbl2(p):
            sk = p.newlabel("WB")
            p("s_cmp_lg_u32 s%d, 0" % sWAVE); p("s_cbranch_scc1 %s" % sk); cond(p, "buffer_wbl2 sc1"); p.label(sk)
        if OPT.get("wb", 0):
            for bp_ in ((720,) if OPT["wb"] == 1 else (400, 720)): ab.setdefault(bp_, []).append(wbl2)
            ab.setdefault(880, []).append(signal(64))
        else: ab.setdefault(OPT.get("c1s", 752), []).append(signal(64))
        ew = {80: ["LS"], 176: ["LN"], OPT.get("c1s", 752): ["ST1"], BH: ["STH"], 1008: ["KV"]}
        if OPT.get("wb", 0) == 2: ew[400] = ["ST1"]
        C0B, C1B = OPT.get("c0b", 368), OPT.get("c1b", 944)
        mark = {}
        def pmark(k):
            def f(p): mark[k] = p.nvm
            return f
        bb = {C0B: [poll_check(R_DBG, "0", 256, True, nwait=lambda p: p.nvm - mark[0])], C1B: [poll_check(R_DBG, "64", 256, True, nwait=lambda p: p.nvm - mark[1])]}
        S, pro, init, last_use = engine(toks, items, UB, mf, wdma, prev, minbar, range(8), 512, {b: 0 for b in range(4)},
                                        extra_wait=ew, after_bar=ab, before_bar=bb, maxnew=6 if B64 else 3,
                                        bpos=(list(range(16, B64, 32)) + list(range(B64, 1000, 64)) + [1008]) if B64 else None)
        def tread(c):
            def f(p):
                p.wait_tok(toks["T%d" % c])
                for kk in range(2):
                    ad, o = VTA + kk, (c % 3) * 32768
                    if c % 3 == 2: p("v_add_u32 v%d, 0x10000, v%d" % (96 + kk, VTA + kk)); ad, o = 96 + kk, 0
                    for th in range(2):
                        t = treg(2 * c + kk, th); p("ds_read_b128 a[%d:%d], v%d offset:%d" % (t, t + 3, ad, o + th * 2048))
            return f
        if OPT.get("lazy", 0):
            S.group(0, wdma(2) + tdma(2) + wdma(3), per=3); S.group(16, wdma(4) + wdma(5), per=2)
        else: S.group(0, wdma(4)); S.group(0, wdma(5))
        for c in range(1, 8): S.put(16 * (c - 1) + 6, tread(c))
        S.group(10, tdma(3), per=2); S.group(16, wdma(6)); S.group(16, wdma(7))
        for c in range(4, 8): S.group(16 * (c - 3) + 10, tdma(c), per=2)
        X0 = OPT.get("x0", 1)
        if not OPT.get("xe", 2): S.spread(X0, ["s_lshl_b32 s%d, s%d, 10" % (sT3, sLNROW), "buffer_load_dwordx4 v[100:103], v%d, %s, s%d offen" % (VL16, sr(R_X), sT3)], per=6)
        S.spread(26, ["v_mov_b32 v104, 0", "s_lshl_b32 s%d, s2, 8" % sT3, "s_add_u32 s%d, s%d, 0x%x" % (sT3, sT3, WS_FLAG),
                      "v_lshrrev_b32 v106, 2, v%d" % VL16, "s_cmp_eq_u32 s%d, 0" % sWAVE,
                      "s_cselect_b32 s%d, s%d, 0x%x" % (sT3, sT3, OOB), ("buffer_store_dword v104, v106, %s, s%d offen sc1" % (sr(R_WS), sT3), "LN")], per=8)
        e = S.spread(OPT.get('lna', 28), ln_list_a(), per=3); assert e <= 64, e
        S.spread(80, ln_list_b0(), per=2)
        e = S.spread(100, ln_list_b(), per=3); assert e <= 134, e
        def cvt(grp, q):
            st0 = 96 + 4 * q
            if var == "K":
                kap, th = 2 * grp + (q >> 1), q & 1; src = [16 * kap + 4 * th, 16 * kap + 4 * th + 2, 16 * kap + 8 + 4 * th, 16 * kap + 10 + 4 * th]
            else:
                cb = 4 * grp + q; src = [8 * cb + 2 * j for j in range(4)]
            return ["v_cvt_pk_bf16_f32 v%d, v%d, v%d" % (st0 + j, src[j], src[j] + 1) for j in range(4)]
        def sto(grp, q):
            if OPT.get("nost", 0): return ("s_nop 0", None)
            return ("buffer_store_dwordx4 %s, v%d, %s, s%d offen offset:%d%s" % (vr(96 + 4 * q), VL16, sr(R_WS), sO1B if grp else sO1, q * 1024, "" if OPT.get("wb", 0) else " sc1"), "ST1")
        def stg(t, st):
            d = OPT.get("stg", 0)
            if not d: S.put(t, *st); return
            def mk(lo):
                def f(p):
                    sk = p.newlabel("SS")
                    p("s_cmp_%s_u32 s%d, 4" % ("ge" if lo else "lt", sWAVE)); p("s_cbranch_scc1 %s" % sk); cond(p, st[0]); p.label(sk)
                return f
            S.put(t, mk(True)); S.put(t + d, mk(False))
        for ps in range(3):
            for q in range(4):
                t0 = 128 * (ps + 1) + 8 + (28 if ps < 2 else OPT.get("s2", 12)) * q
                S.spread(t0, cvt(ps & 1, q))
                if ps < 2: stg(t0 + 6, sto(ps & 1, q))
                else: S.put(t0 + 6, *sto(ps & 1, q))
        S.put(250, "s_add_u32 s%d, s%d, 0x80000" % (sO1, sO1)); S.put(378, "s_add_u32 s%d, s%d, 0x80000" % (sO1B, sO1B))
        S.spread(522, sum([cvt(1, q) for q in range(4)], []))
        for q in range(4): S.put(OPT.get("fb", 660) + OPT.get("fs", 20) * q, *sto(1, q))
        S.put(C0B - 24, poll_issue_w0(R_DBG, "0")); S.put(C0B - 24, pmark(0))
        def stag(f):
            def g(lo):
                def h(p):
                    sk = p.newlabel("SK")
                    p("s_cmp_%s_u32 s%d, 4" % ("ge" if lo else "lt", sWAVE)); p("s_cbranch_scc1 %s" % sk); f(p); p.label(sk)
                return h
            return g(True), g(False)
        def pf_xn(t):
            def f(p):
                p("s_lshl_b32 s%d, s%d, 16" % (sT1, sIDX)); p("s_lshl_b32 s%d, s%d, 13" % (sT0, sS4)); p("s_add_u32 s%d, s%d, s%d" % (sT0, sT1, sT0))
                cond(p, "buffer_load_dword v%d, v%d, %s, s%d offen offset:0" % (VDUM, VL128, sr(R_WS), sT0)) if t == 0 else (
                    p("s_add_u32 s%d, s%d, 32768" % (sT0, sT0)), cond(p, "buffer_load_dword v%d, v%d, %s, s%d offen" % (VDUM, VL128, sr(R_WS), sT0)))
            return f
        def pf_kv(t):
            def f(p):
                p("v_and_b32 v%d, 0x380, v%d" % (VSP, VL128)); p("v_bfe_u32 v%d, v%d, 7, 2" % (VPOLL, VL16)); p("v_lshl_add_u32 v%d, v%d, 13, v%d" % (VSP, VPOLL, VSP))
                p("v_lshrrev_b32 v%d, 9, v%d" % (VPOLL, VL16)); p("v_lshl_add_u32 v%d, v%d, 24, v%d" % (VSP, VPOLL, VSP))
                p("s_lshl_b32 s%d, s%d, 15" % (sT0, sWAVE)); p("s_add_u32 s%d, s%d, s%d" % (sT0, sT0, sHB)); p("s_and_b32 s%d, s%d, 28" % (sT1, sIDX)); p("s_lshl_b32 s%d, s%d, 8" % (sT1, sT1))
                p("s_add_u32 s%d, s%d, s%d" % (sT0, sT0, sT1)); p("s_add_u32 s%d, s%d, 0x%x" % (sT0, sT0, WS_K + t * 262144))
                cond(p, "buffer_load_dword v%d, v%d, %s, s%d offen" % (VDUM, VSP, sr(R_WS), sT0))
            return f
        if OPT.get("pf", 0):
            S.put(C0B + 9, stag(pf_xn(0))[1]); S.put(C0B + 41, stag(pf_xn(1))[1])
        if OPT.get("pfw", 0): S.put(OPT["pfw"], pf_p2w)
        if OPT.get("gw", 0):
            a_, b_ = stag(global_warm); S.put(OPT["gw"], b_); S.put(OPT["gw"] + OPT.get("gw2", 32), a_)
        if OPT.get("pfx", 0):
            def pf_own(p):
                p("v_lshrrev_b32 v%d, 9, v%d" % (VSP, VL16)); p("v_add_u32 v%d, s%d, v%d" % (VSP, sRO2, VSP)); p("v_and_b32 v%d, 7, v%d" % (VSP, VSP))
                p("v_and_b32 v%d, 0xf80, v%d" % (VPOLL, VL128)); p("v_lshl_add_u32 v%d, v%d, 12, v%d" % (VSP, VSP, VPOLL))
                cond(p, "buffer_load_dword v%d, v%d, %s, s%d offen" % (VDUM, VSP, sr(R_WS), sXN))
            a_, b_ = stag(pf_own); S.put(C0B + OPT.get("pfx1", 12), b_); S.put(C0B + OPT.get("pfx2", 44), a_)
        if OPT.get("pfkv", 0):
            for t in range(2):
                a_, b_ = stag(pf_kv(t)); S.put(C1B + 8 + 40 * t, a_); S.put(C1B + 26 + 40 * t, b_)
        for c in range(8):
            L = rot8(sT3, c, "s_lshl_b32 s%d, s%d, 12" % (sT3, sT3), sXN)
            for kk in range(2):
                for th in range(2):
                    t = treg(2 * c + kk, th)
                    L.append("buffer_load_dwordx4 a[%d:%d], v%d, %s, s%d offen offset:%d sc1" % (t, t + 3, VL16, sr(R_WS), sT3, kk * 2048 + th * 1024))
            need = 512 + (16 * c if c < 2 else 32 * c)
            t0 = max(401 + 16 * c, need - OPT.get("xla", 100))
            if not OPT.get("noxn", 0): S.spread(t0, L[:-4], per=5); S.spread(t0 + 1, L[-4:], per=1, step=2)
        def swiglu(grp):
            r_ = []
            for th in range(2):
                st0 = 96 + 4 * th; E = 104
                g = [8 * (4 * grp + (j >> 2)) + 4 * th + (j & 3) for j in range(8)]; u = [x + 16 for x in g]
                for j in range(8): r_.append("v_mul_f32 v%d, 0xbfb8aa3b, v%d" % (E + j, g[j]))
                for j in range(8): r_.append("v_exp_f32 v%d, v%d" % (E + j, E + j))
                for j in range(8): r_.append("v_mul_f32 v%d, v%d, v%d" % (g[j], g[j], u[j]))
                for j in range(8): r_.append("v_add_f32 v%d, 1.0, v%d" % (E + j, E + j))
                for j in range(8): r_.append("v_rcp_f32 v%d, v%d" % (E + j, E + j))
                r_.append("s_nop 0")
                for j in range(8): r_.append("v_mul_f32 v%d, v%d, v%d" % (g[j], g[j], E + j))
                for j in range(4): r_.append("v_cvt_pk_bf16_f32 v%d, v%d, v%d" % (st0 + j, g[2 * j], g[2 * j + 1]))
                r_.append(("buffer_store_dwordx4 %s, v%d, %s, s%d offen offset:%d sc1" % (vr(st0), VL16, sr(R_WS), sHO2 if grp else sHO, th * 1024), "STH"))
            return r_
        e = S.spread(736 + 5, swiglu(0), per=4); assert e <= 768, e
        e = S.spread(768 + 5, swiglu(1), per=4); assert e <= 800, e
        S.spread(1008 + 5, qepi(0), per=5)
        S.spread(900, ["v_accvgpr_write_b32 a%d, 0" % r for r in range(64)], per=1)
        S.put(C1B - 14, poll_issue_w0(R_DBG, "64")); S.put(C1B - 14, pmark(1))
        kv = ["s_lshl_b32 s%d, s%d, 13" % (sT0, sWAVE), "s_add_u32 s%d, s%d, s%d" % (sT1, sHB, sT0), "s_add_u32 s%d, s%d, 0x%x" % (sT1, sT1, WS_K),
              "s_add_u32 s%d, s%d, 0x%x" % (sT3, sT1, WS_V - WS_K - 6 * 8192), "s_add_u32 s%d, s%d, %d" % (sSRC, sT0, 65536 - 6 * 8192),
              "s_cmp_ge_u32 s%d, 6" % sWAVE, "s_cselect_b32 s%d, s%d, s%d" % (sT1, sT3, sT1), "s_cselect_b32 s%d, s%d, s%d" % (sT0, sSRC, sT0)]
        S.spread(952, kv, per=8)
        kv = []
        for hf in range(2):
            kv += [("s_add_u32 m0, s%d, %d" % (sT0, hf * 4096), "m0:KV"), ("s_add_u32 s%d, s%d, %d" % (sT3, sT1, hf * 4096), None)]
            kv += [("buffer_load_dwordx4 v%d, %s, s%d offen offset:%d sc1 lds" % (VL16, sr(R_WS), sT3, j * 1024), "KV") for j in range(4)]
        assert max(S.busy) < 882, max(S.busy)
        assert max(last_use[40], last_use[42]) < C1B
        LS0, LS1 = late_setup()
        e = S.spread(884 if not B64 else 914, LS1, per=2 if not B64 else 3); assert e <= 951, e
        S.spread(980, LS0, per=1)
        for f in range(OPT.get("la", 7)): S.put(1009 + 2 * f, "ds_read_b128 a[%d:%d], v%d offset:%d" % (64 + 4 * f, 67 + 4 * f, VKA, f * 1024), "A%d" % f)
        S.spread(953, kv, step=2)
        assert max(last_use[40], last_use[42]) < 944
        p.wait_tok(sum([toks["W%d" % s] for s in init], [])); p("s_barrier")
        tread(0)(p)
        run(pro)
        S.emit(p, toks, 0, MERGE)
        if var == "K": p("s_branch P2_M")
    p.label("P2_M")
    S.emit(p, toks, MERGE, None)
    stamp(p, 14)
    return toks

def late_setup():
    p = Rec()
    p("s_cmp_ge_u32 s%d, 2" % sS4)
    p("s_mov_b32 s%d, 0x%x" % (sSRC, WS_K + 6 * 8192)); p("s_cselect_b32 s%d, 0x%x, s%d" % (sSRC, WS_V, sSRC))
    p("s_mov_b32 s%d, 0x%x" % (sMAX, WS_K)); p("s_cselect_b32 s%d, 0x%x, s%d" % (sMAX, WS_V, sMAX))
    p("s_mov_b32 s%d, 0" % sRB); p("s_cselect_b32 s%d, 0x10000, s%d" % (sRB, sRB))
    p("s_mov_b32 s%d, %d" % (sDST, 6 * 8192)); p("s_cselect_b32 s%d, 0, s%d" % (sDST, sDST))

    p("s_lshl_b32 s%d, s%d, 13" % (sT0, sS4)); p("s_add_u32 s%d, s%d, s%d" % (sSRC, sSRC, sT0)); p("s_add_u32 s%d, s%d, s%d" % (sSRC, sSRC, sHB))
    p("s_add_u32 s%d, s%d, s%d" % (sDST, sDST, sT0))
    p("s_lshl_b32 s%d, s%d, 13" % (sT0, sLAST)); p("s_add_u32 s%d, s%d, s%d" % (sMAX, sMAX, sT0)); p("s_add_u32 s%d, s%d, s%d" % (sMAX, sMAX, sHB))
    nld = len(p.l)
    p4_setup(p)
    p("v_mov_b32 v%d, v%d" % (VKA, VL16)); p("v_add_u32 v%d, 16384, v%d" % (VKB, VL16)); p("v_mov_b32 v%d, v%d" % (VV, VL16))
    p("v_bfe_u32 v%d, v%d, 4, 4" % (VQM, VL16)); p("v_lshrrev_b32 v%d, 8, v%d" % (TM, VL16)); p("v_lshlrev_b32 v%d, 2, v%d" % (TM, TM))
    p("v_sub_u32 v%d, v%d, v%d" % (VQM, VQM, TM)); p("v_mov_b32 v%d, 0xff800000" % TM)
    for r in range(4): p("v_cmp_gt_i32 s[%d:%d], %d, v%d" % (sTAB + 2 * r, sTAB + 1 + 2 * r, r, VQM))
    p("v_mov_b32 v%d, 0" % LR[1][0]); p("v_mov_b32 v%d, 0" % LR[1][1])
    p("s_mov_b32 s%d, %s" % (sTHR, f32hex(THR))); p("s_max_u32 s%d, s%d, 2" % (sRING, sTB)); p("s_sub_u32 s%d, s%d, 2" % (sRING, sRING)); p("s_lshr_b32 s%d, s%d, 1" % (sRING, sRING))
    if not OPT.get("fast", 1): p("s_mov_b32 s%d, 0" % sRING)
    p("s_lshl_b32 s%d, s%d, 1" % (sUU, sRING)); p("s_add_u32 s%d, s%d, 1" % (sUU, sUU)); p("s_mov_b32 s%d, 0" % sPF)
    return p.l[:nld], p.l[nld:]

def global_warm(p):
    end = p.newlabel("GW")
    p("s_mov_b32 s%d, s%d" % (sT0, sLNROW))
    for rs, n in ((R_WG, 224), (R_WU, 224), (R_WQ, 512), (R_WD, 224), (R_WO, 512)):
        nx = p.newlabel("GW")
        p("s_cmp_ge_u32 s%d, %d" % (sT0, n)); p("s_cbranch_scc1 %s" % nx)
        p("s_lshl_b32 s%d, s%d, 13" % (sT0, sT0))
        cond(p, "buffer_load_dword v%d, v%d, %s, s%d offen" % (VDUM, VL128, sr(rs), sT0))
        p("s_branch %s" % end)
        p.label(nx); p("s_sub_u32 s%d, s%d, %d" % (sT0, sT0, n))
    p.label(end)

def pf_p2w(p):
    l1, l2, l3 = p.newlabel("PF"), p.newlabel("PF"), p.newlabel("PF")
    p("s_cmp_lt_u32 s%d, 4" % sWAVE); p("s_cbranch_scc1 %s" % l3)
    p("s_cmp_ge_u32 s%d, 2" % sS4); p("s_cbranch_scc1 %s" % l1)
    p("v_and_b32 v%d, 0x380, v%d" % (VSP, VL128)); p("v_lshrrev_b32 v%d, 7, v%d" % (VPOLL, VL16)); p("v_lshl_add_u32 v%d, v%d, 13, v%d" % (VSP, VPOLL, VSP))
    p("s_lshl_b32 s%d, s%d, 1" % (sT0, sIDX)); p("s_add_u32 s%d, s%d, s%d" % (sT0, sT0, sS4)); p("s_lshl_b32 s%d, s%d, 16" % (sT0, sT0))
    p("s_lshl_b32 s%d, s%d, 10" % (sT1, sX8)); p("s_add_u32 s%d, s%d, s%d" % (sT0, sT0, sT1))
    cond(p, "buffer_load_dword v%d, v%d, %s, s%d offen" % (VDUM, VSP, sr(R_WQ), sT0))
    p("s_branch %s" % l3)
    p.label(l1)
    p("v_and_b32 v%d, 0x180, v%d" % (VSP, VL128)); p("v_lshrrev_b32 v%d, 6, v%d" % (VPOLL, VL16)); p("v_mul_u32_u24 v%d, 3584, v%d" % (VPOLL, VPOLL))
    p("v_add_u32 v%d, v%d, v%d" % (VSP, VSP, VPOLL))
    p("s_mul_i32 s%d, s%d, %d" % (sT0, sIDX, 16 * 3584)); p("s_lshl_b32 s%d, s%d, 9" % (sT1, sX8)); p("s_lshl_b32 s%d, s%d, 8" % (sT3, sX8)); p("s_add_u32 s%d, s%d, 1536" % (sT3, sT3))
    p("s_cmp_ge_u32 s%d, 6" % sX8); p("s_cselect_b32 s%d, s%d, s%d" % (sT1, sT3, sT1)); p("s_add_u32 s%d, s%d, s%d" % (sT0, sT0, sT1))
    p("s_cmp_eq_u32 s%d, 3" % sS4); p("s_cbranch_scc1 %s" % l2)
    cond(p, "buffer_load_dword v%d, v%d, %s, s%d offen" % (VDUM, VSP, sr(R_WG), sT0))
    p("s_branch %s" % l3)
    p.label(l2)
    cond(p, "buffer_load_dword v%d, v%d, %s, s%d offen" % (VDUM, VSP, sr(R_WU), sT0))
    p.label(l3)

def qepi(grp):
    r = []
    for kap in (2 * grp, 2 * grp + 1):
        for j in range(16): r.append("v_mul_f32 v%d, %s, v%d" % (16 * kap + j, f32hex(QSCALE), 16 * kap + j))
        for th in range(2):
            b = 16 * kap + 4 * th
            for j, s_ in enumerate((b, b + 2, b + 8, b + 10)): r.append("v_cvt_pk_bf16_f32 v%d, v%d, v%d" % (b + j, s_, s_ + 1))
    return r

SREG = [[8 + (e & 7) + 16 * (e >> 3) for e in range(16)], [40 + (e & 7) + 16 * (e >> 3) for e in range(16)]]
CI, PB, E, LR, VKA, VKB, VV, VQM, TM = 64, (80, 88), 96, ((100, 101), (102, 103)), 104, 105, 106, 107, 108
def attention(p, toks0):
    AF = 64; LA = OPT.get("la", 7); KVSC = "sc1 " if OPT.get("kvsc", 1) else ""
    AFN = 8 if OPT.get("acc", 0) and LA > 7 else OPT.get("afn", 16)
    if OPT.get("acc", 0): AFN = 8
    fr = lambda j: "a[%d:%d]" % (AF + 4 * (j % AFN), AF + 4 * (j % AFN) + 3)
    O = lambda cb, qh: "a[%d:%d]" % (8 * cb + 4 * qh, 8 * cb + 4 * qh + 3)
    Q = lambda qh, kap: vr(16 * kap + 4 * qh)
    def dma_block():
        if OPT.get("nodma", 0): return
        p("s_min_u32 s%d, s%d, s%d" % (sT0, sSRC, sMAX)); p("s_and_b32 s%d, s%d, 0xffff" % (sT1, sDST)); p("s_add_u32 m0, s%d, s%d" % (sT1, sRB))
        p("s_add_u32 s%d, s%d, 4096" % (sT2, sT0))
        for j in range(4): cond(p, "buffer_load_dwordx4 v%d, %s, s%d offen offset:%d %slds" % (VL16, sr(R_WS), sT0, j * 1024, KVSC))
        p("s_add_u32 m0, m0, 4096"); p("s_add_u32 s%d, s%d, 16384" % (sSRC, sSRC))
        for j in range(4): cond(p, "buffer_load_dwordx4 v%d, %s, s%d offen offset:%d %slds" % (VL16, sr(R_WS), sT2, j * 1024, KVSC))
        p("s_add_u32 s%d, s%d, 16384" % (sDST, sDST))
    def touch():
        if not OPT.get("touch", 0): return
        p("s_add_u32 s%d, s%d, 32768" % (sT0, sSRC)); p("s_min_u32 s%d, s%d, s%d" % (sT0, sT0, sMAX)); p("s_add_u32 s%d, s%d, 16384" % (sSRC, sSRC))
        cond(p, "buffer_load_dword v%d, v%d, %s, s%d offen" % (VDUM, VL128, sr(R_WS), sT0))
    def dma_list():
        L = ["s_min_u32 s%d, s%d, s%d" % (sT0, sSRC, sMAX), "s_and_b32 s%d, s%d, 0xffff" % (sT1, sDST), "s_add_u32 m0, s%d, s%d" % (sT1, sRB), "s_add_u32 s%d, s%d, 4096" % (sT2, sT0)]
        L += [(lambda p, j=j: cond(p, "buffer_load_dwordx4 v%d, %s, s%d offen offset:%d %slds" % (VL16, sr(R_WS), sT0, j * 1024, KVSC))) for j in range(4)]
        L += ["s_add_u32 m0, m0, 4096", "s_add_u32 s%d, s%d, 16384" % (sSRC, sSRC)]
        L += [(lambda p, j=j: cond(p, "buffer_load_dwordx4 v%d, %s, s%d offen offset:%d %slds" % (VL16, sr(R_WS), sT2, j * 1024, KVSC))) for j in range(4)]
        L += ["s_add_u32 s%d, s%d, 16384" % (sDST, sDST)]
        return L
    def role(tag):
        p("s_cmp_ge_u32 s%d, 4" % sWAVE); p("s_cbranch_scc1 AT_RE%s" % tag)
        if tag == "0":
            p("s_cmp_lt_u32 s%d, 2" % sWAVE); p("s_cbranch_scc1 AT_R00"); dma_block(); p.label("AT_R00")
        dma_block()
        p.label("AT_RE%s" % tag)
    kread = lambda j, ad, off: ("ds_read_b128 %s, v%d offset:%d" % (fr(j), ad, off + j * 1024), "A%d" % j)
    vread = lambda j, off: ("ds_read_b128 %s, v%d offset:%d" % (fr(j), VV, off + (j - 8) * 1024), "A%d" % j)
    def maskprep(R=None):
        R = R or [CI + e for e in range(16)]
        for r in range(4):
            p("v_mov_b32 v%d, v%d" % (R[4 + r], TM))
            for e in (r, 12 + r): p("v_cndmask_b32 v%d, v%d, v%d, s[%d:%d]" % (R[e], R[e], TM, sTAB + 2 * r, sTAB + 1 + 2 * r))
        p("s_nop 1")
    def qk_slots(S, dst, zero=False):
        for j in range(16):
            kap, kh, qh = j >> 2, (j >> 1) & 1, j & 1; e0 = 8 * qh + 4 * kh
            S.add("%s %s, %s, %s, %s" % (MF, vr(dst[e0]), fr(j >> 1), Q(qh, kap), ("0" if zero else vr(CI + e0)) if kap == 0 else vr(dst[e0])))
    toks = {}
    def pairwait(S, nf):
        for f in range(0, nf, 2):
            S.s[2 * f]["pre"].append(lambda p, f=f: p.wait_tok(toks["A%d" % (f + 1)][-1]))
    def period(par, pv=True, fast=None):
        cur, nxt = SREG[par], SREG[1 - par]; koff = 0 if par else 8192
        S = Slots(); qk_slots(S, nxt)
        if pv:
            for j in range(16, 32):
                cb, qh = (j - 16) >> 1, j & 1
                S.add("%s %s, %s, %s, %s" % (MF, O(cb, qh), fr(j >> 1), vr(PB[1 - par] + 4 * qh), O(cb, qh)))
        n = len(S.s); nf = n // 2; k = n // 16
        for f in range(LA, nf): S.put(2 * (f - LA), *(kread(f, VKA, koff) if f < 8 else vread(f, koff)))
        for f in range(LA): S.put(2 * (nf - LA + f), *(kread(f, VKA, 8192) if par else kread(f, VKB, 0)))
        pairwait(S, nf)
        for e in range(16):
            qh = e >> 3; l = LR[par][qh]
            add = "v_add_f32 v%d, v%d, v%d" % (l, LR[1 - par][qh] if e % 8 == 0 else l, E + e % 4)
            pe = max(e - 1, 0) if pv else e
            sl = k * pe + k - 1
            if pv and e == 1: S.put(sl, "s_nop 0"); S.put(sl, add)
            else: S.put(k * pe, add)
            if e & 1: S.put(sl, "v_cvt_pk_bf16_f32 v%d, v%d, v%d" % (PB[par] + e // 2, E + (e - 1) % 4, E + e % 4))
            if e < 15: S.put(sl, "v_exp_f32 v%d, v%d" % (E + (e + 1) % 4, cur[e + 1]))
        if pv:
            S.put(30, "v_max_f32 v%d, v%d, v%d" % (TM + 1, LR[par][0], LR[par][1]))
            S.put(30, "v_cmp_lt_f32 vcc, s%d, v%d" % (sTHR, TM + 1))
        else: S.put(n - 1, "s_nop 7")
        S.put(n - 1, "v_exp_f32 v%d, v%d" % (E, nxt[0]))
        if fast and par:
            bp = OPT.get("abar", 8)
            S.put(1, "v_add_u32 v%d, 16384, v%d" % (VKB, VKA)); S.put(5, "v_and_b32 v%d, 0xffff, v%d" % (VKB, VKB))
            if fast == "A": S.put(bp, "s_waitcnt vmcnt(8)")
            S.put(bp, "s_barrier")
            if fast == "A" and not OPT.get("nodma", 0): S.spread(bp + 1, dma_list(), per=1)
        if fast and not par:
            S.put(17, "v_add_u32 v%d, 0x10000, v%d" % (VV, VKA)); S.put(21, "v_mov_b32 v%d, v%d" % (VKA, VKB))
            S.put(25, "s_sub_u32 s%d, s%d, 1" % (sRING, sRING)); S.put(29, "s_cmp_lg_u32 s%d, 0" % sRING)
        S.emit(p, toks)
    def rowred(op, a, b):
        for sw in ("v_permlane16_swap_b32", "v_permlane32_swap_b32"):
            p("v_mov_b32 v%d, v%d" % (b, a)); p("s_nop 1"); p("%s v%d, v%d" % (sw, b, a)); p("s_nop 1"); p("%s v%d, v%d, v%d" % (op, a, a, b))
    def rowmax(cur, qh, d, t, lold=None):
        c = cur[8 * qh]
        if lold is not None: p("v_log_f32 v%d, v%d" % (t, lold))
        p("v_max3_f32 v%d, v%d, v%d, v%d" % (d, c, c + 1, c + 2)); p("v_max3_f32 v%d, v%d, v%d, v%d" % (d, d, c + 3, c + 4))
        p("v_max3_f32 v%d, v%d, v%d, v%d" % (d, d, c + 5, c + 6)); p("v_max_f32 v%d, v%d, v%d" % (d, d, c + 7))
        if lold is not None:
            p("v_add_f32 v%d, 0xc1400000, v%d" % (t, t)); p("v_max_f32 v%d, v%d, v%d" % (d, d, t))
        rowred("v_max_f32", d, t)
    def fixup(par, back):
        cur, nxt = SREG[par], SREG[1 - par]
        p.nop(8)
        if STAMP and OPT.get("acc", 0):
            p("v_accvgpr_read_b32 v%d, a127" % VPOLL); p("s_nop 0"); p("v_add_u32 v%d, 1, v%d" % (VPOLL, VPOLL)); p("s_nop 0"); p("v_accvgpr_write_b32 a127, v%d" % VPOLL)
        for qh in range(2):
            D, Fc = TM + 1, TM + 2
            rowmax(cur, qh, D, Fc, LR[1 - par][qh])
            p("v_ceil_f32 v%d, v%d" % (D, D)); p("v_max_f32 v%d, 0, v%d" % (D, D)); p("v_exp_f32 v%d, -v%d" % (Fc, D))
            for e in range(8 * qh, 8 * qh + 8):
                p("v_sub_f32 v%d, v%d, v%d" % (cur[e], cur[e], D)); p("v_sub_f32 v%d, v%d, v%d" % (nxt[e], nxt[e], D)); p("v_sub_f32 v%d, v%d, v%d" % (CI + e, CI + e, D))
            for cb in range(8):
                for r in range(4):
                    a = 8 * cb + 4 * qh + r
                    p("v_accvgpr_read_b32 v%d, a%d" % (E + r, a)); p("v_mul_f32 v%d, v%d, v%d" % (E + r, E + r, Fc)); p("v_accvgpr_write_b32 a%d, v%d" % (a, E + r))
            l = LR[par][qh]
            p("v_mul_f32 v%d, v%d, v%d" % (l, LR[1 - par][qh], Fc))
            for e in range(8 * qh, 8 * qh + 8, 2):
                p("v_exp_f32 v%d, v%d" % (E, cur[e])); p("v_exp_f32 v%d, v%d" % (E + 1, cur[e + 1])); p("s_nop 0")
                p("v_add_f32 v%d, v%d, v%d" % (l, l, E)); p("v_add_f32 v%d, v%d, v%d" % (l, l, E + 1))
                p("v_cvt_pk_bf16_f32 v%d, v%d, v%d" % (PB[par] + e // 2, E, E + 1))
        p("v_exp_f32 v%d, v%d" % (E, nxt[0]))
        p("s_cmp_eq_u32 s%d, 0" % sPF); p("s_cbranch_scc1 AT_B%d" % par)
        lb = p.newlabel("FXB")
        p("s_cmp_eq_u32 s%d, 2" % sPF); p("s_cbranch_scc1 %s" % lb)
        p("s_cmp_lg_u32 s%d, 0" % sRING); p("s_branch AT_FA_B%d" % par)
        p.label(lb)
        p("s_cmp_lg_u32 s%d, 0" % sRING); p("s_branch AT_FB_B%d" % par)
    for f in range(LA): toks["A%d" % f] = [toks0["A%d" % f][-1]]
    p.vq = []
    if STAMP and OPT.get("acc", 0):
        for i in range(8): p("v_accvgpr_write_b32 a%d, 0" % (120 + i))
        p("s_mov_b32 s98, s100")
    poll_issue_w0(R_DBG, "128")(p)
    role("0")
    if OPT.get("pfkv2", 0):
        u0 = OPT.get("pfu0", 24)
        p("s_cmp_lt_u32 s%d, 16" % sIDX); p("s_cbranch_scc1 AT_NOPF")
        p("v_and_b32 v%d, 0x780, v%d" % (VSP, VL128)); p("v_bfe_u32 v%d, v%d, 8, 1" % (VPOLL, VL16)); p("v_lshl_add_u32 v%d, v%d, 13, v%d" % (VSP, VPOLL, VSP))
        p("v_lshrrev_b32 v%d, 9, v%d" % (VPOLL, VL16)); p("v_lshl_add_u32 v%d, v%d, 24, v%d" % (VSP, VPOLL, VSP))
        p("s_lshl_b32 s%d, s%d, 14" % (sT0, sWAVE)); p("s_add_u32 s%d, s%d, s%d" % (sT0, sT0, sHB)); p("s_and_b32 s%d, s%d, 12" % (sT1, sIDX)); p("s_lshl_b32 s%d, s%d, 9" % (sT1, sT1))
        p("s_add_u32 s%d, s%d, s%d" % (sT0, sT0, sT1)); p("s_add_u32 s%d, s%d, 0x%x" % (sT0, sT0, WS_K + u0 * 8192))
        for t in range((64 - u0 + 15) // 16):
            if u0 + 16 * (t + 1) > 64:
                p("s_cmp_ge_u32 s%d, %d" % (sWAVE, (64 - u0 - 16 * t) // 2)); p("s_cbranch_scc1 AT_NOPF")
            cond(p, "buffer_load_dword v%d, v%d, %s, s%d offen" % (VDUM, VSP, sr(R_WS), sT0))
            p("s_add_u32 s%d, s%d, 0x20000" % (sT0, sT0))
        p.label("AT_NOPF")
    S = Slots(); qk_slots(S, SREG[0], zero=True)
    for f in range(LA, 8): S.put(2 * (f - LA), *kread(f, VKA, 0))
    for f in range(LA): S.put(2 * (8 - LA + f), *kread(f, VKA, 8192))
    q1 = qepi(1)
    S.spread(0, q1[:24], per=4); S.spread(6, q1[24:], per=4)
    S.spread(12, ["v_xor_b32 v%d, %d, v%d" % (VWR + b_, 32 * b_, VTA) for b_ in range(4)], per=1)
    S.emit(p, toks)
    p.nop(6)
    p("s_cmp_lg_u32 s%d, 0" % sTB); p("s_cbranch_scc1 AT_NM0"); maskprep(SREG[0]); p.label("AT_NM0")
    for qh in range(2):
        rowmax(SREG[0], qh, E + 1, E + 2)
        for e in range(8 * qh, 8 * qh + 8): p("v_sub_f32 v%d, 0, v%d" % (CI + e, E + 1))
        for e in range(8 * qh, 8 * qh + 8): p("v_sub_f32 v%d, v%d, v%d" % (SREG[0][e], SREG[0][e], E + 1))
    p("v_exp_f32 v%d, v%d" % (E, SREG[0][0]))
    p("s_cmp_lg_u32 s%d, 1" % sTB); p("s_cbranch_scc1 AT_NM1"); maskprep(); p.label("AT_NM1")
    period(0, pv=False)
    sig0 = [sorted(e["regs"]) for e in p.lq]
    poll_check(R_DBG, "128", 256, True, nwait=lambda p: 8)(p)
    chk = lambda: [sorted(e["regs"]) for e in p.lq] == sig0
    lq0 = list(p.lq)
    stamp(p, 27); p.lq = list(lq0)
    p("s_cmp_eq_u32 s%d, 0" % sRING); p("s_cbranch_scc1 AT_STEPEND")
    p("v_add_u32 v%d, 0x10000, v%d" % (VV, VKA)); p("v_mov_b32 v%d, v%d" % (VKA, VKB))
    p("s_mov_b32 s%d, 2" % sPF)
    if OPT.get("prio", 0) == 1:
        p("s_cmp_lt_u32 s%d, 4" % sWAVE); p("s_cbranch_scc1 AT_NP"); p("s_setprio 1"); p.label("AT_NP")
    if OPT.get("prio", 0) == 2:
        p("s_sub_u32 s%d, 63, s%d" % (sT0, sLAST)); p("s_lshr_b32 s%d, s%d, 1" % (sT0, sT0)); p("s_add_u32 s%d, s%d, 2" % (sT0, sT0))
        p("s_min_u32 s%d, s%d, s%d" % (sT0, sT0, sRING)); p("s_sub_u32 s%d, s%d, s%d" % (sLNROW, sRING, sT0))
        p("s_cmp_ge_u32 s%d, 4" % sWAVE); p("s_cselect_b32 s%d, s%d, s%d" % (sRING, sT0, sRING))
    p("s_cmp_ge_u32 s%d, 4" % sWAVE); p("s_cbranch_scc1 AT_FB")
    p("s_mov_b32 s%d, 1" % sPF)
    for fa in ("A", "B"):
        p.lq = list(lq0)
        p.raw(".p2align 6") if fa == "B" else None
        p.label("AT_F%s" % fa)
        for par in (1, 0):
            period(par, fast=fa)
            p("s_cbranch_vccnz AT_FIX%d" % par)
            p.label("AT_F%s_B%d" % (fa, par))
            assert chk()
        p("s_cbranch_scc1 AT_F%s" % fa)
        if OPT.get("prio", 0) == 2 and fa == "B":
            p("s_mov_b32 s%d, s%d" % (sRING, sLNROW)); p("s_mov_b32 s%d, 0" % sLNROW); p("s_setprio 1")
            p("s_cmp_lg_u32 s%d, 0" % sRING); p("s_cbranch_scc1 AT_FB")
        p("s_mov_b32 s%d, 0" % sPF)
        stamp(p, 28); p.lq = list(lq0)
        p("s_branch AT_STEPEND2")
    p.lq = list(lq0)
    p.label("AT_STEPEND")
    p("v_add_u32 v%d, 0x10000, v%d" % (VV, VKA)); p("v_mov_b32 v%d, v%d" % (VKA, VKB))
    p.label("AT_STEPEND2")
    p("v_add_u32 v%d, 16384, v%d" % (VKB, VKA)); p("v_and_b32 v%d, 0xffff, v%d" % (VKB, VKB))
    acc_stamp(p, 0)
    p("s_waitcnt vmcnt(8)")
    acc_stamp(p, 1)
    p("s_barrier")
    acc_stamp(p, 2)
    if OPT.get("hm", 0):
        p("s_cmp_lg_u32 s%d, 0" % sHMB); p("s_cbranch_scc1 AT_GPP")
        cond(p, poll_issue(R_DBG, "128")); p("s_branch AT_GPQ")
        p.label("AT_GPP"); cond(p, poll_issue(R_WS, "s%d" % sCF)); p.label("AT_GPQ")
    role("1")
    acc_stamp(p, 3)
    lqs = {}
    for par in (1, 0):
        p("s_add_u32 s%d, s%d, 1" % (sUU, sUU)); p("s_cmp_ge_u32 s%d, s%d" % (sUU, sTB)); p("s_cbranch_scc1 AT_H%d" % par)
        p.label("AT_P%d" % par)
        lqs[par] = list(p.lq)
        period(par)
        p("s_cbranch_vccnz AT_FIX%d" % par)
        p.label("AT_B%d" % par)
        assert [sorted(e["regs"]) for e in p.lq] == sig0
    p("s_branch AT_STEPEND")
    for par in (1, 0):
        p.lq = list(lqs[par])
        p.label("AT_FIX%d" % par); fixup(par, "AT_B%d" % par)
        p.label("AT_H%d" % par)
        p("s_sub_u32 s%d, s%d, s%d" % (sT0, sUU, sTB)); p("s_cmp_eq_u32 s%d, 1" % sT0); p("s_cbranch_scc1 AT_N%d" % par)
        p("s_cmp_eq_u32 s%d, 2" % sT0); p("s_cbranch_scc1 AT_T%d" % par)
        maskprep(); p("s_branch AT_P%d" % par)
        p.label("AT_N%d" % par)
        p("s_waitcnt lgkmcnt(0)")
        cur = SREG[par]; off = 0 if par else 8192
        for f in range(8, 16): p(vread(f, off)[0])
        S = Slots()
        for j in range(16, 32):
            cb, qh = (j - 16) >> 1, j & 1
            S.add("%s %s, %s, %s, %s" % (MF, O(cb, qh), fr(j >> 1), vr(PB[1 - par] + 4 * qh), O(cb, qh)))
        for e in range(16):
            qh = e >> 3; l = LR[par][qh]
            S.put(e, "v_add_f32 v%d, v%d, v%d" % (l, LR[1 - par][qh] if e % 8 == 0 else l, E + e % 4))
            if e & 1: S.put(e, "v_cvt_pk_bf16_f32 v%d, v%d, v%d" % (PB[par] + e // 2, E + (e - 1) % 4, E + e % 4))
            if e < 15: S.put(e, "v_exp_f32 v%d, v%d" % (E + (e + 1) % 4, cur[e + 1]))
        S.put(15, "v_max_f32 v%d, v%d, v%d" % (TM + 1, LR[par][0], LR[par][1])); S.put(15, "v_cmp_lt_f32 vcc, s%d, v%d" % (sTHR, TM + 1))
        def btl(r):
            def f(p):
                sk = p.newlabel("BT")
                p("s_cmp_lt_u32 s%d, 4" % sWAVE); p("s_cbranch_scc1 %s" % sk); p4_tld(p, FULL, r); p.vq = []; p.label(sk)
            return f
        S.put(OPT.get("bt0", 9), btl(0)); S.put(15, btl(1))
        S.emit(p, {})
        p("s_cbranch_vccnz AT_FIX%d" % par); p("s_branch AT_B%d" % par)
        p.label("AT_T%d" % par)
        p("s_waitcnt lgkmcnt(0)")
        off = 0 if par else 8192
        for f in range(8, 16): p(vread(f, off)[0])
        p("v_mov_b32 v%d, v%d" % (TM + 1, LR[1 - par][0])); p("v_mov_b32 v%d, v%d" % (TM + 2, LR[1 - par][1]))
        for j in range(16, 32):
            cb, qh = (j - 16) >> 1, j & 1
            p("%s %s, %s, %s, %s" % (MF, O(cb, qh), fr(j >> 1), vr(PB[1 - par] + 4 * qh), O(cb, qh)))
        p("s_branch AT_EPI")
    p.label("AT_EPI")
    p("s_cmp_lt_u32 s%d, 4" % sWAVE); p("s_cbranch_scc1 AT_EPI2")
    p("s_cmp_gt_u32 s%d, 5" % sWAVE); p("s_cbranch_scc1 AT_EPI1")
    p("s_barrier")
    p.label("AT_EPI1")
    if not OPT.get("hm", 0): p4_tld(p, FULL, 2); p.vq = []
    else:
        p("s_cmp_lg_u32 s%d, 0" % sHM); p("s_cbranch_scc1 AT_EPI1H")
        p4_tld(p, FULL, 2); p("s_branch AT_EPI2")
        p.label("AT_EPI1H")
        p("s_waitcnt vmcnt(0)")
        p("v_readfirstlane_b32 s%d, v%d" % (sT0, VPOLL), note="=val %d" % (8 if OPT.get("early_ok", 1) else 0)); p("s_nop 0")
        p("s_cmp_lt_u32 s%d, 8" % sT0); p("s_cbranch_scc1 AT_EPI2")
        p("s_mov_b32 s%d, 2" % sHMB)
        for r in range(3): p4_tld(p, CRUN, r)
        p.vq = []
    p.label("AT_EPI2")
    stamp(p, 29)
    for qh in range(2):
        rowred("v_add_f32", TM + 1 + qh, E)
    for qh in range(2):
        p("v_rcp_f32 v%d, v%d" % (E + 2 * qh, TM + 1 + qh)); p("v_rcp_f32 v%d, v%d" % (E + 2 * qh + 1, TM + 1 + qh))
    p("v_mov_b32 v%d, 1" % VSP)
    p("s_lshr_b32 s%d, s%d, 1" % (sUU, sUU)); p("s_lshr_b32 s%d, s%d, 1" % (sLAST, sLAST))
    for q in range(8):
        kap, qh = q >> 1, q & 1; st = 8 * q
        if q == 4:
            p("s_add_u32 s%d, s%d, 4096" % (sCTX, sCTX))
            p("s_cmp_ge_u32 s%d, 4" % sWAVE); p("s_cbranch_scc1 AT_EPI3")
            p("s_waitcnt vmcnt(12)"); p("s_barrier")
            p("s_cmp_gt_u32 s%d, s%d" % (sSRC, sMAX)); p("s_cbranch_scc1 AT_EPI3")
            dma_block()
            p.label("AT_EPI3")
        for j in range(8): p("v_accvgpr_read_b32 v%d, a%d" % (st + j, 16 * kap + 8 * (j >> 2) + 4 * qh + (j & 3)))
        for j in range(4): p("v_pk_mul_f32 %s, %s, %s" % (vr(st + 2 * j, 2), vr(st + 2 * j, 2), vr(E + 2 * qh, 2)))
        for j in range(4): p("v_cvt_pk_bf16_f32 v%d, v%d, v%d" % (st + j, st + 2 * j, st + 2 * j + 1))
        p("buffer_store_dwordx4 %s, v%d, %s, s%d offen offset:%d sc1" % (vr(st), VL16, sr(R_WS), sCTX, (q % 4) * 1024))
    stamp(p, 15)
    if OPT.get("hm", 0): p("s_cmp_lg_u32 s%d, 0" % sHMB); p("s_cbranch_scc1 P4_JOINC")
    p("s_cmp_ge_u32 s%d, 4" % sWAVE); p("s_cbranch_scc1 P4_JOINF")
    p("s_add_u32 s%d, s%d, 1" % (sUU, sUU))
    p("s_cmp_gt_u32 s%d, s%d" % (sSRC, sMAX)); p("s_cbranch_scc1 AT_LDA1")
    p("s_waitcnt vmcnt(12)")
    p("s_sub_u32 s%d, s%d, %d" % (sT0, sIDX, 4 * OPT.get("tp0", 2))); p("s_cmp_lt_u32 s%d, 16" % sT0); p("s_cbranch_scc1 AT_TS")
    p("s_branch AT_LD")
    p.label("AT_LDA1"); p("s_waitcnt vmcnt(4)")
    p.label("AT_LD")
    p("s_cmp_lg_u32 s%d, 0" % sPF); p("s_cbranch_scc1 AT_LD2")
    p("s_add_u32 s%d, s%d, %d" % (sT0, sUU, OPT.get("pfat", 9))); p("s_cmp_lt_u32 s%d, s%d" % (sT0, sLAST)); p("s_cbranch_scc1 AT_LD2")
    p("s_cmp_eq_u32 s%d, s%d" % (sT0, sLAST)); p("s_cbranch_scc1 AT_PS")
    p("s_add_u32 s%d, s%d, %d" % (sT0, sUU, OPT.get("pfl", 4))); p("s_cmp_lt_u32 s%d, s%d" % (sT0, sLAST)); p("s_cbranch_scc1 AT_LD2")
    npf = p4_early(p)
    p("s_mov_b32 s%d, 1" % sPF)
    p.label("AT_LD2")
    if OPT.get("hm", 0):
        p("s_add_u32 s%d, s%d, 9" % (sT0, sUU)); p("s_cmp_eq_u32 s%d, s%d" % (sT0, sLAST)); p("s_cselect_b32 s%d, s%d, 0" % (sT0, sHM))
        p("s_cmp_lg_u32 s%d, 0" % sT0); p("s_cbranch_scc1 AT_HM")
    p("s_cmp_gt_u32 s%d, s%d" % (sUU, sLAST)); p("s_cbranch_scc1 AT_LDX")
    acc_stamp(p, 4)
    p("s_barrier")
    acc_stamp(p, 5)
    p("s_add_u32 s%d, s%d, 1" % (sUU, sUU))
    p("s_cmp_le_u32 s%d, s%d" % (sSRC, sMAX)); p("s_cbranch_scc1 AT_LD4")
    p("s_cmp_eq_u32 s%d, 1" % sPF); p("s_cbranch_scc1 AT_LD5")
    p("s_waitcnt vmcnt(0)"); p("s_branch AT_LDS")
    p.label("AT_LD5")
    p("s_mov_b32 s%d, 2" % sPF); p("s_waitcnt vmcnt(%d)" % npf); p("s_branch AT_LDS")
    p.label("AT_LD4")
    dma_block()
    acc_stamp(p, 6)
    p("s_cmp_eq_u32 s%d, 1" % sPF); p("s_cbranch_scc1 AT_LD3")
    p("s_waitcnt vmcnt(8)")
    p("s_branch AT_LDS")
    p.label("AT_LD3")
    p("s_mov_b32 s%d, 2" % sPF); p("s_waitcnt vmcnt(%d)" % (8 + npf))
    p.label("AT_LDS")
    p("s_cmp_eq_u32 s%d, 0x%x" % (sTE, OOB)); p("s_cbranch_scc1 AT_LD")
    p("v_mov_b32 v%d, 1" % VSP)
    cond(p, "buffer_atomic_add v%d, v%d, %s, s%d offen sc1" % (VSP, VONE, sr(R_WS), sTE))
    p("s_mov_b32 s%d, 0x%x" % (sTE, OOB))
    p("s_branch AT_LD")
    if OPT.get("hm", 0):
        p.label("AT_HM")
        for b_ in range(4): p("v_add_u32 v%d, 0x20000, v%d" % (VWR + b_, VWR + b_))
        for it in range(10):
            p.lq, p.vq = [], []
            p("s_barrier")
            if it == 9: break
            if it < 7:
                a_dma1(p, ("h", it), 8 + (it & 1))
                p("s_add_u32 s%d, s%d, %d" % (sT3, sH, it * 4096))
                for kk in range(2):
                    for th in range(2):
                        t = treg(8 + 2 * (it & 1) + kk, th)
                        cond(p, "buffer_load_dwordx4 a[%d:%d], v%d, %s, s%d offen offset:%d sc1" % (t, t + 3, VL16, sr(R_WS), sT3, kk * 2048 + th * 1024))
            if it == 8: a_dma(p, CRUN[0], 8)
            l1, l2, l3 = p.newlabel("HM"), p.newlabel("HM"), p.newlabel("HM")
            p("s_cmp_gt_u32 s%d, s%d" % (sSRC, sMAX)); p("s_cbranch_scc1 %s" % l1)
            dma_block()
            p.label(l1)
            if 1 <= it <= 7:
                k = it - 1
                def mfh(u, kk, at, th, fr_, k=k):
                    t = treg(8 + 2 * (k & 1) + kk, th); acc = vr(8 * at + 4 * th)
                    return "%s %s, %s, a[%d:%d], %s" % (MF, acc, vr(fr_), t, t + 3, "0" if (k == 0 and kk == 0) else acc)
                tk = {}
                S, pro, init, lu = engine(tk, [(0, XG), (0, YG)], [(k & 1) * 16384], mfh, None, {}, {}, [0], 2048, {b_: 0 for b_ in range(4)}, nobar=True)
                for t_ in pro: emit_tagged(p, tk, *t_)
                S.emit(p, tk)
            p("s_cmp_gt_u32 s%d, s%d" % (sSRC, sMAX)); p("s_cbranch_scc1 %s" % l2)
            p("s_waitcnt vmcnt(8)"); p("s_branch %s" % l3)
            p.label(l2); p("s_waitcnt vmcnt(0)"); p.label(l3)
        for b_ in range(4): p("v_add_u32 v%d, 0xfffe0000, v%d" % (VWR + b_, VWR + b_))
        p(poll_issue(R_WS, "s%d" % sCF))
        a_dma(p, CRUN[1], SL4(1)); a_dma(p, CRUN[2], SL4(2))
        p("s_waitcnt vmcnt(16)")
        poll_check(R_WS, "s%d" % sCF, 8)(p)
        for r in range(3): p4_tld(p, CRUN, r)
        p("s_branch P4_JOINC")
    if OPT.get("pfs", 1):
        p.label("AT_PS")
        prevn = 0
        for f, k in p4_pieces()[3:]:
            p("s_barrier"); dma_block(); f(p)
            p("s_waitcnt vmcnt(%d)" % (8 + k + prevn)); prevn = k
        p("s_add_u32 s%d, s%d, %d" % (sUU, sUU, len(p4_pieces()) - 3)); p("s_mov_b32 s%d, 2" % sPF)
        p("s_branch AT_LDS")
        p.label("AT_TS")
        prevn = 0
        for f, k in p4_pieces()[:3]:
            p("s_barrier"); dma_block(); f(p)
            p("s_waitcnt vmcnt(%d)" % (8 + k + prevn)); prevn = k
        p("s_add_u32 s%d, s%d, 3" % (sUU, sUU))
        p("s_branch AT_LDS")
    p.label("AT_LDX")
    a_dma(p, FULL[1], SL4(1)); a_dma(p, FULL[2], SL4(2))

sJ, sNT, sMT, sG, sTB4, sXO, sWD, sWO = range(12, 20)
sH, sC, sH3, sCF, sPB, sFL, sHM, sHMB = range(24, 32)
FULL = [("h", 0), ("h", 2), ("h", 4), ("h", 6)] + [("c", 2 * r) for r in range(8)]
CRUN = FULL[4:]
SHORT = FULL[:3] + FULL[4:]
SL4 = lambda r: ((r + 4) % 5) * 2
def p4_setup(p):
    A, B, C, L = 96, 97, 98, 99
    p("s_and_b32 s%d, s2, 3" % sJ); p("s_and_b32 s%d, s%d, 3" % (sNT, sIDX))
    p("s_lshr_b32 s%d, s%d, 2" % (sMT, sIDX)); p("s_and_b32 s%d, s2, 4" % sT0); p("s_lshl_b32 s%d, s%d, 1" % (sT0, sT0)); p("s_add_u32 s%d, s%d, s%d" % (sMT, sMT, sT0))
    p("s_lshr_b32 s%d, s%d, 2" % (sG, sWAVE)); p("s_lshl_b32 s%d, s%d, 2" % (sTB4, sMT)); p("s_add_u32 s%d, s%d, s%d" % (sTB4, sTB4, sS4))
    p("v_lshrrev_b32 v%d, 4, v%d" % (L, VL16))
    p("v_lshrrev_b32 v%d, 2, v%d" % (C, L)); p("v_lshlrev_b32 v%d, 7, v%d" % (C, C)); p("v_and_b32 v%d, 3, v%d" % (B, L)); p("v_lshl_add_u32 v%d, v%d, 3, v%d" % (C, B, C))
    p("s_lshl_b32 s%d, s%d, 14" % (sT0, sG)); p("v_add_u32 v%d, s%d, v%d" % (C, sT0, C)); p("v_bfe_u32 v%d, v%d, 3, 2" % (A, L))
    p("v_lshl_add_u32 v%d, v%d, 5, v%d" % (VTA, A, C))
    p("v_bfe_u32 v%d, v%d, 1, 2" % (A, L)); p("v_lshrrev_b32 v%d, 4, v%d" % (B, L)); p("v_xor_b32 v%d, v%d, v%d" % (A, A, B))
    p("v_and_b32 v%d, 1, v%d" % (B, L)); p("v_lshlrev_b32 v%d, 4, v%d" % (B, B)); p("v_lshl_add_u32 v%d, v%d, 5, v%d" % (A, A, B))
    p("v_lshrrev_b32 v%d, 3, v%d" % (B, L)); p("v_lshl_add_u32 v%d, v%d, 10, v%d" % (VD8, B, A))
    p("s_lshl_b32 s%d, s%d, 13" % (sT0, sWAVE)); p("v_add_u32 v%d, s%d, v%d" % (VDG, sT0, VD8))
    p("v_and_b32 v%d, 15, v%d" % (A, L)); p("v_lshrrev_b32 v%d, 4, v%d" % (B, L)); p("v_lshlrev_b32 v%d, 3, v%d" % (B, B)); p("v_lshl_add_u32 v%d, v%d, 10, v%d" % (VDT, A, B))
    p("v_add_u32 v%d, 16384, v%d" % (VDT + 1, VDT))
    p("s_lshl_b32 s%d, s%d, 15" % (sXO, sTB4)); p("s_lshl_b32 s%d, s%d, 8" % (sT0, sNT)); p("s_add_u32 s%d, s%d, s%d" % (sXO, sXO, sT0))
    p("s_lshl_b32 s%d, s%d, 6" % (sT1, sJ)); p("s_add_u32 s%d, s%d, s%d" % (sXO, sXO, sT1))
    p("s_mul_i32 s%d, s%d, 7" % (sH3, sJ)); p("s_and_b32 s%d, s%d, 1" % (sT1, sJ)); p("s_add_u32 s%d, s%d, s%d" % (sH3, sH3, sT1))
    p("s_lshl_b32 s%d, s%d, 16" % (sWD, sH3)); p("s_add_u32 s%d, s%d, s%d" % (sWD, sWD, sT0))
    p("s_lshl_b32 s%d, s%d, 20" % (sWO, sJ)); p("s_add_u32 s%d, s%d, s%d" % (sWO, sWO, sT0))
    p("s_mul_i32 s%d, s%d, %d" % (sT1, sTB4, 368 * 1024)); p("s_add_u32 s%d, s%d, 0x%x" % (sT1, sT1, WS_CH))
    p("s_lshl_b32 s%d, s%d, 12" % (sH, sH3)); p("s_add_u32 s%d, s%d, s%d" % (sH, sH, sT1)); p("s_add_u32 s%d, s%d, %d" % (sH, sH, 256 * 1024))
    p("s_lshl_b32 s%d, s%d, 16" % (sC, sJ)); p("s_add_u32 s%d, s%d, s%d" % (sC, sC, sT1))
    p("s_lshl_b32 s%d, s%d, 12" % (sT0, sG)); p("s_add_u32 s%d, s%d, s%d" % (sH, sH, sT0)); p("s_add_u32 s%d, s%d, s%d" % (sC, sC, sT0))
    p("s_cmp_ge_u32 s%d, %d" % (sLAST, 47 if OPT.get("hm", 0) else 99)); p("s_cselect_b32 s%d, 1, 0" % sHM); p("s_and_b32 s%d, s%d, s%d" % (sHMB, sHM, sG))
    p("s_lshl_b32 s%d, s%d, 10" % (sCF, sTB4)); p("s_lshl_b32 s%d, s%d, 8" % (sT0, sJ)); p("s_add_u32 s%d, s%d, s%d" % (sCF, sCF, sT0)); p("s_add_u32 s%d, s%d, 0x%x" % (sCF, sCF, WS_FLAG))

    p("s_lshl_b32 s%d, s%d, 10" % (sT0, sTB)); p("s_lshr_b32 s%d, s%d, 3" % (sT1, sHEAD)); p("s_lshl_b32 s%d, s%d, 8" % (sT1, sT1))
    p("s_add_u32 s%d, s%d, s%d" % (sTE, sT0, sT1)); p("s_add_u32 s%d, s%d, 0x%x" % (sTE, sTE, WS_FLAG))
    p("s_lshl_b32 s%d, s%d, 2" % (sT0, sMT)); p("s_add_u32 s%d, s%d, s%d" % (sT0, sT0, sNT))
    p("s_lshl_b32 s%d, s%d, 17" % (sPB, sT0)); p("s_add_u32 s%d, s%d, 0x%x" % (sPB, sPB, WS_PART)); p("s_lshl_b32 s%d, s%d, 11" % (sT1, sS4)); p("s_add_u32 s%d, s%d, s%d" % (sPB, sPB, sT1))
    p("s_lshl_b32 s%d, s%d, 10" % (sFL, sT0)); p("s_add_u32 s%d, s%d, 0x%x" % (sFL, sFL, WS_FLAG + 128)); p("s_lshl_b32 s%d, s%d, 2" % (sT1, sS4)); p("s_add_u32 s%d, s%d, s%d" % (sFL, sFL, sT1))

def w4src(spec, g):
    kind, k = spec
    if kind == "h": return R_WD, sWD, (k + g) * 65536
    return R_WO, sWO, (k + g) * 65536
def a_dma1(p, spec, slot, g=0):
    rs, sb, o = w4src(spec, g)
    p("s_lshl_b32 s%d, s%d, 14" % (sT0, sS4)); p("s_add_u32 s%d, s%d, s%d" % (sT0, sT0, sb)); p("s_add_u32 s%d, s%d, %d" % (sT0, sT0, o)); p("s_lshl_b32 s%d, s%d, 11" % (sT1, sS4))
    for pc in range(2):
        if pc: p("s_add_u32 s%d, s%d, 8192" % (sT0, sT0))
        for sub in range(2):
            p("s_add_u32 m0, s%d, %d" % (sT1, slot * 16384 + pc * 1024 + sub * (8192 - 128))); p("s_nop 0")
            cond(p, "buffer_load_dwordx4 v%d, %s, s%d offen offset:%d lds" % (VD8, sr(rs), sT0, sub * 128))
def a_dma(p, spec, slot):
    for g in range(2): a_dma1(p, spec, slot + g, g)
def p4_touch(p, which):
    p("v_lshrrev_b32 v%d, 7, v%d" % (VPOLL, VL16)); p("v_and_b32 v%d, 0x380, v%d" % (VSP, VL128)); p("v_lshl_add_u32 v%d, v%d, 10, v%d" % (VSP, VPOLL, VSP))
    p("s_lshl_b32 s%d, s%d, 2" % (sT0, sIDX)); p("s_add_u32 s%d, s%d, s%d" % (sT0, sT0, sS4)); p("s_sub_u32 s%d, s%d, %d" % (sT0, sT0, 16 * OPT.get("tp0", 2)))
    if which < 2:
        if which: p("s_add_u32 s%d, s%d, 64" % (sT0, sT0))
        p("s_cmp_ge_u32 s%d, 128" % sT0); p("s_cselect_b32 s%d, 0x%x, 0" % (sT2, OOB))
        p("s_lshl_b32 s%d, s%d, 13" % (sT0, sT0)); p("s_lshl_b32 s%d, s%d, 20" % (sT1, sJ)); rs = R_WO
    else:
        p("s_mov_b32 s%d, 0" % sT2)
        p("s_lshl_b32 s%d, s%d, 13" % (sT0, sT0)); p("s_lshl_b32 s%d, s%d, 16" % (sT1, sH3)); rs = R_WD
    p("s_add_u32 s%d, s%d, s%d" % (sT0, sT0, sT1)); p("s_add_u32 s%d, s%d, s%d" % (sT0, sT0, sT2))
    cond(p, "buffer_load_dword v%d, v%d, %s, s%d offen" % (VDUM, VSP, sr(rs), sT0))
def p4_pieces():
    def tl(r):
        def f(p):
            vq = list(p.vq); p4_tld(p, FULL, r); p.vq = vq
        return f
    return [(lambda p: p4_touch(p, 2), 1), (lambda p: p4_touch(p, 0), 1), (lambda p: p4_touch(p, 1), 1), (tl(0), 4), (tl(1), 4), (tl(2), 4),
            (lambda p: a_dma1(p, FULL[0], 8, 0), 4), (lambda p: a_dma1(p, FULL[0], 9, 1), 4)]
def p4_early(p):
    n = 0
    for f, k in p4_pieces()[3:]: f(p); n += k
    return n

def t4reg(r, kk, th): return treg(2 * ((r + 4) % 8) + kk, th)
def p4_tld_list(run, r):
    kind, k = run[r]
    out = ["s_add_u32 s%d, s%d, %d" % (sT3, sH if kind == "h" else sC, k * 4096)]; so = sT3
    for kk in range(2):
        for th in range(2):
            t = t4reg(r, kk, th)
            out.append(("buffer_load_dwordx4 a[%d:%d], v%d, %s, s%d offen offset:%d sc1" % (t, t + 3, VL16, sr(R_WS), so, kk * 2048 + th * 1024), "T4_%d" % r))
    return out
def p4_tld(p, run, r):
    for it in p4_tld_list(run, r): p(it[0] if isinstance(it, tuple) else it)

def phase4_run(p, run, tag):
    NR, TR = len(run), 8
    if tag == "F":
        p.label("P4_JOINF")
        p.lq, p.vq = [], []
        stamp(p, 16)
        p("v_mov_b32 v%d, 1" % VSP)
        p("s_waitcnt vmcnt(0)")
        p("buffer_atomic_add v%d, v%d, %s, s%d offen sc1" % (VSP, VONE, sr(R_WS), sTE))
        p("s_barrier")
        stamp(p, 17)
        p("s_bitcmp1_b32 s%d, 0" % sJ); p("s_cbranch_scc1 P4_SHORT")
        p.st4 = (list(p.lq), list(p.vq))
    else:
        p.label("P4_SHORT"); p.lq, p.vq = list(p.st4[0]), list(p.st4[1])
    def wdma(r):
        out = []
        for g in range(2):
            rs, sb, o = w4src(run[r], g); t = "W%d" % r; b = (SL4(r) + g) * 16384
            out += [("s_add_u32 m0, s%d, %d" % (sLW, b), "m0:" + t), ("s_add_u32 s%d, s%d, %d" % (sT2, sb, o), None),
                    ("buffer_load_dwordx4 v%d, %s, s%d offen lds" % (VDG, sr(rs), sT2), t),
                    ("s_add_u32 m0, s%d, %d" % (sLW, b + 8192 - 128), "m0:" + t), ("s_nop 0", None),
                    ("buffer_load_dwordx4 v%d, %s, s%d offen offset:128 lds" % (VDG, sr(rs), sT2), t)]
        return out
    items = [(r, g) for r in range(NR) for g in (XG, YG)]
    prev = {r: ([r - 5] if r >= 5 else []) for r in range(NR)}
    toks = {}
    def mf(r, kk, cb, th, fr):
        t = t4reg(r, kk, th); acc = vr(8 * cb + 4 * th); cc = "0" if (r == 0 and kk == 0) else acc
        return "%s %s, %s, a[%d:%d], %s" % (MF, acc, vr(fr), t, t + 3, cc)
    ab = {112: [lambda p: stamp(p, 19)]} if STAMP else {}
    S, pro, init, last_use = engine(toks, items, [SL4(r) * 16384 for r in range(NR)], mf, wdma, prev, {}, [0, 1, 2, 3, 4], 2048, {b: 0 for b in range(4)},
                                    after_bar=ab, maxnew=1)
    S.group(0, wdma(3)); S.group(0, wdma(4))
    e = 1
    for r in range(3, NR):
        if r == NR - 8:
            cp = OPT.get("cpoll", 40) - (0 if tag == "F" else 16)
            S.put(cp - 16, poll_issue(R_WS, "s%d" % sCF)); S.put(cp, poll_check(R_WS, "s%d" % sCF, 8)); e = max(e, cp + 1)
        e = S.spread(max(e, 32 * (r - TR + 1) + 1, 32 * (r - OPT.get("tla", 4))), p4_tld_list(run, r))
    x0, x1 = SL4(NR - 5) * 16384, SL4(NR - 4) * 16384
    S.spread(32 * NR - 40, ["buffer_load_dwordx2 v[%d:%d], v%d, %s, s%d offen offset:%d" % (100 + 2 * q, 101 + 2 * q, VDT + (q & 1), sr(R_X), sXO, (q >> 1) * 32) for q in range(4)] +
             [lambda p: (p("s_lshl_b32 s%d, s%d, 13" % (sT0, sS4)), p("s_cmp_eq_u32 s%d, 0" % sG), p("s_mov_b32 s%d, %d" % (sT1, x1)), p("s_cselect_b32 s%d, %d, s%d" % (sT1, x0, sT1)),
                         p("s_add_u32 s%d, s%d, s%d" % (sT1, sT1, sT0)), p("v_add_u32 v96, s%d, v%d" % (sT1, VL16)),
                         p("s_xor_b32 s%d, s%d, %d" % (sT1, sT1, x0 ^ x1)), p("v_add_u32 v97, s%d, v%d" % (sT1, VL16)))], step=2)
    for t_ in pro: emit_tagged(p, toks, *t_)
    S.emit(p, toks)

def phase4(p):
    phase4_run(p, FULL, "F")
    p("s_branch OUT_RED")
    phase4_run(p, SHORT, "S")
    p.label("OUT_RED")
    p("s_waitcnt lgkmcnt(0)")
    stamp(p, 23)
    p.nop(6)
    p("s_cmp_eq_u32 s%d, 1" % sG); p("s_cbranch_scc1 OUT_G1")
    st = (list(p.lq), list(p.vq))
    for g in range(2):
        if g == 1:
            p.label("OUT_G1"); p.lq, p.vq = list(st[0]), list(st[1])
        give = 32 * (1 - g); keep = 32 * g
        for q in range(8): p("ds_write_b128 v96, %s offset:%d" % (vr(give + 4 * q), q * 1024))
        p("s_waitcnt lgkmcnt(0)"); p("s_barrier")
        for q in range(8): p("ds_read_b128 %s, v97 offset:%d" % (vr(give + 4 * q), q * 1024))
        for r in range(32): p("v_add_f32 v%d, v%d, v%d" % (r, keep + r, give + r))
        if g == 0: p("s_branch OUT_X")
    p.label("OUT_X")
    p("s_lshl_b32 s%d, s%d, 13" % (sT0, sJ)); p("s_add_u32 s%d, s%d, s%d" % (sT0, sT0, sPB)); p("s_lshl_b32 s%d, s%d, 16" % (sT1, sG)); p("s_add_u32 s%d, s%d, s%d" % (sT0, sT0, sT1))
    p("s_lshl_b32 s%d, s%d, 9" % (sT1, sG)); p("s_add_u32 s%d, s%d, s%d" % (sH, sT1, sFL)); p("s_lshl_b32 s%d, s%d, 1" % (sT1, sG))
    for bb in range(2):
        p("s_add_u32 s%d, s%d, %d" % (sT2, sT0, bb * 32768)); p("s_add_u32 s%d, s%d, %d" % (sC + bb, sH, bb * 256))
        p("s_add_u32 s%d, s%d, %d" % (sT3, sT1, bb)); p("s_cmp_eq_u32 s%d, s%d" % (sT3, sJ))
        p("s_cselect_b32 s%d, 0x%x, s%d" % (sT2, OOB, sT2)); p("s_cselect_b32 s%d, 0x%x, s%d" % (sC + bb, OOB, sC + bb))
        for j in range(8): p("v_cvt_pk_bf16_f32 v%d, v%d, v%d" % (32 + 8 * bb + j, 16 * bb + 2 * j, 16 * bb + 2 * j + 1))
        for q in range(2): p("buffer_store_dwordx4 %s, v%d, %s, s%d offen offset:%d sc1" % (vr(32 + 8 * bb + 4 * q), VL16, sr(R_WS), sT2, q * 1024))
    p("v_mov_b32 v%d, 1" % VSP)
    p("s_lshl_b32 s%d, s%d, 8" % (sT0, sJ)); p("s_add_u32 s%d, s%d, s%d" % (sFL, sFL, sT0))
    p("s_waitcnt vmcnt(0)")
    for bb in range(2): p("buffer_atomic_add v%d, v%d, %s, s%d offen sc1" % (VSP, VONE, sr(R_WS), sC + bb))
    stamp(p, 24)
    p("s_lshr_b32 s%d, s%d, 1" % (sT0, sJ)); p("s_cmp_lg_u32 s%d, s%d" % (sT0, sG)); p("s_cbranch_scc1 K_END")
    p(poll_issue(R_WS, "s%d" % sFL))
    p("s_and_b32 s%d, s%d, 1" % (sT0, sJ)); p("s_cmp_eq_u32 s%d, 0" % sT0); p("s_cbranch_scc1 OUT_OWN")
    for r in range(16): p("v_mov_b32 v%d, v%d" % (r, 16 + r))
    p.label("OUT_OWN")
    for q in range(4):
        d = 64 + 8 * (q >> 1) + 4 * (q & 1)
        for e in range(2):
            p("v_lshlrev_b32 v%d, 16, v%d" % (d + 2 * e, 100 + 2 * q + e)); p("v_and_b32 v%d, 0xffff0000, v%d" % (d + 2 * e + 1, 100 + 2 * q + e))
    for r in range(16): p("v_add_f32 v%d, v%d, v%d" % (r, r, 64 + r))
    poll_check(R_WS, "s%d" % sFL, 3, sleep=1)(p)
    stamp(p, 25)
    p("s_lshl_b32 s%d, s%d, 15" % (sT3, sJ)); p("s_add_u32 s%d, s%d, s%d" % (sT3, sT3, sPB))
    for k in range(1, 4):
        p("s_add_u32 s%d, s%d, %d" % (sT0, sJ, k)); p("s_and_b32 s%d, s%d, 3" % (sT0, sT0)); p("s_lshl_b32 s%d, s%d, 13" % (sT0, sT0)); p("s_add_u32 s%d, s%d, s%d" % (sT0, sT0, sT3))
        for q in range(2): p("buffer_load_dwordx4 %s, v%d, %s, s%d offen offset:%d sc1" % (vr(16 + 8 * k + 4 * q), VL16, sr(R_WS), sT0, q * 1024))
    for k in range(1, 4):
        for j in range(8):
            p("v_lshlrev_b32 v64, 16, v%d" % (16 + 8 * k + j)); p("v_and_b32 v65, 0xffff0000, v%d" % (16 + 8 * k + j))
            p("v_add_f32 v%d, v%d, v64" % (2 * j, 2 * j)); p("v_add_f32 v%d, v%d, v65" % (2 * j + 1, 2 * j + 1))
    for q in range(4):
        a = 8 * (q >> 1) + 4 * (q & 1)
        p("v_cvt_pk_bf16_f32 v%d, v%d, v%d" % (64 + 2 * q, a, a + 1)); p("v_cvt_pk_bf16_f32 v%d, v%d, v%d" % (65 + 2 * q, a + 2, a + 3))
        p("buffer_store_dwordx2 v[%d:%d], v%d, %s, s%d offen offset:%d" % (64 + 2 * q, 65 + 2 * q, VDT + (q & 1), sr(R_OUT), sXO, (q >> 1) * 32))
    stamp(p, 26)
    if OPT.get("dbgt", 0):
        p("s_memrealtime s[100:101]"); p("s_waitcnt lgkmcnt(0)"); p("v_mov_b32 v%d, s100" % VSP)
        p("s_and_b32 s100, s%d, 3" % sX8); p("s_lshl_b32 s100, s100, 2"); p("s_add_u32 s100, s100, 36"); p("s_add_u32 s101, s%d, s%d" % (sIDX, sS4)); p("s_cmp_eq_u32 s101, 0"); p("s_cselect_b32 s100, s100, 0x1000")
        p("buffer_store_dword v%d, v%d, %s, s100 offen" % (VSP, VONE, sr(R_DBG)))

def build():
    p = Prog()
    hdr = open("cdna_kernels/%s.s.ref" % NAME).read().split("; Override launch")[0]
    p.raw(hdr.rstrip())
    p.raw("; @launch grid=(256,1,1) block=(512,1,1) lds=163840")
    p.raw('.amdgcn_target "amdgcn-amd-amdhsa--gfx950"'); p.raw(".text")
    kernel_begin(p, KN)
    t0 = p12(p); attention(p, t0); phase4(p)
    p.label("K_END"); p("s_endpgm")
    p.raw('.section .rodata,"a"'); p.raw(kernel_desc(KN, 256, 128, 102))
    return p

def selfcheck(p):
    bad = []
    for wg, wave in [(0, 0), (0, 3), (0, 4), (0, 7), (5, 2), (100, 1), (100, 6), (255, 2), (255, 5), (255, 0), (30, 4), (3, 7)]:
        for fx in (False, True):
            tr = trace(p, KN, wg, wave, vcc_taken=(lambda i, n: n % 3 == 1) if fx else (lambda i, n: False))
            pr = check_trace(tr, "wg%d w%d" % (wg, wave))
            nb = sum(1 for i in tr if i.mn == "s_barrier"); nm = sum(1 for i in tr if i.kind == "mfma")
            if not fx: print("wg%d w%d: %d instrs, %d mfma, %d barriers, %d problems" % (wg, wave, len(tr), nm, nb, len(pr)))
            bad += pr
    for b in sorted(set(bad))[:40]: print(b)
    return not bad

if __name__ == "__main__":
    for o in sys.argv[2:]:
        if o == "stamp": STAMP = True
        else:
            k, v = o.split("="); OPT[k] = int(v) if v.isdigit() else v
    import subprocess
    if OPT.get("cpf", 0):
        open("pass1.s", "w").write(build().text())
        subprocess.run(["clang", "-x", "assembler", "-target", "amdgcn-amd-amdhsa", "-mcpu=gfx950", "-c", "pass1.s", "-o", "pass1.o"], check=True)
        sym = subprocess.run(["llvm-objdump", "-t", "pass1.o"], capture_output=True, text=True).stdout
        ad = {l.split()[-1]: int(l.split()[0], 16) for l in sym.splitlines() if ".text" in l and len(l.split()) >= 5}
        OPT["reach"] = ad["K_END"] - ad["K_CPFREF"]
    p = build()
    ok = selfcheck(p)
    open(sys.argv[1], "w").write(p.text())
    import subprocess
    r = subprocess.run(["clang", "-x", "assembler", "-target", "amdgcn-amd-amdhsa", "-mcpu=gfx950", "-c", sys.argv[1], "-o", "chk.o"], capture_output=True, text=True)
    print("written", sys.argv[1], "OK" if ok else "PROBLEMS", "ASM-OK" if r.returncode == 0 else "ASM-FAIL\n" + r.stderr[:2000])
```
